```python
import torch

def _softmax(x, axis=-1):
    return torch.softmax(x, dim=axis)
def _gelu(x):
    return torch.nn.functional.gelu(x, approximate="tanh")
def _silu(x):
    return torch.nn.functional.silu(x)
def _sigmoid(x):
    return torch.sigmoid(x)
def _layernorm(x, axis=-1, eps=1e-5):
    m = x.mean(dim=axis, keepdim=True)
    v = x.var(dim=axis, keepdim=True, unbiased=False)
    return (x - m) / torch.sqrt(v + eps)
def _scatter_add(tgt, idx, src, axis=0):
    return tgt.clone().index_add_(axis, idx, src)
def _segment_sum(src, seg, n):
    out = torch.zeros((n,) + src.shape[1:], dtype=src.dtype)
    return out.index_add_(0, seg, src)
def _pad(x, pw):
    flat = tuple(v for pair in reversed(pw) for v in pair)
    return torch.nn.functional.pad(x, flat)

kernel_name = 'concat_heads__mha_block_cached__gqa_block_cached__near_ridge'

def setup_inputs():

    _w = (lambda a: (lambda t: t.to(torch.bfloat16) if t.is_floating_point() else t)(torch.as_tensor(a)))
    def _A_setup():
        B, Sq, D = 32, 32, 640
        H, Sk, Dh = 32, 32, 128
        return {
            "x": _w((lambda *s: torch.randn(*s, dtype=torch.bfloat16) * 0.8)(B, Sq, D)),
            "k_cache": _w((lambda *s: torch.randn(*s, dtype=torch.bfloat16) * 0.8)(B, H, Sk, Dh)),
            "v_cache": _w((lambda *s: torch.randn(*s, dtype=torch.bfloat16) * 0.05)(B, H, Sk, Dh)),
            "wq": _w((lambda *s: torch.randn(*s, dtype=torch.bfloat16) * 0.8)(D, H * Dh) * (D ** -0.5)),
            "wo": _w((lambda *s: torch.randn(*s, dtype=torch.bfloat16) * 0.05)(H * Dh, D) * ((H * Dh) ** -0.5)),
        }
    _A_in = _A_setup()

    def _B_setup():
        B, Sq, D = 32, 32, 640
        Hq, Hkv, Sk, Dh = 32, 32, 32, 128
        assert Hq % Hkv == 0, (Hq, Hkv)
        return {
            "x": _w((lambda *s: torch.randn(*s, dtype=torch.bfloat16) * 0.8)(B, Sq, D)),
            "k_cache": _w((lambda *s: torch.randn(*s, dtype=torch.bfloat16) * 0.8)(B, Hkv, Sk, Dh)),
            "v_cache": _w((lambda *s: torch.randn(*s, dtype=torch.bfloat16) * 0.05)(B, Hkv, Sk, Dh)),
            "wq": _w((lambda *s: torch.randn(*s, dtype=torch.bfloat16) * 0.8)(D, Hq * Dh) * (D ** -0.5)),
            "wo": _w((lambda *s: torch.randn(*s, dtype=torch.bfloat16) * 0.05)(Hq * Dh, D) * ((Hq * Dh) ** -0.5)),
        }
    _B_in = _B_setup()

    return {
        "A_x": _A_in["x"],
        "A_k_cache": _A_in["k_cache"],
        "A_v_cache": _A_in["v_cache"],
        "A_wq": _A_in["wq"],
        "A_wo": _A_in["wo"],
        "B_x": _B_in["x"],
        "B_k_cache": _B_in["k_cache"],
        "B_v_cache": _B_in["v_cache"],
        "B_wq": _B_in["wq"],
        "B_wo": _B_in["wo"],
    }

def reference(A_x, A_k_cache, A_v_cache, A_wq, A_wo, B_x, B_k_cache, B_v_cache, B_wq, B_wo):
    def _A_ref(x, k_cache, v_cache, wq, wo):
        B, Sq, D = x.shape
        H, Dh = 32, 128
        q = (lambda x, *d: x.permute(*d))((x @ wq).reshape(B, Sq, H, Dh), 0, 2, 1, 3)
        scores = torch.einsum("bhqd,bhkd->bhqk", q, k_cache) * (Dh ** -0.5)
        p = _softmax(scores, axis=-1)
        o = torch.einsum("bhqk,bhkd->bhqd", p, v_cache)
        return (lambda x, *d: x.permute(*d))(o, 0, 2, 1, 3).reshape(B, Sq, H * Dh) @ wo

    def _B_ref(x, k_cache, v_cache, wq, wo):
        B, Sq, D = x.shape
        Hq, Dh = 32, 128
        Hkv = k_cache.shape[1]
        rep = Hq // Hkv
        q = (lambda x, *d: x.permute(*d))((x @ wq).reshape(B, Sq, Hq, Dh), 0, 2, 1, 3)
        k = (lambda x, n, axis: torch.repeat_interleave(x, n, dim=axis))(k_cache, rep, axis=1)
        v = (lambda x, n, axis: torch.repeat_interleave(x, n, dim=axis))(v_cache, rep, axis=1)
        scores = torch.einsum("bhqd,bhkd->bhqk", q, k) * (Dh ** -0.5)
        p = _softmax(scores, axis=-1)
        o = torch.einsum("bhqk,bhkd->bhqd", p, v)
        return (lambda x, *d: x.permute(*d))(o, 0, 2, 1, 3).reshape(B, Sq, Hq * Dh) @ wo

    a = _A_ref(A_x, A_k_cache, A_v_cache, A_wq, A_wo)
    b = _B_ref(B_x, B_k_cache, B_v_cache, B_wq, B_wo)
    return torch.concatenate([a, b], axis=-1)
```

```python
NAME = "concat_heads__mha_block_cached__gqa_block_cached__near_ridge"
KARG = dict(x=(0, 40), k=(8, 48), v=(16, 56), wq=(24, 64), wo=(32, 72))
KARG_OUT, KARG_DBG, KARG_WS = 80, 88, 96
SZ = dict(x=32*32*640*2, k=32*32*32*128*2, v=32*32*32*128*2, wq=640*4096*2, wo=4096*640*2, out=32*32*1280*2)
HEADER = open("cdna_kernels/%s.s.ref" % NAME).read().split("; Override launch")[0]

class Asm:
    def __init__(self): self.L = []
    def __call__(self, s):
        for x in s.split("\n"):
            x = x.strip()
            if x: self.L.append(x if x.endswith(":") or x.startswith(".") else "    " + x)
    def text(self): return "\n".join(self.L) + "\n"

def vr(b, n=1): return f"v{b}" if n == 1 else f"v[{b}:{b+n-1}]"
def ar(b, n=1): return f"a{b}" if n == 1 else f"a[{b}:{b+n-1}]"
def sr(b, n=1): return f"s{b}" if n == 1 else f"s[{b}:{b+n-1}]"

def kernel_begin(a, name):
    a(f".globl {name}\n.p2align 8\n.type {name},@function\n{name}:")

def descriptor(name, nvgpr, accum, nsgpr=102):
    return f""".amdhsa_kernel {name}
  .amdhsa_next_free_vgpr {nvgpr}
  .amdhsa_next_free_sgpr {nsgpr}
  .amdhsa_accum_offset {accum}
  .amdhsa_group_segment_fixed_size 0
  .amdhsa_kernarg_size 104
  .amdhsa_user_sgpr_count 2
  .amdhsa_user_sgpr_kernarg_segment_ptr 1
  .amdhsa_system_sgpr_workgroup_id_x 1
.end_amdhsa_kernel
"""

def write_file(path, launches, body, descs):
    s = HEADER
    for l in launches: s += l + "\n"
    s += '.amdgcn_target "amdgcn-amd-amdhsa--gfx950"\n.text\n' + body
    s += '.section .rodata,"a"\n'
    for d in descs: s += ".p2align 6\n" + d
    open(path, "w").write(s)

def srd(a, dst, ptr, nbytes):
    a(f"s_mov_b32 s{dst}, s{ptr}\ns_mov_b32 s{dst+1}, s{ptr+1}\ns_mov_b32 s{dst+2}, {nbytes}\ns_mov_b32 s{dst+3}, 0x00020000")
```

```python
import sys
from common import *
SCALE_LOG2E = 128 ** -0.5 * 1.4426950408889634
import struct
def f2u(f): return struct.unpack("<I", struct.pack("<f", f))[0]

def load_branch_ptrs(a, names, sbr, dst):
    a(f"s_mul_i32 s{sbr+1}, s{sbr}, 40\ns_add_u32 s4, s0, s{sbr+1}\ns_addc_u32 s5, s1, 0")
    for i, n in enumerate(names): a(f"s_load_dwordx2 s[{dst+2*i}:{dst+2*i+1}], s[4:5], {KARG[n][0]}")

def softmax_cols(a, S, ncol, T, sC):
    for c in range(ncol):
        s = S + 8 * c; m = T + 4 * c
        a(f"v_max3_f32 v{m}, v{s}, v{s+1}, v{s+2}\nv_max3_f32 v{m+1}, v{s+3}, v{s+4}, v{s+5}")
        a(f"v_max3_f32 v{m}, v{m}, v{s+6}, v{s+7}\nv_max_f32 v{m}, v{m}, v{m+1}\nv_mov_b32 v{m+1}, v{m}")
    a("s_nop 1")
    for c in range(ncol): m = T + 4 * c; a(f"v_permlane16_swap_b32 v{m}, v{m+1}")
    a("s_nop 1")
    for c in range(ncol): m = T + 4 * c; a(f"v_max_f32 v{m}, v{m}, v{m+1}\nv_mov_b32 v{m+1}, v{m}")
    a("s_nop 1")
    for c in range(ncol): m = T + 4 * c; a(f"v_permlane32_swap_b32 v{m}, v{m+1}")
    a("s_nop 1")
    for c in range(ncol): m = T + 4 * c; a(f"v_max_f32 v{m}, v{m}, v{m+1}\nv_mul_f32 v{m}, s{sC}, v{m}")
    for c in range(ncol):
        s = S + 8 * c; m = T + 4 * c
        for r in range(8): a(f"v_fma_f32 v{s+r}, v{s+r}, s{sC}, -v{m}")
        for r in range(8): a(f"v_exp_f32 v{s+r}, v{s+r}")
    a("s_nop 0")
    for c in range(ncol):
        s = S + 8 * c; m = T + 4 * c
        a(f"v_add_f32 v{m}, v{s}, v{s+1}\nv_add_f32 v{m+1}, v{s+2}, v{s+3}\nv_add_f32 v{m+2}, v{s+4}, v{s+5}\nv_add_f32 v{m+3}, v{s+6}, v{s+7}")
        a(f"v_add_f32 v{m}, v{m}, v{m+1}\nv_add_f32 v{m+2}, v{m+2}, v{m+3}\nv_add_f32 v{m}, v{m}, v{m+2}\nv_mov_b32 v{m+1}, v{m}")
    a("s_nop 1")
    for c in range(ncol): m = T + 4 * c; a(f"v_permlane16_swap_b32 v{m}, v{m+1}")
    a("s_nop 1")
    for c in range(ncol): m = T + 4 * c; a(f"v_add_f32 v{m}, v{m}, v{m+1}\nv_mov_b32 v{m+1}, v{m}")
    a("s_nop 1")
    for c in range(ncol): m = T + 4 * c; a(f"v_permlane32_swap_b32 v{m}, v{m+1}")
    a("s_nop 1")
    for c in range(ncol): m = T + 4 * c; a(f"v_add_f32 v{m}, v{m}, v{m+1}")
    for c in range(ncol): m = T + 4 * c; a(f"v_rcp_f32 v{m}, v{m}")
    a("s_nop 0")
    for c in range(ncol):
        s = S + 8 * c; m = T + 4 * c
        for r in range(8): a(f"v_mul_f32 v{s+r}, v{s+r}, v{m}")

def ka(a):
    kernel_begin(a, "attn_kernel")
    a("s_cmp_ge_u32 s2, 512\ns_cbranch_scc1 La_end")
    a("v_lshrrev_b32 v1, 6, v0\ns_nop 1\nv_readfirstlane_b32 s6, v1\ns_nop 3")
    a("s_lshl_b32 s7, s2, 2\ns_add_u32 s7, s7, s6")
    a("s_lshr_b32 s10, s7, 10")
    load_branch_ptrs(a, ["x", "k", "v", "wq"], 10, 12)
    a(f"s_load_dwordx2 s[20:21], s[0:1], {KARG_WS}")
    a("s_bfe_u32 s8, s7, 0x50005\ns_and_b32 s9, s7, 31")
    a("s_waitcnt lgkmcnt(0)")
    srd(a, 24, 12, SZ["x"]); srd(a, 28, 14, SZ["k"]); srd(a, 32, 16, SZ["v"]); srd(a, 36, 18, SZ["wq"]); srd(a, 40, 20, 2 * 1024 * 4096 * 2)
    a("v_and_b32 v1, 15, v0\nv_bfe_u32 v2, v0, 4, 2")
    a("s_lshl_b32 s44, s8, 5\nv_add_u32 v3, s44, v1\nv_mul_u32_u24 v3, 1280, v3\nv_lshl_add_u32 v3, v2, 4, v3")
    a("v_add_u32 v4, 20480, v3")
    a("s_lshl_b32 s45, s9, 7\nv_add_u32 v5, s45, v1\nv_lshlrev_b32 v5, 1, v5\nv_lshl_add_u32 v8, v2, 16, v5")
    for e in range(1, 8): a(f"v_add_u32 v{8+e}, {8192*e}, v8")
    ACC = 64
    for r in range(64): a(f"v_mov_b32 v{ACC+r}, 0")
    a("s_mov_b32 s46, 0\ns_mov_b32 s47, 0")
    a("La_loop:")
    a("buffer_load_dwordx4 v[16:19], v3, s[24:27], s46 offen\nbuffer_load_dwordx4 v[20:23], v4, s[24:27], s46 offen")
    for i in range(8):
        for e in range(8):
            a(f"buffer_load_ushort v{128+8*(i%4)+e}, v{8+e}, s[36:39], s47 offen offset:{32*i}")
        if i % 4 == 3:
            a("s_waitcnt vmcnt(0)")
            for ii in range(i-3, i+1):
                for q in range(4): a(f"v_lshl_or_b32 v{24+4*ii+q}, v{128+8*(ii%4)+2*q+1}, 16, v{128+8*(ii%4)+2*q}")
    a("s_nop 1")
    for i in range(8):
        for j in range(2):
            t = ACC + 8 * i + 4 * j
            a(f"v_mfma_f32_16x16x32_bf16 v[{t}:{t+3}], v[{24+4*i}:{27+4*i}], v[{16+4*j}:{19+4*j}], v[{t}:{t+3}]")
    a("s_add_u32 s46, s46, 64\ns_add_u32 s47, s47, 262144\ns_cmp_lt_u32 s46, 1280\ns_cbranch_scc1 La_loop")
    a("s_nop 7\ns_nop 7")
    QF = 128
    for sd in range(4):
        for j in range(2):
            d = QF + 8 * sd + 4 * j; t0 = ACC + 8 * (2 * sd) + 4 * j; t1 = t0 + 8
            a(f"v_cvt_pk_bf16_f32 v{d}, v{t0}, v{t0+1}\nv_cvt_pk_bf16_f32 v{d+1}, v{t0+2}, v{t0+3}")
            a(f"v_cvt_pk_bf16_f32 v{d+2}, v{t1}, v{t1+1}\nv_cvt_pk_bf16_f32 v{d+3}, v{t1+2}, v{t1+3}")
    a("s_and_b32 s48, s7, 1023\ns_lshl_b32 s48, s48, 13")
    a("v_lshlrev_b32 v5, 8, v1\nv_lshl_add_u32 v5, v2, 3, v5\nv_add_u32 v6, 4096, v5")
    KF = 160
    for kt in range(2):
        for sd in range(4):
            d = KF + 16 * kt + 4 * sd
            a(f"buffer_load_dwordx2 v[{d}:{d+1}], v{5+kt}, s[28:31], s48 offen offset:{64*sd}")
            a(f"buffer_load_dwordx2 v[{d+2}:{d+3}], v{5+kt}, s[28:31], s48 offen offset:{64*sd+32}")
    S = 16
    for r in range(16): a(f"v_mov_b32 v{S+r}, 0")
    a("s_waitcnt vmcnt(0)")
    for sd in range(4):
        for kt in range(2):
            for j in range(2):
                t = S + 8 * j + 4 * kt
                a(f"v_mfma_f32_16x16x32_bf16 v[{t}:{t+3}], v[{KF+16*kt+4*sd}:{KF+16*kt+4*sd+3}], v[{QF+8*sd+4*j}:{QF+8*sd+4*j+3}], v[{t}:{t+3}]")
    a("s_nop 7\ns_nop 7")
    a(f"s_mov_b32 s49, {f2u(SCALE_LOG2E)}")
    softmax_cols(a, S, 2, 40, 49)
    PF = 48
    for j in range(2):
        for q in range(4): a(f"v_cvt_pk_bf16_f32 v{PF+4*j+q}, v{S+8*j+2*q}, v{S+8*j+2*q+1}")
    a("v_lshlrev_b32 v5, 1, v1\nv_lshl_add_u32 v5, v2, 10, v5\nv_add_u32 v6, 4096, v5")
    VF = 128
    for i in range(8):
        for e in range(8):
            a(f"buffer_load_ushort v{160+8*(i%4)+e}, v{5+e//4}, s[32:35], s48 offen offset:{256*(e%4)+32*i}")
        if i % 4 == 3:
            a("s_waitcnt vmcnt(0)")
            for ii in range(i-3, i+1):
                for q in range(4): a(f"v_lshl_or_b32 v{VF+4*ii+q}, v{160+8*(ii%4)+2*q+1}, 16, v{160+8*(ii%4)+2*q}")
    for r in range(64): a(f"v_mov_b32 v{ACC+r}, 0")
    a("s_nop 1")
    for i in range(8):
        for j in range(2):
            t = ACC + 8 * i + 4 * j
            a(f"v_mfma_f32_16x16x32_bf16 v[{t}:{t+3}], v[{VF+4*i}:{VF+4*i+3}], v[{PF+4*j}:{PF+4*j+3}], v[{t}:{t+3}]")
    a("s_nop 7\ns_nop 7")
    a("s_lshr_b32 s50, s7, 5\ns_lshl_b32 s50, s50, 18\ns_lshl_b32 s51, s9, 12\ns_add_u32 s50, s50, s51")
    a("v_and_b32 v5, 63, v0\nv_lshlrev_b32 v5, 4, v5\nv_add_u32 v6, 0x20000, v5")
    for j in range(2):
        for sd in range(4):
            d = 160 + 16 * j + 4 * sd; t0 = ACC + 8 * (2 * sd) + 4 * j; t1 = t0 + 8
            a(f"v_cvt_pk_bf16_f32 v{d}, v{t0}, v{t0+1}\nv_cvt_pk_bf16_f32 v{d+1}, v{t0+2}, v{t0+3}")
            a(f"v_cvt_pk_bf16_f32 v{d+2}, v{t1}, v{t1+1}\nv_cvt_pk_bf16_f32 v{d+3}, v{t1+2}, v{t1+3}")
            a(f"buffer_store_dwordx4 v[{d}:{d+3}], v{5+j}, s[40:43], s50 offen offset:{1024*sd}")
    a("La_end:\ns_endpgm")

def kb(a):
    kernel_begin(a, "proj_kernel")
    a("s_cmp_ge_u32 s2, 320\ns_cbranch_scc1 Lb_end")
    a("v_lshrrev_b32 v1, 6, v0\ns_nop 1\nv_readfirstlane_b32 s6, v1\ns_nop 3")
    a("s_lshl_b32 s7, s2, 2\ns_add_u32 s7, s7, s6")
    a(f"s_mov_b32 s8, {(2**32 + 19)//20}\ns_mul_hi_u32 s8, s7, s8\ns_mul_i32 s9, s8, 20\ns_sub_u32 s9, s7, s9")
    a("s_lshr_b32 s10, s8, 5")
    load_branch_ptrs(a, ["wo"], 10, 12)
    a(f"s_load_dwordx2 s[20:21], s[0:1], {KARG_WS}\ns_load_dwordx2 s[22:23], s[0:1], {KARG_OUT}")
    a("s_waitcnt lgkmcnt(0)")
    srd(a, 24, 12, SZ["wo"]); srd(a, 28, 20, 2 * 1024 * 4096 * 2); srd(a, 32, 22, SZ["out"])
    a("v_and_b32 v1, 15, v0\nv_bfe_u32 v2, v0, 4, 2")
    a("v_and_b32 v3, 63, v0\nv_lshlrev_b32 v3, 4, v3\nv_add_u32 v4, 0x20000, v3")
    a("s_lshl_b32 s36, s9, 5\nv_add_u32 v5, s36, v1\nv_lshlrev_b32 v5, 1, v5\nv_mul_u32_u24 v6, 5120, v2\nv_add_u32 v5, v5, v6\nv_add_u32 v6, 20480, v5")
    ACC = 48
    for r in range(16): a(f"v_mov_b32 v{ACC+r}, 0")
    a("s_lshl_b32 s37, s8, 18\ns_mov_b32 s38, 0")
    a("Lb_loop:")
    a("buffer_load_dwordx4 v[16:19], v3, s[28:31], s37 offen\nbuffer_load_dwordx4 v[20:23], v4, s[28:31], s37 offen")
    for t in range(2):
        for e in range(8):
            a(f"buffer_load_ushort v{32+8*t+e}, v{5+e//4}, s[24:27], s38 offen offset:{1280*(e%4)+32*t}")
    a("s_waitcnt vmcnt(0)")
    for t in range(2):
        for q in range(4): a(f"v_lshl_or_b32 v{24+4*t+q}, v{32+8*t+2*q+1}, 16, v{32+8*t+2*q}")
    a("s_nop 1")
    for t in range(2):
        for j in range(2):
            d = ACC + 8 * t + 4 * j
            a(f"v_mfma_f32_16x16x32_bf16 v[{d}:{d+3}], v[{24+4*t}:{27+4*t}], v[{16+4*j}:{19+4*j}], v[{d}:{d+3}]")
    a(f"s_add_u32 s37, s37, 1024\ns_add_u32 s38, s38, 40960\ns_cmp_lt_u32 s38, {SZ['wo']}\ns_cbranch_scc1 Lb_loop")
    a("s_nop 7\ns_nop 7")
    a("s_and_b32 s39, s8, 31\ns_mul_i32 s39, s39, 81920\ns_mul_i32 s40, s10, 1280\ns_add_u32 s39, s39, s40\ns_lshl_b32 s40, s9, 6\ns_add_u32 s39, s39, s40")
    a("v_mul_u32_u24 v5, 2560, v1\nv_lshl_add_u32 v5, v2, 3, v5\nv_add_u32 v6, 40960, v5")
    for t in range(2):
        for j in range(2):
            d = ACC + 8 * t + 4 * j; o = 16 + 4 * t + 2 * j
            a(f"v_cvt_pk_bf16_f32 v{o}, v{d}, v{d+1}\nv_cvt_pk_bf16_f32 v{o+1}, v{d+2}, v{d+3}")
            a(f"buffer_store_dwordx2 v[{o}:{o+1}], v{5+j}, s[32:35], s39 offen offset:{32*t}")
    a("Lb_end:\ns_endpgm")

def build(path, probe=None):
    a = Asm(); launches = []; descs = []
    if probe:
        launches.append(probe(a, descs))
    ka(a); kb(a)
    launches += ["; @launch kernel=attn_kernel grid=(512,1,1) block=(256,1,1) lds=0", "; @launch kernel=proj_kernel grid=(320,1,1) block=(256,1,1) lds=0"]
    descs += [descriptor("attn_kernel", 192, 192), descriptor("proj_kernel", 64, 64)]
    write_file(path, launches, a.text(), descs)

if __name__ == "__main__":
    build(sys.argv[1] if len(sys.argv) > 1 else f"cdna_kernels/{NAME}.s")
```

```python
import sys
from common import *
import naive
AMP = 20
def mk(kind, flags="", wsoff=0, nbytes=131072):
    def probe(a, descs):
        kernel_begin(a, "probe_kernel")
        a("s_cmp_ge_u32 s2, 256\ns_cbranch_scc1 Lp_end")
        if kind != "empty":
            a("s_load_dwordx2 s[4:5], s[0:1], 8\ns_load_dwordx2 s[6:7], s[0:1], 16\ns_load_dwordx2 s[8:9], s[0:1], 48\ns_load_dwordx2 s[10:11], s[0:1], 56\ns_load_dwordx2 s[12:13], s[0:1], 96")
            a("s_waitcnt lgkmcnt(0)")
            for i in range(4): srd(a, 16 + 4 * i, 4 + 2 * i, SZ["k"])
            srd(a, 32, 12, 268435456)
            a("v_lshlrev_b32 v1, 4, v0")
            a("s_memrealtime s[40:41]\ns_waitcnt lgkmcnt(0)")
            if kind == "readin":
                a("s_lshl_b32 s36, s2, 15")
                for q in range(8):
                    for i in range(4):
                        r = 4 + 4 * ((q * 4 + i) % 32)
                        a(f"buffer_load_dwordx4 v[{r}:{r+3}], v1, s[{16+4*i}:{19+4*i}], s36 offen {flags}")
                    a("s_add_u32 s36, s36, 4096")
            else:
                a(f"s_mul_i32 s36, s2, {nbytes}\ns_add_u32 s36, s36, {wsoff}")
                for q in range(nbytes // 4096):
                    r = 4 + 4 * (q % 32)
                    if kind == "readws": a(f"buffer_load_dwordx4 v[{r}:{r+3}], v1, s[32:35], s36 offen {flags}")
                    else: a(f"buffer_store_dwordx4 v[4:7], v1, s[32:35], s36 offen {flags}")
                    a("s_add_u32 s36, s36, 4096")
            a("s_waitcnt vmcnt(0)\ns_barrier")
            a("s_memrealtime s[42:43]\ns_waitcnt lgkmcnt(0)")
            a(f"s_sub_u32 s44, s42, s40\ns_mul_i32 s44, s44, {AMP}")
            a("Lp_spin:\ns_sleep 4\ns_memrealtime s[42:43]\ns_waitcnt lgkmcnt(0)\ns_sub_u32 s45, s42, s40\ns_cmp_lt_u32 s45, s44\ns_cbranch_scc1 Lp_spin")
        a("Lp_end:\ns_endpgm")
        descs.append(descriptor("probe_kernel", 136, 136))
        return "; @launch kernel=probe_kernel grid=(256,1,1) block=(256,1,1) lds=0"
    return probe
V = {
 "empty": mk("empty"),
 "rd_def": mk("readin", ""),
 "rd_nt": mk("readin", "nt"),
 "wr_sc1_64M": mk("write", "sc1", 64 << 20, 65536),
 "wr_sc1_200M": mk("write", "sc1", 200 << 20, 65536),
 "wr_sc1_239M": mk("write", "sc1", 239 << 20, 65536),
 "wr_sc1_20M": mk("write", "sc1", 20 << 20, 65536),
 "wr_plain_64M": mk("write", "", 64 << 20, 65536),
 "wr_nt_64M": mk("write", "sc1 nt", 64 << 20, 65536),
 "rdws_def_64M": mk("readws", "", 64 << 20, 131072),
 "rdws_nt_64M": mk("readws", "nt", 64 << 20, 131072),
 "rdws_nt_220M": mk("readws", "nt", 220 << 20, 131072),
}
import os
os.makedirs("probes", exist_ok=True)
for k, p in V.items(): naive.build(f"probes/{k}.s", p)
naive.build("base.s")
```

```python
import re

A0 = 256
S0 = 1000
M0 = 2000
VCC = 2001

_reg = re.compile(r"^(-)?(?:abs\()?([vas])(?:(\d+)|\[(\d+):(\d+)\])\)?$")


def regs(tok):
    tok = tok.strip()
    if tok == "m0":
        return [M0]
    if tok in ("vcc", "vcc_lo", "vcc_hi"):
        return [VCC]
    m = _reg.match(tok)
    if not m:
        return []
    base = {"v": 0, "a": A0, "s": S0}[m.group(2)]
    if m.group(3) is not None:
        return [base + int(m.group(3))]
    return list(range(base + int(m.group(4)), base + int(m.group(5)) + 1))


TRANS = ("v_exp_f32", "v_rcp_f32", "v_log_f32", "v_rsq_f32", "v_sqrt_f32")


class Op:
    def __init__(self, text, **meta):
        self.text = text.strip()
        self.meta = meta
        mn, _, rest = self.text.partition(" ")
        self.mn = mn
        toks = [t.strip() for t in re.split(r",(?![^\[]*\])", rest)] if rest else []
        if toks:
            last = toks[-1].split()
            toks[-1] = last[0] if last else ""
            mods = last[1:]
        else:
            mods = []
        self.mods = mods
        rd, wr = [], []
        k = None
        if mn.startswith("v_mfma"):
            k = "mfma"
            wr = regs(toks[0]); self.srca = regs(toks[1]); self.srcb = regs(toks[2]); self.srcc = regs(toks[3])
            rd = self.srca + self.srcb + self.srcc
        elif mn.startswith("ds_read"):
            k = "dsr"; wr = regs(toks[0]); rd = regs(toks[1])
        elif mn.startswith("ds_write"):
            k = "dsw"
            for t in toks: rd += regs(t)
        elif mn.startswith("buffer_load") or mn.startswith("global_load"):
            if "lds" in mods:
                k = "dma"
                for t in toks: rd += regs(t)
                rd.append(M0)
            else:
                k = "vld"; wr = regs(toks[0])
                for t in toks[1:]: rd += regs(t)
        elif mn.startswith("buffer_store") or mn.startswith("buffer_atomic"):
            k = "vst"; self.data = regs(toks[0])
            for t in toks: rd += regs(t)
        elif mn.startswith("v_permlane"):
            k = "perm"; wr = regs(toks[0]) + regs(toks[1]); rd = list(wr)
        elif mn.startswith("v_readfirstlane") or mn.startswith("v_readlane"):
            k = "rfl"; wr = regs(toks[0]); rd = regs(toks[1])
        elif mn.startswith("v_"):
            k = "trans" if mn in TRANS else "valu"
            wr = regs(toks[0])
            for t in toks[1:]: rd += regs(t)
            if mn.startswith("v_fmac"): rd += wr
        elif mn == "s_barrier":
            k = "bar"
        elif mn == "s_waitcnt":
            k = "wait"
        elif mn == "s_nop":
            k = "nop"
        elif mn == "WAITG":
            k = "waitg"
        elif mn == "WAITL":
            k = "waitl"
        elif mn.startswith("s_load"):
            k = "smem"; wr = regs(toks[0]); rd = regs(toks[1])
        elif mn.startswith("s_cbranch") or mn == "s_branch" or mn.endswith(":") or mn in ("s_endpgm", "s_setprio", "s_sleep") or mn.startswith("."):
            k = "ctl"
        elif mn.startswith("s_cmp"):
            k = "salu"
            for t in toks: rd += regs(t)
        elif mn.startswith("s_"):
            k = "salu"; wr = regs(toks[0])
            for t in toks[1:]: rd += regs(t)
        else:
            raise ValueError("unknown instruction: " + text)
        self.kind, self.rd, self.wr = k, set(rd), set(wr)

    def __repr__(self):
        return self.text


VALU_KINDS = ("valu", "trans", "perm", "rfl")


class Stream:
    def __init__(self):
        self.ops = []

    def add(self, x, **meta):
        if isinstance(x, Op):
            self.ops.append(x)
        elif isinstance(x, (list, tuple)):
            for y in x: self.add(y, **meta)
        else:
            for line in x.split("\n"):
                if line.strip(): self.ops.append(Op(line, **meta))

    def finalize(self, stats=None):
        out = []
        slot = 0
        lds_q = []
        vm_q = []
        smem_pending = set()
        w_valu = {}; w_trans = {}; w_mfma = {}; r_mfmac = {}; w_vsgpr = {}; w_m0 = -99; st_data = {}
        mfma_dst = {}
        events = []
        nwait = nnop = 0

        def emit(text, n=1):
            nonlocal slot
            out.append(text); slot += n

        def wait(vm=None, lg=None):
            nonlocal nwait
            parts = []
            if vm is not None:
                assert vm <= 63, vm
                parts.append(f"vmcnt({vm})")
                done = vm_q[:len(vm_q) - vm] if vm < len(vm_q) else []
                for o in done: events.append((len(out), "vmdone", o))
                del vm_q[:len(done)]
            if lg is not None:
                lg = min(lg, 15)
                parts.append(f"lgkmcnt({lg})")
                done = lds_q[:len(lds_q) - lg] if lg < len(lds_q) else []
                for o in done: events.append((len(out), "ldsdone", o))
                del lds_q[:len(done)]
                if lg == 0: smem_pending.clear()
            emit("s_waitcnt " + " ".join(parts)); nwait += 1

        for op in self.ops:
            k = op.kind
            if k == "waitg":
                g = op.meta["group"]
                idx = max((i for i, o in enumerate(vm_q) if o.meta.get("group") == g), default=None)
                vm = None if idx is None else len(vm_q) - 1 - idx
                lg = 0 if (op.meta.get("lds") and lds_q) else None
                if vm is not None or lg is not None: wait(vm, lg)
                continue
            if k == "waitl":
                if lds_q: wait(None, 0)
                continue
            if k == "wait":
                m = re.search(r"vmcnt\((\d+)\)", op.text); vm = int(m.group(1)) if m else None
                m = re.search(r"lgkmcnt\((\d+)\)", op.text); lg = int(m.group(1)) if m else None
                wait(vm, lg); continue
            if k == "nop":
                emit(op.text, 0 if op.meta.get("cond") else int(op.text.split()[1]) + 1); continue
            touched = op.rd | op.wr
            lg = vm = None
            for i, o in enumerate(lds_q):
                if o.wr & touched: lg = len(lds_q) - 1 - i
            for i, o in enumerate(vm_q):
                if o.wr & touched: vm = len(vm_q) - 1 - i
            if smem_pending & touched: lg = 0
            if lg is not None or vm is not None: wait(vm, lg)
            need = 0
            def req(t, n):
                nonlocal need
                need = max(need, t + n + 1 - slot)
            if k == "mfma":
                for r in op.rd:
                    if r in w_valu: req(w_valu[r], 2)
                for r in op.srca + op.srcb:
                    if r in w_mfma: req(w_mfma[r], 8)
                for r in op.srcc:
                    if r in w_mfma and mfma_dst[r] != tuple(op.srcc): req(w_mfma[r], 6)
                for r in op.wr:
                    if r in w_mfma and mfma_dst[r] != tuple(sorted(op.wr)): req(w_mfma[r], 6)
            elif k in VALU_KINDS:
                for r in touched:
                    if r in w_mfma: req(w_mfma[r], 8)
                for r in op.wr:
                    if r in r_mfmac: req(r_mfmac[r], 3)
                    if r in st_data: req(st_data[r], 2)
                for r in op.rd:
                    if r in w_trans and k != "trans": req(w_trans[r], 1)
                    if r in w_vsgpr: req(w_vsgpr[r], 2)
                    if k == "perm" and r in w_valu: req(w_valu[r], 2)
                    if k == "rfl" and r in w_valu: req(w_valu[r], 1)
            elif k in ("dsr", "dsw", "vld", "vst", "dma"):
                for r in touched:
                    if r in w_mfma: req(w_mfma[r], 8)
                    if r in w_vsgpr and k in ("vld", "vst", "dma"): req(w_vsgpr[r], 5)
                for r in op.wr:
                    if r in st_data: req(st_data[r], 1)
                    if r in r_mfmac: req(r_mfmac[r], 3)
                if k == "dma": req(w_m0, 1)
            elif k == "salu":
                for r in op.rd:
                    if r in w_vsgpr: req(w_vsgpr[r], 1)
            if need > 0 and not op.meta.get("nohaz"):
                nnop += 1
                while need > 0:
                    n = min(need, 16); emit(f"s_nop {n-1}", n); need -= n
            here = slot
            events.append((len(out), "issue", op))
            skipped = op.meta.get("cond") or op.meta.get("uncounted")
            emit(op.text, 0 if (skipped or (k == "ctl" and (op.mn.endswith(":") or op.mn.startswith(".")))) else 1)
            for r in op.wr:
                for d in (w_valu, w_trans, w_mfma, w_vsgpr): d.pop(r, None)
            if k == "mfma":
                for r in op.wr: w_mfma[r] = here; mfma_dst[r] = tuple(sorted(op.wr))
                for r in op.srcc: r_mfmac[r] = here
            elif k in VALU_KINDS:
                for r in op.wr:
                    if r >= S0: w_vsgpr[r] = here
                    else: w_valu[r] = here
                    if k == "trans": w_trans[r] = here
            elif k == "salu" and M0 in op.wr:
                w_m0 = here
            elif k == "smem":
                smem_pending |= op.wr
            uncounted = op.meta.get("uncounted")
            if k in ("dsr", "dsw"): lds_q.append(op)
            if k in ("vld", "vst", "dma") and not uncounted:
                vm_q.append(op); assert len(vm_q) <= 63, "too many vector memory ops in flight"
            if k == "vst" and len(op.data) >= 3:
                for r in op.data: st_data[r] = here
        check_handoffs(events)
        if stats is not None:
            stats.update(waits=nwait, nops=nnop, lines=len(out))
        return out


def check_handoffs(events):
    bars = [p for p, w, o in events if w == "issue" and o.kind == "bar"]
    done = {}; issue = {}
    for p, w, o in events:
        if w == "issue": issue[id(o)] = p
        else: done[id(o)] = p
    fills = {}; uses = {}
    for p, w, o in events:
        if w != "issue": continue
        for key in o.meta.get("fill", ()): fills.setdefault(key, []).append(o)
        for key in o.meta.get("use", ()): uses.setdefault(key, []).append(o)
    def barrier_between(a, b): return any(a <= x < b for x in bars)
    for key, us in uses.items():
        assert key in fills, f"read of {key} that nothing fills"
        for f in fills[key]:
            for u in us:
                if f.meta.get("private") and u.meta.get("private"):
                    if f.kind == "dsw": assert issue[id(f)] < issue[id(u)], (key, f, u)
                    else: assert id(f) in done and done[id(f)] <= issue[id(u)], (key, f, u)
                    continue
                assert id(f) in done, f"fill never waited for: {key} {f}"
                assert barrier_between(done[id(f)], issue[id(u)]), f"no barrier between fill and use of {key}: {f} -> {u}"
    for (reg, gen), fs in fills.items():
        for (r2, g2), us in uses.items():
            if r2 != reg or g2 >= gen: continue
            for f in fs:
                for u in us:
                    if (f.meta.get("private") or f.meta.get("wpriv")) and u.meta.get("private") and f.kind == "dsw":
                        assert issue[id(u)] < issue[id(f)], (reg, gen, f, u); continue
                    assert id(u) in done, f"use never waited for: {u}"
                    assert barrier_between(done[id(u)], issue[id(f)]), f"WAR on {reg}: gen {g2} use {u} vs gen {gen} fill {f}"
```

```python
import sys, struct
from common import *
from ops import Op, Stream

def f2u(f): return struct.unpack("<I", struct.pack("<f", f))[0]
SCALE_LOG2E = 128 ** -0.5 * 1.4426950408889634
KNAME = NAME + "_kernel"

DEF = dict(
    nt_w="", nt_x="", nt_kv="nt", nt_wo="", bpos=17, code_pf=1, dbg=0,
    kwin=(1, 10), vwin=(11, 16), vlate=8,
)

WS_ROT = 0
WS_SH = 16 << 20
WS_FL = 20 << 20
WS_DBG = 32 << 20
OOB = 0x40000000

SLOT = lambda s: 32768 * s
XR = 131072
SCR = 32768
G2SLOT = [0, 4, 3, 0, 4, 1, 2, 3] + [[0, 4, 1, 2, 3][(u - 8) % 5] for u in range(8, 20)]

sW, sJ, sRG, sR, sBR = 3, 6, 7, 8, 9
SRD_X, SRD_K, SRD_V, SRD_WQ, SRD_WO, SRD_OUT, SRD_DBG, SRD_WS = 36, 40, 44, 48, 52, 56, 60, 64
sWQ0, sX0, sKV0, sWO0, sM8, sM2 = 68, 69, 70, 71, 72, 73
sT0, sT1, sT2, sT3 = 74, 75, 76, 77
sROT, sROTL, sSH, sSHL, sFLM, sFLD, sC, sHS, sSC = 78, 79, 80, 81, 82, 83, 84, 85, 86
sNEED, sSPIN, sKV = 87, 88, 89
sOUT0, sOUT1 = 90, 91
sST = 92

vW = 1
vX = 9
vWo = 11
aW = 15
aX = 23
aO = 25
vL16 = 28
vL8 = 29
vOrd = 30
vOwr = 31
kW = 32
kR = 36
vWr = 40
vR = 42
ID1 = 50
ID01 = 56
vFL, vFL0, vONE, vFLAG = 60, 61, 62, 63
ABUF = 64
vT = 88
QA = 96
ACC = 128
QB = 128
SS = 160
OACC = [192, 128]
OPK = [64, 192]
GACC = [128, 144]; ZACC = 160; ZSH = 176; PK = [180, 188]; INC = 196
vFA, vFB, vOA, vOB, vOC = 1, 2, 3, 4, 5
aKP, aVP, aB, aKF, aVF = 0, 64, 128, 192, 128

def v(b, n=1): return vr(b, n)
def a_(b, n=1): return ar(b, n)
def mfma(d, A, B, C=None): return Op(f"v_mfma_f32_16x16x32_bf16 {v(d,4)}, {A}, {B}, {v(d,4) if C is None else C}")
def cvt(d, s0): return Op(f"v_cvt_pk_bf16_f32 v{d}, v{s0}, v{s0+1}")

class Ticks:
    def __init__(self): self.m = []; self.f = []
    def add(self, op): self.m.append(op); self.f.append([]); return len(self.m) - 1
    def put(self, t, ops, prio=5):
        if not isinstance(ops, (list, tuple)): ops = [ops]
        ops = [Op(o) if isinstance(o, str) else o for o in ops]
        self.f[t].append((prio, len(self.f[t]), ops))
    def spread(self, items, t0, t1, prio=5):
        n = len(items)
        for q, it in enumerate(items): self.put(t0 + (q * (t1 - t0 + 1)) // n, it, prio)
    def flush(self, st):
        for m, f in zip(self.m, self.f):
            st.add(m)
            for _, _, ops in sorted(f, key=lambda x: (x[0], x[1])): st.add(ops)

def build(path, **kw):
    P = dict(DEF); P.update(kw)
    st = Stream(); A = st.add
    tail = []
    BP = P["bpos"]

    def dma_w(t):
        kc, dh = t // 2, t % 2; s = t % 4; g = ("W", t); items = []
        for q in range(8):
            it = []
            if q == 0: it.append(Op(f"s_add_u32 s{sT0}, s{sWQ0}, {kc*524288 + dh*128}"))
            if q % 4 == 0: it.append(Op(f"s_add_u32 m0, s{sM8}, {SLOT(s) + (q//4)*4096}"))
            it.append(Op(f"buffer_load_dwordx4 v{vW+q}, s[{SRD_WQ}:{SRD_WQ+3}], s{sT0} offen offset:{(q%4)*1024} {P['nt_w']} lds", group=g, fill=[(f"S{s}", t)]))
            items.append(it)
        if dh == 0:
            for q in range(2):
                it = []
                if q == 0:
                    it.append(Op(f"s_add_u32 s{sT1}, s{sX0}, {kc*128}"))
                    it.append(Op(f"s_add_u32 m0, s{sM2}, {XR + (kc%2)*8192}"))
                it.append(Op(f"buffer_load_dwordx4 v{vX+q}, s[{SRD_X}:{SRD_X+3}], s{sT1} offen offset:{q*1024} {P['nt_x']} lds", group=g, fill=[(f"X{kc%2}", kc)]))
                items.append(it)
            items = items[8:] + items[:8]
        return items
    def chunk_ops(p, dst):
        if p < 2: return [Op(f"s_mov_b32 s{dst}, {8+p}")]
        return [Op(f"s_add_u32 s{dst}, s{sJ}, {p-1}"), Op(f"s_and_b32 s{dst}, s{dst}, 7")]
    def dma_o(u):
        p, hh = u // 2, u % 2; s = G2SLOT[u]; g = ("O", u); items = []
        fill = [(f"S{s}", 200 + u)] + ([("X0", 200 + u), ("X1", 200 + u)] if s == 4 else [])
        for q in range(8):
            it = []
            if q == 0:
                it += chunk_ops(p, sT0)
                it.append(Op(f"s_lshl_b32 s{sT0}, s{sT0}, 7"))
                it.append(Op(f"s_add_u32 s{sT0}, s{sT0}, s{sWO0}"))
                if hh: it.append(Op(f"s_add_u32 s{sT0}, s{sT0}, {256*1280}"))
            if q == 4: it.append(Op(f"s_add_u32 s{sT0}, s{sT0}, 40960"))
            if q % 4 == 0: it.append(Op(f"s_add_u32 m0, s{sM8}, {SLOT(s) + (q//4)*4096}"))
            it.append(Op(f"buffer_load_dwordx4 v{vWo+q%4}, s[{SRD_WO}:{SRD_WO+3}], s{sT0} offen offset:{(q%4)*1024} {P['nt_wo']} lds", group=g, fill=fill))
            items.append(it)
        return items
    def park(which, n):
        srd_, base = (SRD_K, aKP) if which == "K" else (SRD_V, aVP)
        it = []
        if n % 4 == 0: it.append(Op(f"s_add_u32 s{sKV}, s{sKV0}, {(n//8)*262144 + ((n%8)//4)*4096}"))
        it.append(Op(f"buffer_load_dwordx4 {a_(base+4*n,4)}, v{vL16}, s[{srd_}:{srd_+3}], s{sKV} offen offset:{(n%4)*1024} {P['nt_kv']}"))
        return it
    def stamp(i):
        if not P["dbg"]: return []
        return [Op(f"s_memtime s[{sST}:{sST+1}]"), Op("s_waitcnt lgkmcnt(0)"), Op(f"s_mov_b32 s{12+i}, s{sST}")]

    A(f"s_cmp_ge_u32 s2, 256\ns_cbranch_scc1 L_end")
    if P["dbg"]: A(f"s_memtime s[{sST+2}:{sST+3}]\ns_memrealtime s[{sST+4}:{sST+5}]")
    A(f"s_bfe_u32 s{sBR}, s2, 0x10002\ns_mul_i32 s10, s{sBR}, 40\ns_add_u32 s4, s0, s10\ns_addc_u32 s5, s1, 0")
    A("s_load_dwordx8 s[12:19], s[4:5], 0\ns_load_dwordx2 s[20:21], s[4:5], 32\ns_load_dwordx4 s[24:27], s[0:1], 80\ns_load_dwordx2 s[28:29], s[0:1], 96")
    A(f"v_lshrrev_b32 v{vT}, 6, v0\nv_and_b32 v0, 63, v0\nv_readfirstlane_b32 s{sW}, v{vT}")
    A(f"s_and_b32 s10, s2, 3\ns_lshl_b32 s10, s10, 1\ns_bfe_u32 s11, s2, 0x10003\ns_add_u32 s{sJ}, s10, s11\ns_lshr_b32 s{sRG}, s2, 4")
    A(f"s_lshl_b32 s{sR}, s{sBR}, 4\ns_add_u32 s{sR}, s{sR}, s{sRG}")
    t0, t1, t2, t3, t4, t5 = vT, vT + 1, vT + 2, vT + 3, vT + 4, vT + 5
    A(f"""v_lshrrev_b32 v{t0}, 5, v0
        v_bfe_u32 v{t1}, v0, 1, 3
        v_xor_b32 v{t1}, v{t1}, v{t0}
        v_and_b32 v{t2}, 4, v{t1}
        v_and_b32 v{t1}, 3, v{t1}
        v_lshlrev_b32 v{t2}, 6, v{t2}
        v_lshl_or_b32 v{t1}, v{t1}, 5, v{t2}
        v_and_b32 v{t2}, 1, v0
        v_lshl_or_b32 v{t1}, v{t2}, 4, v{t1}
        v_bfe_u32 v{t2}, v0, 4, 1
        v_lshl_or_b32 v{t1}, v{t2}, 9, v{t1}
        v_lshl_or_b32 v{t1}, v{t0}, 13, v{t1}""")
    for q in range(8):
        cq = 2 * (q & 1) + 4 * (q >> 2); tc = ((cq & 4) << 6) | ((cq & 3) << 5)
        A(f"v_xor_b32 v{vW+q}, {tc}, v{t1}")
        if q: A(f"v_add_u32 v{vW+q}, {16384*q - 1024*(q&3)}, v{vW+q}")
    A(f"""v_lshrrev_b32 v{t0}, 3, v0
        v_and_b32 v{t1}, 7, v0
        v_lshrrev_b32 v{t2}, 4, v0
        v_mul_u32_u24 v{t0}, 1280, v{t0}
        v_xor_b32 v{t3}, v{t1}, v{t2}
        v_lshl_add_u32 v{vX}, v{t3}, 4, v{t0}
        v_xor_b32 v{t3}, 4, v{t3}
        v_lshl_add_u32 v{vX+1}, v{t3}, 4, v{t0}
        v_add_u32 v{vX+1}, 9216, v{vX+1}
        v_lshlrev_b32 v{t2}, 1, v{t2}
        v_xor_b32 v{t3}, v{t1}, v{t2}
        v_lshl_add_u32 v{vWo}, v{t3}, 4, v{t0}
        v_lshlrev_b32 v{vL16}, 4, v0""")
    A(f"""s_lshl_b32 s{sWQ0}, s{sJ}, 10
        s_lshl_b32 s10, s{sW}, 17
        s_add_u32 s{sWQ0}, s{sWQ0}, s10
        s_lshl_b32 s10, s{sRG}, 2
        s_add_u32 s10, s10, s{sW}
        s_mul_i32 s{sX0}, s10, 20480
        s_lshl_b32 s{sM8}, s{sW}, 13
        s_lshl_b32 s{sM2}, s{sW}, 11""")
    def mksrd(dst, ptr, n): A(f"s_mov_b32 s{dst}, s{ptr}\ns_mov_b32 s{dst+1}, s{ptr+1}\ns_mov_b32 s{dst+2}, {n}\ns_mov_b32 s{dst+3}, 0x00020000")
    A(f"s_mov_b32 s{SRD_X+2}, {SZ['x']}\ns_mov_b32 s{SRD_X+3}, 0x00020000\ns_mov_b32 s{SRD_WQ+2}, {SZ['wq']}\ns_mov_b32 s{SRD_WQ+3}, 0x00020000")
    A(f"s_mov_b32 s{SRD_X}, s12\ns_mov_b32 s{SRD_X+1}, s13\ns_mov_b32 s{SRD_WQ}, s18\ns_mov_b32 s{SRD_WQ+1}, s19")
    for t in range(2):
        for it in dma_w(t): A(it)
    if P["code_pf"]:
        A(f"""s_getpc_b64 s[22:23]
            s_lshr_b32 s10, s2, 3
            s_lshl_b32 s10, s10, 11
            v_and_b32 v{t0}, 15, v0
            v_lshlrev_b32 v{t0}, 7, v{t0}
            v_add_u32 v{t0}, s10, v{t0}
            v_min_u32 v{t0}, CODE_LAST, v{t0}""")
        A(Op(f"global_load_dword v{t5}, v{t0}, s[22:23]"))
    for t in range(2, 4):
        for it in dma_w(t): A(it)
    mksrd(SRD_K, 14, SZ["k"]); mksrd(SRD_V, 16, SZ["v"]); mksrd(SRD_WO, 20, SZ["wo"])
    mksrd(SRD_OUT, 24, SZ["out"]); mksrd(SRD_DBG, 26, 256); mksrd(SRD_WS, 28, 268435456)
    A(f"""s_lshl_b32 s10, s{sRG}, 6
        s_lshl_b32 s11, s{sJ}, 2
        s_add_u32 s10, s10, s11
        s_add_u32 s10, s10, s{sW}
        s_lshl_b32 s{sKV0}, s10, 13
        s_lshl_b32 s10, s{sJ}, 3
        s_add_u32 s10, s10, s{sW}
        s_mul_i32 s{sWO0}, s10, 81920
        s_lshl_b32 s10, s{sR}, 19
        s_lshl_b32 s11, s{sW}, 11
        s_add_u32 s10, s10, s11
        s_lshl_b32 s11, s{sJ}, 13
        s_add_u32 s{sROT}, s10, s11
        s_lshl_b32 s11, s{sJ}, 16
        s_add_u32 s{sROTL}, s10, s11
        s_lshl_b32 s10, s{sR}, 17
        s_lshl_b32 s11, s{sW}, 9
        s_add_u32 s10, s10, s11
        s_add_u32 s10, s10, {WS_SH}
        s_lshl_b32 s11, s{sJ}, 11
        s_add_u32 s{sSH}, s10, s11
        s_lshl_b32 s11, s{sJ}, 14
        s_add_u32 s{sSHL}, s10, s11
        s_lshl_b32 s10, s{sR}, 15
        s_lshl_b32 s11, s{sW}, 10
        s_add_u32 s10, s10, s11
        s_add_u32 s10, s10, {WS_FL}
        s_lshl_b32 s11, s{sJ}, 7
        s_add_u32 s{sFLD}, s10, s11
        s_lshl_b32 s11, s{sJ}, 12
        s_add_u32 s{sFLM}, s10, s11
        s_mov_b32 s{sC}, {f2u(SCALE_LOG2E)}
        s_and_b32 s{sHS}, s{sR}, 7
        s_lshl_b32 s10, s{sW}, 3
        s_add_u32 s{sHS}, s{sHS}, s10
        s_lshl_b32 s{sSC}, s{sW}, 14
        s_add_u32 s{sSC}, s{sSC}, {SCR}
        s_mul_i32 s10, s{sRG}, {64*2560}
        s_mul_i32 s11, s{sBR}, 1280
        s_add_u32 s10, s10, s11
        s_mul_i32 s11, s{sW}, {16*2560}
        s_add_u32 s{sOUT0}, s10, s11
        s_lshl_b32 s11, s{sJ}, 7
        s_add_u32 s{sOUT0}, s{sOUT0}, s11
        s_and_b32 s11, s{sJ}, 3
        s_lshl_b32 s11, s11, 2
        s_add_u32 s11, s11, s{sW}
        s_mul_i32 s11, s11, {4*2560}
        s_add_u32 s10, s10, s11
        s_lshr_b32 s11, s{sJ}, 2
        s_lshl_b32 s11, s11, 7
        s_add_u32 s10, s10, s11
        s_add_u32 s{sOUT1}, s10, 1024""")
    A(f"""v_mov_b32 v{t0}, {OOB}
        v_lshlrev_b32 v{t1}, 7, v0
        v_cmp_gt_u32 vcc, 8, v0
        v_mov_b32 v{t2}, 0
        v_mov_b32 v{vONE}, 1
        v_cndmask_b32 v{vFL}, v{t0}, v{t1}, vcc
        v_cmp_eq_u32 vcc, 0, v0
        v_lshlrev_b32 v{vL8}, 3, v0
        v_mov_b32 v{ID1}, 0
        v_cndmask_b32 v{vFL0}, v{t0}, v{t2}, vcc""")
    A(Op(f"buffer_store_dword v{ID1}, v{vFL}, s[{SRD_WS}:{SRD_WS+3}], s{sFLM} offen sc1"))
    for q in range(1, 4): A(f"v_add_u32 v{vWo+q}, {9216*q}, v{vWo}")
    l16, g, r, c4 = t0, t1, t2, t3
    A(f"""v_and_b32 v{l16}, 15, v0
        v_lshrrev_b32 v{g}, 4, v0
        v_bfe_u32 v{r}, v0, 2, 2
        v_and_b32 v{c4}, 3, v0
        v_and_b32 v{t4}, 1, v{g}
        v_lshl_or_b32 v{t4}, v{t4}, 2, v{r}""")
    u0, u1 = ABUF, ABUF + 1
    A(f"""s_and_b32 s10, s{sW}, 1
        s_lshl_b32 s10, s10, 2
        s_lshr_b32 s11, s{sW}, 1
        s_lshl_b32 s11, s11, 8
        v_lshl_add_u32 v{u0}, v{g}, 3, v{r}
        v_lshlrev_b32 v{u0}, 9, v{u0}
        v_lshl_or_b32 v{u0}, v{c4}, 3, v{u0}
        v_add_u32 v{u0}, s11, v{u0}
        v_xor_b32 v{u1}, s10, v{t4}
        v_lshl_or_b32 v{u0}, v{u1}, 5, v{u0}""")
    for i in range(4):
        A(f"v_xor_b32 v{aW+i}, {32*i}, v{u0}\nv_add_u32 v{aW+4+i}, 0x10000, v{aW+i}")
    A(f"""v_lshrrev_b32 v{u1}, 1, v{l16}
        v_xor_b32 v{u1}, v{u1}, v{g}
        v_lshlrev_b32 v{u1}, 4, v{u1}
        v_lshl_or_b32 v{u1}, v{l16}, 7, v{u1}
        v_add_u32 v{aX}, {XR}, v{u1}
        v_xor_b32 v{aX+1}, 64, v{aX}""")
    A(f"""v_lshl_add_u32 v{u0}, v{g}, 2, v{r}
        v_bfe_u32 v{u1}, v{u0}, 1, 2
        v_xor_b32 v{u1}, s{sW}, v{u1}
        v_lshlrev_b32 v{u1}, 5, v{u1}
        v_lshl_or_b32 v{u1}, v{c4}, 3, v{u1}
        v_lshl_or_b32 v{aO}, v{u0}, 7, v{u1}
        v_add_u32 v{aO+1}, 0x10000, v{aO}
        v_add_u32 v{aO+2}, 0x20000, v{aO}
        v_lshlrev_b32 v{u0}, 8, v{u0}
        v_lshl_or_b32 v{u0}, v{c4}, 3, v{u0}
        v_lshl_or_b32 v{u0}, v{t4}, 5, v{u0}
        v_add_u32 v{u0}, s{sSC}, v{u0}""")
    for i in range(8): A(f"v_xor_b32 v{vR+i}, {32*i}, v{u0}")
    A(f"""v_lshrrev_b32 v{u0}, 2, v{l16}
        v_and_b32 v{u1}, 1, v{l16}
        v_lshl_or_b32 v{u0}, v{u0}, 1, v{u1}
        v_lshrrev_b32 v{u1}, 1, v{g}
        v_xor_b32 v{u0}, v{u0}, v{u1}
        v_lshlrev_b32 v{u0}, 4, v{u0}
        v_bfe_u32 v{u1}, v{l16}, 1, 1
        v_lshl_or_b32 v{u0}, v{u1}, 3, v{u0}
        v_lshl_or_b32 v{u0}, v{g}, 7, v{u0}
        v_add_u32 v{u0}, s{sSC}, v{u0}""")
    for q in range(4): A(f"v_xor_b32 v{kW+q}, {32*q}, v{u0}")
    A(f"""v_lshrrev_b32 v{u0}, 1, v{g}
        v_lshrrev_b32 v{u1}, 1, v{l16}
        v_xor_b32 v{u0}, v{u0}, v{u1}
        v_lshlrev_b32 v{u0}, 4, v{u0}
        v_lshl_or_b32 v{u0}, v{c4}, 7, v{u0}
        v_and_b32 v{u1}, 1, v{g}
        v_lshl_or_b32 v{u0}, v{u1}, 9, v{u0}
        v_lshl_or_b32 v{u0}, v{r}, 10, v{u0}
        v_add_u32 v{u0}, s{sSC}, v{u0}""")
    for sd in range(4): A(f"v_xor_b32 v{kR+sd}, {32*sd}, v{u0}")
    A(f"""v_lshrrev_b32 v{u0}, 1, v{l16}
        v_xor_b32 v{u0}, v{u0}, v{g}
        v_lshlrev_b32 v{u0}, 5, v{u0}
        v_and_b32 v{u1}, 1, v{l16}
        v_lshl_or_b32 v{u0}, v{u1}, 4, v{u0}
        v_lshl_or_b32 v{u0}, v{g}, 8, v{u0}
        v_add_u32 v{vWr}, s{sSC}, v{u0}
        v_xor_b32 v{vWr+1}, 128, v{vWr}
        v_add_u32 v{vOrd}, {SCR}, v{vL16}
        v_add_u32 v{vOwr}, s{sSC}, v{vL16}""")
    A(f"""v_and_b32 v{u0}, 1, v0
        v_lshlrev_b32 v{u0}, 4, v{u0}
        v_mov_b32 v{u1}, 0x3f80
        v_lshlrev_b32 v{u0}, v{u0}, v{u1}
        v_cmp_eq_u32 vcc, v{g}, v{r}
        v_mov_b32 v{u1}, 0
        v_mov_b32 v{ID1+1}, 0
        v_cndmask_b32 v{u0}, v{u1}, v{u0}, vcc
        v_cmp_gt_u32 vcc, 2, v{c4}
        v_mov_b32 v{ID1+4}, 0
        v_mov_b32 v{ID1+5}, 0
        v_cndmask_b32 v{ID1+2}, v{u1}, v{u0}, vcc
        v_cndmask_b32 v{ID1+3}, v{u0}, v{u1}, vcc
        v_mov_b32 v{ID01}, v{ID1+2}
        v_mov_b32 v{ID01+1}, v{ID1+3}
        v_mov_b32 v{ID01+2}, v{ID1+2}
        v_mov_b32 v{ID01+3}, v{ID1+3}""")

    def rdA1(t, i):
        s = t % 4; buf = ABUF + 8 * ((4 * t + i) % 3); ad = aW + 4 * (s // 2) + i; base = (s % 2) * 32768
        return [Op(f"ds_read_b64_tr_b16 {v(buf+4*ss+2*h,2)}, v{ad} offset:{base + ss*16384 + h*2048}", use=[(f"S{s}", t)]) for ss in range(2) for h in range(2)]
    def rdB(kc):
        return [Op(f"ds_read_b128 {a_(aB+32*(kc%2)+8*jt+4*ss,4)}, v{aX+ss} offset:{(kc%2)*8192 + jt*2048}", use=[(f"X{kc%2}", kc)]) for jt in range(4) for ss in range(2)]
    def bar(group): return [Op("WAITG", group=group, lds=True), Op("s_barrier")]

    A(bar(("W", 0)))
    if P["dbg"]: A(stamp(1))
    b0 = rdB(0); a0 = rdA1(0, 0)
    A(a0[:2] + b0[:1] + a0[2:] + b0[1:] + rdA1(0, 1))
    T = Ticks()
    for t in range(20):
        kc, dh = t // 2, t % 2
        for i in range(4):
            buf = ABUF + 8 * ((4 * t + i) % 3)
            for jt in range(4):
                for ss in range(2):
                    d = ACC + 16 * (4 * dh + i) + 4 * jt
                    T.add(mfma(d, v(buf + 4 * ss, 4), a_(aB + 32 * (kc % 2) + 8 * jt + 4 * ss, 4), "0" if (kc == 0 and ss == 0) else None))
    for t in range(20):
        b = 32 * t
        for q, o in enumerate(rdA1(t, 2)): T.put(b + q, o, 2)
        for q, o in enumerate(rdA1(t, 3)): T.put(b + 8 + q, o, 2)
        T.put(b + BP, bar(("W", t + 1)), 1)
        if t < 19:
            for q, o in enumerate(rdA1(t + 1, 0)): T.put(b + BP + q, o, 2)
            for q, o in enumerate(rdA1(t + 1, 1)): T.put(b + 24 + q, o, 2)
            if t % 2 == 1:
                for pos, o in zip([BP + 4, BP + 5, BP + 6, 28, 29, 30, 31, 32], rdB((t + 1) // 2)): T.put(b + pos, o, 3)
    def win(x): return 32 * (x - 1) + BP, min(32 * x + BP - 1, 639)
    extra = {x: [] for x in range(1, 21)}
    k0, k1 = P["kwin"]; v0_, v1_ = P["vwin"]; nve = 16 - P["vlate"]
    for n in range(16): extra[k0 + (n * (k1 - k0 + 1)) // 16].append(park("K", n))
    for n in range(nve): extra[v0_ + (n * (v1_ - v0_ + 1)) // nve].append(park("V", n))
    for n in range(nve, 16): extra[18].append(park("V", n))
    for x in range(1, 21):
        items = dma_w(x + 3) if x <= 16 else {17: dma_o(0), 18: [], 19: dma_o(1), 20: []}[x]
        items = items + extra[x]
        if items: T.spread(items, *win(x), prio=6)
    for q in range(8):
        T.put(32 * (4 + q) + BP + 2, [Op(f"s_cmp_lg_u32 s{sHS}, {q}"), Op(f"s_cbranch_scc1 L_hs{q}"),
              Op(f"s_lshl_b32 s{sT2}, s{sR}, 3", cond=True),
              Op(f"buffer_atomic_add v{vONE}, v{vFL0}, s[{SRD_DBG}:{SRD_DBG+3}], s{sT2} offen sc1", uncounted=True), Op(f"L_hs{q}:")], 7)
    T.put(32 * 14 + BP + 2, [Op(f"s_cmp_lg_u32 s{sW}, 0"), Op("s_cbranch_scc1 L_hsl"), Op(f"s_lshl_b32 s{sT2}, s{sR}, 3", cond=True),
          Op(f"buffer_load_dword v{vFLAG}, v{vFL0}, s[{SRD_DBG}:{SRD_DBG+3}], s{sT2} offen sc1", uncounted=True), Op("L_hsl:")], 7)
    T.put(32 * 18 + BP, [Op(f"s_cmp_lg_u32 s{sW}, 0"), Op("s_cbranch_scc1 L_hsc"),
          Op(f"v_readfirstlane_b32 s{sT3}, v{vFLAG}", cond=True), Op("s_nop 1", cond=True), Op(f"s_cmp_lg_u32 s{sT3}, 8", cond=True, nohaz=True), Op("s_cbranch_scc1 L_hs_spin", cond=True), Op("L_hsc:")], 1.5)
    tail += [f"L_hs_spin:", f"s_mov_b32 s{sSPIN}, 0", "L_hs_spin1:",
             f"s_lshl_b32 s{sT2}, s{sR}, 3",
             f"buffer_load_dword v{vFLAG}, v{vFL0}, s[{SRD_DBG}:{SRD_DBG+3}], s{sT2} offen sc1", "s_waitcnt vmcnt(0)",
             f"v_readfirstlane_b32 s{sT3}, v{vFLAG}", f"s_add_u32 s{sSPIN}, s{sSPIN}, 1", f"s_cmp_gt_u32 s{sSPIN}, 100000", "s_cbranch_scc1 L_hsc",
             f"s_cmp_lg_u32 s{sT3}, 8", "s_cbranch_scc1 L_hs_spin1", "s_branch L_hsc"]
    SCRF = lambda gen: [("S1", gen), ("S2", gen)]
    kwr = [Op(f"ds_write2st64_b64 v{kW+(n&3)}, {a_(aKP+4*n,2)}, {a_(aKP+4*n+2,2)} offset0:{2*n} offset1:{2*n+1}", fill=SCRF(100), private=True) for n in range(16)]
    def qreg(b, sd, jt): return (QA if sd < 2 else QB) + 16 * b + 8 * (sd % 2) + 4 * jt
    def qcvt(sd, j4):
        d = qreg(j4 // 2, sd, j4 % 2); s0 = ACC + 16 * (2 * sd) + 4 * j4
        return [cvt(d, s0), cvt(d + 1, s0 + 2), cvt(d + 2, s0 + 16), cvt(d + 3, s0 + 18)]
    def krd(b, kt, sd): return Op(f"ds_read_b128 {a_(aKF+32*b+16*kt+4*sd,4)}, v{kR+sd} offset:{b*8192 + kt*4096}", use=SCRF(100), private=True)
    b18, b19 = 32 * 18, 32 * 19
    T.spread(kwr[:7], b18 + BP + 4, b18 + 31, 4); T.spread(kwr[7:], b19 + 4, b19 + 16, 4)
    T.spread([o for j4 in range(4) for o in qcvt(0, j4)], b18 + 24, b18 + 31, 5)
    T.spread([o for j4 in range(4) for o in qcvt(1, j4)], b19 + 4, b19 + 19, 5)
    T.spread([o for j4 in range(4) for o in qcvt(2, j4)], b19 + 22, b19 + 31, 5)
    krs = [krd(b, kt, sd) for b in range(2) for sd in range(4) for kt in range(2)]
    T.spread(krs[:12], b19 + BP + 1, b19 + 31, 4)
    T.flush(st)
    if P["dbg"]: A(stamp(2))

    def sreg(b, jt, kt): return SS + 16 * b + 8 * jt + 4 * kt
    def softmax(b):
        tmp = QA + 16 * b; pf = tmp + 8; L = []
        cols = [(sreg(b, c, 0), tmp + 4 * c) for c in range(2)]
        def both(f):
            a0_, a1_ = f(*cols[0]), f(*cols[1])
            for x, y in zip(a0_, a1_): L.extend([Op(x), Op(y)])
        both(lambda s, m: [f"v_max3_f32 v{m}, v{s}, v{s+1}, v{s+2}", f"v_max3_f32 v{m+1}, v{s+3}, v{s+4}, v{s+5}",
                           f"v_max3_f32 v{m}, v{m}, v{s+6}, v{s+7}", f"v_max_f32 v{m}, v{m}, v{m+1}", f"v_mov_b32 v{m+1}, v{m}",
                           f"v_permlane16_swap_b32 v{m}, v{m+1}", f"v_max_f32 v{m}, v{m}, v{m+1}", f"v_mov_b32 v{m+1}, v{m}",
                           f"v_permlane32_swap_b32 v{m}, v{m+1}", f"v_max_f32 v{m}, v{m}, v{m+1}", f"v_mul_f32 v{m}, s{sC}, v{m}"])
        both(lambda s, m: [x for q in range(8) for x in (f"v_fma_f32 v{s+q}, v{s+q}, s{sC}, -v{m}",)])
        both(lambda s, m: [f"v_exp_f32 v{s+q}, v{s+q}" for q in range(8)])
        both(lambda s, m: [f"v_add_f32 v{m}, v{s}, v{s+1}", f"v_add_f32 v{m+1}, v{s+2}, v{s+3}", f"v_add_f32 v{m+2}, v{s+4}, v{s+5}", f"v_add_f32 v{m+3}, v{s+6}, v{s+7}",
                           f"v_add_f32 v{m}, v{m}, v{m+1}", f"v_add_f32 v{m+2}, v{m+2}, v{m+3}", f"v_add_f32 v{m}, v{m}, v{m+2}", f"v_mov_b32 v{m+1}, v{m}",
                           f"v_permlane16_swap_b32 v{m}, v{m+1}", f"v_add_f32 v{m}, v{m}, v{m+1}", f"v_mov_b32 v{m+1}, v{m}",
                           f"v_permlane32_swap_b32 v{m}, v{m+1}", f"v_add_f32 v{m}, v{m}, v{m+1}", f"v_rcp_f32 v{m}, v{m}"])
        both(lambda s, m: [f"v_mul_f32 v{s+q}, v{s+q}, v{m}" for q in range(8)])
        for c in range(2):
            for q in range(4): L.append(cvt(pf + 4 * c + q, cols[c][0] + 2 * q))
        return L
    vwr = [Op(f"ds_write_b128 v{vWr+(n&1)}, {a_(aVP+4*n,4)} offset:{n*1024}", fill=SCRF(101), private=True) for n in range(16)]
    def vrd(b): return [Op(f"ds_read_b64_tr_b16 {a_(aVF+32*b+4*i+2*h,2)}, v{vR+i} offset:{b*8192 + h*4096}", use=SCRF(101), private=True) for i in range(8) for h in range(2)]
    def pv(b): return [mfma(OACC[b] + 8 * i + 4 * jt, a_(aVF + 32 * b + 4 * i, 4), v(QA + 16 * b + 8 + 4 * jt, 4), "0") for i in range(8) for jt in range(2)]
    def ocvt(b, s2, jt):
        d = OPK[b] + 8 * s2 + 4 * jt; s0 = OACC[b] + 16 * s2 + 4 * jt
        return [cvt(d, s0), cvt(d + 1, s0 + 2), cvt(d + 2, s0 + 8), cvt(d + 3, s0 + 10),
                Op(f"ds_write_b128 v{vOwr}, {v(d,4)} offset:{(s2*4 + 2*b + jt)*1024}", fill=SCRF(102), wpriv=True)]
    T = Ticks()
    for b in range(2):
        for sd in range(4):
            for kt in range(2):
                for jt in range(2):
                    T.add(mfma(sreg(b, jt, kt), a_(aKF + 32 * b + 16 * kt + 4 * sd, 4), v(qreg(b, sd, jt), 4), "0" if sd == 0 else None))
    T.spread(krs[12:], 0, 3, 2)
    T.spread([o for j4 in range(2) for o in qcvt(3, j4)], 1, 6, 3)
    T.spread([o for j4 in range(2, 4) for o in qcvt(3, j4)], 7, 12, 3)
    T.spread(vwr, 4, 19, 4)
    sm0 = softmax(0); sm1 = softmax(1)
    T.spread(sm0[:22], 20, 31, 5)
    d2 = dma_o(2)
    T.spread(d2[:4], 8, 31, 6)
    T.flush(st)
    def weave(main, side, first=0):
        n, m = len(main), len(side); k = 0
        for i, o in enumerate(main):
            A(o)
            while k < m and i >= first and (k + 1) * (n - first) <= (i + 1 - first) * (m + 0): A(side[k]); k += 1
        while k < m: A(side[k]); k += 1
    weave(sm0[22:], vrd(0) + d2[4:] + vrd(1))
    weave(sm1, pv(0), first=2)
    T = Ticks()
    for o in pv(1): T.add(o)
    T.spread([o for s2 in range(4) for jt in range(2) for o in ocvt(0, s2, jt)], 0, 11, 5)
    T.spread([o for jt in range(2) for o in ocvt(1, 0, jt)], 12, 15, 5)
    T.flush(st)
    for s2 in range(1, 4):
        for jt in range(2): A(ocvt(1, s2, jt))
    if P["dbg"]: A(stamp(3))

    def rdA2(u, n):
        s = G2SLOT[u]; buf = ABUF + 8 * ((4 * u + n) % 3); ad = aO + s // 2; base = (s % 2) * 32768
        return [Op(f"ds_read_b64_tr_b16 {v(buf+4*ss+2*h,2)}, v{ad} offset:{base + (2*n+ss)*4096 + h*2048}", use=[(f"S{s}", 200 + u)]) for ss in range(2) for h in range(2)]
    def rdO(u, n):
        return [Op(f"ds_read_b128 {a_(16*ks+4*jt,4)}, v{vOrd} offset:{ks*4096 + jt*1024}", use=SCRF(102)) for jt in range(4) for ks in (8*u + 2*n, 8*u + 2*n + 1)]
    A(bar(("O", 0)))
    a0 = rdA2(0, 0); o0 = rdO(0, 0)
    A(a0[:2] + o0[:1] + a0[2:] + o0[1:] + rdA2(0, 1) + rdO(0, 1))
    T = Ticks()
    def acc(p): return ZACC if p == 9 else GACC[p % 2]
    for u in range(20):
        p, hh = u // 2, u % 2
        for n in range(4):
            buf = ABUF + 8 * ((4 * u + n) % 3)
            for jt in range(4):
                for ss in range(2):
                    ks = 8 * hh + 2 * n + ss
                    T.add(mfma(acc(p) + 4 * jt, v(buf + 4 * ss, 4), a_(16 * ks + 4 * jt, 4), "0" if (ks == 0 and p < 9) else None))
    for u in range(20):
        b = 32 * u
        for q, o in enumerate(rdA2(u, 2)): T.put(b + q, o, 2)
        for q, o in enumerate(rdA2(u, 3)): T.put(b + 8 + q, o, 2)
        if u < 2:
            T.spread(rdO(u, 2), b, b + 7, 3); T.spread(rdO(u, 3), b + 8, b + 13, 3)
        if u < 19:
            T.put(b + BP, bar(("O", u + 1)), 1)
            for q, o in enumerate(rdA2(u + 1, 0)): T.put(b + BP + q, o, 2)
            for q, o in enumerate(rdA2(u + 1, 1)): T.put(b + 24 + q, o, 2)
            if u == 0:
                T.spread(rdO(1, 0), b + BP, b + 23, 3); T.spread(rdO(1, 1), b + 24, b + 31, 3)
    wins = {1: [3], 2: [4, 5], 3: [6, 7]}
    for x in range(4, 16): wins[x] = [x + 4]
    for x, us in wins.items():
        T.spread([it for u in us for it in dma_o(u)], *win(x), prio=6)
    WSR = f"s[{SRD_WS}:{SRD_WS+3}]"
    cover = P.get("cover", {})
    for p in range(9):
        b = 32 * (2 * p + 2); ac = acc(p); pk = PK[p % 2]; L = []
        for jt in range(4): L += [cvt(pk + 2 * jt, ac + 4 * jt), cvt(pk + 2 * jt + 1, ac + 4 * jt + 2)]
        T.spread(L, b + 4, b + 7, 4)
        g = ("P", p)
        if p < 2:
            for jt in range(4):
                T.put(b + 8 + jt, [Op(f"s_add_u32 s{sT2}, s{sSH}, {(4*p+jt)*16384}"),
                      Op(f"buffer_store_dwordx2 {v(pk+2*jt,2)}, v{vL8}, {WSR}, s{sT2} offen sc1", group=g)], 4)
        else:
            T.put(b + 8, chunk_ops(p, sT2) + [Op(f"s_lshl_b32 s{sT3}, s{sT2}, 16"), Op(f"s_add_u32 s{sT3}, s{sT3}, s{sROT}"),
                  Op(f"buffer_store_dwordx4 {v(pk,4)}, v{vL16}, {WSR}, s{sT3} offen sc1", group=g)], 4)
            T.put(b + 10, Op(f"buffer_store_dwordx4 {v(pk+4,4)}, v{vL16}, {WSR}, s{sT3} offen offset:1024 sc1", group=g), 4)
            fl = [Op("WAITG", group=g)] + chunk_ops(p, sT2) + [Op(f"s_lshl_b32 s{sT2}, s{sT2}, 12"), Op(f"s_add_u32 s{sT2}, s{sT2}, s{sFLD}"),
                  Op(f"buffer_store_dword v{vONE}, v{vFL0}, {WSR}, s{sT2} offen sc1")]
            if p < 8: T.put(min(b + cover.get(p, 3 * 32 if p < 6 else 2 * 32) + BP + 1, 639), fl, 1.7)
            else: final_flag = fl
    def src_ops(p, dst): return [Op(f"s_add_u32 s{dst}, s{sJ}, {9-p}"), Op(f"s_and_b32 s{dst}, s{dst}, 7")]
    nspin = [0]
    def poll(): return Op(f"buffer_load_dword v{vFLAG}, v{vFL}, {WSR}, s{sFLM} offen sc1")
    def check(ps):
        k = nspin[0]; nspin[0] += 1; L = []
        for q, p in enumerate(ps):
            L += src_ops(p, sT2)
            L.append(Op(f"s_lshl_b32 s{sNEED if q == 0 else sT2}, 1, s{sT2}"))
            if q: L.append(Op(f"s_or_b32 s{sNEED}, s{sNEED}, s{sT2}"))
        L += [Op(f"v_cmp_ne_u32 vcc, 0, v{vFLAG}"), Op(f"s_and_b32 s{sT2}, vcc_lo, s{sNEED}"), Op(f"s_cmp_lg_u32 s{sT2}, s{sNEED}"),
              Op(f"s_cbranch_scc1 L_spin{k}"), Op(f"L_back{k}:")]
        tail.extend([f"L_spin{k}:", f"s_mov_b32 s{sSPIN}, 0", f"L_spin{k}a:",
                     f"buffer_load_dword v{vFLAG}, v{vFL}, {WSR}, s{sFLM} offen sc1", "s_waitcnt vmcnt(0)",
                     f"v_cmp_ne_u32 vcc, 0, v{vFLAG}", f"s_add_u32 s{sSPIN}, s{sSPIN}, 1", f"s_cmp_gt_u32 s{sSPIN}, 100000", f"s_cbranch_scc1 L_back{k}",
                     f"s_and_b32 s{sT2}, vcc_lo, s{sNEED}", f"s_cmp_lg_u32 s{sT2}, s{sNEED}", f"s_cbranch_scc1 L_spin{k}a", f"s_branch L_back{k}"])
        return L
    def inc_rot(k): return INC + 8 * k
    INSH = INC + 40
    shslot = {2: 0, 3: 1, 4: 2, 5: 3, 6: 4, 9: 5, 7: 6, 8: 7}
    def fetch(p, k):
        L = src_ops(p, sT2)
        if p < 9:
            L += [Op(f"s_lshl_b32 s{sT3}, s{sT2}, 13"), Op(f"s_add_u32 s{sT3}, s{sT3}, s{sROTL}"),
                  Op(f"buffer_load_dwordx4 {v(inc_rot(k),4)}, v{vL16}, {WSR}, s{sT3} offen sc1"),
                  Op(f"buffer_load_dwordx4 {v(inc_rot(k)+4,4)}, v{vL16}, {WSR}, s{sT3} offen offset:1024 sc1")]
        L += [Op(f"s_lshl_b32 s{sT3}, s{sT2}, 11"), Op(f"s_add_u32 s{sT3}, s{sT3}, s{sSHL}"),
              Op(f"buffer_load_dwordx2 {v(INSH+2*shslot[p],2)}, v{vL8}, {WSR}, s{sT3} offen sc1")]
        return L
    first = {"z": True, "s": True}
    def addin(k):
        L = []
        for h in range(2):
            for e in range(2):
                L.append(mfma(ZACC + 8 * h + 4 * e, v(ID1 + 2 - 2 * e, 4), v(inc_rot(k) + 4 * h, 4), "0" if first["z"] else None))
        first["z"] = False
        return L
    def addsh(q):
        L = [mfma(ZSH, v(ID01, 4), v(INSH + 4 * q, 4), "0" if first["s"] else None)]
        first["s"] = False
        return L
    S_ = lambda u, pos: 32 * u + pos
    T.put(S_(13, BP + 3), poll(), 6.5)
    T.put(S_(16, BP + 2), check([2, 3]) + fetch(2, 0) + fetch(3, 1) + fetch(9, 0) + [poll()], 6.5)
    T.put(S_(17, BP + 6), check([4, 5]) + fetch(4, 2) + fetch(5, 3) + [poll()], 6.5)
    T.put(S_(17, 30), addin(0) + addin(1) + addsh(0), 8)
    T.put(S_(19, 4), check([6]) + fetch(6, 4), 6.5)
    T.put(S_(19, 14), addin(2) + addin(3) + addsh(1), 8)
    T.put(S_(18, 12), [Op(x) for x in f"""v_and_b32 v{t0}, 15, v0
        v_lshrrev_b32 v{t1}, 4, v0
        v_lshrrev_b32 v{t2}, 1, v{t1}
        s_lshl_b32 s{sT2}, s{sW}, 1
        v_add_u32 v{t2}, s{sT2}, v{t2}
        v_and_b32 v{t3}, 7, v0
        v_xor_b32 v{t2}, v{t2}, v{t3}
        v_lshlrev_b32 v{t2}, 4, v{t2}
        v_and_b32 v{t1}, 1, v{t1}
        v_lshl_or_b32 v{t2}, v{t1}, 3, v{t2}
        v_lshl_or_b32 v{vFA}, v{t0}, 7, v{t2}""".split("\n")], 5)
    T.put(S_(18, 28), [Op(x) for x in f"""v_lshrrev_b32 v{t0}, 3, v0
        v_and_b32 v{t1}, 7, v0
        v_xor_b32 v{t2}, v{t0}, v{t1}
        v_lshlrev_b32 v{t2}, 4, v{t2}
        v_lshl_or_b32 v{t2}, v{t0}, 7, v{t2}
        v_add_u32 v{vFB}, s{sM2}, v{t2}
        v_mul_u32_u24 v{t3}, 2560, v{t0}
        v_lshl_or_b32 v{vOA}, v{t1}, 4, v{t3}
        v_add_u32 v{vOB}, {8*2560}, v{vOA}
        s_lshl_b32 s{sT2}, s{sW}, 2
        v_add_u32 v{t0}, s{sT2}, v{t0}
        v_and_b32 v{t3}, 7, v{t0}
        v_xor_b32 v{t3}, v{t3}, v{t1}
        v_lshlrev_b32 v{t3}, 4, v{t3}
        v_and_b32 v{t0}, 15, v{t0}
        v_lshl_or_b32 v{vFB+4}, v{t0}, 7, v{t3}
        v_mov_b32 v{t3}, {OOB}
        v_cmp_gt_u32 vcc, 32, v0
        s_nop 1
        v_cndmask_b32 v{vOC}, v{t3}, v{vOA}, vcc""".split("\n")], 5)
    T.flush(st)
    if P["dbg"]: A(stamp(4))
    A(final_flag)
    A(poll())
    A(addin(4) + addsh(2))
    A(check([7])); A(fetch(7, 0)); A(check([8])); A(fetch(8, 1))
    A(addin(0) + addin(1) + addsh(3))
    if P["dbg"]: A(stamp(5))
    FS = G2SLOT[17]; FB = SLOT(FS)
    pk = PK[0]
    for jt in range(4):
        A([cvt(pk + 2 * jt, ZACC + 4 * jt), cvt(pk + 2 * jt + 1, ZACC + 4 * jt + 2)])
    A([cvt(pk + 8, ZSH), cvt(pk + 9, ZSH + 2)])
    A(f"v_add_u32 v{vFA}, {FB}, v{vFA}\nv_add_u32 v{vFB}, {FB}, v{vFB}\nv_add_u32 v{vFB+4}, {FB + 8192}, v{vFB+4}")
    for jt in range(5):
        A(Op(f"ds_write_b64 v{vFA}, {v(pk+2*jt,2)} offset:{jt*2048}", fill=[(f"S{FS}", 300)]))
    A([Op("WAITL"), Op("s_barrier")])
    A(Op(f"ds_read_b128 {v(GACC[0],4)}, v{vFB}", use=[(f"S{FS}", 300)]))
    A(Op(f"ds_read_b128 {v(GACC[0]+4,4)}, v{vFB} offset:1024", use=[(f"S{FS}", 300)]))
    A(Op(f"ds_read_b128 {v(GACC[0]+8,4)}, v{vFB+4}", use=[(f"S{FS}", 300)]))
    OUTR = f"s[{SRD_OUT}:{SRD_OUT+3}]"
    A(f"buffer_store_dwordx4 {v(GACC[0],4)}, v{vOA}, {OUTR}, s{sOUT0} offen")
    A(f"buffer_store_dwordx4 {v(GACC[0]+4,4)}, v{vOB}, {OUTR}, s{sOUT0} offen")
    A(f"buffer_store_dwordx4 {v(GACC[0]+8,4)}, v{vOC}, {OUTR}, s{sOUT1} offen")
    if P["dbg"]:
        A("s_waitcnt vmcnt(0)"); A(stamp(6))
        A(f"""s_memrealtime s[{sST}:{sST+1}]
            s_waitcnt lgkmcnt(0)
            v_writelane_b32 v{vT+7}, s{sST+2}, 0
            v_writelane_b32 v{vT+7}, s{sST}, 15
            v_writelane_b32 v{vT+7}, s{sST+4}, 14
            v_writelane_b32 v{vT+7}, s13, 1
            v_writelane_b32 v{vT+7}, s14, 2
            v_writelane_b32 v{vT+7}, s15, 3
            v_writelane_b32 v{vT+7}, s16, 4
            v_writelane_b32 v{vT+7}, s17, 5
            v_writelane_b32 v{vT+7}, s18, 6
            v_writelane_b32 v{vT+7}, s19, 7
            v_writelane_b32 v{vT+7}, s20, 8
            v_writelane_b32 v{vT+7}, s21, 9
            v_writelane_b32 v{vT+7}, s22, 10
            v_writelane_b32 v{vT+7}, s23, 11
            v_writelane_b32 v{vT+7}, s24, 12
            v_writelane_b32 v{vT+7}, s25, 13
            s_lshl_b32 s{sT2}, s2, 2
            s_add_u32 s{sT2}, s{sT2}, s{sW}
            s_lshl_b32 s{sT2}, s{sT2}, 8
            s_add_u32 s{sT2}, s{sT2}, {WS_DBG}
            v_lshlrev_b32 v{t0}, 2, v0
            buffer_store_dword v{vT+7}, v{t0}, {WSR}, s{sT2} offen""")
    A("L_end:\ns_endpgm")

    stats = {}
    lines = st.finalize(stats) + tail
    a = Asm(); kernel_begin(a, KNAME)
    for l in lines: a(l)
    a("L_code_end:")
    body = a.text().replace("CODE_LAST", f"L_code_end-{KNAME}-1024")
    write_file(path, ["; @launch grid=(256,1,1) block=(256,1,1) lds=163840"], body, [descriptor(KNAME, 512, 256)])
    return stats

if __name__ == "__main__":
    out = sys.argv[1] if len(sys.argv) > 1 else f"cdna_kernels/{NAME}.s"
    kw = {}
    for x in sys.argv[2:]:
        k, val = x.split("=", 1)
        try: val = eval(val)
        except Exception: pass
        kw[k] = val
    print(build(out, **kw))
```

```python
import re

A0 = 256
S0 = 1000
M0 = 2000
VCC = 2001

_reg = re.compile(r"^(-)?(?:abs\()?([vas])(?:(\d+)|\[(\d+):(\d+)\])\)?$")


def regs(tok):
    tok = tok.strip()
    if tok == "m0":
        return [M0]
    if tok in ("vcc", "vcc_lo", "vcc_hi"):
        return [VCC]
    m = _reg.match(tok)
    if not m:
        return []
    base = {"v": 0, "a": A0, "s": S0}[m.group(2)]
    if m.group(3) is not None:
        return [base + int(m.group(3))]
    return list(range(base + int(m.group(4)), base + int(m.group(5)) + 1))


TRANS = ("v_exp_f32", "v_rcp_f32", "v_log_f32", "v_rsq_f32", "v_sqrt_f32")


class Op:
    def __init__(self, text, **meta):
        self.text = text.strip()
        self.meta = meta
        mn, _, rest = self.text.partition(" ")
        self.mn = mn
        toks = [t.strip() for t in re.split(r",(?![^\[]*\])", rest)] if rest else []
        if toks:
            last = toks[-1].split()
            toks[-1] = last[0] if last else ""
            mods = last[1:]
        else:
            mods = []
        self.mods = mods
        rd, wr = [], []
        k = None
        if mn.startswith("v_mfma"):
            k = "mfma"
            wr = regs(toks[0]); self.srca = regs(toks[1]); self.srcb = regs(toks[2]); self.srcc = regs(toks[3])
            rd = self.srca + self.srcb + self.srcc
        elif mn.startswith("ds_read"):
            k = "dsr"; wr = regs(toks[0]); rd = regs(toks[1])
        elif mn.startswith("ds_write"):
            k = "dsw"
            for t in toks: rd += regs(t)
        elif mn.startswith("buffer_load") or mn.startswith("global_load"):
            if "lds" in mods:
                k = "dma"
                for t in toks: rd += regs(t)
                rd.append(M0)
            else:
                k = "vld"; wr = regs(toks[0])
                for t in toks[1:]: rd += regs(t)
        elif mn.startswith("buffer_store") or mn.startswith("buffer_atomic"):
            k = "vst"; self.data = regs(toks[0])
            for t in toks: rd += regs(t)
        elif mn.startswith("v_permlane"):
            k = "perm"; wr = regs(toks[0]) + regs(toks[1]); rd = list(wr)
        elif mn.startswith("v_readfirstlane") or mn.startswith("v_readlane"):
            k = "rfl"; wr = regs(toks[0]); rd = regs(toks[1])
        elif mn.startswith("v_"):
            k = "trans" if mn in TRANS else "valu"
            wr = regs(toks[0])
            for t in toks[1:]: rd += regs(t)
            if mn.startswith("v_fmac"): rd += wr
        elif mn == "s_barrier":
            k = "bar"
        elif mn == "s_waitcnt":
            k = "wait"
        elif mn == "s_nop":
            k = "nop"
        elif mn == "WAITG":
            k = "waitg"
        elif mn == "WAITL":
            k = "waitl"
        elif mn.startswith("s_load"):
            k = "smem"; wr = regs(toks[0]); rd = regs(toks[1])
        elif mn.startswith("s_cbranch") or mn == "s_branch" or mn.endswith(":") or mn in ("s_endpgm", "s_setprio", "s_sleep") or mn.startswith("."):
            k = "ctl"
        elif mn.startswith("s_cmp") or mn.startswith("s_bitcmp"):
            k = "salu"
            for t in toks: rd += regs(t)
        elif mn.startswith("s_"):
            k = "salu"; wr = regs(toks[0])
            for t in toks[1:]: rd += regs(t)
        else:
            raise ValueError("unknown instruction: " + text)
        self.kind, self.rd, self.wr = k, set(rd), set(wr)

    def __repr__(self):
        return self.text


VALU_KINDS = ("valu", "trans", "perm", "rfl")


class Stream:
    def __init__(self):
        self.ops = []

    def add(self, x, **meta):
        if isinstance(x, Op):
            self.ops.append(x)
        elif isinstance(x, (list, tuple)):
            for y in x: self.add(y, **meta)
        else:
            for line in x.split("\n"):
                if line.strip(): self.ops.append(Op(line, **meta))

    def finalize(self, stats=None):
        out = []
        slot = 0
        lds_q = []
        vm_q = []
        smem_pending = set()
        w_valu = {}; w_trans = {}; w_mfma = {}; r_mfmac = {}; w_vsgpr = {}; w_m0 = -99; st_data = {}
        mfma_dst = {}
        events = []
        nwait = nnop = 0

        def emit(text, n=1):
            nonlocal slot
            out.append(text); slot += n

        def wait(vm=None, lg=None):
            nonlocal nwait
            parts = []
            if vm is not None:
                assert vm <= 63, vm
                parts.append(f"vmcnt({vm})")
                done = vm_q[:len(vm_q) - vm] if vm < len(vm_q) else []
                for o in done: events.append((len(out), "vmdone", o))
                del vm_q[:len(done)]
            if lg is not None:
                lg = min(lg, 15)
                parts.append(f"lgkmcnt({lg})")
                done = lds_q[:len(lds_q) - lg] if lg < len(lds_q) else []
                for o in done: events.append((len(out), "ldsdone", o))
                del lds_q[:len(done)]
                if lg == 0: smem_pending.clear()
            emit("s_waitcnt " + " ".join(parts)); nwait += 1

        for op in self.ops:
            k = op.kind
            if k == "waitg":
                g = op.meta["group"]
                idx = max((i for i, o in enumerate(vm_q) if o.meta.get("group") == g), default=None)
                vm = None if idx is None else len(vm_q) - 1 - idx
                lg = 0 if (op.meta.get("lds") and lds_q) else None
                if vm is not None or lg is not None: wait(vm, lg)
                for oo in op.meta.get("covers", ()): events.append((len(out), "vmdone", oo))
                continue
            if k == "waitl":
                if lds_q: wait(None, 0)
                continue
            if k == "wait":
                m = re.search(r"vmcnt\((\d+)\)", op.text); vm = int(m.group(1)) if m else None
                m = re.search(r"lgkmcnt\((\d+)\)", op.text); lg = int(m.group(1)) if m else None
                wait(vm, lg); continue
            if k == "nop":
                emit(op.text, 0 if op.meta.get("cond") else int(op.text.split()[1]) + 1); continue
            touched = op.rd | op.wr | set(op.meta.get('also', ()))
            lg = vm = None
            for i, o in enumerate(lds_q):
                if o.wr & touched: lg = len(lds_q) - 1 - i
            for i, o in enumerate(vm_q):
                if o.wr & touched: vm = len(vm_q) - 1 - i
            if smem_pending & touched: lg = 0
            if lg is not None or vm is not None: wait(vm, lg)
            need = 0
            def req(t, n):
                nonlocal need
                need = max(need, t + n + 1 - slot)
            if k == "mfma":
                for r in op.rd:
                    if r in w_valu: req(w_valu[r], 2)
                for r in op.srca + op.srcb:
                    if r in w_mfma: req(w_mfma[r], 8)
                for r in op.srcc:
                    if r in w_mfma and mfma_dst[r] != tuple(op.srcc): req(w_mfma[r], 6)
                for r in op.wr:
                    if r in w_mfma and mfma_dst[r] != tuple(sorted(op.wr)): req(w_mfma[r], 6)
            elif k in VALU_KINDS:
                for r in touched:
                    if r in w_mfma: req(w_mfma[r], 8)
                for r in op.wr:
                    if r in r_mfmac: req(r_mfmac[r], 3)
                    if r in st_data: req(st_data[r], 2)
                for r in op.rd:
                    if r in w_trans and k != "trans": req(w_trans[r], 1)
                    if r in w_vsgpr: req(w_vsgpr[r], 2)
                    if k == "perm" and r in w_valu: req(w_valu[r], 2)
                    if k == "rfl" and r in w_valu: req(w_valu[r], 1)
            elif k in ("dsr", "dsw", "vld", "vst", "dma"):
                for r in touched:
                    if r in w_mfma: req(w_mfma[r], 8)
                    if r in w_vsgpr and k in ("vld", "vst", "dma"): req(w_vsgpr[r], 5)
                for r in op.wr:
                    if r in st_data: req(st_data[r], 1)
                    if r in r_mfmac: req(r_mfmac[r], 3)
                if k == "dma": req(w_m0, 1)
            elif k == "salu":
                for r in op.rd:
                    if r in w_vsgpr: req(w_vsgpr[r], 1)
            if need > 0 and not op.meta.get("nohaz"):
                nnop += 1
                while need > 0:
                    n = min(need, 16); emit(f"s_nop {n-1}", n); need -= n
            here = slot
            events.append((len(out), "issue", op))
            skipped = op.meta.get("cond") or op.meta.get("uncounted")
            emit(op.text, 0 if (skipped or (k == "ctl" and (op.mn.endswith(":") or op.mn.startswith(".")))) else 1)
            for r in op.wr:
                for d in (w_valu, w_trans, w_mfma, w_vsgpr): d.pop(r, None)
            if k == "mfma":
                for r in op.wr: w_mfma[r] = here; mfma_dst[r] = tuple(sorted(op.wr))
                for r in op.srcc: r_mfmac[r] = here
            elif k in VALU_KINDS:
                for r in op.wr:
                    if r >= S0: w_vsgpr[r] = here
                    else: w_valu[r] = here
                    if k == "trans": w_trans[r] = here
            elif k == "salu" and M0 in op.wr:
                w_m0 = here
            elif k == "smem":
                smem_pending |= op.wr
            uncounted = op.meta.get("uncounted")
            if k in ("dsr", "dsw"): lds_q.append(op)
            if k in ("vld", "vst", "dma") and not uncounted:
                vm_q.append(op); assert len(vm_q) <= 63, "too many vector memory ops in flight"
            if k == "vst" and len(op.data) >= 3:
                for r in op.data: st_data[r] = here
        self.events = events
        if not getattr(self, 'nocheck', False): check_handoffs([events])
        if stats is not None:
            stats.update(waits=nwait, nops=nnop, lines=len(out))
        return out


def check_handoffs(streams):
    done = {}; issue = {}; fills = {}; uses = {}; nb = []
    for si, events in enumerate(streams):
        ep = 0
        for p, w, o in events:
            if w == "issue":
                issue[id(o)] = (si, p, ep)
                if o.kind == "bar": ep += 1
                for key in o.meta.get("fill", ()): fills.setdefault(key, []).append(o)
                for key in o.meta.get("use", ()): uses.setdefault(key, []).append(o)
            else: done[id(o)] = (si, p, ep)
        nb.append(ep)
    def same_wave(f, u, strong): return (f.meta.get("private") or (not strong and f.meta.get("wpriv"))) and u.meta.get("private") and issue[id(f)][0] == issue[id(u)][0]
    for key, us in uses.items():
        assert key in fills, f"read of {key} that nothing fills"
        for f in fills[key]:
            for u in us:
                if same_wave(f, u, True):
                    assert f.kind == "dsw" and issue[id(f)][1] < issue[id(u)][1], (key, f, u); continue
                assert id(f) in done, f"fill never waited for: {key} {f}"
                assert done[id(f)][2] < issue[id(u)][2], f"no barrier between fill and use of {key}: {f} -> {u}"
    for (reg, gen), fs in fills.items():
        for (r2, g2), us in uses.items():
            if r2 != reg or g2 >= gen: continue
            for f in fs:
                for u in us:
                    if same_wave(f, u, False) and f.kind == "dsw":
                        assert issue[id(u)][1] < issue[id(f)][1], (reg, gen, f, u); continue
                    assert id(u) in done, f"use never waited for: {u}"
                    assert done[id(u)][2] < issue[id(f)][2], f"WAR on {reg}: gen {g2} use {u} vs gen {gen} fill {f}"
        for (r2, g2), f2s in fills.items():
            if r2 != reg or g2 >= gen: continue
            for f in fs:
                for f2 in f2s:
                    if issue[id(f)][0] == issue[id(f2)][0] and f.kind == f2.kind: continue
                    assert id(f2) in done and done[id(f2)][2] < issue[id(f)][2], f"WAW on {reg}: {f2} vs {f}"
    return nb
```

```python
import sys, struct
from common import *
from ops import Op, Stream, check_handoffs

def f2u(f): return struct.unpack("<I", struct.pack("<f", f))[0]
SCALE_LOG2E = 128 ** -0.5 * 1.4426950408889634
KNAME = NAME + "_kernel"

DEF = dict(
    nt_w="", nt_x="", nt_kv="nt", nt_wo="", bpos=17, bpos2=23, code_pf=1, dbg=0, rot=1, xrot=0, flip=0,
    stamps=("start", "g1", "att", "g2", "coll", "end"), lstamps=(),
    cl=8, nph=4, clx=(1, 5, 9, 13), first=5, prio_l=0, prio_c=0, cover=64, la=3, split1=4, x_nokv=0, x_noex=0, x_nomfma=0, x_nodma=0,
)

WS_ROT = 0
WS_SH = 16 << 20
WS_FL = 20 << 20
WS_DBG = 32 << 20
OOB = 0x40000000

SLOT = lambda s: 32768 * s
XR = 131072
SCR = 32768
G2SLOT = [0, 4, 3, 0, 4, 1, 2, 3] + [[0, 4, 1, 2, 3][(u - 8) % 5] for u in range(8, 20)]

sW, sJ, sRG, sR, sBR = 3, 6, 7, 8, 9
sPH, sKC, sRHO, sFLIP = 33, 34, 35, 32
SRD_X, SRD_K, SRD_V, SRD_WQ, SRD_WO, SRD_OUT, SRD_DBG, SRD_WS = 36, 40, 44, 48, 52, 56, 60, 64
sWQ0, sX0, sKV0, sWO0, sM8, sM2 = 68, 69, 70, 71, 72, 73
sT0, sT1, sT2, sT3 = 74, 75, 76, 77
sROT, sROTL, sSH, sSHL, sFLM, sFLD, sC, sHS, sSC = 78, 79, 80, 81, 82, 83, 84, 85, 86
sNEED, sSPIN, sKV = 87, 88, 89
sOUT0, sOUT1 = 90, 91
sST = 92
WSR = f"s[{SRD_WS}:{SRD_WS+3}]"; DBGR = f"s[{SRD_DBG}:{SRD_DBG+3}]"; OUTR = f"s[{SRD_OUT}:{SRD_OUT+3}]"

vL16, vFL, vFL0, vONE, vFLAG = 28, 29, 30, 31, 32
vT = 33
aW, aX, kR, vR = 1, 9, 11, 15
vOwr, vOrd = 23, 24
aO = 1
ABUF = 40; BB = 64; ACC = 128
PF = 40
A2 = 40; GACC = [72, 88]; ZSH = 104; PK = 112; ZSHL = 120; OF = 128
cID = 8
vFA, vFA2, vFB, vFB2, vOA, vOB, vOC, vZ = 14, 15, 16, 17, 18, 19, 20, 21
vW, vX, vWo, kW, vWr = 1, 9, 11, 15, 19
lID = 22
lZa = 21
KP, VP = 64, 128
LINC = 64
LZ = 200

def v(b, n=1): return vr(b, n)
def mfma(d, A, B, C=None): return Op(f"v_mfma_f32_16x16x32_bf16 {v(d,4)}, {A}, {B}, {v(d,4) if C is None else C}")
def cvt(d, s0): return Op(f"v_cvt_pk_bf16_f32 v{d}, v{s0}, v{s0+1}")
def ops(text): return [Op(x) for x in text.split("\n") if x.strip()]

class Ticks:
    def __init__(self): self.m = []; self.f = []
    def add(self, op): self.m.append(op); self.f.append([]); return len(self.m) - 1
    def put(self, t, o, prio=5):
        if not isinstance(o, (list, tuple)): o = [o]
        self.f[t].append((prio, len(self.f[t]), [Op(x) if isinstance(x, str) else x for x in o]))
    def spread(self, items, t0, t1, prio=5):
        n = len(items)
        for q, it in enumerate(items): self.put(t0 + (q * (t1 - t0 + 1)) // n, it, prio)
    def flush(self, st):
        for m, f in zip(self.m, self.f):
            st.add(m)
            for _, _, o in sorted(f, key=lambda x: (x[0], x[1])): st.add(o)

def weave(st, main, side, first=0):
    n, m = len(main), len(side); k = 0
    for i, o in enumerate(main):
        st.add(o)
        while k < m and i >= first and (k + 1) * (n - first) <= (i + 1 - first) * m: st.add(side[k]); k += 1
    while k < m: st.add(side[k]); k += 1

def build(path, **kw):
    P = dict(DEF); P.update(kw)
    BP, BP2 = P["bpos"], P["bpos2"]
    tail = []
    pro = Stream(); cs = Stream(); ls = Stream()
    for s in (pro, cs, ls): s.nocheck = True
    t0, t1, t2, t3, t4, t5, t6 = range(vT, vT + 7)
    nst = {"c": 0, "l": 0}
    def stamp(name, role="c"):
        if not P["dbg"] or name not in P["stamps" if role == "c" else "lstamps"]: return []
        nst[role] += 1; i = nst[role]; assert i <= 13
        return [Op(f"s_memtime s[{sST}:{sST+1}]"), Op("s_waitcnt lgkmcnt(0)"), Op(f"s_mov_b32 s{12+i}, s{sST}")]
    def dump():
        if not P["dbg"]: return []
        L = ops(f"""s_waitcnt vmcnt(0)
            s_memrealtime s[{sST}:{sST+1}]
            s_waitcnt lgkmcnt(0)
            v_writelane_b32 v{t6}, s{sST+2}, 0
            v_writelane_b32 v{t6}, s{sST}, 15
            v_writelane_b32 v{t6}, s{sST+4}, 14""")
        L += [Op(f"v_writelane_b32 v{t6}, s{12+i}, {i}") for i in range(1, 14)]
        L += ops(f"""s_lshl_b32 s{sT2}, s2, 3
            s_add_u32 s{sT2}, s{sT2}, s31
            s_lshl_b32 s{sT2}, s{sT2}, 8
            s_add_u32 s{sT2}, s{sT2}, {WS_DBG}
            v_lshlrev_b32 v{t0}, 2, v0
            buffer_store_dword v{t6}, v{t0}, {WSR}, s{sT2} offen""")
        return L
    BAR = lambda: Op("s_barrier")
    def mksrd(dst, ptr, n): return ops(f"s_mov_b32 s{dst}, s{ptr}\ns_mov_b32 s{dst+1}, s{ptr+1}\ns_mov_b32 s{dst+2}, {n}\ns_mov_b32 s{dst+3}, 0x00020000")
    def mod10(x, tmp): return f"s_sub_u32 s{tmp}, s{x}, 10\ns_min_u32 s{x}, s{x}, s{tmp}"
    def chunk_ops(p, dst):
        if p < 2: return [Op(f"s_mov_b32 s{dst}, {8+p}")]
        return [Op(f"s_add_u32 s{dst}, s{sJ}, {p-1}"), Op(f"s_and_b32 s{dst}, s{dst}, 7")]
    def src_ops(p, dst): return [Op(f"s_add_u32 s{dst}, s{sJ}, {9-p}"), Op(f"s_and_b32 s{dst}, s{dst}, 7")]
    def selector(ID):
        return ops(f"""v_and_b32 v{t0}, 1, v0
            v_lshlrev_b32 v{t0}, 4, v{t0}
            v_mov_b32 v{t1}, 0x3f80
            v_lshlrev_b32 v{t0}, v{t0}, v{t1}
            v_lshrrev_b32 v{t1}, 4, v0
            v_bfe_u32 v{t2}, v0, 2, 2
            v_cmp_eq_u32 vcc, v{t1}, v{t2}
            v_mov_b32 v{ID}, 0
            v_and_b32 v{t2}, 3, v0
            v_cndmask_b32 v{t0}, v{ID}, v{t0}, vcc
            v_cmp_gt_u32 vcc, 2, v{t2}
            v_mov_b32 v{ID+1}, 0
            v_mov_b32 v{ID+4}, 0
            v_cndmask_b32 v{ID+2}, v{ID}, v{t0}, vcc
            v_cndmask_b32 v{ID+3}, v{t0}, v{ID}, vcc
            v_mov_b32 v{ID+5}, 0""")
    nspin = [0]
    def poll(): return Op(f"buffer_load_dword v{vFLAG}, v{vFL}, {WSR}, s{sFLM} offen sc1")
    def check(ps):
        k = nspin[0]; nspin[0] += 1; L = []
        for q, p in enumerate(ps):
            L += src_ops(p, sT2)
            L.append(Op(f"s_lshl_b32 s{sNEED if q == 0 else sT2}, 1, s{sT2}"))
            if q: L.append(Op(f"s_or_b32 s{sNEED}, s{sNEED}, s{sT2}"))
        L += [Op(f"v_cmp_ne_u32 vcc, 0, v{vFLAG}"), Op(f"s_and_b32 s{sT2}, vcc_lo, s{sNEED}"), Op(f"s_cmp_lg_u32 s{sT2}, s{sNEED}"),
              Op(f"s_cbranch_scc1 L_spin{k}"), Op(f"L_back{k}:")]
        tail.extend([f"L_spin{k}:", f"s_mov_b32 s{sSPIN}, 0", f"L_spin{k}a:",
                     f"buffer_load_dword v{vFLAG}, v{vFL}, {WSR}, s{sFLM} offen sc1", "s_waitcnt vmcnt(0)",
                     f"v_cmp_ne_u32 vcc, 0, v{vFLAG}", f"s_add_u32 s{sSPIN}, s{sSPIN}, 1", f"s_cmp_gt_u32 s{sSPIN}, 100000", f"s_cbranch_scc1 L_back{k}",
                     f"s_and_b32 s{sT2}, vcc_lo, s{sNEED}", f"s_cmp_lg_u32 s{sT2}, s{sNEED}", f"s_cbranch_scc1 L_spin{k}a", f"s_branch L_back{k}"])
        return L
    def fetch(p, r):
        L = src_ops(p, sT2)
        if p < 9:
            L += [Op(f"s_lshl_b32 s{sT3}, s{sT2}, 13"), Op(f"s_add_u32 s{sT3}, s{sT3}, s{sROTL}"),
                  Op(f"buffer_load_dwordx4 {v(r,4)}, v{vL16}, {WSR}, s{sT3} offen sc1"),
                  Op(f"buffer_load_dwordx4 {v(r+4,4)}, v{vL16}, {WSR}, s{sT3} offen offset:1024 sc1")]
        L += [Op(f"s_lshl_b32 s{sT3}, s{sT2}, 11"), Op(f"s_add_u32 s{sT3}, s{sT3}, s{sSHL}"),
              Op(f"buffer_load_dwordx4 {v(r+8,4)}, v{vL16}, {WSR}, s{sT3} offen sc1")]
        return L
    def addin(p, r, z, zs, ID, zero_z=False, zero_s=False):
        L = []
        if p < 9:
            for nt in range(2):
                for jt in range(2): L.append(mfma(z + 8 * nt + 4 * jt, v(ID + 2 - 2 * jt, 4), v(r + 4 * nt, 4), "0" if zero_z else None))
        for nt in range(2): L.append(mfma(zs + 4 * nt, v(ID + 2 - 2 * nt, 4), v(r + 8, 4), "0" if zero_s else None))
        return L

    A = pro.add
    A("s_cmp_ge_u32 s2, 256\ns_cbranch_scc1 L_end")
    if P["dbg"]: A(f"s_memtime s[{sST+2}:{sST+3}]\ns_memrealtime s[{sST+4}:{sST+5}]")
    A(f"s_bfe_u32 s{sBR}, s2, 0x10002\ns_mul_i32 s10, s{sBR}, 40\ns_add_u32 s4, s0, s10\ns_addc_u32 s5, s1, 0")
    A("s_load_dwordx8 s[12:19], s[4:5], 0\ns_load_dwordx2 s[20:21], s[4:5], 32\ns_load_dwordx4 s[24:27], s[0:1], 80\ns_load_dwordx2 s[28:29], s[0:1], 96")
    A(f"v_lshrrev_b32 v{t0}, 6, v0\nv_and_b32 v0, 63, v0\nv_readfirstlane_b32 s31, v{t0}")
    A(f"""s_and_b32 s10, s2, 3
        s_lshl_b32 s{sJ}, s10, 1
        s_bfe_u32 s11, s2, 0x10003
        s_add_u32 s{sJ}, s{sJ}, s11
        s_lshr_b32 s{sRG}, s2, 4
        s_lshl_b32 s{sR}, s{sBR}, 4
        s_add_u32 s{sR}, s{sR}, s{sRG}
        s_mov_b32 s{sRHO}, s{sRG}
        {mod10(sRHO, 30)}
        s_and_b32 s{sW}, s31, 3
        s_mov_b32 s{sFLIP}, 0""")
    if P["flip"]:
        A(f"s_mul_i32 s{sKC}, s{sRG}, 5\ns_lshr_b32 s{sKC}, s{sKC}, 2\ns_and_b32 s{sFLIP}, s{sKC}, 1\ns_lshr_b32 s{sKC}, s{sKC}, 1")
    else:
        A(f"s_mul_i32 s{sKC}, s{sRG}, 5\ns_lshr_b32 s{sKC}, s{sKC}, 3")
    A(f"s_mul_i32 s11, s11, 5\ns_add_u32 s{sKC}, s{sKC}, s11\n{mod10(sKC, 30)}")
    if P["xrot"]: A(f"s_mul_i32 s10, s10, {P['xrot']}\ns_add_u32 s{sKC}, s{sKC}, s10\n{mod10(sKC, 30)}")
    if not P["rot"]: A(f"s_mov_b32 s{sKC}, 0\ns_mov_b32 s{sRHO}, 0")
    A(f"v_lshlrev_b32 v{vL16}, 4, v0\ns_lshl_b32 s{sSC}, s{sW}, 14\ns_add_u32 s{sSC}, s{sSC}, {SCR}\ns_lshl_b32 s{sM2}, s{sW}, 11")
    A("s_cmp_ge_u32 s31, 4\ns_cbranch_scc1 L_loader")

    def exchange_setup():
        return mksrd(SRD_WS, 28, 268435456) + ops(f"""s_lshl_b32 s10, s{sR}, 19
            s_add_u32 s10, s10, s{sM2}
            s_lshl_b32 s11, s{sJ}, 13
            s_add_u32 s{sROT}, s10, s11
            s_lshl_b32 s11, s{sJ}, 16
            s_add_u32 s{sROTL}, s10, s11
            s_lshl_b32 s10, s{sR}, 17
            s_and_b32 s11, s{sW}, 1
            s_lshl_b32 s11, s11, 10
            s_add_u32 s10, s10, s11
            s_add_u32 s10, s10, {WS_SH}
            s_lshl_b32 s11, s{sJ}, 11
            s_add_u32 s{sSH}, s10, s11
            s_lshr_b32 s11, s{sW}, 1
            s_lshl_b32 s30, s11, 15
            s_add_u32 s{sSH}, s{sSH}, s30
            s_lshl_b32 s30, s{sJ}, 14
            s_add_u32 s{sSHL}, s10, s30
            s_bfe_u32 s30, s{sJ}, 0x10001
            s_cmp_eq_u32 s30, s11
            s_cselect_b32 s{sSHL}, s{sSHL}, {OOB}
            s_lshl_b32 s10, s{sR}, 15
            s_lshl_b32 s11, s{sW}, 10
            s_add_u32 s10, s10, s11
            s_add_u32 s10, s10, {WS_FL}
            s_lshl_b32 s11, s{sJ}, 7
            s_add_u32 s{sFLD}, s10, s11
            s_lshl_b32 s11, s{sJ}, 12
            s_add_u32 s{sFLM}, s10, s11
            v_mov_b32 v{t0}, {OOB}
            v_lshlrev_b32 v{t1}, 7, v0
            v_cmp_gt_u32 vcc, 8, v0
            v_mov_b32 v{t2}, 0
            v_mov_b32 v{vONE}, 1
            v_cndmask_b32 v{vFL}, v{t0}, v{t1}, vcc
            v_cmp_eq_u32 vcc, 0, v0
            s_nop 1
            v_cndmask_b32 v{vFL0}, v{t0}, v{t2}, vcc""")

    A = ls.add
    def dma_w(t):
        kc, dh = t // 2, t % 2; s = t % 4; g = ("W", t); items = []
        if dh == 0:
            for q in range(2):
                it = []
                if q == 0:
                    if kc: it += [Op(f"s_add_u32 s{sKC}, s{sKC}, 1"), Op(f"s_cmp_eq_u32 s{sKC}, 10"), Op(f"s_cselect_b32 s{sKC}, 0, s{sKC}")]
                    it += [Op(f"s_lshl_b32 s{sT1}, s{sKC}, 7"), Op(f"s_add_u32 s{sT1}, s{sT1}, s{sX0}"),
                           Op(f"s_lshl_b32 s{sT0}, s{sKC}, 19"), Op(f"s_add_u32 s{sT0}, s{sT0}, s{sWQ0}"),
                           Op(f"s_add_u32 m0, s{sM2}, {XR + (kc%2)*8192}")]
                it.append(Op(f"buffer_load_dwordx4 v{vX+q}, s[{SRD_X}:{SRD_X+3}], s{sT1} offen offset:{q*1024} {P['nt_x']} lds", group=g, fill=[(f"X{kc%2}", kc)]))
                items.append(it)
        for q in range(8):
            it = []
            if q == 0 and dh == 1: it.append(Op(f"s_xor_b32 s{sT0}, s{sT0}, 128"))
            if q % 4 == 0: it.append(Op(f"s_add_u32 m0, s{sM8}, {SLOT(s) + (q//4)*4096}"))
            it.append(Op(f"buffer_load_dwordx4 v{vW+q}, s[{SRD_WQ}:{SRD_WQ+3}], s{sT0} offen offset:{(q%4)*1024} {P['nt_w']} lds", group=g, fill=[(f"S{s}", t)]))
            items.append(it)
        return items
    def dma_o(u):
        p, hh = u // 2, u % 2; s = G2SLOT[u]; g = ("O", u); items = []
        fill = [(f"S{s}", 200 + u)] + ([("X0", 200 + u), ("X1", 200 + u)] if s == 4 else [])
        for q in range(8):
            it = []
            if q == 0:
                it += chunk_ops(p, sT0) + ops(f"s_add_u32 s{sT0}, s{sT0}, s{sRHO}\n{mod10(sT0, sT1)}\ns_lshl_b32 s{sT0}, s{sT0}, 7\ns_add_u32 s{sT0}, s{sT0}, s{sWO0}")
                if hh: it.append(Op(f"s_add_u32 s{sT0}, s{sT0}, {256*1280}"))
            if q == 4: it.append(Op(f"s_add_u32 s{sT0}, s{sT0}, 40960"))
            if q % 4 == 0: it.append(Op(f"s_add_u32 m0, s{sM8}, {SLOT(s) + (q//4)*4096}"))
            it.append(Op(f"buffer_load_dwordx4 v{vWo+q%4}, s[{SRD_WO}:{SRD_WO+3}], s{sT0} offen offset:{(q%4)*1024} {P['nt_wo']} lds", group=g, fill=fill))
            items.append(it)
        return items
    def park(n):
        srd_ = SRD_K if n < 16 else SRD_V; m = n % 16; it = []
        if m % 4 == 0: it.append(Op(f"s_add_u32 s{sKV}, s{sKV0}, {(m//8)*262144 + ((m%8)//4)*4096}"))
        it.append(Op(f"buffer_load_dwordx4 {v(KP+4*n,4)}, v{vL16}, s[{srd_}:{srd_+3}], s{sKV} offen offset:{(m%4)*1024} {P['nt_kv']}"))
        return it
    A("L_loader:")
    if P["prio_l"]: A(f"s_setprio {P['prio_l']}")
    A(f"""v_lshrrev_b32 v{t0}, 5, v0
        v_bfe_u32 v{t1}, v0, 1, 3
        v_xor_b32 v{t1}, v{t1}, v{t0}
        v_and_b32 v{t2}, 4, v{t1}
        v_and_b32 v{t1}, 3, v{t1}
        v_lshlrev_b32 v{t2}, 6, v{t2}
        v_lshl_or_b32 v{t1}, v{t1}, 5, v{t2}
        v_and_b32 v{t2}, 1, v0
        v_lshl_or_b32 v{t1}, v{t2}, 4, v{t1}
        v_bfe_u32 v{t2}, v0, 4, 1
        v_lshl_or_b32 v{t1}, v{t2}, 9, v{t1}
        v_lshl_or_b32 v{t1}, v{t0}, 13, v{t1}""")
    for q in range(8):
        cq = 2 * (q & 1) + 4 * (q >> 2); tc = ((cq & 4) << 6) | ((cq & 3) << 5)
        A(f"v_xor_b32 v{vW+q}, {tc}, v{t1}")
        if q: A(f"v_add_u32 v{vW+q}, {16384*q - 1024*(q&3)}, v{vW+q}")
    A(f"""v_lshrrev_b32 v{t0}, 3, v0
        v_and_b32 v{t1}, 7, v0
        v_lshrrev_b32 v{t2}, 4, v0
        v_mul_u32_u24 v{t0}, 1280, v{t0}
        v_xor_b32 v{t3}, v{t1}, v{t2}
        v_lshl_add_u32 v{vX}, v{t3}, 4, v{t0}
        v_xor_b32 v{t3}, 4, v{t3}
        v_lshl_add_u32 v{vX+1}, v{t3}, 4, v{t0}
        v_add_u32 v{vX+1}, 9216, v{vX+1}
        v_lshlrev_b32 v{t2}, 1, v{t2}
        v_xor_b32 v{t3}, v{t1}, v{t2}
        v_lshl_add_u32 v{vWo}, v{t3}, 4, v{t0}
        s_lshl_b32 s{sWQ0}, s{sJ}, 10
        s_lshl_b32 s10, s{sW}, 17
        s_add_u32 s{sWQ0}, s{sWQ0}, s10
        s_lshl_b32 s10, s{sFLIP}, 7
        s_add_u32 s{sWQ0}, s{sWQ0}, s10
        s_lshl_b32 s10, s{sRG}, 2
        s_add_u32 s10, s10, s{sW}
        s_mul_i32 s{sX0}, s10, 20480
        s_lshl_b32 s{sM8}, s{sW}, 13
        s_mov_b32 s{SRD_X+2}, {SZ['x']}
        s_mov_b32 s{SRD_X+3}, 0x00020000
        s_mov_b32 s{SRD_WQ+2}, {SZ['wq']}
        s_mov_b32 s{SRD_WQ+3}, 0x00020000
        s_waitcnt lgkmcnt(0)
        s_mov_b32 s{SRD_X}, s12
        s_mov_b32 s{SRD_X+1}, s13
        s_mov_b32 s{SRD_WQ}, s18
        s_mov_b32 s{SRD_WQ+1}, s19""")
    A(dma_w(0))
    rest = []
    if P["code_pf"]:
        rest += ops(f"""s_getpc_b64 s[22:23]
            s_lshr_b32 s10, s2, 3
            s_lshl_b32 s10, s10, 11
            v_and_b32 v{t0}, 15, v0
            v_lshlrev_b32 v{t0}, 7, v{t0}
            v_add_u32 v{t0}, s10, v{t0}
            v_min_u32 v{t0}, CODE_SPAN, v{t0}
            s_sub_u32 s22, s22, CODE_BACK
            s_subb_u32 s23, s23, 0
            global_load_dword v{t5}, v{t0}, s[22:23]""")
        A(rest[:1]); A("L_pc:"); A(rest[1:]); rest = []
    rest += mksrd(SRD_K, 14, SZ["k"]) + mksrd(SRD_V, 16, SZ["v"]) + mksrd(SRD_WO, 20, SZ["wo"]) + mksrd(SRD_DBG, 26, 256)
    rest += exchange_setup()
    rest += [Op(f"v_mov_b32 v{t3}, 0"), Op(f"buffer_store_dword v{t3}, v{vFL}, {WSR}, s{sFLM} offen sc1")]
    rest += ops(f"""s_lshl_b32 s10, s{sRG}, 6
        s_lshl_b32 s11, s{sJ}, 2
        s_add_u32 s10, s10, s11
        s_add_u32 s10, s10, s{sW}
        s_lshl_b32 s{sKV0}, s10, 13
        s_lshl_b32 s10, s{sJ}, 3
        s_add_u32 s10, s10, s{sW}
        s_mul_i32 s{sWO0}, s10, 81920
        s_and_b32 s{sHS}, s{sR}, 7
        s_lshl_b32 s10, s{sW}, 3
        s_add_u32 s{sHS}, s{sHS}, s10
        s_lshr_b32 s{sPH}, s2, 3
        s_and_b32 s{sPH}, s{sPH}, {P['nph']-1}""")
    for q in range(1, 4): rest.append(Op(f"v_add_u32 v{vWo+q}, {9216*q}, v{vWo}"))
    rest += ops(f"""v_and_b32 v{t0}, 15, v0
        v_lshrrev_b32 v{t1}, 4, v0
        v_lshrrev_b32 v{t2}, 2, v{t0}
        v_and_b32 v{t3}, 1, v{t0}
        v_lshl_or_b32 v{t2}, v{t2}, 1, v{t3}
        v_lshrrev_b32 v{t4}, 1, v{t1}
        v_xor_b32 v{t2}, v{t2}, v{t4}
        v_lshlrev_b32 v{t2}, 4, v{t2}
        v_bfe_u32 v{t4}, v{t0}, 1, 1
        v_lshl_or_b32 v{t2}, v{t4}, 3, v{t2}
        v_lshl_or_b32 v{t2}, v{t1}, 7, v{t2}
        v_add_u32 v{kW}, s{sSC}, v{t2}
        v_xor_b32 v{kW+1}, 32, v{kW}
        v_xor_b32 v{kW+2}, 64, v{kW}
        v_xor_b32 v{kW+3}, 0x60, v{kW}
        v_lshrrev_b32 v{t2}, 1, v{t0}
        v_xor_b32 v{t2}, v{t2}, v{t1}
        v_lshlrev_b32 v{t2}, 5, v{t2}
        v_lshl_or_b32 v{t2}, v{t3}, 4, v{t2}
        v_lshl_or_b32 v{t2}, v{t1}, 8, v{t2}
        v_add_u32 v{vWr}, s{sSC}, v{t2}
        v_xor_b32 v{vWr+1}, 128, v{vWr}""")
    rest += selector(lID)
    ZS = G2SLOT[15]; FS = G2SLOT[17]
    rest += ops(f"s_mul_i32 s10, s{sW}, 6144\ns_add_u32 s10, s10, {SLOT(ZS)}\nv_add_u32 v{lZa}, s10, v{vL16}")
    g1 = dma_w(1); nf = P["first"]
    side = g1[:nf]; k = 0
    for i, o in enumerate(rest):
        A(o)
        if k < len(side) and (k + 1) * len(rest) <= (i + 1) * len(side) and not o.mn.startswith("s_cmp"): A(side[k]); k += 1
    A(side[k:])
    A(stamp("lstart", "l"))
    def lbar(group): return [Op("WAITG", group=group, lds=True), BAR()]
    A(lbar(("W", 0)))
    LA = P["la"]
    A(g1[nf:])
    for t in range(2, LA + 1): A(dma_w(t))
    A(lbar(("W", 1)))
    CL = P["cl"]; clx = P["clx"]; assert len(clx) * CL == 32
    SCRF = lambda gen: [("S1", gen), ("S2", gen)]
    for x in range(1, 20):
        for c, xc in enumerate(clx):
            for ph in range(P["nph"]):
                if xc + ph != x: continue
                o = [y for n in range(c * CL, (c + 1) * CL) for y in park(n)]
                if P["nph"] > 1:
                    assert x + LA <= 19
                    for y in o: y.meta["uncounted" if y.kind == "vld" else "cond"] = True
                    o = [Op(f"s_cmp_lg_u32 s{sPH}, {ph}"), Op(f"s_cbranch_scc1 L_cl{c}_{ph}")] + o + [Op(f"L_cl{c}_{ph}:")]
                A(o)
        if 4 <= x < 12:
            q = x - 4
            A([Op(f"s_cmp_lg_u32 s{sHS}, {q}"), Op(f"s_cbranch_scc1 L_hs{q}"), Op(f"s_lshl_b32 s{sT2}, s{sR}, 3", cond=True),
               Op(f"buffer_atomic_add v{vONE}, v{vFL0}, {DBGR}, s{sT2} offen sc1", uncounted=True), Op(f"L_hs{q}:")])
        if x == 15:
            A([Op(f"s_cmp_lg_u32 s{sW}, 0"), Op("s_cbranch_scc1 L_hsl"), Op(f"s_lshl_b32 s{sT2}, s{sR}, 3", cond=True),
               Op(f"buffer_load_dword v{vFLAG}, v{vFL0}, {DBGR}, s{sT2} offen sc1", uncounted=True), Op("L_hsl:")])
        if x + LA <= 19: A(dma_w(x + LA))
        if x == 17: A(dma_o(0))
        if x == 19:
            A([Op(f"ds_write2st64_b64 v{kW+(n&3)}, {v(KP+4*n,2)}, {v(KP+4*n+2,2)} offset0:{2*n} offset1:{2*n+1}", fill=SCRF(100)) for n in range(16)])
            A([Op(f"s_cmp_lg_u32 s{sW}, 0"), Op("s_cbranch_scc1 L_hsc"),
               Op(f"v_readfirstlane_b32 s{sT3}, v{vFLAG}", cond=True), Op("s_nop 1", cond=True), Op(f"s_cmp_lt_u32 s{sT3}, 8", cond=True, nohaz=True),
               Op("s_cbranch_scc1 L_hs_spin", cond=True), Op("L_hsc:")])
            tail.extend(["L_hs_spin:", f"s_mov_b32 s{sSPIN}, 0", "L_hs_spin1:", f"s_lshl_b32 s{sT2}, s{sR}, 3",
                 f"buffer_load_dword v{vFLAG}, v{vFL0}, {DBGR}, s{sT2} offen sc1", "s_waitcnt vmcnt(0)",
                 f"v_readfirstlane_b32 s{sT3}, v{vFLAG}", f"s_add_u32 s{sSPIN}, s{sSPIN}, 1", f"s_cmp_gt_u32 s{sSPIN}, 100000", "s_cbranch_scc1 L_hsc",
                 f"s_cmp_lt_u32 s{sT3}, 8", "s_cbranch_scc1 L_hs_spin1", "s_branch L_hsc"])
            A([Op("WAITL"), BAR()])
        else: A(lbar(("W", x + 1)))
        A(stamp(f"l{x}", "l"))
    d1 = dma_o(1); A(d1[:P["split1"]])
    A(BAR())
    A([Op(f"ds_write_b128 v{vWr+(n&1)}, {v(VP+4*n,4)} offset:{n*1024}", fill=SCRF(101)) for n in range(16)])
    A([Op("WAITL"), BAR()])
    A(d1[P["split1"]:]); A(dma_o(2))
    A(lbar(("O", 0)))
    wins = {1: [3], 2: [4, 5], 3: [6, 7]}
    for x in range(4, 16): wins[x] = [x + 4]
    inc = lambda k: LINC + 12 * k
    for x in range(0, 20):
        for u in wins.get(x, []): A(dma_o(u))
        if x == 12: A(poll())
        if x == 13: A(check([2, 3]) + fetch(2, inc(0)) + fetch(3, inc(1)) + fetch(9, inc(5)))
        if x == 15: A(poll())
        if x == 16: A(addin(2, inc(0), LZ, LZ + 16, lID, True, True) + addin(3, inc(1), LZ, LZ + 16, lID) + addin(9, inc(5), LZ, LZ + 16, lID) + check([4]) + fetch(4, inc(2)) + [poll()])
        if x == 17: A(check([5]) + fetch(5, inc(3)) + addin(4, inc(2), LZ, LZ + 16, lID))
        if x == 18: A([poll()] + addin(5, inc(3), LZ, LZ + 16, lID))
        if x == 19:
            A(check([6]) + fetch(6, inc(4)) + addin(6, inc(4), LZ, LZ + 16, lID))
            A([Op(f"ds_write_b128 v{lZa}, {v(LZ+4*q,4)} offset:{q*1024}", fill=[(f"S{ZS}", 290)]) for q in range(6)])
            A([Op("WAITL"), BAR()])
        else: A(lbar(("O", x + 1)))
        A(stamp(f"m{x}", "l"))
    A(dump())
    A("s_endpgm")

    A = cs.add
    if P["prio_c"]: A(f"s_setprio {P['prio_c']}")
    l16, g, r, c4, f3 = t0, t1, t2, t3, t4
    u0, u1 = ABUF, ABUF + 1
    lanebits = f"""v_and_b32 v{l16}, 15, v0
        v_lshrrev_b32 v{g}, 4, v0
        v_bfe_u32 v{r}, v0, 2, 2
        v_and_b32 v{c4}, 3, v0"""
    A(lanebits)
    A(f"""v_and_b32 v{f3}, 1, v{g}
        v_lshl_or_b32 v{f3}, v{f3}, 2, v{r}
        s_and_b32 s10, s{sW}, 1
        s_lshl_b32 s10, s10, 2
        s_lshr_b32 s11, s{sW}, 1
        s_lshl_b32 s11, s11, 8
        v_lshl_add_u32 v{u0}, v{g}, 3, v{r}
        v_lshlrev_b32 v{u0}, 9, v{u0}
        v_lshl_or_b32 v{u0}, v{c4}, 3, v{u0}
        v_add_u32 v{u0}, s11, v{u0}
        v_xor_b32 v{u1}, s10, v{f3}
        v_lshl_or_b32 v{u0}, v{u1}, 5, v{u0}""")
    for i in range(4): A(f"v_xor_b32 v{aW+i}, {32*i}, v{u0}\nv_add_u32 v{aW+4+i}, 0x10000, v{aW+i}")
    A(f"""v_lshrrev_b32 v{u1}, 1, v{l16}
        v_xor_b32 v{u1}, v{u1}, v{g}
        v_lshlrev_b32 v{u1}, 4, v{u1}
        v_lshl_or_b32 v{u1}, v{l16}, 7, v{u1}
        v_add_u32 v{aX}, {XR}, v{u1}
        v_xor_b32 v{aX+1}, 64, v{aX}
        v_lshl_add_u32 v{u0}, v{g}, 2, v{r}
        v_lshlrev_b32 v{u0}, 8, v{u0}
        v_lshl_or_b32 v{u0}, v{c4}, 3, v{u0}
        v_lshl_or_b32 v{u0}, v{f3}, 5, v{u0}
        v_add_u32 v{u0}, s{sSC}, v{u0}""")
    for i in range(8): A(f"v_xor_b32 v{vR+i}, {32*i}, v{u0}")
    A(f"""v_lshrrev_b32 v{u0}, 1, v{g}
        v_lshrrev_b32 v{u1}, 1, v{l16}
        v_xor_b32 v{u0}, v{u0}, v{u1}
        v_lshlrev_b32 v{u0}, 4, v{u0}
        v_lshl_or_b32 v{u0}, v{c4}, 7, v{u0}
        v_and_b32 v{u1}, 1, v{g}
        v_lshl_or_b32 v{u0}, v{u1}, 9, v{u0}
        v_lshl_or_b32 v{u0}, v{r}, 10, v{u0}
        s_lshl_b32 s10, s{sFLIP}, 6
        s_add_u32 s11, s10, s{sSC}
        v_xor_b32 v{u0}, s11, v{u0}""")
    for sd in range(4): A(f"v_xor_b32 v{kR+sd}, {32*sd}, v{u0}")
    A(f"""s_lshr_b32 s10, s{sW}, 1
        s_lshl_b32 s10, s10, 11
        s_add_u32 s10, s10, {SCR}
        v_add_u32 v{vOrd}, s10, v{vL16}
        v_add_u32 v{vOwr}, s{sSC}, v{vL16}
        s_mov_b32 s{sC}, {f2u(SCALE_LOG2E)}
        s_waitcnt lgkmcnt(0)""")
    A(exchange_setup()); A(mksrd(SRD_OUT, 24, SZ["out"]))
    A(f"""s_mul_i32 s10, s{sRG}, {64*2560}
        s_mul_i32 s11, s{sBR}, 1280
        s_add_u32 s10, s10, s11
        s_mul_i32 s11, s{sW}, {16*2560}
        s_add_u32 s{sOUT0}, s10, s11
        s_add_u32 s11, s{sJ}, s{sRHO}
        {mod10(11, 30)}
        s_lshl_b32 s11, s11, 7
        s_add_u32 s{sOUT0}, s{sOUT0}, s11
        s_and_b32 s11, s{sJ}, 3
        s_lshl_b32 s11, s11, 2
        s_add_u32 s11, s11, s{sW}
        s_mul_i32 s11, s11, {4*2560}
        s_add_u32 s10, s10, s11
        s_lshr_b32 s11, s{sJ}, 2
        s_add_u32 s11, s11, 8
        s_add_u32 s11, s11, s{sRHO}
        {mod10(11, 30)}
        s_lshl_b32 s11, s11, 7
        s_add_u32 s{sOUT1}, s10, s11""")
    cbar = lambda: [Op("WAITL"), BAR()]

    def rdA1(t, i):
        s = t % 4; buf = ABUF + 8 * ((4 * t + i) % 3); ad = aW + 4 * (s // 2) + i; base = (s % 2) * 32768
        return [Op(f"ds_read_b64_tr_b16 {v(buf+4*ss+2*h,2)}, v{ad} offset:{base + ss*16384 + h*2048}", use=[(f"S{s}", t)]) for ss in range(2) for h in range(2)]
    def rdB(kc):
        return [Op(f"ds_read_b128 {v(BB+32*(kc%2)+8*jt+4*ss,4)}, v{aX+ss} offset:{(kc%2)*8192 + jt*2048}", use=[(f"X{kc%2}", kc)]) for jt in range(4) for ss in range(2)]
    A(BAR())
    A(stamp("start"))
    b0 = rdB(0); a0 = rdA1(0, 0)
    A(a0[:2] + b0[:1] + a0[2:] + b0[1:] + rdA1(0, 1))
    T = Ticks()
    for t in range(20):
        kc, dh = t // 2, t % 2
        for i in range(4):
            buf = ABUF + 8 * ((4 * t + i) % 3)
            for jt in range(4):
                for ss in range(2):
                    d = ACC + 16 * (4 * dh + i) + 4 * jt
                    T.add(mfma(d, v(buf + 4 * ss, 4), v(BB + 32 * (kc % 2) + 8 * jt + 4 * ss, 4), "0" if (kc == 0 and ss == 0) else None))
    for t in range(20):
        b = 32 * t
        for q, o in enumerate(rdA1(t, 2)): T.put(b + q, o, 2)
        for q, o in enumerate(rdA1(t, 3)): T.put(b + 8 + q, o, 2)
        T.put(b + BP, cbar(), 1)
        if t < 19:
            for q, o in enumerate(rdA1(t + 1, 0)): T.put(b + BP + q, o, 2)
            for q, o in enumerate(rdA1(t + 1, 1)): T.put(b + 24 + q, o, 2)
            if t % 2 == 1:
                for pos, o in zip([BP + 4, BP + 5, BP + 6, 28, 29, 30, 31, 32], rdB((t + 1) // 2)): T.put(b + pos, o, 3)
        T.put(b + 31, stamp(f"w{t}"), 9)
    def qreg(sd, j4): return ACC + 32 * sd + 4 * j4
    def pack(d, e): return [cvt(d, d), cvt(d + 1, d + 2), cvt(d + 2, e), cvt(d + 3, e + 2)]
    def qcvt(sd, j4): return pack(qreg(sd, j4), qreg(sd, j4) + 16)
    def krd(b, kt, sd): return Op(f"ds_read_b128 {v(BB+32*b+16*kt+4*sd,4)}, v{kR+sd} offset:{b*8192 + kt*4096}", use=SCRF(100), private=True)
    b18, b19 = 32 * 18, 32 * 19
    T.spread([o for j4 in range(4) for o in qcvt(0, j4)], b18 + 20, b18 + 31, 5)
    T.spread([o for j4 in range(4) for o in qcvt(1, j4)], b19 + 4, b19 + 16, 5)
    T.spread([o for j4 in range(4) for o in qcvt(2, j4)], b19 + 20, b19 + 31, 5)
    T.spread([krd(0, kt, sd) for sd in range(4) for kt in range(2)], b19 + BP, b19 + BP + 7, 4)
    T.flush(cs)
    A(stamp("g1"))

    def sreg(b, jt, kt): return ACC + 16 + 32 * b + 8 * jt + 4 * kt
    def softmax(b):
        tmp = ACC + 80 + 8 * b; pf = PF + 8 * b; L = []
        cols = [(sreg(b, c, 0), tmp + 4 * c) for c in range(2)]
        def both(f):
            for x, y in zip(f(*cols[0]), f(*cols[1])): L.extend([Op(x), Op(y)])
        both(lambda s, m: [f"v_max3_f32 v{m}, v{s}, v{s+1}, v{s+2}", f"v_max3_f32 v{m+1}, v{s+3}, v{s+4}, v{s+5}",
                           f"v_max3_f32 v{m}, v{m}, v{s+6}, v{s+7}", f"v_max_f32 v{m}, v{m}, v{m+1}", f"v_mov_b32 v{m+1}, v{m}",
                           f"v_permlane16_swap_b32 v{m}, v{m+1}", f"v_max_f32 v{m}, v{m}, v{m+1}", f"v_mov_b32 v{m+1}, v{m}",
                           f"v_permlane32_swap_b32 v{m}, v{m+1}", f"v_max_f32 v{m}, v{m}, v{m+1}", f"v_mul_f32 v{m}, s{sC}, v{m}"])
        both(lambda s, m: [f"v_fma_f32 v{s+q}, v{s+q}, s{sC}, -v{m}" for q in range(8)])
        both(lambda s, m: [f"v_exp_f32 v{s+q}, v{s+q}" for q in range(8)])
        both(lambda s, m: [f"v_add_f32 v{m}, v{s}, v{s+1}", f"v_add_f32 v{m+1}, v{s+2}, v{s+3}", f"v_add_f32 v{m+2}, v{s+4}, v{s+5}", f"v_add_f32 v{m+3}, v{s+6}, v{s+7}",
                           f"v_add_f32 v{m}, v{m}, v{m+1}", f"v_add_f32 v{m+2}, v{m+2}, v{m+3}", f"v_add_f32 v{m}, v{m}, v{m+2}", f"v_mov_b32 v{m+1}, v{m}",
                           f"v_permlane16_swap_b32 v{m}, v{m+1}", f"v_add_f32 v{m}, v{m}, v{m+1}", f"v_mov_b32 v{m+1}, v{m}",
                           f"v_permlane32_swap_b32 v{m}, v{m+1}", f"v_add_f32 v{m}, v{m}, v{m+1}", f"v_rcp_f32 v{m}, v{m}"])
        both(lambda s, m: [f"v_mul_f32 v{s+q}, v{s+q}, v{m}" for q in range(8)])
        for c in range(2):
            for q in range(4): L.append(cvt(pf + 4 * c + q, cols[c][0] + 2 * q))
        return L
    def vrd(b): return [Op(f"ds_read_b64_tr_b16 {v(BB+32*b+4*i+2*h,2)}, v{vR+i} offset:{b*8192 + h*4096}", use=SCRF(101), private=True) for i in range(8) for h in range(2)]
    def oreg(b, i, jt): return ACC + 16 * b + 32 * (i // 2) + 8 * (i % 2) + 4 * jt
    def pv(b): return [mfma(oreg(b, i, jt), v(BB + 32 * b + 4 * i, 4), v(PF + 8 * b + 4 * jt, 4), "0") for i in range(8) for jt in range(2)]
    def ocvt(b, s2, jt):
        d = oreg(b, 2 * s2, jt)
        return pack(d, d + 8) + [Op(f"ds_write_b128 v{vOwr}, {v(d,4)} offset:{(s2*4 + 2*b + jt)*1024}", fill=SCRF(102), wpriv=True)]
    T = Ticks()
    for b in range(2):
        for sd in range(4):
            for kt in range(2):
                for jt in range(2):
                    T.add(mfma(sreg(b, jt, kt), v(BB + 32 * b + 16 * kt + 4 * sd, 4), v(qreg(sd, 2 * b + jt), 4), "0" if sd == 0 else None))
    T.spread([krd(1, kt, sd) for sd in range(4) for kt in range(2)], 0, 3, 2)
    T.spread([o for j4 in range(2) for o in qcvt(3, j4)], 1, 6, 3)
    T.spread([o for j4 in range(2, 4) for o in qcvt(3, j4)], 7, 12, 3)
    T.put(8, cbar(), 1)
    sm0 = softmax(0); sm1 = softmax(1)
    T.spread(sm0[:22], 20, 31, 5)
    T.flush(cs)
    A(sm0[22:38]); A(BAR())
    weave(cs, sm0[38:], vrd(0) + vrd(1))
    weave(cs, sm1, pv(0), first=2)
    T = Ticks()
    for o in pv(1): T.add(o)
    T.spread([o for s2 in range(4) for jt in range(2) for o in ocvt(0, s2, jt)], 0, 11, 5)
    T.spread([o for jt in range(2) for o in ocvt(1, 0, jt)], 12, 15, 5)
    T.flush(cs)
    A(lanebits)
    A(f"""v_lshl_add_u32 v{t4}, v{g}, 2, v{r}
        v_bfe_u32 v{t5}, v{t4}, 1, 2
        s_and_b32 s10, s{sW}, 1
        s_lshl_b32 s10, s10, 1
        v_xor_b32 v{t5}, s10, v{t5}
        v_lshlrev_b32 v{t5}, 5, v{t5}
        v_lshl_or_b32 v{t5}, v{c4}, 3, v{t5}
        v_lshl_or_b32 v{aO}, v{t4}, 7, v{t5}
        v_xor_b32 v{aO+1}, 32, v{aO}""")
    for q in range(1, 3): A(f"v_add_u32 v{aO+2*q}, {q*65536}, v{aO}\nv_add_u32 v{aO+2*q+1}, {q*65536}, v{aO+1}")
    for s2 in range(1, 4):
        for jt in range(2): A(ocvt(1, s2, jt))
    A(stamp("att"))

    def rdA2(u, n):
        s = G2SLOT[u]; buf = A2 + 8 * (n % 4); ad = aO + 2 * (s // 2) + n % 2; base = (s % 2) * 32768
        return [Op(f"ds_read_b64_tr_b16 {v(buf+4*ss+2*h,2)}, v{ad} offset:{base + (2*(n//2)+ss)*4096 + h*2048}", use=[(f"S{s}", 200 + u)]) for ss in range(2) for h in range(2)]
    def rdO(kp): return [Op(f"ds_read_b128 {v(OF+8*ks+4*jt,4)}, v{vOrd} offset:{ks*4096 + jt*1024}", use=SCRF(102)) for jt in range(2) for ks in (2 * kp, 2 * kp + 1)]
    A(cbar())
    a0 = rdA2(0, 0); o0 = rdO(0)
    A(a0[:2] + o0[:1] + a0[2:] + o0[1:] + rdA2(0, 1) + rdA2(0, 2) + rdO(1))
    T = Ticks()
    for u in range(20):
        p, hh = u // 2, u % 2
        for n in range(8):
            buf = A2 + 8 * (n % 4)
            for jt in range(2):
                for ss in range(2):
                    ks = 8 * hh + 2 * (n // 2) + ss
                    T.add(mfma(GACC[p % 2] + 8 * (n % 2) + 4 * jt, v(buf + 4 * ss, 4), v(OF + 8 * ks + 4 * jt, 4), "0" if ks == 0 else None))
    for u in range(20):
        b = 32 * u
        for n in range(3, 8):
            for q, o in enumerate(rdA2(u, n)): T.put(b + 4 * (n - 3) + q, o, 2)
        if u < 19:
            T.put(b + BP2, cbar(), 1)
            for q, o in enumerate(rdA2(u + 1, 0) + rdA2(u + 1, 1)): T.put(b + BP2 + q // 2, o, 2)
            for q, o in enumerate(rdA2(u + 1, 2)): T.put(b + 28 + q, o, 2)
        T.put(b + 31, stamp(f"o{u}"), 9)
    for kp in range(2, 8): T.spread(rdO(kp), 8 * (kp - 2), 8 * (kp - 2) + 7, 3)
    S_ = lambda u, pos: 32 * u + pos
    T.spread(selector(cID), S_(3, 0), S_(3, 20), 5)
    for p in range(9):
        b = 32 * (2 * p + 2); ac = GACC[p % 2]; L = []; gp = ("P", p)
        for nt in range(2):
            for jt in range(2):
                d = PK + (4 * jt + 2 * nt if p < 2 else 4 * nt + 2 * jt)
                L += [cvt(d, ac + 8 * nt + 4 * jt), cvt(d + 1, ac + 8 * nt + 4 * jt + 2)]
        T.spread(L, b + 3, b + 6, 4)
        if p < 2:
            for jt in range(2):
                T.put(b + 7 + 2 * jt, [Op(f"s_add_u32 s{sT2}, s{sSH}, {(4*p+jt)*16384}"),
                      Op(f"buffer_store_dwordx4 {v(PK+4*jt,4)}, v{vL16}, {WSR}, s{sT2} offen sc1", group=gp)], 4)
        else:
            T.put(b + 7, chunk_ops(p, sT2) + [Op(f"s_lshl_b32 s{sT3}, s{sT2}, 16"), Op(f"s_add_u32 s{sT3}, s{sT3}, s{sROT}"),
                  Op(f"buffer_store_dwordx4 {v(PK,4)}, v{vL16}, {WSR}, s{sT3} offen sc1", group=gp)], 4)
            T.put(b + 9, Op(f"buffer_store_dwordx4 {v(PK+4,4)}, v{vL16}, {WSR}, s{sT3} offen offset:1024 sc1", group=gp), 4)
            fl = [Op("WAITG", group=gp)] + chunk_ops(p, sT2) + [Op(f"s_lshl_b32 s{sT2}, s{sT2}, 12"), Op(f"s_add_u32 s{sT2}, s{sT2}, s{sFLD}"),
                  Op(f"buffer_store_dword v{vONE}, v{vFL0}, {WSR}, s{sT2} offen sc1")]
            if b + P["cover"] <= 639: T.put(b + P["cover"], fl, 1.7)
            else: final_flag = fl
    T.spread(ops(f"""v_and_b32 v{t0}, 15, v0
        v_lshrrev_b32 v{t1}, 4, v0
        v_lshrrev_b32 v{t2}, 1, v{t1}
        s_and_b32 s10, s{sW}, 1
        s_lshl_b32 s10, s10, 2
        v_add_u32 v{t2}, s10, v{t2}
        v_and_b32 v{t3}, 7, v0
        v_xor_b32 v{t2}, v{t2}, v{t3}
        v_lshlrev_b32 v{t2}, 4, v{t2}
        v_and_b32 v{t1}, 1, v{t1}
        v_lshl_or_b32 v{t2}, v{t1}, 3, v{t2}
        v_lshl_or_b32 v{t2}, v{t0}, 7, v{t2}
        s_lshr_b32 s10, s{sW}, 1
        s_lshl_b32 s11, s10, 12
        s_add_u32 s11, s11, {SLOT(FS)}
        v_add_u32 v{vFA}, s11, v{t2}
        s_bfe_u32 s11, s{sJ}, 0x10001
        s_xor_b32 s11, s11, s10
        s_lshl_b32 s11, s11, 11
        s_add_u32 s11, s11, {SLOT(FS) + 8192}
        v_add_u32 v{vFA2}, s11, v{t2}
        v_lshrrev_b32 v{t0}, 3, v0
        v_xor_b32 v{t2}, v{t0}, v{t3}
        v_lshlrev_b32 v{t2}, 4, v{t2}
        v_lshl_or_b32 v{t2}, v{t0}, 7, v{t2}
        s_add_u32 s11, s{sM2}, {SLOT(FS)}
        v_add_u32 v{vFB}, s11, v{t2}
        v_mul_u32_u24 v{t1}, 2560, v{t0}
        v_lshl_or_b32 v{vOA}, v{t3}, 4, v{t1}
        v_add_u32 v{vOB}, {8*2560}, v{vOA}
        s_lshl_b32 s11, s{sW}, 2
        v_add_u32 v{t0}, s11, v{t0}
        v_and_b32 v{t1}, 7, v{t0}
        v_xor_b32 v{t1}, v{t1}, v{t3}
        v_lshlrev_b32 v{t1}, 4, v{t1}
        v_and_b32 v{t0}, 15, v{t0}
        v_lshl_or_b32 v{t1}, v{t0}, 7, v{t1}
        v_add_u32 v{vFB2}, {SLOT(FS) + 8192}, v{t1}
        v_mov_b32 v{t1}, {OOB}
        v_cmp_gt_u32 vcc, 32, v0
        s_mul_i32 s10, s{sW}, 6144
        s_add_u32 s10, s10, {SLOT(ZS)}
        v_cndmask_b32 v{vOC}, v{t1}, v{vOA}, vcc
        v_add_u32 v{vZ}, s10, v{vL16}"""), S_(5, 0), S_(5, 31), 5)
    T.flush(cs)
    A(stamp("g2"))
    Z = GACC[1]; ZL = GACC[0]
    A(final_flag)
    A(poll())
    A(BAR())
    A([Op(f"ds_read_b128 {v(ZL+4*q if q < 4 else ZSHL+4*(q-4),4)}, v{vZ} offset:{q*1024}", use=[(f"S{ZS}", 290)]) for q in range(6)])
    A(check([7])); A(fetch(7, A2)); A(check([8])); A(fetch(8, A2 + 12))
    for q in range(16): A(f"v_add_f32 v{Z+q}, v{Z+q}, v{ZL+q}")
    A(addin(7, A2, Z, ZSHL, cID) + addin(8, A2 + 12, Z, ZSHL, cID))
    A(stamp("coll"))
    FK = [(f"S{FS}", 300)]
    A(f"v_xor_b32 v{t0}, 32, v{vFA}\nv_xor_b32 v{t1}, 32, v{vFA2}")
    for nt in range(2):
        for jt in range(2):
            d = PK + 4 * nt + 2 * jt
            A([cvt(d, Z + 8 * nt + 4 * jt), cvt(d + 1, Z + 8 * nt + 4 * jt + 2)])
            A(Op(f"ds_write_b64 v{t0 if nt else vFA}, {v(d,2)} offset:{jt*2048}", fill=FK))
    for nt in range(2):
        d = ZSH + 2 * nt
        A([cvt(d, ZSHL + 4 * nt), cvt(d + 1, ZSHL + 4 * nt + 2)])
        A(Op(f"ds_write_b64 v{t1 if nt else vFA2}, {v(d,2)}", fill=FK))
    A(cbar())
    A(Op(f"ds_read_b128 {v(ZL,4)}, v{vFB}", use=FK))
    A(Op(f"ds_read_b128 {v(ZL+4,4)}, v{vFB} offset:1024", use=FK))
    A(Op(f"ds_read_b128 {v(ZL+8,4)}, v{vFB2}", use=FK))
    A(f"buffer_store_dwordx4 {v(ZL,4)}, v{vOA}, {OUTR}, s{sOUT0} offen")
    A(f"buffer_store_dwordx4 {v(ZL+4,4)}, v{vOB}, {OUTR}, s{sOUT0} offen")
    A(f"buffer_store_dwordx4 {v(ZL+8,4)}, v{vOC}, {OUTR}, s{sOUT1} offen")
    if P["dbg"]: A("s_waitcnt vmcnt(0)"); A(stamp("end")); A(dump())
    A("L_end:\ns_endpgm")

    sc, sl = {}, {}
    def drop(st, pred): st.ops = [o for o in st.ops if not pred(o)]
    if P["x_nokv"]: drop(ls, lambda o: o.kind == "vld" and (f"s[{SRD_K}:" in o.text or f"s[{SRD_V}:" in o.text))
    if P["x_noex"]:
        for st in (cs, ls): drop(st, lambda o: (o.kind in ("vld", "vst") and WSR in o.text and f"v{t6}," not in o.text) or "L_spin" in o.text)
    if P["x_nomfma"]: drop(cs, lambda o: o.kind in ("mfma", "dsr"))
    if P["x_nodma"]: drop(ls, lambda o: o.kind == "dma")
    cfull = Stream(); cfull.nocheck = True; cfull.ops = pro.ops + cs.ops
    lines = cfull.finalize(sc)
    ls.ops = [Op("s_nop 4")] + ls.ops if False else ls.ops
    lines += ls.finalize(sl) + tail
    nb = None
    if not (P['x_nomfma'] or P['x_nodma']):
        nb = check_handoffs([cfull.events, ls.events])
        assert nb[0] == nb[1] + 1, nb
    a = Asm(); kernel_begin(a, KNAME)
    for l in lines: a(l)
    a("L_code_end:")
    body = a.text().replace("CODE_SPAN", f"L_code_end-{KNAME}-4").replace("CODE_BACK", f"L_pc-{KNAME}")
    write_file(path, ["; @launch grid=(256,1,1) block=(512,1,1) lds=163840"], body, [descriptor(KNAME, 256, 256)])
    return sc, sl, nb

if __name__ == "__main__":
    out = sys.argv[1] if len(sys.argv) > 1 else f"cdna_kernels/{NAME}.s"
    kw = {}
    for x in sys.argv[2:]:
        k, val = x.split("=", 1)
        try: val = eval(val)
        except Exception: pass
        kw[k] = val
    print(build(out, **kw))
```

```python
import sys, struct
from common import *
from ops import Op, Stream, check_handoffs

def f2u(f): return struct.unpack("<I", struct.pack("<f", f))[0]
SCALE_LOG2E = 128 ** -0.5 * 1.4426950408889634
KNAME = NAME + "_kernel"

DEF = dict(
    nt_w="", nt_x="", nt_kv="nt", nt_wo="", bpos=17, bpos2=23, code_pf=1, dbg=0, rot=1, xrot=0, flip=0,
    stamps=("start", "g1", "att", "g2", "coll", "end"), lstamps=(),
    cl=8, nph=4, clx=(1, 5, 9, 13), first=5, prio_l=0, prio_c=0, cover=64, la=3, split1=4, x_nokv=0, x_noex=0, x_nomfma=0, x_nodma=0, x_amp=0,
)

WS_ROT = 0
WS_SH = 16 << 20
WS_FL = 20 << 20
WS_DBG = 32 << 20
OOB = 0x40000000

SLOT = lambda s: 32768 * s
XR = 131072
SCR = 32768
G2SLOT = [0, 4, 3, 0, 4, 1, 2, 3] + [[0, 4, 1, 2, 3][(u - 8) % 5] for u in range(8, 20)]

sW, sJ, sRG, sR, sBR = 3, 6, 7, 8, 9
sPH, sKC, sRHO, sFLIP = 33, 34, 35, 32
SRD_X, SRD_K, SRD_V, SRD_WQ, SRD_WO, SRD_OUT, SRD_DBG, SRD_WS = 36, 40, 44, 48, 52, 56, 60, 64
sWQ0, sX0, sKV0, sWO0, sM8, sM2 = 68, 69, 70, 71, 72, 73
sT0, sT1, sT2, sT3 = 74, 75, 76, 77
sROT, sROTL, sSH, sSHL, sFLM, sFLD, sC, sHS, sSC = 78, 79, 80, 81, 82, 83, 84, 85, 86
sNEED, sSPIN, sKV = 87, 88, 89
sOUT0, sOUT1 = 90, 91
sST = 92
WSR = f"s[{SRD_WS}:{SRD_WS+3}]"; DBGR = f"s[{SRD_DBG}:{SRD_DBG+3}]"; OUTR = f"s[{SRD_OUT}:{SRD_OUT+3}]"

vL16, vFL, vFL0, vONE, vFLAG = 28, 29, 30, 31, 32
vT = 33
aW, aX, kR, vR = 1, 9, 11, 15
vOwr, vOrd = 23, 24
aO = 1
ABUF = 40; BB = 64; ACC = 128
PF = 40
A2 = 40; GACC = [72, 88]; ZSH = 104; PK = 112; ZSHL = 120; OF = 128
cID = 8
vFA, vFA2, vFB, vFB2, vOA, vOB, vOC, vZ = 14, 15, 16, 17, 18, 19, 20, 21
vW, vX, vWo, kW, vWr = 1, 9, 11, 15, 19
lID = 22
lZa = 21
KP, VP = 64, 128
LINC = 64
LZ = 200

def v(b, n=1): return vr(b, n)
def mfma(d, A, B, C=None): return Op(f"v_mfma_f32_16x16x32_bf16 {v(d,4)}, {A}, {B}, {v(d,4) if C is None else C}")
def cvt(d, s0): return Op(f"v_cvt_pk_bf16_f32 v{d}, v{s0}, v{s0+1}")
def ops(text): return [Op(x) for x in text.split("\n") if x.strip()]

class Ticks:
    def __init__(self): self.m = []; self.f = []
    def add(self, op): self.m.append(op); self.f.append([]); return len(self.m) - 1
    def put(self, t, o, prio=5):
        if not isinstance(o, (list, tuple)): o = [o]
        self.f[t].append((prio, len(self.f[t]), [Op(x) if isinstance(x, str) else x for x in o]))
    def spread(self, items, t0, t1, prio=5):
        n = len(items)
        for q, it in enumerate(items): self.put(t0 + (q * (t1 - t0 + 1)) // n, it, prio)
    def flush(self, st):
        for m, f in zip(self.m, self.f):
            st.add(m)
            for _, _, o in sorted(f, key=lambda x: (x[0], x[1])): st.add(o)

def weave(st, main, side, first=0):
    n, m = len(main), len(side); k = 0
    for i, o in enumerate(main):
        st.add(o)
        while k < m and i >= first and (k + 1) * (n - first) <= (i + 1 - first) * m: st.add(side[k]); k += 1
    while k < m: st.add(side[k]); k += 1

def build(path, **kw):
    P = dict(DEF); P.update(kw)
    BP, BP2 = P["bpos"], P["bpos2"]
    tail = []
    pro = Stream(); cs = Stream(); ls = Stream()
    for s in (pro, cs, ls): s.nocheck = True
    t0, t1, t2, t3, t4, t5, t6 = range(vT, vT + 7)
    nst = {"c": 0, "l": 0}
    def stamp(name, role="c"):
        if not P["dbg"] or name not in P["stamps" if role == "c" else "lstamps"]: return []
        nst[role] += 1; i = nst[role]; assert i <= 13
        return [Op(f"s_memtime s[{sST}:{sST+1}]"), Op("s_waitcnt lgkmcnt(0)"), Op(f"s_mov_b32 s{12+i}, s{sST}")]
    def dump():
        if not P["dbg"]: return []
        L = ops(f"""s_waitcnt vmcnt(0)
            s_memrealtime s[{sST}:{sST+1}]
            s_waitcnt lgkmcnt(0)
            v_writelane_b32 v{t6}, s{sST+2}, 0
            v_writelane_b32 v{t6}, s{sST}, 15
            v_writelane_b32 v{t6}, s{sST+4}, 14""")
        L += [Op(f"v_writelane_b32 v{t6}, s{12+i}, {i}") for i in range(1, 14)]
        L += ops(f"""s_lshl_b32 s{sT2}, s2, 3
            s_add_u32 s{sT2}, s{sT2}, s31
            s_lshl_b32 s{sT2}, s{sT2}, 8
            s_add_u32 s{sT2}, s{sT2}, {WS_DBG}
            v_lshlrev_b32 v{t0}, 2, v0
            buffer_store_dword v{t6}, v{t0}, {WSR}, s{sT2} offen""")
        return L
    BAR = lambda: Op("s_barrier")
    def mksrd(dst, ptr, n): return ops(f"s_mov_b32 s{dst}, s{ptr}\ns_mov_b32 s{dst+1}, s{ptr+1}\ns_mov_b32 s{dst+2}, {n}\ns_mov_b32 s{dst+3}, 0x00020000")
    def mod10(x, tmp): return f"s_sub_u32 s{tmp}, s{x}, 10\ns_min_u32 s{x}, s{x}, s{tmp}"
    def chunk_ops(p, dst):
        if p < 2: return [Op(f"s_mov_b32 s{dst}, {8+p}")]
        return [Op(f"s_add_u32 s{dst}, s{sJ}, {p-1}"), Op(f"s_and_b32 s{dst}, s{dst}, 7")]
    def src_ops(p, dst): return [Op(f"s_add_u32 s{dst}, s{sJ}, {9-p}"), Op(f"s_and_b32 s{dst}, s{dst}, 7")]
    def selector(ID):
        return ops(f"""v_and_b32 v{t0}, 1, v0
            v_lshlrev_b32 v{t0}, 4, v{t0}
            v_mov_b32 v{t1}, 0x3f80
            v_lshlrev_b32 v{t0}, v{t0}, v{t1}
            v_lshrrev_b32 v{t1}, 4, v0
            v_bfe_u32 v{t2}, v0, 2, 2
            v_cmp_eq_u32 vcc, v{t1}, v{t2}
            v_mov_b32 v{ID}, 0
            v_and_b32 v{t2}, 3, v0
            v_cndmask_b32 v{t0}, v{ID}, v{t0}, vcc
            v_cmp_gt_u32 vcc, 2, v{t2}
            v_mov_b32 v{ID+1}, 0
            v_mov_b32 v{ID+4}, 0
            v_cndmask_b32 v{ID+2}, v{ID}, v{t0}, vcc
            v_cndmask_b32 v{ID+3}, v{t0}, v{ID}, vcc
            v_mov_b32 v{ID+5}, 0""")
    nspin = [0]
    def poll(): return Op(f"buffer_load_dword v{vFLAG}, v{vFL}, {WSR}, s{sFLM} offen sc1")
    def check(ps):
        k = nspin[0]; nspin[0] += 1; L = []
        for q, p in enumerate(ps):
            L += src_ops(p, sT2)
            L.append(Op(f"s_lshl_b32 s{sNEED if q == 0 else sT2}, 1, s{sT2}"))
            if q: L.append(Op(f"s_or_b32 s{sNEED}, s{sNEED}, s{sT2}"))
        L += [Op(f"v_cmp_ne_u32 vcc, 0, v{vFLAG}"), Op(f"s_and_b32 s{sT2}, vcc_lo, s{sNEED}"), Op(f"s_cmp_lg_u32 s{sT2}, s{sNEED}"),
              Op(f"s_cbranch_scc1 L_spin{k}"), Op(f"L_back{k}:")]
        tail.extend([f"L_spin{k}:", f"s_mov_b32 s{sSPIN}, 0", f"L_spin{k}a:",
                     f"buffer_load_dword v{vFLAG}, v{vFL}, {WSR}, s{sFLM} offen sc1", "s_waitcnt vmcnt(0)",
                     f"v_cmp_ne_u32 vcc, 0, v{vFLAG}", f"s_add_u32 s{sSPIN}, s{sSPIN}, 1", f"s_cmp_gt_u32 s{sSPIN}, 100000", f"s_cbranch_scc1 L_back{k}",
                     f"s_and_b32 s{sT2}, vcc_lo, s{sNEED}", f"s_cmp_lg_u32 s{sT2}, s{sNEED}", f"s_cbranch_scc1 L_spin{k}a", f"s_branch L_back{k}"])
        return L
    def fetch(p, r):
        L = src_ops(p, sT2)
        if p < 9:
            L += [Op(f"s_lshl_b32 s{sT3}, s{sT2}, 13"), Op(f"s_add_u32 s{sT3}, s{sT3}, s{sROTL}"),
                  Op(f"buffer_load_dwordx4 {v(r,4)}, v{vL16}, {WSR}, s{sT3} offen sc1"),
                  Op(f"buffer_load_dwordx4 {v(r+4,4)}, v{vL16}, {WSR}, s{sT3} offen offset:1024 sc1")]
        L += [Op(f"s_lshl_b32 s{sT3}, s{sT2}, 11"), Op(f"s_add_u32 s{sT3}, s{sT3}, s{sSHL}"),
              Op(f"buffer_load_dwordx4 {v(r+8,4)}, v{vL16}, {WSR}, s{sT3} offen sc1")]
        return L
    def addin(p, r, z, zs, ID, zero_z=False, zero_s=False):
        L = []
        if p < 9:
            for nt in range(2):
                for jt in range(2): L.append(mfma(z + 8 * nt + 4 * jt, v(ID + 2 - 2 * jt, 4), v(r + 4 * nt, 4), "0" if zero_z else None))
        for nt in range(2): L.append(mfma(zs + 4 * nt, v(ID + 2 - 2 * nt, 4), v(r + 8, 4), "0" if zero_s else None))
        return L

    A = pro.add
    A("s_cmp_ge_u32 s2, 256\ns_cbranch_scc1 L_end")
    if P["dbg"] or P["x_amp"]: A(f"s_memtime s[{sST+2}:{sST+3}]\ns_memrealtime s[{sST+4}:{sST+5}]")
    A(f"s_bfe_u32 s{sBR}, s2, 0x10002\ns_mul_i32 s10, s{sBR}, 40\ns_add_u32 s4, s0, s10\ns_addc_u32 s5, s1, 0")
    A("s_load_dwordx8 s[12:19], s[4:5], 0\ns_load_dwordx2 s[20:21], s[4:5], 32\ns_load_dwordx4 s[24:27], s[0:1], 80\ns_load_dwordx2 s[28:29], s[0:1], 96")
    A(f"v_lshrrev_b32 v{t0}, 6, v0\nv_and_b32 v0, 63, v0\nv_readfirstlane_b32 s31, v{t0}")
    A(f"""s_and_b32 s10, s2, 3
        s_lshl_b32 s{sJ}, s10, 1
        s_bfe_u32 s11, s2, 0x10003
        s_add_u32 s{sJ}, s{sJ}, s11
        s_lshr_b32 s{sRG}, s2, 4
        s_lshl_b32 s{sR}, s{sBR}, 4
        s_add_u32 s{sR}, s{sR}, s{sRG}
        s_mov_b32 s{sRHO}, s{sRG}
        {mod10(sRHO, 30)}
        s_and_b32 s{sW}, s31, 3
        s_mov_b32 s{sFLIP}, 0""")
    if P["flip"]:
        A(f"s_mul_i32 s{sKC}, s{sRG}, 5\ns_lshr_b32 s{sKC}, s{sKC}, 2\ns_and_b32 s{sFLIP}, s{sKC}, 1\ns_lshr_b32 s{sKC}, s{sKC}, 1")
    else:
        A(f"s_mul_i32 s{sKC}, s{sRG}, 5\ns_lshr_b32 s{sKC}, s{sKC}, 3")
    A(f"s_mul_i32 s11, s11, 5\ns_add_u32 s{sKC}, s{sKC}, s11\n{mod10(sKC, 30)}")
    if P["xrot"]: A(f"s_mul_i32 s10, s10, {P['xrot']}\ns_add_u32 s{sKC}, s{sKC}, s10\n{mod10(sKC, 30)}")
    if not P["rot"]: A(f"s_mov_b32 s{sKC}, 0\ns_mov_b32 s{sRHO}, 0")
    A(f"v_lshlrev_b32 v{vL16}, 4, v0\ns_lshl_b32 s{sSC}, s{sW}, 14\ns_add_u32 s{sSC}, s{sSC}, {SCR}\ns_lshl_b32 s{sM2}, s{sW}, 11")
    A("s_cmp_ge_u32 s31, 4\ns_cbranch_scc1 L_loader")

    def exchange_setup():
        return mksrd(SRD_WS, 28, 268435456) + ops(f"""s_lshl_b32 s10, s{sR}, 19
            s_add_u32 s10, s10, s{sM2}
            s_lshl_b32 s11, s{sJ}, 13
            s_add_u32 s{sROT}, s10, s11
            s_lshl_b32 s11, s{sJ}, 16
            s_add_u32 s{sROTL}, s10, s11
            s_lshl_b32 s10, s{sR}, 17
            s_and_b32 s11, s{sW}, 1
            s_lshl_b32 s11, s11, 10
            s_add_u32 s10, s10, s11
            s_add_u32 s10, s10, {WS_SH}
            s_lshl_b32 s11, s{sJ}, 11
            s_add_u32 s{sSH}, s10, s11
            s_lshr_b32 s11, s{sW}, 1
            s_lshl_b32 s30, s11, 15
            s_add_u32 s{sSH}, s{sSH}, s30
            s_lshl_b32 s30, s{sJ}, 14
            s_add_u32 s{sSHL}, s10, s30
            s_bfe_u32 s30, s{sJ}, 0x10001
            s_cmp_eq_u32 s30, s11
            s_cselect_b32 s{sSHL}, s{sSHL}, {OOB}
            s_lshl_b32 s10, s{sR}, 15
            s_lshl_b32 s11, s{sW}, 10
            s_add_u32 s10, s10, s11
            s_add_u32 s10, s10, {WS_FL}
            s_lshl_b32 s11, s{sJ}, 7
            s_add_u32 s{sFLD}, s10, s11
            s_lshl_b32 s11, s{sJ}, 12
            s_add_u32 s{sFLM}, s10, s11
            v_mov_b32 v{t0}, {OOB}
            v_lshlrev_b32 v{t1}, 7, v0
            v_cmp_gt_u32 vcc, 8, v0
            v_mov_b32 v{t2}, 0
            v_mov_b32 v{vONE}, 1
            v_cndmask_b32 v{vFL}, v{t0}, v{t1}, vcc
            v_cmp_eq_u32 vcc, 0, v0
            s_nop 1
            v_cndmask_b32 v{vFL0}, v{t0}, v{t2}, vcc""")

    A = ls.add
    def dma_w(t):
        kc, dh = t // 2, t % 2; s = t % 4; g = ("W", t); items = []
        if dh == 0:
            for q in range(2):
                it = []
                if q == 0:
                    if kc: it += [Op(f"s_add_u32 s{sKC}, s{sKC}, 1"), Op(f"s_cmp_eq_u32 s{sKC}, 10"), Op(f"s_cselect_b32 s{sKC}, 0, s{sKC}")]
                    it += [Op(f"s_lshl_b32 s{sT1}, s{sKC}, 7"), Op(f"s_add_u32 s{sT1}, s{sT1}, s{sX0}"),
                           Op(f"s_lshl_b32 s{sT0}, s{sKC}, 19"), Op(f"s_add_u32 s{sT0}, s{sT0}, s{sWQ0}"),
                           Op(f"s_add_u32 m0, s{sM2}, {XR + (kc%2)*8192}")]
                it.append(Op(f"buffer_load_dwordx4 v{vX+q}, s[{SRD_X}:{SRD_X+3}], s{sT1} offen offset:{q*1024} {P['nt_x']} lds", group=g, fill=[(f"X{kc%2}", kc)]))
                items.append(it)
        for q in range(8):
            it = []
            if q == 0 and dh == 1: it.append(Op(f"s_xor_b32 s{sT0}, s{sT0}, 128"))
            if q % 4 == 0: it.append(Op(f"s_add_u32 m0, s{sM8}, {SLOT(s) + (q//4)*4096}"))
            it.append(Op(f"buffer_load_dwordx4 v{vW+q}, s[{SRD_WQ}:{SRD_WQ+3}], s{sT0} offen offset:{(q%4)*1024} {P['nt_w']} lds", group=g, fill=[(f"S{s}", t)]))
            items.append(it)
        return items
    def dma_o(u):
        p, hh = u // 2, u % 2; s = G2SLOT[u]; g = ("O", u); items = []
        fill = [(f"S{s}", 200 + u)] + ([("X0", 200 + u), ("X1", 200 + u)] if s == 4 else [])
        for q in range(8):
            it = []
            if q == 0:
                it += chunk_ops(p, sT0) + ops(f"s_add_u32 s{sT0}, s{sT0}, s{sRHO}\n{mod10(sT0, sT1)}\ns_lshl_b32 s{sT0}, s{sT0}, 7\ns_add_u32 s{sT0}, s{sT0}, s{sWO0}")
                if hh: it.append(Op(f"s_add_u32 s{sT0}, s{sT0}, {256*1280}"))
            if q == 4: it.append(Op(f"s_add_u32 s{sT0}, s{sT0}, 40960"))
            if q % 4 == 0: it.append(Op(f"s_add_u32 m0, s{sM8}, {SLOT(s) + (q//4)*4096}"))
            it.append(Op(f"buffer_load_dwordx4 v{vWo+q%4}, s[{SRD_WO}:{SRD_WO+3}], s{sT0} offen offset:{(q%4)*1024} {P['nt_wo']} lds", group=g, fill=fill))
            items.append(it)
        return items
    def park(n):
        srd_ = SRD_K if n < 16 else SRD_V; m = n % 16; it = []
        if m % 4 == 0: it.append(Op(f"s_add_u32 s{sKV}, s{sKV0}, {(m//8)*262144 + ((m%8)//4)*4096}"))
        it.append(Op(f"buffer_load_dwordx4 {v(KP+4*n,4)}, v{vL16}, s[{srd_}:{srd_+3}], s{sKV} offen offset:{(m%4)*1024} {P['nt_kv']}"))
        return it
    A("L_loader:")
    if P["prio_l"]: A(f"s_setprio {P['prio_l']}")
    A(f"""v_lshrrev_b32 v{t0}, 5, v0
        v_bfe_u32 v{t1}, v0, 1, 3
        v_xor_b32 v{t1}, v{t1}, v{t0}
        v_and_b32 v{t2}, 4, v{t1}
        v_and_b32 v{t1}, 3, v{t1}
        v_lshlrev_b32 v{t2}, 6, v{t2}
        v_lshl_or_b32 v{t1}, v{t1}, 5, v{t2}
        v_and_b32 v{t2}, 1, v0
        v_lshl_or_b32 v{t1}, v{t2}, 4, v{t1}
        v_bfe_u32 v{t2}, v0, 4, 1
        v_lshl_or_b32 v{t1}, v{t2}, 9, v{t1}
        v_lshl_or_b32 v{t1}, v{t0}, 13, v{t1}""")
    for q in range(8):
        cq = 2 * (q & 1) + 4 * (q >> 2); tc = ((cq & 4) << 6) | ((cq & 3) << 5)
        A(f"v_xor_b32 v{vW+q}, {tc}, v{t1}")
        if q: A(f"v_add_u32 v{vW+q}, {16384*q - 1024*(q&3)}, v{vW+q}")
    A(f"""v_lshrrev_b32 v{t0}, 3, v0
        v_and_b32 v{t1}, 7, v0
        v_lshrrev_b32 v{t2}, 4, v0
        v_mul_u32_u24 v{t0}, 1280, v{t0}
        v_xor_b32 v{t3}, v{t1}, v{t2}
        v_lshl_add_u32 v{vX}, v{t3}, 4, v{t0}
        v_xor_b32 v{t3}, 4, v{t3}
        v_lshl_add_u32 v{vX+1}, v{t3}, 4, v{t0}
        v_add_u32 v{vX+1}, 9216, v{vX+1}
        v_lshlrev_b32 v{t2}, 1, v{t2}
        v_xor_b32 v{t3}, v{t1}, v{t2}
        v_lshl_add_u32 v{vWo}, v{t3}, 4, v{t0}
        s_lshl_b32 s{sWQ0}, s{sJ}, 10
        s_lshl_b32 s10, s{sW}, 17
        s_add_u32 s{sWQ0}, s{sWQ0}, s10
        s_lshl_b32 s10, s{sFLIP}, 7
        s_add_u32 s{sWQ0}, s{sWQ0}, s10
        s_lshl_b32 s10, s{sRG}, 2
        s_add_u32 s10, s10, s{sW}
        s_mul_i32 s{sX0}, s10, 20480
        s_lshl_b32 s{sM8}, s{sW}, 13
        s_mov_b32 s{SRD_X+2}, {SZ['x']}
        s_mov_b32 s{SRD_X+3}, 0x00020000
        s_mov_b32 s{SRD_WQ+2}, {SZ['wq']}
        s_mov_b32 s{SRD_WQ+3}, 0x00020000
        s_waitcnt lgkmcnt(0)
        s_mov_b32 s{SRD_X}, s12
        s_mov_b32 s{SRD_X+1}, s13
        s_mov_b32 s{SRD_WQ}, s18
        s_mov_b32 s{SRD_WQ+1}, s19""")
    A(dma_w(0))
    rest = []
    if P["code_pf"]:
        rest += ops(f"""s_getpc_b64 s[22:23]
            s_lshr_b32 s10, s2, 3
            s_lshl_b32 s10, s10, 11
            v_and_b32 v{t0}, 15, v0
            v_lshlrev_b32 v{t0}, 7, v{t0}
            v_add_u32 v{t0}, s10, v{t0}
            v_min_u32 v{t0}, CODE_SPAN, v{t0}
            s_sub_u32 s22, s22, CODE_BACK
            s_subb_u32 s23, s23, 0
            global_load_dword v{t5}, v{t0}, s[22:23]""")
        A(rest[:1]); A("L_pc:"); A(rest[1:]); rest = []
    rest += mksrd(SRD_K, 14, SZ["k"]) + mksrd(SRD_V, 16, SZ["v"]) + mksrd(SRD_WO, 20, SZ["wo"]) + mksrd(SRD_DBG, 26, 256)
    rest += exchange_setup()
    rest += [Op(f"v_mov_b32 v{t3}, 0"), Op(f"buffer_store_dword v{t3}, v{vFL}, {WSR}, s{sFLM} offen sc1")]
    rest += ops(f"""s_lshl_b32 s10, s{sRG}, 6
        s_lshl_b32 s11, s{sJ}, 2
        s_add_u32 s10, s10, s11
        s_add_u32 s10, s10, s{sW}
        s_lshl_b32 s{sKV0}, s10, 13
        s_lshl_b32 s10, s{sJ}, 3
        s_add_u32 s10, s10, s{sW}
        s_mul_i32 s{sWO0}, s10, 81920
        s_and_b32 s{sHS}, s{sR}, 7
        s_lshl_b32 s10, s{sW}, 3
        s_add_u32 s{sHS}, s{sHS}, s10
        s_lshr_b32 s{sPH}, s2, 3
        s_and_b32 s{sPH}, s{sPH}, {P['nph']-1}""")
    for q in range(1, 4): rest.append(Op(f"v_add_u32 v{vWo+q}, {9216*q}, v{vWo}"))
    rest += ops(f"""v_and_b32 v{t0}, 15, v0
        v_lshrrev_b32 v{t1}, 4, v0
        v_lshrrev_b32 v{t2}, 2, v{t0}
        v_and_b32 v{t3}, 1, v{t0}
        v_lshl_or_b32 v{t2}, v{t2}, 1, v{t3}
        v_lshrrev_b32 v{t4}, 1, v{t1}
        v_xor_b32 v{t2}, v{t2}, v{t4}
        v_lshlrev_b32 v{t2}, 4, v{t2}
        v_bfe_u32 v{t4}, v{t0}, 1, 1
        v_lshl_or_b32 v{t2}, v{t4}, 3, v{t2}
        v_lshl_or_b32 v{t2}, v{t1}, 7, v{t2}
        v_add_u32 v{kW}, s{sSC}, v{t2}
        v_xor_b32 v{kW+1}, 32, v{kW}
        v_xor_b32 v{kW+2}, 64, v{kW}
        v_xor_b32 v{kW+3}, 0x60, v{kW}
        v_lshrrev_b32 v{t2}, 1, v{t0}
        v_xor_b32 v{t2}, v{t2}, v{t1}
        v_lshlrev_b32 v{t2}, 5, v{t2}
        v_lshl_or_b32 v{t2}, v{t3}, 4, v{t2}
        v_lshl_or_b32 v{t2}, v{t1}, 8, v{t2}
        v_add_u32 v{vWr}, s{sSC}, v{t2}
        v_xor_b32 v{vWr+1}, 128, v{vWr}""")
    rest += selector(lID)
    ZS = G2SLOT[15]; FS = G2SLOT[17]
    rest += ops(f"s_mul_i32 s10, s{sW}, 6144\ns_add_u32 s10, s10, {SLOT(ZS)}\nv_add_u32 v{lZa}, s10, v{vL16}")
    g1 = dma_w(1); nf = P["first"]
    side = g1[:nf]; k = 0
    for i, o in enumerate(rest):
        A(o)
        if k < len(side) and (k + 1) * len(rest) <= (i + 1) * len(side) and not o.mn.startswith("s_cmp"): A(side[k]); k += 1
    A(side[k:])
    A(stamp("lstart", "l"))
    def lbar(group): return [Op("WAITG", group=group, lds=True), BAR()]
    A(lbar(("W", 0)))
    LA = P["la"]
    A(g1[nf:])
    for t in range(2, LA + 1): A(dma_w(t))
    A(lbar(("W", 1)))
    CL = P["cl"]; clx = P["clx"]; assert len(clx) * CL == 32
    SCRF = lambda gen: [("S1", gen), ("S2", gen)]
    for x in range(1, 20):
        for c, xc in enumerate(clx):
            for ph in range(P["nph"]):
                if xc + ph != x: continue
                o = [y for n in range(c * CL, (c + 1) * CL) for y in park(n)]
                if P["nph"] > 1:
                    assert x + LA <= 19
                    for y in o: y.meta["uncounted" if y.kind == "vld" else "cond"] = True
                    o = [Op(f"s_cmp_lg_u32 s{sPH}, {ph}"), Op(f"s_cbranch_scc1 L_cl{c}_{ph}")] + o + [Op(f"L_cl{c}_{ph}:")]
                A(o)
        if 4 <= x < 12:
            q = x - 4
            A([Op(f"s_cmp_lg_u32 s{sHS}, {q}"), Op(f"s_cbranch_scc1 L_hs{q}"), Op(f"s_lshl_b32 s{sT2}, s{sR}, 3", cond=True),
               Op(f"buffer_atomic_add v{vONE}, v{vFL0}, {DBGR}, s{sT2} offen sc1", uncounted=True), Op(f"L_hs{q}:")])
        if x == 15:
            A([Op(f"s_cmp_lg_u32 s{sW}, 0"), Op("s_cbranch_scc1 L_hsl"), Op(f"s_lshl_b32 s{sT2}, s{sR}, 3", cond=True),
               Op(f"buffer_load_dword v{vFLAG}, v{vFL0}, {DBGR}, s{sT2} offen sc1", uncounted=True), Op("L_hsl:")])
        if x + LA <= 19: A(dma_w(x + LA))
        if x == 17: A(dma_o(0))
        if x == 19:
            A([Op(f"ds_write2st64_b64 v{kW+(n&3)}, {v(KP+4*n,2)}, {v(KP+4*n+2,2)} offset0:{2*n} offset1:{2*n+1}", fill=SCRF(100)) for n in range(16)])
            A([Op(f"s_cmp_lg_u32 s{sW}, 0"), Op("s_cbranch_scc1 L_hsc"),
               Op(f"v_readfirstlane_b32 s{sT3}, v{vFLAG}", cond=True), Op("s_nop 1", cond=True), Op(f"s_cmp_lt_u32 s{sT3}, 8", cond=True, nohaz=True),
               Op("s_cbranch_scc1 L_hs_spin", cond=True), Op("L_hsc:")])
            tail.extend(["L_hs_spin:", f"s_mov_b32 s{sSPIN}, 0", "L_hs_spin1:", f"s_lshl_b32 s{sT2}, s{sR}, 3",
                 f"buffer_load_dword v{vFLAG}, v{vFL0}, {DBGR}, s{sT2} offen sc1", "s_waitcnt vmcnt(0)",
                 f"v_readfirstlane_b32 s{sT3}, v{vFLAG}", f"s_add_u32 s{sSPIN}, s{sSPIN}, 1", f"s_cmp_gt_u32 s{sSPIN}, 100000", "s_cbranch_scc1 L_hsc",
                 f"s_cmp_lt_u32 s{sT3}, 8", "s_cbranch_scc1 L_hs_spin1", "s_branch L_hsc"])
            A([Op("WAITL"), BAR()])
        else: A(lbar(("W", x + 1)))
        A(stamp(f"l{x}", "l"))
    d1 = dma_o(1); A(d1[:P["split1"]])
    A(BAR())
    A([Op(f"ds_write_b128 v{vWr+(n&1)}, {v(VP+4*n,4)} offset:{n*1024}", fill=SCRF(101)) for n in range(16)])
    A([Op("WAITL"), BAR()])
    A(d1[P["split1"]:]); A(dma_o(2))
    A(lbar(("O", 0)))
    wins = {1: [3], 2: [4, 5], 3: [6, 7]}
    for x in range(4, 16): wins[x] = [x + 4]
    inc = lambda k: LINC + 12 * k
    for x in range(0, 20):
        for u in wins.get(x, []): A(dma_o(u))
        if x == 12: A(poll())
        if x == 13: A(check([2, 3]) + fetch(2, inc(0)) + fetch(3, inc(1)) + fetch(9, inc(5)))
        if x == 15: A(poll())
        if x == 16: A(addin(2, inc(0), LZ, LZ + 16, lID, True, True) + addin(3, inc(1), LZ, LZ + 16, lID) + addin(9, inc(5), LZ, LZ + 16, lID) + check([4]) + fetch(4, inc(2)) + [poll()])
        if x == 17: A(check([5]) + fetch(5, inc(3)) + addin(4, inc(2), LZ, LZ + 16, lID))
        if x == 18: A([poll()] + addin(5, inc(3), LZ, LZ + 16, lID))
        if x == 19:
            A(check([6]) + fetch(6, inc(4)) + addin(6, inc(4), LZ, LZ + 16, lID))
            A([Op(f"ds_write_b128 v{lZa}, {v(LZ+4*q,4)} offset:{q*1024}", fill=[(f"S{ZS}", 290)]) for q in range(6)])
            A([Op("WAITL"), BAR()])
        else: A(lbar(("O", x + 1)))
        A(stamp(f"m{x}", "l"))
    A(dump())
    A("s_endpgm")

    A = cs.add
    if P["prio_c"]: A(f"s_setprio {P['prio_c']}")
    l16, g, r, c4, f3 = t0, t1, t2, t3, t4
    u0, u1 = ABUF, ABUF + 1
    lanebits = f"""v_and_b32 v{l16}, 15, v0
        v_lshrrev_b32 v{g}, 4, v0
        v_bfe_u32 v{r}, v0, 2, 2
        v_and_b32 v{c4}, 3, v0"""
    A(lanebits)
    A(f"""v_and_b32 v{f3}, 1, v{g}
        v_lshl_or_b32 v{f3}, v{f3}, 2, v{r}
        s_and_b32 s10, s{sW}, 1
        s_lshl_b32 s10, s10, 2
        s_lshr_b32 s11, s{sW}, 1
        s_lshl_b32 s11, s11, 8
        v_lshl_add_u32 v{u0}, v{g}, 3, v{r}
        v_lshlrev_b32 v{u0}, 9, v{u0}
        v_lshl_or_b32 v{u0}, v{c4}, 3, v{u0}
        v_add_u32 v{u0}, s11, v{u0}
        v_xor_b32 v{u1}, s10, v{f3}
        v_lshl_or_b32 v{u0}, v{u1}, 5, v{u0}""")
    for i in range(4): A(f"v_xor_b32 v{aW+i}, {32*i}, v{u0}\nv_add_u32 v{aW+4+i}, 0x10000, v{aW+i}")
    A(f"""v_lshrrev_b32 v{u1}, 1, v{l16}
        v_xor_b32 v{u1}, v{u1}, v{g}
        v_lshlrev_b32 v{u1}, 4, v{u1}
        v_lshl_or_b32 v{u1}, v{l16}, 7, v{u1}
        v_add_u32 v{aX}, {XR}, v{u1}
        v_xor_b32 v{aX+1}, 64, v{aX}
        v_lshl_add_u32 v{u0}, v{g}, 2, v{r}
        v_lshlrev_b32 v{u0}, 8, v{u0}
        v_lshl_or_b32 v{u0}, v{c4}, 3, v{u0}
        v_lshl_or_b32 v{u0}, v{f3}, 5, v{u0}
        v_add_u32 v{u0}, s{sSC}, v{u0}""")
    for i in range(8): A(f"v_xor_b32 v{vR+i}, {32*i}, v{u0}")
    A(f"""v_lshrrev_b32 v{u0}, 1, v{g}
        v_lshrrev_b32 v{u1}, 1, v{l16}
        v_xor_b32 v{u0}, v{u0}, v{u1}
        v_lshlrev_b32 v{u0}, 4, v{u0}
        v_lshl_or_b32 v{u0}, v{c4}, 7, v{u0}
        v_and_b32 v{u1}, 1, v{g}
        v_lshl_or_b32 v{u0}, v{u1}, 9, v{u0}
        v_lshl_or_b32 v{u0}, v{r}, 10, v{u0}
        s_lshl_b32 s10, s{sFLIP}, 6
        s_add_u32 s11, s10, s{sSC}
        v_xor_b32 v{u0}, s11, v{u0}""")
    for sd in range(4): A(f"v_xor_b32 v{kR+sd}, {32*sd}, v{u0}")
    A(f"""s_lshr_b32 s10, s{sW}, 1
        s_lshl_b32 s10, s10, 11
        s_add_u32 s10, s10, {SCR}
        v_add_u32 v{vOrd}, s10, v{vL16}
        v_add_u32 v{vOwr}, s{sSC}, v{vL16}
        s_mov_b32 s{sC}, {f2u(SCALE_LOG2E)}
        s_waitcnt lgkmcnt(0)""")
    A(exchange_setup()); A(mksrd(SRD_OUT, 24, SZ["out"]))
    A(f"""s_mul_i32 s10, s{sRG}, {64*2560}
        s_mul_i32 s11, s{sBR}, 1280
        s_add_u32 s10, s10, s11
        s_mul_i32 s11, s{sW}, {16*2560}
        s_add_u32 s{sOUT0}, s10, s11
        s_add_u32 s11, s{sJ}, s{sRHO}
        {mod10(11, 30)}
        s_lshl_b32 s11, s11, 7
        s_add_u32 s{sOUT0}, s{sOUT0}, s11
        s_and_b32 s11, s{sJ}, 3
        s_lshl_b32 s11, s11, 2
        s_add_u32 s11, s11, s{sW}
        s_mul_i32 s11, s11, {4*2560}
        s_add_u32 s10, s10, s11
        s_lshr_b32 s11, s{sJ}, 2
        s_add_u32 s11, s11, 8
        s_add_u32 s11, s11, s{sRHO}
        {mod10(11, 30)}
        s_lshl_b32 s11, s11, 7
        s_add_u32 s{sOUT1}, s10, s11""")
    cbar = lambda: [Op("WAITL"), BAR()]

    def rdA1(t, i):
        s = t % 4; buf = ABUF + 8 * ((4 * t + i) % 3); ad = aW + 4 * (s // 2) + i; base = (s % 2) * 32768
        return [Op(f"ds_read_b64_tr_b16 {v(buf+4*ss+2*h,2)}, v{ad} offset:{base + ss*16384 + h*2048}", use=[(f"S{s}", t)]) for ss in range(2) for h in range(2)]
    def rdB(kc):
        return [Op(f"ds_read_b128 {v(BB+32*(kc%2)+8*jt+4*ss,4)}, v{aX+ss} offset:{(kc%2)*8192 + jt*2048}", use=[(f"X{kc%2}", kc)]) for jt in range(4) for ss in range(2)]
    A(BAR())
    A(stamp("start"))
    b0 = rdB(0); a0 = rdA1(0, 0)
    A(a0[:2] + b0[:1] + a0[2:] + b0[1:] + rdA1(0, 1))
    T = Ticks()
    for t in range(20):
        kc, dh = t // 2, t % 2
        for i in range(4):
            buf = ABUF + 8 * ((4 * t + i) % 3)
            for jt in range(4):
                for ss in range(2):
                    d = ACC + 16 * (4 * dh + i) + 4 * jt
                    T.add(mfma(d, v(buf + 4 * ss, 4), v(BB + 32 * (kc % 2) + 8 * jt + 4 * ss, 4), "0" if (kc == 0 and ss == 0) else None))
    for t in range(20):
        b = 32 * t
        for q, o in enumerate(rdA1(t, 2)): T.put(b + q, o, 2)
        for q, o in enumerate(rdA1(t, 3)): T.put(b + 8 + q, o, 2)
        T.put(b + BP, cbar(), 1)
        if t < 19:
            for q, o in enumerate(rdA1(t + 1, 0)): T.put(b + BP + q, o, 2)
            for q, o in enumerate(rdA1(t + 1, 1)): T.put(b + 24 + q, o, 2)
            if t % 2 == 1:
                for pos, o in zip([BP + 4, BP + 5, BP + 6, 28, 29, 30, 31, 32], rdB((t + 1) // 2)): T.put(b + pos, o, 3)
        T.put(b + 31, stamp(f"w{t}"), 9)
    def qreg(sd, j4): return ACC + 32 * sd + 4 * j4
    def pack(d, e): return [cvt(d, d), cvt(d + 1, d + 2), cvt(d + 2, e), cvt(d + 3, e + 2)]
    def qcvt(sd, j4): return pack(qreg(sd, j4), qreg(sd, j4) + 16)
    def krd(b, kt, sd): return Op(f"ds_read_b128 {v(BB+32*b+16*kt+4*sd,4)}, v{kR+sd} offset:{b*8192 + kt*4096}", use=SCRF(100), private=True)
    b18, b19 = 32 * 18, 32 * 19
    T.spread([o for j4 in range(4) for o in qcvt(0, j4)], b18 + 20, b18 + 31, 5)
    T.spread([o for j4 in range(4) for o in qcvt(1, j4)], b19 + 4, b19 + 16, 5)
    T.spread([o for j4 in range(4) for o in qcvt(2, j4)], b19 + 20, b19 + 31, 5)
    T.spread([krd(0, kt, sd) for sd in range(4) for kt in range(2)], b19 + BP, b19 + BP + 7, 4)
    T.flush(cs)
    A(stamp("g1"))

    def sreg(b, jt, kt): return ACC + 16 + 32 * b + 8 * jt + 4 * kt
    def softmax(b):
        tmp = ACC + 80 + 8 * b; pf = PF + 8 * b; L = []
        cols = [(sreg(b, c, 0), tmp + 4 * c) for c in range(2)]
        def both(f):
            for x, y in zip(f(*cols[0]), f(*cols[1])): L.extend([Op(x), Op(y)])
        both(lambda s, m: [f"v_max3_f32 v{m}, v{s}, v{s+1}, v{s+2}", f"v_max3_f32 v{m+1}, v{s+3}, v{s+4}, v{s+5}",
                           f"v_max3_f32 v{m}, v{m}, v{s+6}, v{s+7}", f"v_max_f32 v{m}, v{m}, v{m+1}", f"v_mov_b32 v{m+1}, v{m}",
                           f"v_permlane16_swap_b32 v{m}, v{m+1}", f"v_max_f32 v{m}, v{m}, v{m+1}", f"v_mov_b32 v{m+1}, v{m}",
                           f"v_permlane32_swap_b32 v{m}, v{m+1}", f"v_max_f32 v{m}, v{m}, v{m+1}", f"v_mul_f32 v{m}, s{sC}, v{m}"])
        both(lambda s, m: [f"v_fma_f32 v{s+q}, v{s+q}, s{sC}, -v{m}" for q in range(8)])
        both(lambda s, m: [f"v_exp_f32 v{s+q}, v{s+q}" for q in range(8)])
        both(lambda s, m: [f"v_add_f32 v{m}, v{s}, v{s+1}", f"v_add_f32 v{m+1}, v{s+2}, v{s+3}", f"v_add_f32 v{m+2}, v{s+4}, v{s+5}", f"v_add_f32 v{m+3}, v{s+6}, v{s+7}",
                           f"v_add_f32 v{m}, v{m}, v{m+1}", f"v_add_f32 v{m+2}, v{m+2}, v{m+3}", f"v_add_f32 v{m}, v{m}, v{m+2}", f"v_mov_b32 v{m+1}, v{m}",
                           f"v_permlane16_swap_b32 v{m}, v{m+1}", f"v_add_f32 v{m}, v{m}, v{m+1}", f"v_mov_b32 v{m+1}, v{m}",
                           f"v_permlane32_swap_b32 v{m}, v{m+1}", f"v_add_f32 v{m}, v{m}, v{m+1}", f"v_rcp_f32 v{m}, v{m}"])
        both(lambda s, m: [f"v_mul_f32 v{s+q}, v{s+q}, v{m}" for q in range(8)])
        for c in range(2):
            for q in range(4): L.append(cvt(pf + 4 * c + q, cols[c][0] + 2 * q))
        return L
    def vrd(b): return [Op(f"ds_read_b64_tr_b16 {v(BB+32*b+4*i+2*h,2)}, v{vR+i} offset:{b*8192 + h*4096}", use=SCRF(101), private=True) for i in range(8) for h in range(2)]
    def oreg(b, i, jt): return ACC + 16 * b + 32 * (i // 2) + 8 * (i % 2) + 4 * jt
    def pv(b): return [mfma(oreg(b, i, jt), v(BB + 32 * b + 4 * i, 4), v(PF + 8 * b + 4 * jt, 4), "0") for i in range(8) for jt in range(2)]
    def ocvt(b, s2, jt):
        d = oreg(b, 2 * s2, jt)
        return pack(d, d + 8) + [Op(f"ds_write_b128 v{vOwr}, {v(d,4)} offset:{(s2*4 + 2*b + jt)*1024}", fill=SCRF(102), wpriv=True)]
    T = Ticks()
    for b in range(2):
        for sd in range(4):
            for kt in range(2):
                for jt in range(2):
                    T.add(mfma(sreg(b, jt, kt), v(BB + 32 * b + 16 * kt + 4 * sd, 4), v(qreg(sd, 2 * b + jt), 4), "0" if sd == 0 else None))
    T.spread([krd(1, kt, sd) for sd in range(4) for kt in range(2)], 0, 3, 2)
    T.spread([o for j4 in range(2) for o in qcvt(3, j4)], 1, 6, 3)
    T.spread([o for j4 in range(2, 4) for o in qcvt(3, j4)], 7, 12, 3)
    T.put(8, cbar(), 1)
    sm0 = softmax(0); sm1 = softmax(1)
    T.spread(sm0[:22], 20, 31, 5)
    T.flush(cs)
    A(sm0[22:38]); A(BAR())
    weave(cs, sm0[38:], vrd(0) + vrd(1))
    weave(cs, sm1, pv(0), first=2)
    T = Ticks()
    for o in pv(1): T.add(o)
    T.spread([o for s2 in range(4) for jt in range(2) for o in ocvt(0, s2, jt)], 0, 11, 5)
    T.spread([o for jt in range(2) for o in ocvt(1, 0, jt)], 12, 15, 5)
    T.flush(cs)
    A(lanebits)
    A(f"""v_lshl_add_u32 v{t4}, v{g}, 2, v{r}
        v_bfe_u32 v{t5}, v{t4}, 1, 2
        s_and_b32 s10, s{sW}, 1
        s_lshl_b32 s10, s10, 1
        v_xor_b32 v{t5}, s10, v{t5}
        v_lshlrev_b32 v{t5}, 5, v{t5}
        v_lshl_or_b32 v{t5}, v{c4}, 3, v{t5}
        v_lshl_or_b32 v{aO}, v{t4}, 7, v{t5}
        v_xor_b32 v{aO+1}, 32, v{aO}""")
    for q in range(1, 3): A(f"v_add_u32 v{aO+2*q}, {q*65536}, v{aO}\nv_add_u32 v{aO+2*q+1}, {q*65536}, v{aO+1}")
    for s2 in range(1, 4):
        for jt in range(2): A(ocvt(1, s2, jt))
    A(stamp("att"))

    def rdA2(u, n):
        s = G2SLOT[u]; buf = A2 + 8 * (n % 4); ad = aO + 2 * (s // 2) + n % 2; base = (s % 2) * 32768
        return [Op(f"ds_read_b64_tr_b16 {v(buf+4*ss+2*h,2)}, v{ad} offset:{base + (2*(n//2)+ss)*4096 + h*2048}", use=[(f"S{s}", 200 + u)]) for ss in range(2) for h in range(2)]
    def rdO(kp): return [Op(f"ds_read_b128 {v(OF+8*ks+4*jt,4)}, v{vOrd} offset:{ks*4096 + jt*1024}", use=SCRF(102)) for jt in range(2) for ks in (2 * kp, 2 * kp + 1)]
    A(cbar())
    a0 = rdA2(0, 0); o0 = rdO(0)
    A(a0[:2] + o0[:1] + a0[2:] + o0[1:] + rdA2(0, 1) + rdA2(0, 2) + rdO(1))
    T = Ticks()
    for u in range(20):
        p, hh = u // 2, u % 2
        for n in range(8):
            buf = A2 + 8 * (n % 4)
            for jt in range(2):
                for ss in range(2):
                    ks = 8 * hh + 2 * (n // 2) + ss
                    T.add(mfma(GACC[p % 2] + 8 * (n % 2) + 4 * jt, v(buf + 4 * ss, 4), v(OF + 8 * ks + 4 * jt, 4), "0" if ks == 0 else None))
    for u in range(20):
        b = 32 * u
        for n in range(3, 8):
            for q, o in enumerate(rdA2(u, n)): T.put(b + 4 * (n - 3) + q, o, 2)
        if u < 19:
            T.put(b + BP2, cbar(), 1)
            for q, o in enumerate(rdA2(u + 1, 0) + rdA2(u + 1, 1)): T.put(b + BP2 + q // 2, o, 2)
            for q, o in enumerate(rdA2(u + 1, 2)): T.put(b + 28 + q, o, 2)
        T.put(b + 31, stamp(f"o{u}"), 9)
    for kp in range(2, 8): T.spread(rdO(kp), 8 * (kp - 2), 8 * (kp - 2) + 7, 3)
    S_ = lambda u, pos: 32 * u + pos
    T.spread(selector(cID), S_(3, 0), S_(3, 20), 5)
    for p in range(9):
        b = 32 * (2 * p + 2); ac = GACC[p % 2]; L = []; gp = ("P", p)
        for nt in range(2):
            for jt in range(2):
                d = PK + (4 * jt + 2 * nt if p < 2 else 4 * nt + 2 * jt)
                L += [cvt(d, ac + 8 * nt + 4 * jt), cvt(d + 1, ac + 8 * nt + 4 * jt + 2)]
        T.spread(L, b + 3, b + 6, 4)
        if p < 2:
            for jt in range(2):
                T.put(b + 7 + 2 * jt, [Op(f"s_add_u32 s{sT2}, s{sSH}, {(4*p+jt)*16384}"),
                      Op(f"buffer_store_dwordx4 {v(PK+4*jt,4)}, v{vL16}, {WSR}, s{sT2} offen sc1", group=gp)], 4)
        else:
            T.put(b + 7, chunk_ops(p, sT2) + [Op(f"s_lshl_b32 s{sT3}, s{sT2}, 16"), Op(f"s_add_u32 s{sT3}, s{sT3}, s{sROT}"),
                  Op(f"buffer_store_dwordx4 {v(PK,4)}, v{vL16}, {WSR}, s{sT3} offen sc1", group=gp)], 4)
            T.put(b + 9, Op(f"buffer_store_dwordx4 {v(PK+4,4)}, v{vL16}, {WSR}, s{sT3} offen offset:1024 sc1", group=gp), 4)
            fl = [Op("WAITG", group=gp)] + chunk_ops(p, sT2) + [Op(f"s_lshl_b32 s{sT2}, s{sT2}, 12"), Op(f"s_add_u32 s{sT2}, s{sT2}, s{sFLD}"),
                  Op(f"buffer_store_dword v{vONE}, v{vFL0}, {WSR}, s{sT2} offen sc1")]
            if b + P["cover"] <= 639: T.put(b + P["cover"], fl, 1.7)
            else: final_flag = fl
    T.spread(ops(f"""v_and_b32 v{t0}, 15, v0
        v_lshrrev_b32 v{t1}, 4, v0
        v_lshrrev_b32 v{t2}, 1, v{t1}
        s_and_b32 s10, s{sW}, 1
        s_lshl_b32 s10, s10, 2
        v_add_u32 v{t2}, s10, v{t2}
        v_and_b32 v{t3}, 7, v0
        v_xor_b32 v{t2}, v{t2}, v{t3}
        v_lshlrev_b32 v{t2}, 4, v{t2}
        v_and_b32 v{t1}, 1, v{t1}
        v_lshl_or_b32 v{t2}, v{t1}, 3, v{t2}
        v_lshl_or_b32 v{t2}, v{t0}, 7, v{t2}
        s_lshr_b32 s10, s{sW}, 1
        s_lshl_b32 s11, s10, 12
        s_add_u32 s11, s11, {SLOT(FS)}
        v_add_u32 v{vFA}, s11, v{t2}
        s_bfe_u32 s11, s{sJ}, 0x10001
        s_xor_b32 s11, s11, s10
        s_lshl_b32 s11, s11, 11
        s_add_u32 s11, s11, {SLOT(FS) + 8192}
        v_add_u32 v{vFA2}, s11, v{t2}
        v_lshrrev_b32 v{t0}, 3, v0
        v_xor_b32 v{t2}, v{t0}, v{t3}
        v_lshlrev_b32 v{t2}, 4, v{t2}
        v_lshl_or_b32 v{t2}, v{t0}, 7, v{t2}
        s_add_u32 s11, s{sM2}, {SLOT(FS)}
        v_add_u32 v{vFB}, s11, v{t2}
        v_mul_u32_u24 v{t1}, 2560, v{t0}
        v_lshl_or_b32 v{vOA}, v{t3}, 4, v{t1}
        v_add_u32 v{vOB}, {8*2560}, v{vOA}
        s_lshl_b32 s11, s{sW}, 2
        v_add_u32 v{t0}, s11, v{t0}
        v_and_b32 v{t1}, 7, v{t0}
        v_xor_b32 v{t1}, v{t1}, v{t3}
        v_lshlrev_b32 v{t1}, 4, v{t1}
        v_and_b32 v{t0}, 15, v{t0}
        v_lshl_or_b32 v{t1}, v{t0}, 7, v{t1}
        v_add_u32 v{vFB2}, {SLOT(FS) + 8192}, v{t1}
        v_mov_b32 v{t1}, {OOB}
        v_cmp_gt_u32 vcc, 32, v0
        s_mul_i32 s10, s{sW}, 6144
        s_add_u32 s10, s10, {SLOT(ZS)}
        v_cndmask_b32 v{vOC}, v{t1}, v{vOA}, vcc
        v_add_u32 v{vZ}, s10, v{vL16}"""), S_(5, 0), S_(5, 31), 5)
    T.flush(cs)
    A(stamp("g2"))
    Z = GACC[1]; ZL = GACC[0]
    A(final_flag)
    A(poll())
    A(BAR())
    A([Op(f"ds_read_b128 {v(ZL+4*q if q < 4 else ZSHL+4*(q-4),4)}, v{vZ} offset:{q*1024}", use=[(f"S{ZS}", 290)]) for q in range(6)])
    A(check([7])); A(fetch(7, A2)); A(check([8])); A(fetch(8, A2 + 12))
    for q in range(16): A(f"v_add_f32 v{Z+q}, v{Z+q}, v{ZL+q}")
    A(addin(7, A2, Z, ZSHL, cID) + addin(8, A2 + 12, Z, ZSHL, cID))
    A(stamp("coll"))
    FK = [(f"S{FS}", 300)]
    A(f"v_xor_b32 v{t0}, 32, v{vFA}\nv_xor_b32 v{t1}, 32, v{vFA2}")
    for nt in range(2):
        for jt in range(2):
            d = PK + 4 * nt + 2 * jt
            A([cvt(d, Z + 8 * nt + 4 * jt), cvt(d + 1, Z + 8 * nt + 4 * jt + 2)])
            A(Op(f"ds_write_b64 v{t0 if nt else vFA}, {v(d,2)} offset:{jt*2048}", fill=FK))
    for nt in range(2):
        d = ZSH + 2 * nt
        A([cvt(d, ZSHL + 4 * nt), cvt(d + 1, ZSHL + 4 * nt + 2)])
        A(Op(f"ds_write_b64 v{t1 if nt else vFA2}, {v(d,2)}", fill=FK))
    A(cbar())
    A(Op(f"ds_read_b128 {v(ZL,4)}, v{vFB}", use=FK))
    A(Op(f"ds_read_b128 {v(ZL+4,4)}, v{vFB} offset:1024", use=FK))
    A(Op(f"ds_read_b128 {v(ZL+8,4)}, v{vFB2}", use=FK))
    A(f"buffer_store_dwordx4 {v(ZL,4)}, v{vOA}, {OUTR}, s{sOUT0} offen")
    A(f"buffer_store_dwordx4 {v(ZL+4,4)}, v{vOB}, {OUTR}, s{sOUT0} offen")
    A(f"buffer_store_dwordx4 {v(ZL+8,4)}, v{vOC}, {OUTR}, s{sOUT1} offen")
    if P["dbg"]: A("s_waitcnt vmcnt(0)"); A(stamp("end")); A(dump())
    if P["x_amp"]:
        A(f"s_waitcnt vmcnt(0)\ns_memrealtime s[{sST}:{sST+1}]\ns_waitcnt lgkmcnt(0)\ns_sub_u32 s10, s{sST}, s{sST+4}\ns_mul_i32 s10, s10, {P['x_amp']}")
        A(f"L_amp:\ns_sleep 2\ns_memrealtime s[{sST}:{sST+1}]\ns_waitcnt lgkmcnt(0)\ns_sub_u32 s11, s{sST}, s{sST+4}\ns_cmp_lt_u32 s11, s10\ns_cbranch_scc1 L_amp")
    A("L_end:\ns_endpgm")

    sc, sl = {}, {}
    def drop(st, pred): st.ops = [o for o in st.ops if not pred(o)]
    if P["x_nokv"]: drop(ls, lambda o: o.kind == "vld" and (f"s[{SRD_K}:" in o.text or f"s[{SRD_V}:" in o.text))
    if P["x_noex"]:
        for st in (cs, ls): drop(st, lambda o: (o.kind in ("vld", "vst") and WSR in o.text and f"v{t6}," not in o.text) or "L_spin" in o.text)
    if P["x_nomfma"]: drop(cs, lambda o: o.kind in ("mfma", "dsr"))
    if P["x_nodma"]: drop(ls, lambda o: o.kind == "dma")
    cfull = Stream(); cfull.nocheck = True; cfull.ops = pro.ops + cs.ops
    lines = cfull.finalize(sc)
    ls.ops = [Op("s_nop 4")] + ls.ops if False else ls.ops
    lines += ls.finalize(sl) + tail
    nb = None
    if not (P['x_nomfma'] or P['x_nodma']):
        nb = check_handoffs([cfull.events, ls.events])
        assert nb[0] == nb[1] + 1, nb
    a = Asm(); kernel_begin(a, KNAME)
    for l in lines: a(l)
    a("L_code_end:")
    body = a.text().replace("CODE_SPAN", f"L_code_end-{KNAME}-4").replace("CODE_BACK", f"L_pc-{KNAME}")
    write_file(path, ["; @launch grid=(256,1,1) block=(512,1,1) lds=163840"], body, [descriptor(KNAME, 256, 256)])
    return sc, sl, nb

if __name__ == "__main__":
    out = sys.argv[1] if len(sys.argv) > 1 else f"cdna_kernels/{NAME}.s"
    kw = {}
    for x in sys.argv[2:]:
        k, val = x.split("=", 1)
        try: val = eval(val)
        except Exception: pass
        kw[k] = val
    print(build(out, **kw))
```

```python
import sys, struct
from common import *
from ops import Op, Stream, check_handoffs

def f2u(f): return struct.unpack("<I", struct.pack("<f", f))[0]
SCALE_LOG2E = 128 ** -0.5 * 1.4426950408889634
KNAME = NAME + "_kernel"

DEF = dict(
    nt_w="", nt_x="", nt_k="nt", nt_v="", nt_wo="", bpos=17, bpos2=15, code_pf=1, dbg=0, rot=1, xrot=0, flip=0,
    stamps=("start", "g1", "att", "g2", "end"), lstamps=(),
    clx=((('K0', 'C'), 2, 4), (('K1',), 6, 4), (('T',), 11, 4)), vdma={17: 0, 19: 1}, x_hot='', first=4, prio_l=0, prio_c=0, la=3, pfx=99, bk=8, nf=2, blpos=9, pld=((2, 8), (5, 8), (9, 8)), pchk=20, hs0=9, cover=64,
    out_mod="", x_amp=0, x_nomfma=0, x_nodma=0,
)

WS_R = 0
WS_P = 16 << 20
WS_FL = 20 << 20
WS_DBG = 32 << 20
OOB = 0x40000000

XB, KB = 65536, 98304
WOB, PB = 65536, 147456

sW, sJ, sRG, sG, sBR = 3, 6, 7, 8, 9
sFLIP, sPH, sKC, sQ = 32, 33, 34, 35
SRD_X, SRD_K, SRD_V, SRD_WQ, SRD_WO, SRD_OUT, SRD_DBG, SRD_WS = 36, 40, 44, 48, 52, 56, 60, 64
sWQ0, sX0, sK0, sV0, sWO0, sM4, sM5 = 68, 69, 70, 71, 72, 73, 74
sT0, sT1, sT2, sT3 = 75, 76, 77, 78
sRS, sRL, sPS, sFLD, sPL, sC, sHS, sCT, sFLM = 79, 80, 81, 82, 83, 84, 85, 86, 98
sNXT, sSPIN, sPEND = 87, 88, 89
sOUT0, sOUT1 = 90, 91
sST = 92
WSR = f"s[{SRD_WS}:{SRD_WS+3}]"; DBGR = f"s[{SRD_DBG}:{SRD_DBG+3}]"; OUTR = f"s[{SRD_OUT}:{SRD_OUT+3}]"

vL16, vL8, vFL0, vONE = 28, 29, 30, 31
vT = 33
aW, aX, kR = 1, 5, 7
vPW, vPR, vZ = 15, 16, 18
aWo, aV = 19, 23
ABUF = 40; BB = 64; ACC = 128
PF = 40
OUTA = 176
PVB = [112, 144]
VF = 96
A2 = 64
PRB = [[40, 44, 48, 52], [56, 60, 2, 6]]
SPARE = 56
PK = 2
vW, vX, vK, vV, vWo = 1, 5, 9, 13, 17
vFLAG = 32
vFL = 22
vNAN = 24
lID = 40
lZa, vFA, vFA2, vFB, vFB2, vOA, vOB, vOC, vPF, vPF2 = 46, 47, 48, 49, 50, 51, 52, 53, 54, 55
LINC = 64
LZ = 112
LZC = 136
LPK = 152
VP = 192
vVW = 56

def v(b, n=1): return vr(b, n)
def mfma(d, A, B, C=None): return Op(f"v_mfma_f32_16x16x32_bf16 {v(d,4)}, {A}, {B}, {v(d,4) if C is None else C}")
def cvt(d, s0): return Op(f"v_cvt_pk_bf16_f32 v{d}, v{s0}, v{s0+1}")
def ops(text): return [Op(x) for x in text.split("\n") if x.strip()]

class Ticks:
    def __init__(self): self.m = []; self.f = []
    def add(self, op): self.m.append(op); self.f.append([]); return len(self.m) - 1
    def put(self, t, o, prio=5):
        if not isinstance(o, (list, tuple)): o = [o]
        self.f[t].append((prio, len(self.f[t]), [Op(x) if isinstance(x, str) else x for x in o]))
    def spread(self, items, t0, t1, prio=5):
        n = len(items)
        for q, it in enumerate(items): self.put(t0 + (q * (t1 - t0 + 1)) // n, it, prio)
    def flush(self, st):
        for m, f in zip(self.m, self.f):
            st.add(m)
            for _, _, o in sorted(f, key=lambda x: (x[0], x[1])): st.add(o)

def weave(st, main, side, first=0):
    n, m = len(main), len(side); k = 0
    for i, o in enumerate(main):
        st.add(o)
        while k < m and i >= first and (k + 1) * (n - first) <= (i + 1 - first) * m: st.add(side[k]); k += 1
    while k < m: st.add(side[k]); k += 1

def build(path, **kw):
    P = dict(DEF); P.update(kw)
    BP, BP2, LA, NF = P["bpos"], P["bpos2"], P["la"], P["nf"]
    NS = 16 - NF
    tail = []
    pro = Stream(); cs = Stream(); ls = Stream()
    for s in (pro, cs, ls): s.nocheck = True
    t0, t1, t2, t3, t4, t5, t6 = range(vT, vT + 7)
    nst = {"c": 0, "l": 0}
    def stamp(name, role="c"):
        if not P["dbg"] or name not in P["stamps" if role == "c" else "lstamps"]: return []
        nst[role] += 1; i = nst[role]; assert i <= 13
        return [Op(f"s_memtime s[{sST}:{sST+1}]"), Op("s_waitcnt lgkmcnt(0)"), Op(f"s_mov_b32 s{12+i}, s{sST}")]
    def dump():
        if not P["dbg"]: return []
        L = ops(f"""s_waitcnt vmcnt(0)
            s_memrealtime s[{sST}:{sST+1}]
            s_waitcnt lgkmcnt(0)
            v_writelane_b32 v{t6}, s{sST+2}, 0
            v_writelane_b32 v{t6}, s{sST}, 15
            v_writelane_b32 v{t6}, s{sST+4}, 14""")
        L += [Op(f"v_writelane_b32 v{t6}, s{12+i}, {i}") for i in range(1, 14)]
        L += ops(f"""s_lshl_b32 s{sT2}, s2, 3
            s_add_u32 s{sT2}, s{sT2}, s31
            s_lshl_b32 s{sT2}, s{sT2}, 8
            s_add_u32 s{sT2}, s{sT2}, {WS_DBG}
            v_lshlrev_b32 v{t0}, 2, v0
            buffer_store_dword v{t6}, v{t0}, {WSR}, s{sT2} offen""")
        return L
    BAR = lambda: Op("s_barrier")
    def mksrd(dst, ptr, n): return ops(f"s_mov_b32 s{dst}, s{ptr}\ns_mov_b32 s{dst+1}, s{ptr+1}\ns_mov_b32 s{dst+2}, {n}\ns_mov_b32 s{dst+3}, 0x00020000")
    def mod10(x, tmp): return f"s_sub_u32 s{tmp}, s{x}, 10\ns_min_u32 s{x}, s{x}, s{tmp}"
    def wo_regions(k):
        lo, hi = WOB + 20480 * k, WOB + 20480 * (k + 1); r = [f"Wo{k}"]
        if lo < XB + 16384: r.append("X0")
        if lo < KB and hi > XB + 16384: r.append("X1")
        if hi > KB: r.append("K")
        return r

    A = pro.add
    A("s_cmp_ge_u32 s2, 256\ns_cbranch_scc1 L_end")
    if P["dbg"] or P["x_amp"]: A(f"s_memtime s[{sST+2}:{sST+3}]\ns_memrealtime s[{sST+4}:{sST+5}]")
    A(f"s_bfe_u32 s{sBR}, s2, 0x10002\ns_mul_i32 s10, s{sBR}, 40\ns_add_u32 s4, s0, s10\ns_addc_u32 s5, s1, 0")
    A("s_load_dwordx8 s[12:19], s[4:5], 0\ns_load_dwordx2 s[20:21], s[4:5], 32\ns_load_dwordx4 s[24:27], s[0:1], 80\ns_load_dwordx2 s[28:29], s[0:1], 96")
    A(f"v_lshrrev_b32 v{t0}, 6, v0\nv_and_b32 v0, 63, v0\nv_readfirstlane_b32 s31, v{t0}")
    A(f"""s_and_b32 s{sQ}, s2, 3
        s_bfe_u32 s{sJ}, s2, 0x20003
        s_lshr_b32 s{sRG}, s2, 5
        s_and_b32 s{sW}, s31, 3
        s_lshl_b32 s{sM4}, s{sW}, 12
        s_mov_b32 s{sFLIP}, 0""")
    if P["flip"]: A(f"s_mul_i32 s{sKC}, s{sRG}, 5\ns_lshr_b32 s{sKC}, s{sKC}, 1\ns_and_b32 s{sFLIP}, s{sKC}, 1\ns_lshr_b32 s{sKC}, s{sKC}, 1")
    else: A(f"s_mul_i32 s{sKC}, s{sRG}, 5\ns_lshr_b32 s{sKC}, s{sKC}, 2")
    A(f"v_lshlrev_b32 v{vL16}, 4, v0")
    A("s_cmp_lt_u32 s31, 4\ns_cbranch_scc1 L_compute")

    def exchange_setup():
        return mksrd(SRD_WS, 28, 268435456) + ops(f"""s_lshl_b32 s10, s{sBR}, 3
            s_add_u32 s10, s10, s{sRG}
            s_lshl_b32 s{sG}, s10, 2
            s_add_u32 s{sG}, s{sG}, s{sJ}
            s_lshl_b32 s10, s{sG}, 18
            s_add_u32 s10, s10, s{sM4}
            s_lshl_b32 s11, s{sQ}, 14
            s_add_u32 s{sRS}, s10, s11
            s_lshl_b32 s11, s{sQ}, 16
            s_add_u32 s{sRL}, s10, s11
            s_lshl_b32 s10, s{sBR}, 3
            s_add_u32 s10, s10, s{sRG}
            s_lshl_b32 s10, s10, 7
            s_lshl_b32 s11, s{sQ}, 3
            s_add_u32 s10, s10, s11
            s_lshl_b32 s11, s{sW}, 5
            s_add_u32 s11, s11, s10
            s_lshl_b32 s11, s11, 11
            s_add_u32 s{sPL}, s11, {WS_P}
            s_lshr_b32 s11, s{sW}, 1
            s_lshl_b32 s11, s11, 6
            s_add_u32 s10, s10, s11
            s_lshl_b32 s11, s{sJ}, 1
            s_add_u32 s10, s10, s11
            s_and_b32 s11, s{sW}, 1
            s_add_u32 s10, s10, s11
            s_lshl_b32 s10, s10, 11
            s_add_u32 s{sPS}, s10, {WS_P}
            s_lshl_b32 s10, s{sG}, 13
            s_lshl_b32 s11, s{sW}, 9
            s_add_u32 s10, s10, s11
            s_add_u32 s{sFLD}, s10, {WS_FL}
            s_lshl_b32 s11, s{sQ}, 11
            s_add_u32 s{sFLM}, s{sFLD}, s11
            v_mov_b32 v{t0}, {OOB}
            v_cmp_eq_u32 vcc, 0, v0
            v_mov_b32 v{t2}, 0
            v_mov_b32 v{vONE}, 1
            v_cndmask_b32 v{vFL0}, v{t0}, v{t2}, vcc
            v_lshlrev_b32 v{vL8}, 3, v0""")

    A = ls.add
    def dma(vo, srd_, so, q, mod, g, fill): return Op(f"buffer_load_dwordx4 v{vo}, s[{srd_}:{srd_+3}], s{so} offen offset:{(q%4)*1024} {mod} lds", group=g, fill=fill)
    def dma_w(t):
        kc, dh = t // 2, t % 2; s = t % 4; g = ("W", t); items = []
        if dh == 0:
            for q in range(4):
                it = []
                if q == 0:
                    if kc: it += [Op(f"s_add_u32 s{sKC}, s{sKC}, 1"), Op(f"s_cmp_eq_u32 s{sKC}, 10"), Op(f"s_cselect_b32 s{sKC}, 0, s{sKC}")]
                    it += [Op(f"s_lshl_b32 s{sT1}, s{sKC}, 7"), Op(f"s_add_u32 s{sT1}, s{sT1}, s{sX0}"),
                           Op(f"s_lshl_b32 s{sT0}, s{sKC}, 19"), Op(f"s_add_u32 s{sT0}, s{sT0}, s{sWQ0}"),
                           Op(f"s_add_u32 m0, s{sM4}, {XB + (kc%2)*16384}")]
                it.append(dma(vX + q, SRD_X, sT1, q, P["nt_x"], g, [(f"X{kc%2}", kc)]))
                items.append(it)
        for q in range(4):
            it = []
            if q == 0:
                if dh == 1: it.append(Op(f"s_xor_b32 s{sT0}, s{sT0}, 128"))
                it.append(Op(f"s_add_u32 m0, s{sM4}, {16384*s}"))
            it.append(dma(vW + q, SRD_WQ, sT0, q, P["nt_w"], g, [(f"S{s}", t)]))
            items.append(it)
        return items
    def dma_k(n):
        it = []
        if n % 4 == 0:
            it += [Op(f"s_add_u32 s{sT2}, s{sK0}, {(n//8)*262144 + ((n%8)//4)*4096}"), Op(f"s_lshl_b32 s{sT3}, s{sM4}, 2"),
                   Op(f"s_add_u32 m0, s{sT3}, {KB + (n//4)*4096}")]
        it.append(dma(vK + n % 4, SRD_K, sT2, n, P["nt_k"], ("K", 0), [("K", 100), ("Kp", 100)]))
        return it
    def park_v(n):
        it = []
        if n % 4 == 0: it += [Op(f"s_lshl_b32 s{sT2}, s{sJ}, 14"), Op(f"s_add_u32 s{sT2}, s{sT2}, s{sV0}"), Op(f"s_add_u32 s{sT2}, s{sT2}, {n*1024}")]
        it.append(Op(f"buffer_load_dwordx4 {v(VP+4*n,4)}, v{vL16}, s[{SRD_V}:{SRD_V+3}], s{sT2} offen offset:{(n%4)*1024} {P['nt_v']}"))
        return it
    def stage_v():
        return [Op(f"ds_write_b128 v{vVW+(n&1)}, {v(VP+4*n,4)} offset:{(n//8)*32768 + (n%8)*512}", fill=[(f"S{2*(n//8)+h}", 200 + 2*(n//8) + h) for h in range(2)]) for n in range(16)]
    def head_ops(s, dst): return [Op(f"s_lshl_b32 s{dst}, s{sJ}, 1"), Op(f"s_add_u32 s{dst}, s{dst}, {s//2}"), Op(f"s_and_b32 s{dst}, s{dst}, 7")]
    def dma_v(s):
        L = head_ops(s, sT2) + [Op(f"s_lshl_b32 s{sT2}, s{sT2}, 13"), Op(f"s_add_u32 s{sT2}, s{sT2}, s{sV0}")]
        if s % 2: L.append(Op(f"s_add_u32 s{sT2}, s{sT2}, 128"))
        L.append(Op(f"s_add_u32 m0, s{sM4}, {16384*(s%4)}"))
        return L + [dma(vV + q, SRD_V, sT2, q, P["nt_v"], ("V", s), [(f"S{s%4}", 200 + s)]) for q in range(4)]
    def dma_wo(s):
        k = s % 4; fill = [(r, 200 + s) for r in wo_regions(k)]
        L = head_ops(s, sT2) + [Op(f"s_mul_i32 s{sT2}, s{sT2}, {128*1280}"), Op(f"s_add_u32 s{sT2}, s{sT2}, s{sWO0}")]
        if s % 2: L.append(Op(f"s_add_u32 s{sT2}, s{sT2}, {64*1280}"))
        for q in range(5):
            if q % 4 == 0: L.append(Op(f"s_add_u32 m0, s{sM5}, {WOB + 20480*k + 1024*q}"))
            L.append(dma(vWo + q, SRD_WO, sT2, q, P["nt_wo"], ("Wo", s), fill))
        return L
    nlab = [0]
    def arrived(regs, reload, tmp):
        k = nlab[0]; nlab[0] += 1; regs = list(regs); L = []
        L.append(f"v_max3_u32 v{tmp}, v{regs[0]}, v{regs[1]}, v{regs[2]}")
        rest_ = regs[3:]
        while len(rest_) >= 2: L.append(f"v_max3_u32 v{tmp}, v{tmp}, v{rest_[0]}, v{rest_[1]}"); rest_ = rest_[2:]
        if rest_: L.append(f"v_max_u32 v{tmp}, v{tmp}, v{rest_[0]}")
        L.append(f"v_cmp_eq_u32 vcc, -1, v{tmp}")
        tail.extend([f"L_spin{k}:", f"s_mov_b32 s{sSPIN}, 0", f"L_spin{k}a:"] + [o.text for o in reload] + ["s_waitcnt vmcnt(0)"] + L +
                    [f"s_add_u32 s{sSPIN}, s{sSPIN}, 1", f"s_cmp_gt_u32 s{sSPIN}, 50000", f"s_cbranch_scc1 L_back{k}",
                     f"s_cbranch_vccnz L_spin{k}a", f"s_branch L_back{k}"])
        return [Op(x) for x in L] + [Op("s_nop 0"), Op(f"s_cbranch_vccnz L_spin{k}"), Op(f"L_back{k}:")]
    def clears():
        st = lambda so, off: Op(f"buffer_store_dwordx4 {v(vNAN,4)}, v{vL16}, {WSR}, s{so} offen offset:{off} sc1")
        return [st(sPS, 0), st(sPS, 1024), Op(f"s_add_u32 s{sT2}, s{sPS}, 65536"), st(sT2, 0), st(sT2, 1024),
                Op(f"buffer_store_dword v{vFL+1}, v{vFL}, {WSR}, s{sFLM} offen sc1")]
    def poll(): return Op(f"buffer_load_dword v{vFLAG}, v{vFL}, {WSR}, s{sFLM} offen sc1")
    def need(mask):
        k = nlab[0]; nlab[0] += 1
        tail.extend([f"L_spin{k}:", f"s_mov_b32 s{sSPIN}, 0", f"L_spin{k}a:",
                     f"buffer_load_dword v{vFLAG}, v{vFL}, {WSR}, s{sFLM} offen sc1", "s_waitcnt vmcnt(0)",
                     f"v_cmp_ne_u32 vcc, 0, v{vFLAG}", f"s_add_u32 s{sSPIN}, s{sSPIN}, 1", f"s_cmp_gt_u32 s{sSPIN}, 100000", f"s_cbranch_scc1 L_back{k}",
                     f"s_and_b32 s{sT2}, vcc_lo, {mask}", f"s_cmp_lg_u32 s{sT2}, {mask}", f"s_cbranch_scc1 L_spin{k}a", f"s_branch L_back{k}"])
        return ops(f"v_cmp_ne_u32 vcc, 0, v{vFLAG}\ns_and_b32 s{sT2}, vcc_lo, {mask}\ns_cmp_lg_u32 s{sT2}, {mask}\ns_cbranch_scc1 L_spin{k}\nL_back{k}:")
    def fetch(k, r):
        L = ops(f"s_add_u32 s{sT2}, s{sQ}, {3 - k + 4}\ns_and_b32 s{sT2}, s{sT2}, 3\ns_lshl_b32 s{sT2}, s{sT2}, 14\ns_add_u32 s{sT2}, s{sT2}, s{sRL}")
        if k < 3: L += [Op(f"buffer_load_dwordx4 {v(r+4*nt,4)}, v{vL16}, {WSR}, s{sT2} offen offset:{1024*nt} sc1") for nt in range(2)]
        return L + [Op(f"buffer_load_dwordx2 {v(r+8,2)}, v{vL8}, {WSR}, s{sT2} offen offset:2048 sc1")]
    def addin(k, r):
        L = []
        if k < 3:
            for nt in range(2):
                for jt in range(2): L.append(mfma(LZ + 8 * nt + 4 * jt, v(lID + 2 - 2 * jt, 4), v(r + 4 * nt, 4)))
        return L + [mfma(LZ + 16, v(lID + 2, 4), v(r + 8, 4))]

    if P["prio_l"]: A(f"s_setprio {P['prio_l']}")
    A(f"""s_mul_i32 s10, s{sJ}, 5
        s_lshr_b32 s10, s10, 1
        s_add_u32 s{sKC}, s{sKC}, s10
        {mod10(sKC, 30)}""")
    if P["xrot"]: A(f"s_mul_i32 s10, s{sQ}, {P['xrot']}\ns_add_u32 s{sKC}, s{sKC}, s10\n{mod10(sKC, 30)}")
    if not P["rot"]: A(f"s_mov_b32 s{sKC}, 0")
    A(f"""v_lshrrev_b32 v{t0}, 4, v0
        v_bfe_u32 v{t1}, v0, 1, 3
        v_xor_b32 v{t1}, v{t1}, v{t0}
        v_and_b32 v{t2}, 4, v{t1}
        v_and_b32 v{t1}, 3, v{t1}
        v_lshlrev_b32 v{t2}, 6, v{t2}
        v_lshl_or_b32 v{t1}, v{t1}, 5, v{t2}
        v_and_b32 v{t2}, 1, v0
        v_lshl_or_b32 v{t1}, v{t2}, 4, v{t1}
        v_lshl_or_b32 v{vW}, v{t0}, 13, v{t1}
        v_add_u32 v{vW+1}, {32768 - 1024}, v{vW}
        v_xor_b32 v{vW+2}, 0x100, v{vW}
        v_add_u32 v{vW+3}, {3*(32768 - 1024)}, v{vW+2}
        v_add_u32 v{vW+2}, {2*(32768 - 1024)}, v{vW+2}
        v_lshrrev_b32 v{t4}, 3, v0
        v_and_b32 v{t1}, 7, v0
        v_mul_u32_u24 v{t2}, 1280, v{t4}
        v_xor_b32 v{t3}, v{t1}, v{t0}
        v_lshl_add_u32 v{vX}, v{t3}, 4, v{t2}
        v_xor_b32 v{t3}, 4, v{t3}
        v_lshl_add_u32 v{vX+1}, v{t3}, 4, v{t2}
        v_add_u32 v{vX+2}, {2*9216}, v{vX}
        v_add_u32 v{vX+3}, {3*9216}, v{vX+1}
        v_add_u32 v{vX+1}, 9216, v{vX+1}
        s_lshl_b32 s10, s{sQ}, 2
        s_add_u32 s10, s10, s{sJ}
        s_lshl_b32 s{sWQ0}, s10, 9
        s_lshl_b32 s10, s{sW}, 17
        s_add_u32 s{sWQ0}, s{sWQ0}, s10
        s_lshl_b32 s10, s{sFLIP}, 7
        s_add_u32 s{sWQ0}, s{sWQ0}, s10
        s_lshl_b32 s10, s{sRG}, 2
        s_add_u32 s10, s10, s{sW}
        s_mul_i32 s{sX0}, s10, 40960
        s_mov_b32 s{SRD_X+2}, {SZ['x']}
        s_mov_b32 s{SRD_X+3}, 0x00020000
        s_mov_b32 s{SRD_WQ+2}, {SZ['wq']}
        s_mov_b32 s{SRD_WQ+3}, 0x00020000
        s_waitcnt lgkmcnt(0)
        s_mov_b32 s{SRD_X}, s12
        s_mov_b32 s{SRD_X+1}, s13
        s_mov_b32 s{SRD_WQ}, s18
        s_mov_b32 s{SRD_WQ+1}, s19""")
    A(dma_w(0))
    if P["code_pf"]:
        A("s_getpc_b64 s[22:23]\nL_pc:")
        A(f"""s_lshr_b32 s10, s2, 3
            s_lshl_b32 s10, s10, 11
            v_and_b32 v{t2}, 15, v0
            v_lshlrev_b32 v{t2}, 7, v{t2}
            v_add_u32 v{t2}, s10, v{t2}
            v_min_u32 v{t2}, CODE_SPAN, v{t2}
            s_sub_u32 s22, s22, CODE_BACK
            s_subb_u32 s23, s23, 0
            global_load_dword v{t5}, v{t2}, s[22:23]""")
    rest = mksrd(SRD_K, 14, SZ["k"]) + ops(f"""v_and_b32 v{t2}, 15, v0
        v_xor_b32 v{t2}, v{t2}, v{t0}
        v_lshlrev_b32 v{t2}, 4, v{t2}
        v_lshl_or_b32 v{vK}, v{t0}, 8, v{t2}
        v_xor_b32 v{vK+1}, 64, v{vK}
        v_xor_b32 v{vK+2}, 0x80, v{vK}
        v_xor_b32 v{vK+3}, 0xc0, v{vK}
        v_lshlrev_b32 v{t2}, 1, v{t0}
        v_xor_b32 v{t2}, v{t2}, v{t1}
        v_lshlrev_b32 v{t2}, 4, v{t2}
        v_lshl_or_b32 v{vV}, v{t4}, 8, v{t2}
        v_add_u32 v{vV+1}, 1024, v{vV}
        v_add_u32 v{vV+2}, 2048, v{vV}
        v_add_u32 v{vV+3}, 3072, v{vV}
        s_lshl_b32 s10, s{sRG}, 1
        s_lshr_b32 s11, s{sW}, 1
        s_add_u32 s10, s10, s11
        s_lshl_b32 s10, s10, 6
        s_lshl_b32 s11, s{sQ}, 3
        s_add_u32 s10, s10, s11
        s_lshl_b32 s11, s{sJ}, 1
        s_add_u32 s10, s10, s11
        s_and_b32 s11, s{sW}, 1
        s_add_u32 s10, s10, s11
        s_lshl_b32 s{sK0}, s10, 13
        s_lshr_b32 s{sPH}, s2, 3
        s_lshl_b32 s10, s{sRG}, 2
        s_add_u32 s10, s10, s{sW}
        s_lshl_b32 s10, s10, 2
        s_add_u32 s10, s10, s{sQ}
        s_lshl_b32 s{sV0}, s10, 16""") + mksrd(SRD_V, 16, SZ["v"]) + mksrd(SRD_WO, 20, SZ["wo"])
    rest += exchange_setup() + mksrd(SRD_DBG, 26, 256)
    rest += ops(f"""v_lshlrev_b32 v{vPF}, 7, v0
        v_min_u32 v{vPF2}, {15*128}, v{vPF}
        v_mov_b32 v{vNAN}, -1
        v_mov_b32 v{vNAN+1}, -1
        v_mov_b32 v{t2}, {OOB}
        v_cmp_gt_u32 vcc, 3, v0
        v_mov_b32 v{vNAN+2}, -1
        v_mov_b32 v{vNAN+3}, -1
        v_cndmask_b32 v{vFL}, v{t2}, v{vPF}, vcc
        v_mov_b32 v{vFL+1}, 0
        s_and_b32 s{sHS}, s{sG}, 3
        s_lshl_b32 s10, s{sW}, 3
        s_add_u32 s{sHS}, s{sHS}, s10""")
    g1 = dma_w(1); nf = P["first"]; side = g1[:nf]; k = 0
    for i, o in enumerate(rest):
        A(o)
        if k < len(side) and (k + 1) * len(rest) <= (i + 1) * len(side): A(side[k]); k += 1
    A(side[k:])
    late = mksrd(SRD_OUT, 24, SZ["out"]) + ops(f"""s_add_u32 s{sCT}, s{sJ}, s{sRG}
        s_and_b32 s{sCT}, s{sCT}, 3
        s_lshl_b32 s10, s{sRG}, 2
        s_add_u32 s10, s10, s{sW}
        s_mul_i32 s10, s10, {32*2560}
        s_mul_i32 s11, s{sBR}, 1280
        s_add_u32 s10, s10, s11
        s_mul_i32 s11, s{sCT}, 320
        s_add_u32 s10, s10, s11
        s_lshl_b32 s30, s{sQ}, 6
        s_add_u32 s{sOUT0}, s10, s30
        s_and_b32 s30, s{sQ}, 1
        s_mul_i32 s30, s30, {16*2560}
        s_add_u32 s10, s10, s30
        s_lshr_b32 s30, s{sQ}, 1
        s_lshl_b32 s30, s30, 5
        s_add_u32 s10, s10, s30
        s_add_u32 s{sOUT1}, s10, 256
        s_lshl_b32 s10, s{sQ}, 6
        s_add_u32 s10, s10, s{sW}
        s_mul_i32 s10, s10, {16*1280}
        s_add_u32 s{sWO0}, s10, s11
        s_mul_i32 s{sM5}, s{sW}, 5120
        s_add_u32 s10, s{sQ}, 1
        s_movk_i32 s11, 3277""")
    for q in range(5):
        late += ops(f"""v_add_u32 v{t0}, {64*q}, v0
            v_mul_u32_u24 v{t1}, s11, v{t0}
            v_lshrrev_b32 v{t1}, 16, v{t1}
            v_mul_u32_u24 v{t2}, 20, v{t1}
            v_sub_u32 v{t0}, v{t0}, v{t2}
            v_lshrrev_b32 v{t2}, 2, v{t0}
            v_add_u32 v{t3}, s10, v{t2}
            v_and_b32 v{t3}, 3, v{t3}
            v_cmp_gt_u32 vcc, 4, v{t2}
            v_and_b32 v{t0}, 3, v{t0}
            v_bfe_u32 v{t4}, v{t1}, 2, 1
            v_cndmask_b32 v{t2}, v{t2}, v{t3}, vcc
            v_lshlrev_b32 v{t4}, 1, v{t4}
            v_xor_b32 v{t0}, v{t0}, v{t4}
            v_lshlrev_b32 v{t0}, 4, v{t0}
            v_lshl_or_b32 v{t0}, v{t2}, 6, v{t0}
            v_mul_u32_u24 v{t1}, 1280, v{t1}
            v_add_u32 v{vWo+q}, v{t0}, v{t1}""")
        if q % 4: late.append(Op(f"v_subrev_u32 v{vWo+q}, {1024*(q%4)}, v{vWo+q}"))
    FA = 16384
    late += ops(f"""v_and_b32 v{t0}, 15, v0
        v_lshrrev_b32 v{t1}, 4, v0
        v_lshrrev_b32 v{t2}, 1, v{t1}
        v_bfe_u32 v{t3}, v0, 1, 2
        v_xor_b32 v{t3}, v{t3}, v{t2}
        v_lshlrev_b32 v{t3}, 4, v{t3}
        v_and_b32 v{t4}, 1, v{t1}
        v_lshl_or_b32 v{t3}, v{t4}, 3, v{t3}
        v_lshl_or_b32 v{t3}, v{t0}, 6, v{t3}
        s_add_u32 s10, s{sM4}, {FA}
        v_add_u32 v{vFA}, s10, v{t3}
        v_lshlrev_b32 v{t3}, 3, v{t1}
        v_lshl_or_b32 v{t3}, v{t0}, 5, v{t3}
        s_add_u32 s11, s10, 2048
        v_add_u32 v{vFA2}, s11, v{t3}
        v_add_u32 v{vFB2}, s11, v{vL16}
        v_lshrrev_b32 v{t0}, 2, v0
        v_and_b32 v{t1}, 3, v0
        v_bfe_u32 v{t2}, v0, 3, 2
        v_xor_b32 v{t2}, v{t2}, v{t1}
        v_lshlrev_b32 v{t2}, 4, v{t2}
        v_lshl_or_b32 v{t2}, v{t0}, 6, v{t2}
        v_add_u32 v{vFB}, s10, v{t2}
        v_mul_u32_u24 v{t0}, 2560, v{t0}
        v_lshl_or_b32 v{vOA}, v{t1}, 4, v{t0}
        v_add_u32 v{vOB}, {16*2560}, v{vOA}
        v_lshrrev_b32 v{t0}, 1, v0
        v_and_b32 v{t1}, 1, v0
        v_mul_u32_u24 v{t0}, 2560, v{t0}
        v_lshl_or_b32 v{t0}, v{t1}, 4, v{t0}
        v_mov_b32 v{t1}, {OOB}
        v_cmp_gt_u32 vcc, 32, v0
        v_add_u32 v{lZa}, s{sM4}, v{vL16}
        v_mov_b32 v{lID}, 0
        v_cndmask_b32 v{vOC}, v{t1}, v{t0}, vcc
        v_and_b32 v{t0}, 1, v0
        v_lshlrev_b32 v{t0}, 4, v{t0}
        v_mov_b32 v{t1}, 0x3f80
        v_lshlrev_b32 v{t0}, v{t0}, v{t1}
        v_lshrrev_b32 v{t1}, 4, v0
        v_bfe_u32 v{t2}, v0, 2, 2
        v_cmp_eq_u32 vcc, v{t1}, v{t2}
        v_mov_b32 v{lID+1}, 0
        v_and_b32 v{t2}, 3, v0
        v_cndmask_b32 v{t0}, v{lID}, v{t0}, vcc
        v_cmp_gt_u32 vcc, 2, v{t2}
        v_mov_b32 v{lID+4}, 0
        v_mov_b32 v{lID+5}, 0
        v_cndmask_b32 v{lID+2}, v{lID}, v{t0}, vcc
        v_cndmask_b32 v{lID+3}, v{t0}, v{lID}, vcc""")
    late += ops(f"""v_lshrrev_b32 v{t0}, 4, v0
        v_bfe_u32 v{t1}, v0, 1, 2
        v_lshrrev_b32 v{t2}, 5, v0
        v_xor_b32 v{t1}, v{t1}, v{t2}
        v_lshlrev_b32 v{t1}, 5, v{t1}
        v_and_b32 v{t2}, 1, v0
        v_lshl_or_b32 v{t1}, v{t2}, 4, v{t1}
        v_lshl_or_b32 v{t1}, v{t0}, 7, v{t1}
        v_bfe_u32 v{t2}, v0, 3, 1
        v_lshl_or_b32 v{t1}, v{t2}, 14, v{t1}
        v_add_u32 v{vVW}, s{sM4}, v{t1}
        v_xor_b32 v{vVW+1}, 64, v{vVW}""")
    late += [Op(f"v_mov_b32 v{LZ+q}, 0") for q in range(20)] + [Op(f"v_mov_b32 v{LINC+12*q+10+e}, 0") for q in range(4) for e in range(2)]
    A(stamp("lstart", "l"))
    def lbar(*groups): return [Op("WAITG", group=g) for g in groups] + [BAR()]
    A(lbar(("W", 0)))
    A(g1[nf:])
    for t in range(2, LA + 1): A(dma_w(t))
    A(lbar(("W", 1)))
    clx = P["clx"]; parked = [int(p[1]) for c in clx for p in c[0] if p[0] == "V"]; vdma = dict(P["vdma"])
    def touch():
        return ops(f"""s_lshl_b32 s{sT2}, s{sQ}, 5
            s_add_u32 s{sT2}, s{sT2}, s{sPH}
            s_lshl_b32 s{sT2}, s{sT2}, 2
            s_add_u32 s{sT2}, s{sT2}, s{sW}
            s_mul_i32 s{sT2}, s{sT2}, 10240
            s_add_u32 s{sT3}, s{sT2}, 8192
            buffer_load_dword v{t5}, v{vPF}, s[{SRD_WO}:{SRD_WO+3}], s{sT2} offen
            buffer_load_dword v{t6}, v{vPF2}, s[{SRD_WO}:{SRD_WO+3}], s{sT3} offen""")
    def piece(p):
        if p == "T": return touch()
        if p == "C": return clears()
        b = int(p[1])
        return [y for n in range(8 * b, 8 * b + 8) for y in (dma_k(n) if p[0] == "K" else park_v(n))]
    nl = len(late); parts = {2: late[:nl // 3], 4: late[nl // 3:2 * nl // 3], 6: late[2 * nl // 3:]}
    kdone = []
    def ph_ops(nph):
        if nph == 3: return ops(f"s_mul_i32 s{sT2}, s{sPH}, 86\ns_lshr_b32 s{sT2}, s{sT2}, 8\ns_mul_i32 s{sT2}, s{sT2}, 3\ns_sub_u32 s{sT2}, s{sPH}, s{sT2}")
        return [Op(f"s_and_b32 s{sT2}, s{sPH}, {nph-1}")]
    for x in range(1, 20):
        for c, (pcs, xc, nph) in enumerate(clx):
            for ph in range(nph):
                if xc + ph != x: continue
                o = [y for p in pcs for y in piece(p)]
                assert x + LA <= 17
                if any(p[0] == "C" for p in pcs): assert x + LA <= P["hs0"]
                for y in o:
                    y.meta["uncounted" if y.kind in ("dma", "vld", "vst") else "cond"] = True
                    if y.kind == "dma": kdone.append(y)
                A(ph_ops(nph) + [Op(f"s_cmp_lg_u32 s{sT2}, {ph}"), Op(f"s_cbranch_scc1 L_cl{c}_{ph}")] + o + [Op(f"L_cl{c}_{ph}:")])
        if P["hs0"] <= x < P["hs0"] + 4:
            q = x - P["hs0"]
            A([Op(f"s_cmp_lg_u32 s{sHS}, {q}"), Op(f"s_cbranch_scc1 L_hs{q}"), Op(f"s_lshr_b32 s{sT2}, s{sG}, 2", cond=True), Op(f"s_lshl_b32 s{sT2}, s{sT2}, 4", cond=True),
               Op(f"buffer_atomic_add v{vONE}, v{vFL0}, {DBGR}, s{sT2} offen sc1", uncounted=True), Op(f"L_hs{q}:")])
        assert P['hs0'] + 4 <= 15
        if x == 15:
            A([Op(f"s_cmp_lg_u32 s{sW}, 0"), Op("s_cbranch_scc1 L_hsl"), Op(f"s_lshr_b32 s{sT2}, s{sG}, 2", cond=True), Op(f"s_lshl_b32 s{sT2}, s{sT2}, 4", cond=True),
               Op(f"buffer_load_dword v{vFLAG}, v{vFL0}, {DBGR}, s{sT2} offen sc1", uncounted=True), Op("L_hsl:")])
        if x + LA <= 19: A(dma_w(x + LA))
        if x in parts: A(parts[x])
        if x in vdma: A(dma_v(vdma[x]))
        if x == P["pfx"]: A(touch())
        if x == 19:
            A([Op(f"s_cmp_lg_u32 s{sW}, 0"), Op("s_cbranch_scc1 L_hsc"),
               Op(f"v_readfirstlane_b32 s{sT3}, v{vFLAG}", cond=True), Op("s_nop 1", cond=True), Op(f"s_cmp_lt_u32 s{sT3}, 16", cond=True, nohaz=True),
               Op("s_cbranch_scc1 L_hs_spin", cond=True), Op("L_hsc:")])
            tail.extend(["L_hs_spin:", f"s_mov_b32 s{sSPIN}, 0", "L_hs_spin1:", f"s_lshr_b32 s{sT2}, s{sG}, 2", f"s_lshl_b32 s{sT2}, s{sT2}, 4",
                 f"buffer_load_dword v{vFLAG}, v{vFL0}, {DBGR}, s{sT2} offen sc1", "s_waitcnt vmcnt(0)",
                 f"v_readfirstlane_b32 s{sT3}, v{vFLAG}", f"s_add_u32 s{sSPIN}, s{sSPIN}, 1", f"s_cmp_gt_u32 s{sSPIN}, 100000", "s_cbranch_scc1 L_hsc",
                 f"s_cmp_lt_u32 s{sT3}, 16", "s_cbranch_scc1 L_hs_spin1", "s_branch L_hsc"])
        w = lbar(("W", x + 1))
        if x == 16 and 'k' not in P['x_hot']: w[-2].meta["covers"] = kdone
        A(w)
        A(stamp(f"l{x}", "l"))
    A(BAR())
    for hd in parked: A(stage_v()[8 * hd:8 * hd + 8])
    todo = [s_ for s_ in range(4) if s_ // 2 not in parked and s_ not in vdma.values()]
    early = [s_ for s_ in todo if s_ < 3]
    A(dma_wo(0))
    for s_ in early: A(dma_v(s_))
    A(dma_wo(1))
    A([Op("WAITL")] + lbar(("V", 0), ("Wo", 0)))
    A(stamp("m0", "l"))
    for x in range(0, NS):
        if x + 2 <= 15: A(dma_wo(x + 2))
        if x == 0 and 3 in todo: A(dma_v(3))
        if x >= 1 and x + 3 <= 15: A(dma_v(x + 3))
        A(stamp(f'd{x}', 'l'))
        g = [("V", x + 1), ("Wo", x + 1)]
        A(lbar(*g))
        A(stamp(f"m{x+1}", "l"))
    assert NF == 2
    if NS + 2 <= 15: A(dma_wo(NS + 2))
    if NS + 3 <= 15: A(dma_v(NS + 3))
    A(lbar(("V", 15), ("Wo", 15)))
    A(poll())
    A(need(1) + fetch(0, LINC) + [poll()])
    A(need(2) + fetch(1, LINC + 12) + addin(0, LINC))
    A(stamp("c1", "l"))
    A(BAR())
    A(fetch(3, LINC + 36) + [poll()])
    A([Op(f"ds_read_b128 {v(LZC+4*q,4)}, v{lZa} offset:{q*1024}", use=[("S0", 290)]) for q in range(4)])
    A(addin(1, LINC + 12))
    A(need(4) + fetch(2, LINC + 24) + addin(3, LINC + 36))
    A("s_nop 7")
    for q in range(16): A(f"v_add_f32 v{LZ+q}, v{LZ+q}, v{LZC+q}")
    A(f"v_xor_b32 v{t0}, 32, v{vFA}")
    A(addin(2, LINC + 24))
    A(stamp("c2", "l"))
    FK = [("S1", 300)]
    for nt in range(2):
        for jt in range(2):
            d = LPK + 4 * nt + 2 * jt; z = LZ + 8 * nt + 4 * jt
            A([cvt(d, z), cvt(d + 1, z + 2)])
            A(Op(f"ds_write_b64 v{t0 if nt else vFA}, {v(d,2)} offset:{jt*1024}", fill=FK, private=True))
    A([cvt(LPK + 8, LZ + 16), cvt(LPK + 9, LZ + 18), Op(f"ds_write_b64 v{vFA2}, {v(LPK+8,2)}", fill=FK, private=True)])
    A(Op(f"ds_read_b128 {v(LINC,4)}, v{vFB}", use=FK, private=True))
    A(Op(f"ds_read_b128 {v(LINC+4,4)}, v{vFB} offset:1024", use=FK, private=True))
    A(Op(f"ds_read_b128 {v(LINC+12,4)}, v{vFB2}", use=FK, private=True))
    A(f"buffer_store_dwordx4 {v(LINC,4)}, v{vOA}, {OUTR}, s{sOUT0} offen {P['out_mod']}")
    A(f"buffer_store_dwordx4 {v(LINC+4,4)}, v{vOB}, {OUTR}, s{sOUT0} offen {P['out_mod']}")
    A(f"buffer_store_dwordx4 {v(LINC+12,4)}, v{vOC}, {OUTR}, s{sOUT1} offen {P['out_mod']}")
    if P["dbg"]: A("s_waitcnt vmcnt(0)"); A(stamp("lend", "l"))
    A(dump())
    if P["x_amp"]:
        A(f"s_waitcnt vmcnt(0)\ns_memrealtime s[{sST}:{sST+1}]\ns_waitcnt lgkmcnt(0)\ns_sub_u32 s10, s{sST}, s{sST+4}\ns_mul_i32 s10, s10, {P['x_amp']}")
        A(f"L_amp:\ns_sleep 2\ns_memrealtime s[{sST}:{sST+1}]\ns_waitcnt lgkmcnt(0)\ns_sub_u32 s11, s{sST}, s{sST+4}\ns_cmp_lt_u32 s11, s10\ns_cbranch_scc1 L_amp")
    A("L_end:\ns_endpgm")

    A = cs.add
    A("L_compute:")
    if P["prio_c"]: A(f"s_setprio {P['prio_c']}")
    l16, g, r, c4 = t0, t1, t2, t3
    u0, u1 = ABUF, ABUF + 1
    A(f"""v_and_b32 v{l16}, 15, v0
        v_lshrrev_b32 v{g}, 4, v0
        v_bfe_u32 v{r}, v0, 2, 2
        v_and_b32 v{c4}, 3, v0
        v_and_b32 v{t5}, 1, v{g}
        v_lshl_or_b32 v{t4}, v{t5}, 2, v{r}
        s_and_b32 s10, s{sW}, 1
        s_lshl_b32 s11, s10, 2
        v_lshl_add_u32 v{u0}, v{g}, 3, v{r}
        v_lshlrev_b32 v{u0}, 8, v{u0}
        v_lshl_or_b32 v{u0}, v{c4}, 3, v{u0}
        v_xor_b32 v{u1}, s11, v{t4}
        v_lshl_or_b32 v{aW}, v{u1}, 5, v{u0}
        v_xor_b32 v{aW+1}, 32, v{aW}
        v_xor_b32 v{aW+2}, 64, v{aW}
        v_xor_b32 v{aW+3}, 0x60, v{aW}
        v_lshrrev_b32 v{u1}, 1, v{l16}
        v_xor_b32 v{u1}, v{u1}, v{g}
        v_lshlrev_b32 v{u1}, 4, v{u1}
        v_lshl_or_b32 v{u1}, v{l16}, 7, v{u1}
        s_lshr_b32 s11, s{sW}, 1
        s_lshl_b32 s30, s11, 13
        s_add_u32 s{sT0}, s30, {XB}
        v_add_u32 v{aX}, s{sT0}, v{u1}
        v_xor_b32 v{aX+1}, 64, v{aX}
        s_lshl_b32 s10, s10, 11
        s_add_u32 s10, s10, s30
        s_add_u32 s10, s10, {PB}
        v_add_u32 v{vPW}, s10, v{vL16}
        s_add_u32 s10, s{sM4}, {PB}
        v_add_u32 v{vPR}, s10, v{vL16}
        v_add_u32 v{vZ}, s{sM4}, v{vL16}
        v_lshrrev_b32 v{u0}, 1, v{g}
        v_xor_b32 v{u0}, v{u0}, v{l16}
        v_lshlrev_b32 v{u0}, 4, v{u0}
        v_lshl_or_b32 v{u0}, v{t5}, 3, v{u0}
        v_lshl_or_b32 v{u0}, v{l16}, 8, v{u0}
        s_lshl_b32 s10, s{sM4}, 2
        s_add_u32 s10, s10, {KB}
        v_add_u32 v{u0}, s10, v{u0}
        s_lshl_b32 s10, s{sFLIP}, 7
        v_xor_b32 v{kR}, s10, v{u0}""")
    for q in range(1, 8): A(f"v_xor_b32 v{kR+q}, {32*q}, v{kR}")
    A(f"""v_lshl_add_u32 v{u0}, v{g}, 2, v{r}
        v_bfe_u32 v{u1}, v{u0}, 1, 2
        v_lshlrev_b32 v{u1}, 5, v{u1}
        v_lshl_or_b32 v{u1}, v{c4}, 3, v{u1}
        v_lshl_or_b32 v{u1}, v{u0}, 7, v{u1}
        v_add_u32 v{aV}, s{sM4}, v{u1}
        v_xor_b32 v{aV+1}, 32, v{aV}
        v_xor_b32 v{aV+2}, 64, v{aV}
        v_xor_b32 v{aV+3}, 0x60, v{aV}
        v_mul_u32_u24 v{u0}, 320, v{u0}
        v_lshl_add_u32 v{u0}, v{c4}, 3, v{u0}
        v_add_u32 v{u0}, {WOB}, v{u0}
        v_lshlrev_b32 v{t5}, 5, v{t5}
        v_add_u32 v{aWo}, v{u0}, v{t5}
        v_sub_u32 v{aWo+1}, v{u0}, v{t5}
        v_add_u32 v{aWo+2}, 61440, v{aWo}
        v_add_u32 v{aWo+3}, 61440, v{aWo+1}
        s_mov_b32 s{sC}, {f2u(SCALE_LOG2E)}
        s_waitcnt lgkmcnt(0)""")
    A(exchange_setup())
    cbar = lambda: [Op("WAITL"), BAR()]

    def rdA1(t, i):
        s = t % 4; buf = ABUF + 8 * ((4 * t + i) % 3)
        return [Op(f"ds_read_b64_tr_b16 {v(buf+4*ss+2*h,2)}, v{aW+i} offset:{s*16384 + ss*8192 + h*1024}", use=[(f"S{s}", t)]) for ss in range(2) for h in range(2)]
    def rdB(kc):
        return [Op(f"ds_read_b128 {v(BB+32*(kc%2)+8*jt+4*ss,4)}, v{aX+ss} offset:{(kc%2)*16384 + jt*2048}", use=[(f"X{kc%2}", kc)]) for jt in range(4) for ss in range(2)]
    A(BAR())
    A(stamp("start"))
    b0 = rdB(0); a0 = rdA1(0, 0)
    A(a0[:2] + b0[:1] + a0[2:] + b0[1:] + rdA1(0, 1))
    T = Ticks()
    for t in range(20):
        kc, dh = t // 2, t % 2
        for i in range(4):
            buf = ABUF + 8 * ((4 * t + i) % 3)
            for jt in range(4):
                for ss in range(2):
                    d = ACC + 16 * (4 * dh + i) + 4 * jt
                    T.add(mfma(d, v(buf + 4 * ss, 4), v(BB + 32 * (kc % 2) + 8 * jt + 4 * ss, 4), "0" if (kc == 0 and ss == 0) else None))
                    if jt == 0 and ss == 0: T.m[-1].meta["also"] = range(buf, buf + 8)
    for t in range(20):
        b = 32 * t
        for q, o in enumerate(rdA1(t, 2)): T.put(b + q, o, 2)
        for q, o in enumerate(rdA1(t, 3)): T.put(b + 8 + q, o, 2)
        T.put(b + BP, cbar(), 1)
        if t < 19:
            for q, o in enumerate(rdA1(t + 1, 0)): T.put(b + BP + q, o, 2)
            for q, o in enumerate(rdA1(t + 1, 1)): T.put(b + 24 + q, o, 2)
            if t % 2 == 1:
                for pos, o in zip([BP + 4, BP + 5, BP + 6, 28, 29, 30, 31, 32], rdB((t + 1) // 2)): T.put(b + pos, o, 3)
        T.put(b + 31, stamp(f"w{t}"), 9)
    def qreg(sd, j4): return ACC + 32 * sd + 4 * j4
    def pack(d, e): return [cvt(d, d), cvt(d + 1, d + 2), cvt(d + 2, e), cvt(d + 3, e + 2)]
    def qcvt(sd, j4): return pack(qreg(sd, j4), qreg(sd, j4) + 16)
    def krd(b): return [Op(f"ds_read_b64 {v(BB+32*b+16*kt+4*sd+2*h,2)}, v{kR+2*sd+h} offset:{b*8192 + kt*4096}", use=[("K", 100), ("Kp", 100)]) for sd in range(4) for kt in range(2) for h in range(2)]
    b18, b19 = 32 * 18, 32 * 19
    T.spread(krd(0), b18 + 4, b18 + 15, 4)
    T.spread([o for j4 in range(4) for o in qcvt(0, j4)], b18 + 20, b18 + 31, 5)
    T.spread([o for j4 in range(4) for o in qcvt(1, j4)], b19 + 4, b19 + 16, 5)
    T.spread([o for j4 in range(4) for o in qcvt(2, j4)], b19 + 20, b19 + 31, 5)
    T.flush(cs)
    A(stamp("g1"))

    def sreg(b, jt, kt): return ACC + 16 + 32 * b + 8 * jt + 4 * kt
    def softmax(b):
        tmp = ACC + 80 + 8 * b; pf = PF + 8 * b; L = []
        cols = [(sreg(b, c, 0), tmp + 4 * c) for c in range(2)]
        def both(f):
            for x, y in zip(f(*cols[0]), f(*cols[1])): L.extend([Op(x), Op(y)])
        both(lambda s, m: [f"v_max3_f32 v{m}, v{s}, v{s+1}, v{s+2}", f"v_max3_f32 v{m+1}, v{s+3}, v{s+4}, v{s+5}",
                           f"v_max3_f32 v{m}, v{m}, v{s+6}, v{s+7}", f"v_max_f32 v{m}, v{m}, v{m+1}", f"v_mov_b32 v{m+1}, v{m}",
                           f"v_permlane16_swap_b32 v{m}, v{m+1}", f"v_max_f32 v{m}, v{m}, v{m+1}", f"v_mov_b32 v{m+1}, v{m}",
                           f"v_permlane32_swap_b32 v{m}, v{m+1}", f"v_max_f32 v{m}, v{m}, v{m+1}", f"v_mul_f32 v{m}, s{sC}, v{m}"])
        both(lambda s, m: [f"v_fma_f32 v{s+q}, v{s+q}, s{sC}, -v{m}" for q in range(8)])
        both(lambda s, m: [f"v_exp_f32 v{s+q}, v{s+q}" for q in range(8)])
        both(lambda s, m: [f"v_add_f32 v{m}, v{s}, v{s+1}", f"v_add_f32 v{m+1}, v{s+2}, v{s+3}", f"v_add_f32 v{m+2}, v{s+4}, v{s+5}", f"v_add_f32 v{m+3}, v{s+6}, v{s+7}",
                           f"v_add_f32 v{m}, v{m}, v{m+1}", f"v_add_f32 v{m+2}, v{m+2}, v{m+3}", f"v_add_f32 v{m}, v{m}, v{m+2}", f"v_mov_b32 v{m+1}, v{m}",
                           f"v_permlane16_swap_b32 v{m}, v{m+1}", f"v_add_f32 v{m}, v{m}, v{m+1}", f"v_mov_b32 v{m+1}, v{m}",
                           f"v_permlane32_swap_b32 v{m}, v{m+1}", f"v_add_f32 v{m}, v{m}, v{m+1}", f"v_rcp_f32 v{m}, v{m}"])
        both(lambda s, m: [f"v_mul_f32 v{s+q}, v{s+q}, v{m}" for q in range(8)])
        if b: L.append(Op(f"s_add_u32 s{sPS}, s{sPS}, 65536"))
        for c in range(2):
            for q in range(4): L.append(cvt(pf + 4 * c + q, cols[c][0] + 2 * q))
            L.append(Op(f"buffer_store_dwordx4 {v(pf+4*c,4)}, v{vL16}, {WSR}, s{sPS} offen offset:{1024*c} sc1"))
            L.append(Op(f"ds_write_b128 v{vPW}, {v(pf+4*c,4)} offset:{b*4096 + c*1024}", fill=[("P", 300), ("Kp", 300)]))
        return L
    T = Ticks()
    for b in range(2):
        for sd in range(4):
            for kt in range(2):
                for jt in range(2):
                    T.add(mfma(sreg(b, jt, kt), v(BB + 32 * b + 16 * kt + 4 * sd, 4), v(qreg(sd, 2 * b + jt), 4), "0" if sd == 0 else None))
    T.spread(krd(1), 0, 5, 2)
    T.spread([o for j4 in range(2) for o in qcvt(3, j4)], 1, 6, 3)
    T.spread([o for j4 in range(2, 4) for o in qcvt(3, j4)], 7, 12, 3)
    T.put(P["bk"], cbar(), 1)
    sm0 = softmax(0); sm1 = softmax(1)
    T.spread(sm0[:22], 20, 31, 5)
    T.flush(cs)
    A(stamp("qk"))
    A(sm0[22:]); A(stamp("sm0")); A(sm1); A(stamp("att"))

    def rdP(gen): return [Op(f"ds_read_b128 {v(PRB[0][2*hd+jt],4)}, v{vPR} offset:{hd*2048 + jt*1024}", use=[("P", gen)]) for hd in range(2) for jt in range(2)]
    def ldP(dj):
        return ops(f"s_add_u32 s{sT2}, s{sJ}, {dj}\ns_and_b32 s{sT2}, s{sT2}, 3\ns_lshl_b32 s{sT2}, s{sT2}, 12\ns_add_u32 s{sT2}, s{sT2}, s{sPL}") + \
            [Op(f"buffer_load_dwordx4 {v(PRB[dj%2][q],4)}, v{vL16}, {WSR}, s{sT2} offen offset:{1024*q} sc1") for q in range(4)]
    def rdV(s): return [Op(f"ds_read_b64_tr_b16 {v(VF+4*i+2*h,2)}, v{aV+i} offset:{(s%4)*16384 + h*2048}", use=[(f"S{s%4}", 200 + s)]) for i in range(4) for h in range(2)]
    def pvreg(s, i, jt):
        if s < NS + 1 or NF == 1: return PVB[s % 2] + 8 * i + 4 * jt
        return fin_regs[s][2 * i + jt]
    fin_regs = {}
    if NF >= 2:
        a_ = PVB[(NS + 1) % 2]
        fin_regs[NS + 1] = [a_ + 4 * q for q in range(8)]
        if NF >= 3:
            e0, e1 = PVB[NS % 2], a_
            fr = [e0 + 8, e0 + 12, e1 + 8, e1 + 12, e0 + 24, e0 + 28, e1 + 24, e1 + 28]
            fin_regs[NS + 2] = fr
    def pvm(s): return [mfma(pvreg(s, i, jt), v(VF + 4 * i, 4), v(PRB[(s // 4) % 2][2 * ((s // 2) % 2) + jt], 4), "0") for i in range(4) for jt in range(2)]
    def pvc(s): return [o for ss in range(2) for jt in range(2) for o in pack(pvreg(s, 2 * ss, jt), pvreg(s, 2 * ss + 1, jt))]
    nA = [0]
    def rdA2(s, t):
        k = s % 4; buf = A2 + 8 * (nA[0] % 4); nA[0] += 1
        ad = aWo + (t % 2) + (2 if k == 3 else 0); base = 0 if k == 3 else k * 20480
        return buf, [Op(f"ds_read_b64_tr_b16 {v(buf+4*ss+2*h,2)}, v{ad} offset:{base + ss*10240 + h*5120 + t*32}", use=[(f"Wo{k}", 200 + s)]) for ss in range(2) for h in range(2)]
    def owo(s, t, buf):
        L = [mfma(OUTA + 8 * t + 4 * jt, v(buf + 4 * ss, 4), v(pvreg(s, 2 * ss, jt), 4), "0" if (s == 0 and ss == 0) else None) for jt in range(2) for ss in range(2)]
        L[0].meta["also"] = range(buf, buf + 8)
        return L
    steps = [(s, t) for s in range(NS) for t in range(10)]
    order = [8, 9, 0, 1, 2, 3, 4, 5, 6, 7]
    steps += [(s, t) for s in range(NS, 16) for t in order[:2]] + [(s, t) for t in order[2:] for s in range(NS, 16)]
    rd = [rdA2(s, t) for s, t in steps]
    A(cbar())
    A(stamp("bp"))
    p0 = rdP(300)
    A(p0[:2] + rdV(0) + p0[2:] + rd[0][1])
    A(pvm(0)); A(rd[1][1] + rd[2][1]); A(pvc(0))
    T = Ticks(); at = []
    for n, (s, t) in enumerate(steps):
        if (s < NS and t == 6) or (n == 10 * NS and False):
            for o in pvm(s + 1): T.add(o)
        if n == 10 * NS:
            fin0 = len(T.m)
            for s2 in range(NS + 1, 16):
                for o in pvm(s2): T.add(o)
        at.append(len(T.m))
        for o in owo(s, t, rd[n][0]): T.add(o)
    for n in range(3, len(steps)):
        base = at[n - 3]
        if n >= 10 * NS and n - 3 < 10 * NS and steps[n][0] > NS: base = None
        if base is not None:
            for q, o in enumerate(rd[n][1]): T.put(base + q, o, 2)
    for s in range(NS):
        b = at[10 * s]
        T.put(b + BP2, BAR(), 1)
        T.spread(rdV(s + 1), b + BP2, b + BP2 + 3, 1.5)
        T.spread(pvc(s + 1), b + 35, b + 46, 4)
        T.put(b + 47, stamp(f"o{s}"), 9)
    late_rd = [o for n in range(10 * NS, 10 * NS + 3) if steps[n][0] > NS for o in rd[n][1]]
    T.put(fin0 - P['blpos'], BAR(), 1)
    T.spread(rdV(NS + 1), fin0 - P['blpos'], fin0 - P['blpos'] + 3, 1.5)
    T.spread(late_rd, fin0 - 4, fin0 - 1, 2)
    for q, s2 in enumerate(range(NS + 1, 16)):
        if q: T.spread(rdV(s2), fin0 + 8 * (q - 1), fin0 + 8 * q - 1, 1.6)
        e = fin0 + 8 * (q + 1)
        T.spread(pvc(s2), e + 1, e + 7, 1.7)
    for dj in range(1, 4):
        ps, pt = P["pld"][dj - 1]; L = ldP(dj)
        T.spread([L[:5], L[5], L[6], L[7]], at[10 * ps] + pt, at[10 * ps] + pt + 6, 6)
        chk = arrived([r_ + e for r_ in PRB[dj % 2] for e in range(4)], ldP(dj), t0)
        b = at[10 * (4 * dj - 1)] + P["pchk"]
        T.spread(chk[:-4], b - 4, b - 1, 6); T.put(b, chk[-4:] + stamp(f"pc{dj}"), 6)
    end = len(T.m); flags = []
    def done(t): return at[steps.index((15, t))] + 3
    L = []
    for m in range(4):
        L += [cvt(PK + 2 * m, OUTA + 64 + 4 * m), cvt(PK + 2 * m + 1, OUTA + 64 + 4 * m + 2),
              [Op(f"s_add_u32 s{sT2}, s{sRS}, {m*65536 + 2048}"), Op(f"buffer_store_dwordx2 {v(PK+2*m,2)}, v{vL8}, {WSR}, s{sT2} offen sc1", group=("R", -1))]]
    T.spread(L, done(9) + 3, done(9) + 4 * NF + 2, 4)
    for k in range(3):
        L = []; pk = SPARE if k % 2 == 0 else PK
        dest = f"s_add_u32 s{{0}}, s{sQ}, {k+1}\ns_and_b32 s{{0}}, s{{0}}, 3"
        for nt in range(2):
            for jt in range(2):
                z = OUTA + 8 * (2 * k + nt) + 4 * jt
                L += [cvt(pk + 4 * nt + 2 * jt, z), cvt(pk + 4 * nt + 2 * jt + 1, z + 2)]
            it = ops(dest.format(sT2) + f"\ns_lshl_b32 s{sT2}, s{sT2}, 16\ns_add_u32 s{sT3}, s{sT2}, s{sRS}") if nt == 0 else []
            L.append(it + [Op(f"buffer_store_dwordx4 {v(pk+4*nt,4)}, v{vL16}, {WSR}, s{sT3} offen offset:{1024*nt} sc1", group=("R", k))])
        T.spread(L[:5], done(2 * k) + 3, done(2 * k) + 5, 4); T.spread(L[5:], done(2 * k + 1) + 3, done(2 * k + 1) + 5, 4)
        fl = [Op("WAITG", group=("R", k))] + ops(dest.format(sT2) + f"\ns_lshl_b32 s{sT2}, s{sT2}, 11\ns_add_u32 s{sT2}, s{sT2}, s{sFLD}")
        fl.append(Op(f"buffer_store_dword v{vONE}, v{vFL0}, {WSR}, s{sT2} offen offset:{k*128} sc1"))
        tf = done(2 * k + 1) + 5 + P["cover"]
        if tf < end: T.put(tf, fl, 6)
        else: flags.append(fl)
    T.flush(cs)
    A(stamp("g2"))
    zw = [Op(f"ds_write_b128 v{vZ}, {v(OUTA+48+4*q,4)} offset:{q*1024}", fill=[("S0", 290)], wpriv=True) for q in range(4)]
    A(flags[:-1]); A(zw); A(flags[-1:])
    A(cbar())
    A(stamp("end"))
    A(dump())
    A("s_endpgm")

    sc, sl = {}, {}
    def drop(st, pred): st.ops = [o for o in st.ops if not pred(o)]
    for name, srd_ in (("v", SRD_V), ("o", SRD_WO), ("k", SRD_K), ("w", SRD_WQ), ("x", SRD_X)):
        if name in P["x_hot"]:
            for i, o in enumerate(ls.ops):
                if o.kind in ("dma", "vld") and f"s[{srd_}:" in o.text:
                    import re
                    ls.ops[i] = Op(re.sub(r"\], s\d+ offen", "], 0 offen", o.text), **o.meta)
    if P["x_nomfma"]: drop(cs, lambda o: o.kind in ("mfma", "dsr"))
    if P["x_nodma"]: drop(ls, lambda o: o.kind == "dma")
    lfull = Stream(); lfull.nocheck = True; lfull.ops = pro.ops + ls.ops
    lines = lfull.finalize(sl) + tail
    lines += cs.finalize(sc)
    nb = None
    if not (P["x_nomfma"] or P["x_nodma"] or P['x_hot']):
        nb = check_handoffs([cs.events, lfull.events])
        assert nb[0] == nb[1], nb
    a = Asm(); kernel_begin(a, KNAME)
    for l in lines: a(l)
    a("L_code_end:")
    body = a.text().replace("CODE_SPAN", f"L_code_end-{KNAME}-4").replace("CODE_BACK", f"L_pc-{KNAME}")
    write_file(path, ["; @launch grid=(256,1,1) block=(512,1,1) lds=163840"], body, [descriptor(KNAME, 256, 256)])
    return sc, sl, nb

if __name__ == "__main__":
    out = sys.argv[1] if len(sys.argv) > 1 else f"cdna_kernels/{NAME}.s"
    kw = {}
    for x in sys.argv[2:]:
        k, val = x.split("=", 1)
        try: val = eval(val)
        except Exception: pass
        kw[k] = val
    print(build(out, **kw))
```

```python
import re

A0 = 256
S0 = 1000
M0 = 2000
VCC = 2001

_reg = re.compile(r"^(-)?(?:abs\()?([vas])(?:(\d+)|\[(\d+):(\d+)\])\)?$")


def regs(tok):
    tok = tok.strip()
    if tok == "m0":
        return [M0]
    if tok in ("vcc", "vcc_lo", "vcc_hi"):
        return [VCC]
    m = _reg.match(tok)
    if not m:
        return []
    base = {"v": 0, "a": A0, "s": S0}[m.group(2)]
    if m.group(3) is not None:
        return [base + int(m.group(3))]
    return list(range(base + int(m.group(4)), base + int(m.group(5)) + 1))


TRANS = ("v_exp_f32", "v_rcp_f32", "v_log_f32", "v_rsq_f32", "v_sqrt_f32")


class Op:
    def __init__(self, text, **meta):
        self.text = text.strip()
        self.meta = meta
        mn, _, rest = self.text.partition(" ")
        self.mn = mn
        toks = [t.strip() for t in re.split(r",(?![^\[]*\])", rest)] if rest else []
        if toks:
            last = toks[-1].split()
            toks[-1] = last[0] if last else ""
            mods = last[1:]
        else:
            mods = []
        self.mods = mods
        rd, wr = [], []
        k = None
        if mn.startswith("v_mfma"):
            k = "mfma"
            wr = regs(toks[0]); self.srca = regs(toks[1]); self.srcb = regs(toks[2]); self.srcc = regs(toks[3])
            rd = self.srca + self.srcb + self.srcc
        elif mn.startswith("ds_read"):
            k = "dsr"; wr = regs(toks[0]); rd = regs(toks[1])
        elif mn.startswith("ds_write"):
            k = "dsw"
            for t in toks: rd += regs(t)
        elif mn.startswith("buffer_load") or mn.startswith("global_load"):
            if "lds" in mods:
                k = "dma"
                for t in toks: rd += regs(t)
                rd.append(M0)
            else:
                k = "vld"; wr = regs(toks[0])
                for t in toks[1:]: rd += regs(t)
        elif mn.startswith("buffer_store") or mn.startswith("buffer_atomic"):
            k = "vst"; self.data = regs(toks[0])
            for t in toks: rd += regs(t)
        elif mn.startswith("v_permlane"):
            k = "perm"; wr = regs(toks[0]) + regs(toks[1]); rd = list(wr)
        elif mn.startswith("v_readfirstlane") or mn.startswith("v_readlane"):
            k = "rfl"; wr = regs(toks[0]); rd = regs(toks[1])
        elif mn == "v_nop":
            k = "valu"
        elif mn.startswith("v_"):
            k = "trans" if mn in TRANS else "valu"
            wr = regs(toks[0])
            for t in toks[1:]: rd += regs(t)
            if mn.startswith("v_fmac"): rd += wr
        elif mn == "s_barrier":
            k = "bar"
        elif mn == "s_waitcnt":
            k = "wait"
        elif mn == "s_nop":
            k = "nop"
        elif mn == "WAITG":
            k = "waitg"
        elif mn == "WAITL":
            k = "waitl"
        elif mn.startswith("s_load"):
            k = "smem"; wr = regs(toks[0]); rd = regs(toks[1])
        elif mn.startswith("s_cbranch") or mn == "s_branch" or mn.endswith(":") or mn in ("s_endpgm", "s_setprio", "s_sleep") or mn.startswith("."):
            k = "ctl"
        elif mn.startswith("s_cmp") or mn.startswith("s_bitcmp"):
            k = "salu"
            for t in toks: rd += regs(t)
        elif mn.startswith("s_"):
            k = "salu"; wr = regs(toks[0])
            for t in toks[1:]: rd += regs(t)
        else:
            raise ValueError("unknown instruction: " + text)
        self.kind, self.rd, self.wr = k, set(rd), set(wr)

    def __repr__(self):
        return self.text


VALU_KINDS = ("valu", "trans", "perm", "rfl")


class Stream:
    def __init__(self):
        self.ops = []

    def add(self, x, **meta):
        if isinstance(x, Op):
            self.ops.append(x)
        elif isinstance(x, (list, tuple)):
            for y in x: self.add(y, **meta)
        else:
            for line in x.split("\n"):
                if line.strip(): self.ops.append(Op(line, **meta))

    def finalize(self, stats=None):
        out = []
        slot = 0
        lds_q = []
        vm_q = []
        smem_pending = set()
        w_valu = {}; w_trans = {}; w_mfma = {}; r_mfmac = {}; w_vsgpr = {}; w_m0 = -99; st_data = {}
        mfma_dst = {}
        events = []
        nwait = nnop = 0

        def emit(text, n=1):
            nonlocal slot
            out.append(text); slot += n

        def wait(vm=None, lg=None):
            nonlocal nwait
            parts = []
            if vm is not None:
                assert vm <= 63, vm
                parts.append(f"vmcnt({vm})")
                done = vm_q[:len(vm_q) - vm] if vm < len(vm_q) else []
                for o in done: events.append((len(out), "vmdone", o))
                del vm_q[:len(done)]
            if lg is not None:
                lg = min(lg, 15)
                parts.append(f"lgkmcnt({lg})")
                done = lds_q[:len(lds_q) - lg] if lg < len(lds_q) else []
                for o in done: events.append((len(out), "ldsdone", o))
                del lds_q[:len(done)]
                if lg == 0: smem_pending.clear()
            emit("s_waitcnt " + " ".join(parts)); nwait += 1

        for op in self.ops:
            k = op.kind
            if k == "waitg":
                g = op.meta["group"]
                idx = max((i for i, o in enumerate(vm_q) if o.meta.get("group") == g), default=None)
                vm = None if idx is None else len(vm_q) - 1 - idx
                lg = 0 if (op.meta.get("lds") and lds_q) else None
                if op.meta.get("cond"):
                    if vm is not None: emit(f"s_waitcnt vmcnt({vm})", 0)
                    continue
                if vm is not None or lg is not None: wait(vm, lg)
                for oo in op.meta.get("covers", ()): events.append((len(out), "vmdone", oo))
                continue
            if k == "waitl":
                if lds_q: wait(None, 0)
                continue
            if k == "wait" and op.meta.get("raw"):
                emit(op.text, 0); continue
            if k == "wait":
                m = re.search(r"vmcnt\((\d+)\)", op.text); vm = int(m.group(1)) if m else None
                m = re.search(r"lgkmcnt\((\d+)\)", op.text); lg = int(m.group(1)) if m else None
                wait(vm, lg); continue
            if k == "nop":
                emit(op.text, 0 if op.meta.get("cond") else int(op.text.split()[1]) + 1); continue
            touched = op.rd | op.wr | set(op.meta.get('also', ()))
            lg = vm = None
            for i, o in enumerate(lds_q):
                if o.wr & touched: lg = len(lds_q) - 1 - i
            for i, o in enumerate(vm_q):
                if o.wr & touched: vm = len(vm_q) - 1 - i
            if smem_pending & touched: lg = 0
            if lg is not None or vm is not None: wait(vm, lg)
            need = 0
            def req(t, n):
                nonlocal need
                need = max(need, t + n + 1 - slot)
            if k == "mfma":
                for r in op.rd:
                    if r in w_valu: req(w_valu[r], 2)
                for r in op.srca + op.srcb:
                    if r in w_mfma: req(w_mfma[r], 8)
                for r in op.srcc:
                    if r in w_mfma and mfma_dst[r] != tuple(op.srcc): req(w_mfma[r], 6)
                for r in op.wr:
                    if r in w_mfma and mfma_dst[r] != tuple(sorted(op.wr)): req(w_mfma[r], 6)
            elif k in VALU_KINDS:
                for r in touched:
                    if r in w_mfma: req(w_mfma[r], 8)
                for r in op.wr:
                    if r in r_mfmac: req(r_mfmac[r], 3)
                    if r in st_data: req(st_data[r], 2)
                for r in op.rd:
                    if r in w_trans and k != "trans": req(w_trans[r], 1)
                    if r in w_vsgpr: req(w_vsgpr[r], 2)
                    if k == "perm" and r in w_valu: req(w_valu[r], 2)
                    if k == "rfl" and r in w_valu: req(w_valu[r], 1)
            elif k in ("dsr", "dsw", "vld", "vst", "dma"):
                for r in touched:
                    if r in w_mfma: req(w_mfma[r], 8)
                    if r in w_vsgpr and k in ("vld", "vst", "dma"): req(w_vsgpr[r], 5)
                for r in op.wr:
                    if r in st_data: req(st_data[r], 1)
                    if r in r_mfmac: req(r_mfmac[r], 3)
                if k == "dma": req(w_m0, 1)
            elif k == "salu":
                for r in op.rd:
                    if r in w_vsgpr: req(w_vsgpr[r], 1)
            if need > 0 and not op.meta.get("nohaz"):
                nnop += 1
                while need > 0:
                    n = min(need, 16); emit(f"s_nop {n-1}", n); need -= n
            here = slot
            events.append((len(out), "issue", op))
            skipped = op.meta.get("cond") or op.meta.get("uncounted")
            emit(op.text, 0 if (skipped or (k == "ctl" and (op.mn.endswith(":") or op.mn.startswith(".")))) else 1)
            for r in op.wr:
                for d in (w_valu, w_trans, w_mfma, w_vsgpr): d.pop(r, None)
            if k == "mfma":
                for r in op.wr: w_mfma[r] = here; mfma_dst[r] = tuple(sorted(op.wr))
                for r in op.srcc: r_mfmac[r] = here
            elif k in VALU_KINDS:
                for r in op.wr:
                    if r >= S0: w_vsgpr[r] = here
                    else: w_valu[r] = here
                    if k == "trans": w_trans[r] = here
            elif k == "salu" and M0 in op.wr:
                w_m0 = here
            elif k == "smem":
                smem_pending |= op.wr
            uncounted = op.meta.get("uncounted")
            if k in ("dsr", "dsw") and not uncounted: lds_q.append(op)
            if k in ("vld", "vst", "dma") and not uncounted:
                vm_q.append(op); assert len(vm_q) <= 63, "too many vector memory ops in flight"
            if k == "vst" and len(op.data) >= 3:
                for r in op.data: st_data[r] = here
        self.events = events
        if not getattr(self, 'nocheck', False): check_handoffs([events])
        if stats is not None:
            stats.update(waits=nwait, nops=nnop, lines=len(out))
        return out


def check_handoffs(streams, roles=None):
    roles = roles or list(range(len(streams)))
    done = {}; issue = {}; fills = {}; uses = {}; nb = []; pubs = []; known = {}
    for si, events in enumerate(streams):
        ep = 0; kn = {}; pb = []
        for p, w, o in events:
            if w == "issue":
                if "chk" in o.meta: kn = dict(kn); r, val = o.meta["chk"]; kn[r] = max(kn.get(r, -1), val)
                issue[id(o)] = (si, p, ep); known[id(o)] = kn
                if "pub" in o.meta: pb.append((p, o.meta["pub"]))
                if o.kind == "bar": ep += 1
                for key in o.meta.get("fill", ()): fills.setdefault(key, []).append(o)
                for key in o.meta.get("use", ()): uses.setdefault(key, []).append(o)
            else: done[id(o)] = (si, p, ep)
        assert [x[1] for x in pb] == sorted(x[1] for x in pb), "progress values must rise"
        nb.append(ep); pubs.append(pb)
    def before(a, b):
        if id(a) in done and done[id(a)][2] < issue[id(b)][2]: return True
        si = issue[id(a)][0]
        if a.kind in ("dsr", "dsw"): pos = issue[id(a)][1]
        elif id(a) in done: pos = done[id(a)][1]
        else: return False
        val = next((x for p, x in pubs[si] if p >= pos), None)
        return val is not None and known[id(b)].get(roles[si], -1) >= val
    def same_wave(f, u, strong): return (f.meta.get("private") or (not strong and f.meta.get("wpriv"))) and u.meta.get("private") and issue[id(f)][0] == issue[id(u)][0]
    for key, us in uses.items():
        assert key in fills, f"read of {key} that nothing fills"
        for f in fills[key]:
            for u in us:
                if same_wave(f, u, True):
                    assert f.kind == "dsw" and issue[id(f)][1] < issue[id(u)][1], (key, f, u); continue
                assert before(f, u), f"nothing orders fill and use of {key}: {f} -> {u}"
    for (reg, gen), fs in fills.items():
        for (r2, g2), us in uses.items():
            if r2 != reg or g2 >= gen: continue
            for f in fs:
                for u in us:
                    if same_wave(f, u, False) and f.kind == "dsw":
                        assert issue[id(u)][1] < issue[id(f)][1], (reg, gen, f, u); continue
                    assert before(u, f), f"WAR on {reg}: gen {g2} use {u} vs gen {gen} fill {f}"
        for (r2, g2), f2s in fills.items():
            if r2 != reg or g2 >= gen: continue
            for f in fs:
                for f2 in f2s:
                    if issue[id(f)][0] == issue[id(f2)][0] and f.kind == f2.kind: continue
                    assert before(f2, f) or any(before(f2, u) and before(u, f) for u in uses.get((r2, g2), ())), f"WAW on {reg}: {f2} vs {f}"
    return nb
```

```python
import sys, struct
from common import *
from ops import Op, Stream, check_handoffs

def f2u(f): return struct.unpack("<I", struct.pack("<f", f))[0]
SCALE_LOG2E = 128 ** -0.5 * 1.4426950408889634
KNAME = NAME + "_kernel"

DEF = dict(
    nt_w="", nt_x="", nt_k="nt", nt_v="", nt_wo="", bpos=17, bpos2=15, code_pf=1, dbg=0, rot=1, xrot=1, flip=1,
    stamps=("start", "g1", "att", "g2", "end"), lstamps=(),
    clx=((('K0',), 2), (('K1',), 6), (('T',), 11)), nv=4, vdma={17: 0, 19: 1}, x_hot='', cend=0, skip=(), cap=8, clr=(2, 6), bal=0, first=4, prio_l=0, prio_c=0, la=3, pfx=17, bk=8, nf=4, bl2=2, pld=((2, 8), (5, 8), (9, 8)), pchk=20, hs0=8, cover=64,
    out_mod="sc1", ntlast=0, x_amp=0, x_nomfma=0, x_nodma=0,
)

WS_R = 0
WS_P = 16 << 20
WS_FL = 20 << 20
WS_DBG = 32 << 20
OOB = 0x40000000

XB, KB = 65536, 98304
WOB, PB = 65536, 147456

sW, sJ, sRG, sG, sBR = 3, 6, 7, 8, 9
sFLIP, sPH, sKC, sQ = 32, 33, 34, 35
SRD_X, SRD_K, SRD_V, SRD_WQ, SRD_WO, SRD_OUT, SRD_DBG, SRD_WS = 36, 40, 44, 48, 52, 56, 60, 64
sWQ0, sX0, sK0, sV0, sWO0, sM4, sM5 = 68, 69, 70, 71, 72, 73, 74
sT0, sT1, sT2, sT3 = 75, 76, 77, 78
sRS, sRL, sPS, sFLD, sPL, sC, sHS, sCT, sFLM = 79, 80, 81, 82, 83, 84, 85, 86, 98
sNXT, sSPIN, sPEND = 87, 88, 89
sOUT0, sOUT1 = 90, 91
sST = 92
WSR = f"s[{SRD_WS}:{SRD_WS+3}]"; DBGR = f"s[{SRD_DBG}:{SRD_DBG+3}]"; OUTR = f"s[{SRD_OUT}:{SRD_OUT+3}]"

vL16, vL8, vFL0, vONE = 28, 29, 30, 31
vT = 33
aW, aX, kR = 1, 5, 7
vPW, vPR, vZ = 15, 16, 17
aWo, aV = 19, 23
ABUF = 40; BB = 64; ACC = 128
PF = 40
OUTA = 176
PVB = [112, 144]
VF = 96
A2 = 64
PRB = [[40, 44, 48, 52], [56, 60, 2, 6]]
SPARE = 56
PK = 2
vW, vX, vK, vV, vWo = 1, 5, 9, 13, 17
vFLAG = 32
vFL = 22
lID = 40
lZa, vFA, vFA2, vFB, vFB2, vOA, vOB, vOC, vPF, vPF2 = 46, 47, 48, 49, 50, 51, 52, 53, 54, 55
LINC = 64
LZ = 112
LZC = 136
LPK = 152
VP = 192
vVW = 56

def v(b, n=1): return vr(b, n)
def mfma(d, A, B, C=None): return Op(f"v_mfma_f32_16x16x32_bf16 {v(d,4)}, {A}, {B}, {v(d,4) if C is None else C}")
def cvt(d, s0): return Op(f"v_cvt_pk_bf16_f32 v{d}, v{s0}, v{s0+1}")
def ops(text): return [Op(x) for x in text.split("\n") if x.strip()]

class Ticks:
    def __init__(self): self.m = []; self.f = []
    def add(self, op): self.m.append(op); self.f.append([]); return len(self.m) - 1
    def put(self, t, o, prio=5):
        if not isinstance(o, (list, tuple)): o = [o]
        self.f[t].append((prio, len(self.f[t]), [Op(x) if isinstance(x, str) else x for x in o]))
    def spread(self, items, t0, t1, prio=5):
        n = len(items)
        for q, it in enumerate(items): self.put(t0 + (q * (t1 - t0 + 1)) // n, it, prio)
    def flush(self, st):
        for m, f in zip(self.m, self.f):
            st.add(m)
            for _, _, o in sorted(f, key=lambda x: (x[0], x[1])): st.add(o)

def weave(st, main, side, first=0):
    n, m = len(main), len(side); k = 0
    for i, o in enumerate(main):
        st.add(o)
        while k < m and i >= first and (k + 1) * (n - first) <= (i + 1 - first) * m: st.add(side[k]); k += 1
    while k < m: st.add(side[k]); k += 1

def build(path, **kw):
    P = dict(DEF); P.update(kw)
    BP, BP2, LA, NF = P["bpos"], P["bpos2"], P["la"], P["nf"]
    NS = 16 - NF
    tail = []
    pro = Stream(); cs = Stream(); ls = Stream()
    for s in (pro, cs, ls): s.nocheck = True
    t0, t1, t2, t3, t4, t5, t6 = range(vT, vT + 7)
    nst = {"c": 0, "l": 0}
    def stamp(name, role="c"):
        if not P["dbg"] or name not in P["stamps" if role == "c" else "lstamps"]: return []
        nst[role] += 1; i = nst[role]; assert i <= 13
        return [Op(f"s_memtime s[{sST}:{sST+1}]"), Op("s_waitcnt lgkmcnt(0)"), Op(f"s_mov_b32 s{12+i}, s{sST}")]
    def dump():
        if not P["dbg"]: return []
        L = ops(f"""s_waitcnt vmcnt(0)
            s_memrealtime s[{sST}:{sST+1}]
            s_waitcnt lgkmcnt(0)
            v_writelane_b32 v{t6}, s{sST+2}, 0
            v_writelane_b32 v{t6}, s{sST}, 15
            v_writelane_b32 v{t6}, s{sST+4}, 14""")
        L += [Op(f"v_writelane_b32 v{t6}, s{12+i}, {i}") for i in range(1, 14)]
        L += ops(f"""s_lshl_b32 s{sT2}, s2, 3
            s_add_u32 s{sT2}, s{sT2}, s31
            s_lshl_b32 s{sT2}, s{sT2}, 8
            s_add_u32 s{sT2}, s{sT2}, {WS_DBG}
            v_lshlrev_b32 v{t0}, 2, v0
            buffer_store_dword v{t6}, v{t0}, {WSR}, s{sT2} offen""")
        return L
    BAR = lambda: Op("s_barrier")
    def mksrd(dst, ptr, n): return ops(f"s_mov_b32 s{dst}, s{ptr}\ns_mov_b32 s{dst+1}, s{ptr+1}\ns_mov_b32 s{dst+2}, {n}\ns_mov_b32 s{dst+3}, 0x00020000")
    def mod10(x, tmp): return f"s_sub_u32 s{tmp}, s{x}, 10\ns_min_u32 s{x}, s{x}, s{tmp}"
    def wo_regions(k):
        lo, hi = WOB + 20480 * k, WOB + 20480 * (k + 1); r = [f"Wo{k}"]
        if lo < XB + 16384: r.append("X0")
        if lo < KB and hi > XB + 16384: r.append("X1")
        if hi > KB: r.append("K")
        return r

    A = pro.add
    A("s_cmp_ge_u32 s2, 256\ns_cbranch_scc1 L_end")
    if P["dbg"] or P["x_amp"]: A(f"s_memtime s[{sST+2}:{sST+3}]\ns_memrealtime s[{sST+4}:{sST+5}]")
    A(f"s_bfe_u32 s{sBR}, s2, 0x10002\ns_mul_i32 s10, s{sBR}, 40\ns_add_u32 s4, s0, s10\ns_addc_u32 s5, s1, 0")
    A("s_load_dwordx8 s[12:19], s[4:5], 0\ns_load_dwordx2 s[20:21], s[4:5], 32\ns_load_dwordx4 s[24:27], s[0:1], 80\ns_load_dwordx2 s[28:29], s[0:1], 96")
    A(f"v_lshrrev_b32 v{t0}, 6, v0\nv_and_b32 v0, 63, v0\nv_readfirstlane_b32 s31, v{t0}")
    A(f"""s_and_b32 s{sQ}, s2, 3
        s_bfe_u32 s{sJ}, s2, 0x20003
        s_lshr_b32 s{sRG}, s2, 5
        s_and_b32 s{sW}, s31, 3
        s_lshl_b32 s{sM4}, s{sW}, 12
        s_mov_b32 s{sFLIP}, 0""")
    if P["flip"]: A(f"s_mul_i32 s{sKC}, s{sRG}, 5\ns_lshr_b32 s{sKC}, s{sKC}, 1\ns_and_b32 s{sFLIP}, s{sKC}, 1\ns_lshr_b32 s{sKC}, s{sKC}, 1")
    else: A(f"s_mul_i32 s{sKC}, s{sRG}, 5\ns_lshr_b32 s{sKC}, s{sKC}, 2")
    A(f"v_lshlrev_b32 v{vL16}, 4, v0")
    A("s_cmp_lt_u32 s31, 4\ns_cbranch_scc1 L_compute")

    def exchange_setup():
        return mksrd(SRD_WS, 28, 268435456) + ops(f"""s_lshl_b32 s10, s{sBR}, 3
            s_add_u32 s10, s10, s{sRG}
            s_lshl_b32 s{sG}, s10, 2
            s_add_u32 s{sG}, s{sG}, s{sJ}
            s_lshl_b32 s10, s{sG}, 18
            s_add_u32 s10, s10, s{sM4}
            s_lshl_b32 s11, s{sQ}, 14
            s_add_u32 s{sRS}, s10, s11
            s_lshl_b32 s11, s{sQ}, 16
            s_add_u32 s{sRL}, s10, s11
            s_lshl_b32 s10, s{sBR}, 3
            s_add_u32 s10, s10, s{sRG}
            s_lshl_b32 s10, s10, 7
            s_lshl_b32 s11, s{sQ}, 3
            s_add_u32 s10, s10, s11
            s_lshl_b32 s11, s{sW}, 5
            s_add_u32 s11, s11, s10
            s_lshl_b32 s11, s11, 11
            s_add_u32 s{sPL}, s11, {WS_P}
            s_lshr_b32 s11, s{sW}, 1
            s_lshl_b32 s11, s11, 6
            s_add_u32 s10, s10, s11
            s_lshl_b32 s11, s{sJ}, 1
            s_add_u32 s10, s10, s11
            s_and_b32 s11, s{sW}, 1
            s_add_u32 s10, s10, s11
            s_lshl_b32 s10, s10, 11
            s_add_u32 s{sPS}, s10, {WS_P}
            s_lshl_b32 s10, s{sG}, 13
            s_lshl_b32 s11, s{sW}, 9
            s_add_u32 s10, s10, s11
            s_add_u32 s{sFLD}, s10, {WS_FL}
            s_lshl_b32 s11, s{sQ}, 11
            s_add_u32 s{sFLM}, s{sFLD}, s11
            v_mov_b32 v{t0}, {OOB}
            v_cmp_eq_u32 vcc, 0, v0
            v_mov_b32 v{t2}, 0
            v_mov_b32 v{vONE}, 1
            v_cndmask_b32 v{vFL0}, v{t0}, v{t2}, vcc
            v_lshlrev_b32 v{vL8}, 3, v0""")

    A = ls.add
    def dma(vo, srd_, so, q, mod, g, fill): return Op(f"buffer_load_dwordx4 v{vo}, s[{srd_}:{srd_+3}], s{so} offen offset:{(q%4)*1024} {mod} lds", group=g, fill=fill)
    def dma_w(t):
        kc, dh = t // 2, t % 2; s = t % 4; g = ("W", t); items = []
        if dh == 0:
            for q in range(4):
                it = []
                if q == 0:
                    if kc: it += [Op(f"s_add_u32 s{sKC}, s{sKC}, 1"), Op(f"s_cmp_eq_u32 s{sKC}, 10"), Op(f"s_cselect_b32 s{sKC}, 0, s{sKC}")]
                    it += [Op(f"s_lshl_b32 s{sT1}, s{sKC}, 7"), Op(f"s_add_u32 s{sT1}, s{sT1}, s{sX0}"),
                           Op(f"s_lshl_b32 s{sT0}, s{sKC}, 19"), Op(f"s_add_u32 s{sT0}, s{sT0}, s{sWQ0}"),
                           Op(f"s_add_u32 m0, s{sM4}, {XB + (kc%2)*16384}", wm0=True)]
                it.append(dma(vX + q, SRD_X, sT1, q, "nt" if t >= 20 - P["ntlast"] else P["nt_x"], g, [(f"X{kc%2}", kc)]))
                items.append(it)
        for q in range(4):
            it = []
            if q == 0:
                if dh == 1: it.append(Op(f"s_xor_b32 s{sT0}, s{sT0}, 128"))
                it.append(Op(f"s_add_u32 m0, s{sM4}, {16384*s}", wm0=True))
            it.append(dma(vW + q, SRD_WQ, sT0, q, "nt" if t >= 20 - P["ntlast"] else P["nt_w"], g, [(f"S{s}", t)]))
            items.append(it)
        return items
    def dma_k(n):
        it = []
        if n % 4 == 0:
            it += [Op(f"s_add_u32 s{sT2}, s{sK0}, {(n//8)*262144 + ((n%8)//4)*4096}"), Op(f"s_lshl_b32 s{sT3}, s{sM4}, 2"),
                   Op(f"s_add_u32 m0, s{sT3}, {KB + (n//4)*4096}")]
        it.append(dma(vK + n % 4, SRD_K, sT2, n, P["nt_k"], ("K", 0), [("K", 100), ("Kp", 100)]))
        return it
    def head_ops(s, dst): return [Op(f"s_lshl_b32 s{dst}, s{sJ}, 1"), Op(f"s_add_u32 s{dst}, s{dst}, {s//2}"), Op(f"s_and_b32 s{dst}, s{dst}, 7")]
    def dma_v(s):
        L = head_ops(s, sT2) + [Op(f"s_lshl_b32 s{sT2}, s{sT2}, 13"), Op(f"s_add_u32 s{sT2}, s{sT2}, s{sV0}")]
        if s % 2: L.append(Op(f"s_add_u32 s{sT2}, s{sT2}, 128"))
        L.append(Op(f"s_add_u32 m0, s{sM4}, {16384*(s%4)}"))
        return L + [dma(vV + q, SRD_V, sT2, q, P["nt_v"], ("V", s), [(f"S{s%4}", 200 + s)]) for q in range(4)]
    def dma_wo(s):
        k = s % 4; fill = [(r, 200 + s) for r in wo_regions(k)]
        L = head_ops(s, sT2) + [Op(f"s_mul_i32 s{sT2}, s{sT2}, {128*1280}"), Op(f"s_add_u32 s{sT2}, s{sT2}, s{sWO0}")]
        if s % 2: L.append(Op(f"s_add_u32 s{sT2}, s{sT2}, {64*1280}"))
        for q in range(5):
            if q % 4 == 0: L.append(Op(f"s_add_u32 m0, s{sM5}, {WOB + 20480*k + 1024*q}"))
            L.append(dma(vWo + q, SRD_WO, sT2, q, P["nt_wo"], ("Wo", s), fill))
        return L
    nlab = [0]
    def arrived(regs, reload, tmp):
        k = nlab[0]; nlab[0] += 1; regs = list(regs); L = []
        L.append(f"v_max3_u32 v{tmp}, v{regs[0]}, v{regs[1]}, v{regs[2]}")
        rest_ = regs[3:]
        while len(rest_) >= 2: L.append(f"v_max3_u32 v{tmp}, v{tmp}, v{rest_[0]}, v{rest_[1]}"); rest_ = rest_[2:]
        if rest_: L.append(f"v_max_u32 v{tmp}, v{tmp}, v{rest_[0]}")
        L.append(f"v_cmp_eq_u32 vcc, -1, v{tmp}")
        tail.extend([f"L_spin{k}:", f"s_mov_b32 s{sSPIN}, 0", f"L_spin{k}a:"] + [o.text for o in reload] + ["s_waitcnt vmcnt(0)"] + L +
                    [f"s_add_u32 s{sSPIN}, s{sSPIN}, 1", f"s_cmp_gt_u32 s{sSPIN}, 50000", f"s_cbranch_scc1 L_back{k}",
                     f"s_cbranch_vccnz L_spin{k}a", f"s_branch L_back{k}"])
        return [Op(x) for x in L] + [Op("s_nop 0"), Op(f"s_cbranch_vccnz L_spin{k}"), Op(f"L_back{k}:")]
    def poll(): return Op(f"buffer_load_dword v{vFLAG}, v{vFL}, {WSR}, s{sFLM} offen sc1")
    def need(mask):
        k = nlab[0]; nlab[0] += 1
        tail.extend([f"L_spin{k}:", f"s_mov_b32 s{sSPIN}, 0", f"L_spin{k}a:",
                     f"buffer_load_dword v{vFLAG}, v{vFL}, {WSR}, s{sFLM} offen sc1", "s_waitcnt vmcnt(0)",
                     f"v_cmp_ne_u32 vcc, 0, v{vFLAG}", f"s_add_u32 s{sSPIN}, s{sSPIN}, 1", f"s_cmp_gt_u32 s{sSPIN}, 100000", f"s_cbranch_scc1 L_back{k}",
                     f"s_and_b32 s{sT2}, vcc_lo, {mask}", f"s_cmp_lg_u32 s{sT2}, {mask}", f"s_cbranch_scc1 L_spin{k}a", f"s_branch L_back{k}"])
        return ops(f"v_cmp_ne_u32 vcc, 0, v{vFLAG}\ns_and_b32 s{sT2}, vcc_lo, {mask}\ns_cmp_lg_u32 s{sT2}, {mask}\ns_cbranch_scc1 L_spin{k}\nL_back{k}:")
    def fetch(k, r):
        L = ops(f"s_add_u32 s{sT2}, s{sQ}, {3 - k + 4}\ns_and_b32 s{sT2}, s{sT2}, 3\ns_lshl_b32 s{sT2}, s{sT2}, 14\ns_add_u32 s{sT2}, s{sT2}, s{sRL}")
        if k < 3: L += [Op(f"buffer_load_dwordx4 {v(r+4*nt,4)}, v{vL16}, {WSR}, s{sT2} offen offset:{1024*nt} sc1") for nt in range(2)]
        return L + [Op(f"buffer_load_dwordx2 {v(r+8,2)}, v{vL8}, {WSR}, s{sT2} offen offset:2048 sc1")]
    def addin(k, r):
        L = []
        if k < 3:
            for nt in range(2):
                for jt in range(2): L.append(mfma(LZ + 8 * nt + 4 * jt, v(lID + 2 - 2 * jt, 4), v(r + 4 * nt, 4)))
        return L + [mfma(LZ + 16, v(lID + 2, 4), v(r + 8, 4))]

    if P["prio_l"]: A(f"s_setprio {P['prio_l']}")
    A(f"""s_mul_i32 s10, s{sJ}, 5
        s_lshr_b32 s10, s10, 1
        s_add_u32 s{sKC}, s{sKC}, s10
        {mod10(sKC, 30)}""")
    if P["xrot"]: A(f"s_mul_i32 s10, s{sQ}, {P['xrot']}\ns_add_u32 s{sKC}, s{sKC}, s10\n{mod10(sKC, 30)}")
    if not P["rot"]: A(f"s_mov_b32 s{sKC}, 0")
    A(f"""v_lshrrev_b32 v{t0}, 4, v0
        v_bfe_u32 v{t1}, v0, 1, 3
        v_xor_b32 v{t1}, v{t1}, v{t0}
        v_and_b32 v{t2}, 4, v{t1}
        v_and_b32 v{t1}, 3, v{t1}
        v_lshlrev_b32 v{t2}, 6, v{t2}
        v_lshl_or_b32 v{t1}, v{t1}, 5, v{t2}
        v_and_b32 v{t2}, 1, v0
        v_lshl_or_b32 v{t1}, v{t2}, 4, v{t1}
        v_lshl_or_b32 v{vW}, v{t0}, 13, v{t1}
        v_add_u32 v{vW+1}, {32768 - 1024}, v{vW}
        v_xor_b32 v{vW+2}, 0x100, v{vW}
        v_add_u32 v{vW+3}, {3*(32768 - 1024)}, v{vW+2}
        v_add_u32 v{vW+2}, {2*(32768 - 1024)}, v{vW+2}
        v_lshrrev_b32 v{t4}, 3, v0
        v_and_b32 v{t1}, 7, v0
        v_mul_u32_u24 v{t2}, 1280, v{t4}
        v_xor_b32 v{t3}, v{t1}, v{t0}
        v_lshl_add_u32 v{vX}, v{t3}, 4, v{t2}
        v_xor_b32 v{t3}, 4, v{t3}
        v_lshl_add_u32 v{vX+1}, v{t3}, 4, v{t2}
        v_add_u32 v{vX+2}, {2*9216}, v{vX}
        v_add_u32 v{vX+3}, {3*9216}, v{vX+1}
        v_add_u32 v{vX+1}, 9216, v{vX+1}
        s_lshl_b32 s10, s{sQ}, 2
        s_add_u32 s10, s10, s{sJ}
        s_lshl_b32 s{sWQ0}, s10, 9
        s_lshl_b32 s10, s{sW}, 17
        s_add_u32 s{sWQ0}, s{sWQ0}, s10
        s_lshl_b32 s10, s{sFLIP}, 7
        s_add_u32 s{sWQ0}, s{sWQ0}, s10
        s_lshl_b32 s10, s{sRG}, 2
        s_add_u32 s10, s10, s{sW}
        s_mul_i32 s{sX0}, s10, 40960
        s_mov_b32 s{SRD_X+2}, {SZ['x']}
        s_mov_b32 s{SRD_X+3}, 0x00020000
        s_mov_b32 s{SRD_WQ+2}, {SZ['wq']}
        s_mov_b32 s{SRD_WQ+3}, 0x00020000
        s_waitcnt lgkmcnt(0)
        s_mov_b32 s{SRD_X}, s12
        s_mov_b32 s{SRD_X+1}, s13
        s_mov_b32 s{SRD_WQ}, s18
        s_mov_b32 s{SRD_WQ+1}, s19""")
    A(dma_w(0))
    if P["code_pf"]:
        A("s_getpc_b64 s[22:23]\nL_pc:")
        A(f"""s_lshr_b32 s10, s2, 3
            s_lshl_b32 s10, s10, 11
            v_and_b32 v{t2}, 15, v0
            v_lshlrev_b32 v{t2}, 7, v{t2}
            v_add_u32 v{t2}, s10, v{t2}
            v_min_u32 v{t2}, CODE_SPAN, v{t2}
            s_sub_u32 s22, s22, CODE_BACK
            s_subb_u32 s23, s23, 0
            global_load_dword v{t5}, v{t2}, s[22:23]""")
    rest = mksrd(SRD_K, 14, SZ["k"]) + ops(f"""v_and_b32 v{t2}, 15, v0
        v_xor_b32 v{t2}, v{t2}, v{t0}
        v_lshlrev_b32 v{t2}, 4, v{t2}
        v_lshl_or_b32 v{vK}, v{t0}, 8, v{t2}
        v_xor_b32 v{vK+1}, 64, v{vK}
        v_xor_b32 v{vK+2}, 0x80, v{vK}
        v_xor_b32 v{vK+3}, 0xc0, v{vK}
        v_lshlrev_b32 v{t2}, 1, v{t0}
        v_xor_b32 v{t2}, v{t2}, v{t1}
        v_lshlrev_b32 v{t2}, 4, v{t2}
        v_lshl_or_b32 v{vV}, v{t4}, 8, v{t2}
        v_add_u32 v{vV+1}, 1024, v{vV}
        v_add_u32 v{vV+2}, 2048, v{vV}
        v_add_u32 v{vV+3}, 3072, v{vV}
        s_lshl_b32 s10, s{sRG}, 1
        s_lshr_b32 s11, s{sW}, 1
        s_add_u32 s10, s10, s11
        s_lshl_b32 s10, s10, 6
        s_lshl_b32 s11, s{sQ}, 3
        s_add_u32 s10, s10, s11
        s_lshl_b32 s11, s{sJ}, 1
        s_add_u32 s10, s10, s11
        s_and_b32 s11, s{sW}, 1
        s_add_u32 s10, s10, s11
        s_lshl_b32 s{sK0}, s10, 13
        s_lshr_b32 s{sPH}, s2, 3
        s_lshl_b32 s10, s{sRG}, 2
        s_add_u32 s10, s10, s{sW}
        s_lshl_b32 s10, s10, 2
        s_add_u32 s10, s10, s{sQ}
        s_lshl_b32 s{sV0}, s10, 16""") + mksrd(SRD_V, 16, SZ["v"]) + mksrd(SRD_WO, 20, SZ["wo"])
    rest += exchange_setup()
    rest += ops(f"""v_lshlrev_b32 v{vPF}, 7, v0
        v_min_u32 v{vPF2}, {15*128}, v{vPF}
        v_mov_b32 v{t2}, {OOB}
        v_cmp_gt_u32 vcc, 3, v0
        s_nop 1
        v_cndmask_b32 v{vFL}, v{t2}, v{vPF}, vcc""")
    g1 = dma_w(1); nf = P["first"]; side = g1[:nf]; k = 0
    for i, o in enumerate(rest):
        A(o)
        if k < len(side) and (k + 1) * len(rest) <= (i + 1) * len(side): A(side[k]); k += 1
    A(side[k:])
    late = mksrd(SRD_OUT, 24, SZ["out"]) + ops(f"""s_add_u32 s{sCT}, s{sJ}, s{sRG}
        s_and_b32 s{sCT}, s{sCT}, 3
        s_lshl_b32 s10, s{sRG}, 2
        s_add_u32 s10, s10, s{sW}
        s_mul_i32 s10, s10, {32*2560}
        s_mul_i32 s11, s{sBR}, 1280
        s_add_u32 s10, s10, s11
        s_mul_i32 s11, s{sCT}, 320
        s_add_u32 s10, s10, s11
        s_lshl_b32 s30, s{sQ}, 6
        s_add_u32 s{sOUT0}, s10, s30
        s_and_b32 s30, s{sQ}, 1
        s_mul_i32 s30, s30, {16*2560}
        s_add_u32 s10, s10, s30
        s_lshr_b32 s30, s{sQ}, 1
        s_lshl_b32 s30, s30, 5
        s_add_u32 s10, s10, s30
        s_add_u32 s{sOUT1}, s10, 256
        s_lshl_b32 s10, s{sQ}, 6
        s_add_u32 s10, s10, s{sW}
        s_mul_i32 s10, s10, {16*1280}
        s_add_u32 s{sWO0}, s10, s11
        s_mul_i32 s{sM5}, s{sW}, 5120
        s_add_u32 s10, s{sQ}, 1
        s_movk_i32 s11, 3277""")
    for q in range(5):
        late += ops(f"""v_add_u32 v{t0}, {64*q}, v0
            v_mul_u32_u24 v{t1}, s11, v{t0}
            v_lshrrev_b32 v{t1}, 16, v{t1}
            v_mul_u32_u24 v{t2}, 20, v{t1}
            v_sub_u32 v{t0}, v{t0}, v{t2}
            v_lshrrev_b32 v{t2}, 2, v{t0}
            v_add_u32 v{t3}, s10, v{t2}
            v_and_b32 v{t3}, 3, v{t3}
            v_cmp_gt_u32 vcc, 4, v{t2}
            v_and_b32 v{t0}, 3, v{t0}
            v_bfe_u32 v{t4}, v{t1}, 2, 1
            v_cndmask_b32 v{t2}, v{t2}, v{t3}, vcc
            v_lshlrev_b32 v{t4}, 1, v{t4}
            v_xor_b32 v{t0}, v{t0}, v{t4}
            v_lshlrev_b32 v{t0}, 4, v{t0}
            v_lshl_or_b32 v{t0}, v{t2}, 6, v{t0}
            v_mul_u32_u24 v{t1}, 1280, v{t1}
            v_add_u32 v{vWo+q}, v{t0}, v{t1}""")
        if q % 4: late.append(Op(f"v_subrev_u32 v{vWo+q}, {1024*(q%4)}, v{vWo+q}"))
    FA = 16384
    late += ops(f"""v_and_b32 v{t0}, 15, v0
        v_lshrrev_b32 v{t1}, 4, v0
        v_lshrrev_b32 v{t2}, 1, v{t1}
        v_bfe_u32 v{t3}, v0, 1, 2
        v_xor_b32 v{t3}, v{t3}, v{t2}
        v_lshlrev_b32 v{t3}, 4, v{t3}
        v_and_b32 v{t4}, 1, v{t1}
        v_lshl_or_b32 v{t3}, v{t4}, 3, v{t3}
        v_lshl_or_b32 v{t3}, v{t0}, 6, v{t3}
        s_add_u32 s10, s{sM4}, {FA}
        v_add_u32 v{vFA}, s10, v{t3}
        v_lshlrev_b32 v{t3}, 3, v{t1}
        v_lshl_or_b32 v{t3}, v{t0}, 5, v{t3}
        s_add_u32 s11, s10, 2048
        v_add_u32 v{vFA2}, s11, v{t3}
        v_add_u32 v{vFB2}, s11, v{vL16}
        v_lshrrev_b32 v{t0}, 2, v0
        v_and_b32 v{t1}, 3, v0
        v_bfe_u32 v{t2}, v0, 3, 2
        v_xor_b32 v{t2}, v{t2}, v{t1}
        v_lshlrev_b32 v{t2}, 4, v{t2}
        v_lshl_or_b32 v{t2}, v{t0}, 6, v{t2}
        v_add_u32 v{vFB}, s10, v{t2}
        v_mul_u32_u24 v{t0}, 2560, v{t0}
        v_lshl_or_b32 v{vOA}, v{t1}, 4, v{t0}
        v_add_u32 v{vOB}, {16*2560}, v{vOA}
        v_lshrrev_b32 v{t0}, 1, v0
        v_and_b32 v{t1}, 1, v0
        v_mul_u32_u24 v{t0}, 2560, v{t0}
        v_lshl_or_b32 v{t0}, v{t1}, 4, v{t0}
        v_mov_b32 v{t1}, {OOB}
        v_cmp_gt_u32 vcc, 32, v0
        v_add_u32 v{lZa}, s{sM4}, v{vL16}
        v_mov_b32 v{lID}, 0
        v_cndmask_b32 v{vOC}, v{t1}, v{t0}, vcc
        v_and_b32 v{t0}, 1, v0
        v_lshlrev_b32 v{t0}, 4, v{t0}
        v_mov_b32 v{t1}, 0x3f80
        v_lshlrev_b32 v{t0}, v{t0}, v{t1}
        v_lshrrev_b32 v{t1}, 4, v0
        v_bfe_u32 v{t2}, v0, 2, 2
        v_cmp_eq_u32 vcc, v{t1}, v{t2}
        v_mov_b32 v{lID+1}, 0
        v_and_b32 v{t2}, 3, v0
        v_cndmask_b32 v{t0}, v{lID}, v{t0}, vcc
        v_cmp_gt_u32 vcc, 2, v{t2}
        v_mov_b32 v{lID+4}, 0
        v_mov_b32 v{lID+5}, 0
        v_cndmask_b32 v{lID+2}, v{lID}, v{t0}, vcc
        v_cndmask_b32 v{lID+3}, v{t0}, v{lID}, vcc""")
    late += [Op(f"v_mov_b32 v{LZ+q}, 0") for q in range(20)] + [Op(f"v_mov_b32 v{LINC+12*q+10+e}, 0") for q in range(4) for e in range(2)]
    A(stamp("lstart", "l"))
    def lbar(*groups): return [Op("WAITG", group=g) for g in groups] + [BAR()]
    A(lbar(("W", 0)))
    clx = P["clx"]; vdma = dict(P["vdma"])
    def touch():
        return ops(f"""s_lshl_b32 s{sT2}, s{sQ}, 5
            s_add_u32 s{sT2}, s{sT2}, s{sPH}
            s_lshl_b32 s{sT2}, s{sT2}, 2
            s_add_u32 s{sT2}, s{sT2}, s{sW}
            s_mul_i32 s{sT2}, s{sT2}, 10240
            s_add_u32 s{sT3}, s{sT2}, 8192
            buffer_load_dword v{t5}, v{vPF}, s[{SRD_WO}:{SRD_WO+3}], s{sT2} offen
            buffer_load_dword v{t6}, v{vPF2}, s[{SRD_WO}:{SRD_WO+3}], s{sT3} offen""")
    def piece(p):
        if p == "T": return touch()
        return [y for n in range(8 * int(p[1]), 8 * int(p[1]) + 8) for y in dma_k(n)]
    nl = len(late); parts = {1: late[:nl // 3], 5: late[nl // 3:2 * nl // 3], 10: late[2 * nl // 3:]}
    NV = P["nv"]; variants = []; lst = {}
    if NV > 1:
        A(f"s_and_b32 s10, s{sPH}, {NV-1}")
        for ph in range(1, NV): A(f"s_cmp_eq_u32 s10, {ph}\ns_cbranch_scc1 L_var{ph}")
    head = ls.ops
    for ph in range(NV):
        V_ = [Op(f"L_var{ph}:")]
        q_ = [(1, [Op(o.text, **o.meta) for o in it]) for it in g1[nf:]] + [(t, it) for t in range(2, 20) for it in dma_w(t)]
        quiet = set()
        for x in range(0, 20):
            cl_ = [y for pcs, xc in clx if xc + ph == x for p_ in pcs for y in piece(p_)]
            if cl_:
                quiet |= {x + d for d in P["skip"]}
            if not P["cend"]: V_ += cl_
            n = 0
            while q_ and q_[0][0] <= x + LA and (q_[0][0] <= x + 1 or (x not in quiet and (n < P["cap"] or x == 0))):
                V_ += q_.pop(0)[1]; n += 1
            if P["cend"]: V_ += cl_
            if x in parts: V_ += [Op(o.text, **o.meta) for o in parts[x]]
            if x == P["pfx"]: V_ += touch()
            if x in vdma:
                V_ += dma_v(vdma[x])
            V_ += lbar(("W", x + 1))
            if ph == 0: lst[x] = stamp(f"l{x}", "l")
            V_ += [Op(o.text) for o in lst[x]]
        fixed = []; cur = want = None
        for o in V_:
            if o.text.startswith("s_add_u32 m0"):
                cur = o.text
                if o.meta.get("wm0"): want = o.text
            if o.kind == "dma" and o.meta["group"][0] == "W" and cur is not None and cur != want: assert want; fixed.append(Op(want)); cur = want
            fixed.append(o)
        V_ = fixed
        V_.append(Op("s_branch L_join"))
        variants.append(V_)
    ls.ops = []
    A("L_join:")
    A(BAR())
    todo = [s_ for s_ in range(4) if s_ not in vdma.values()]
    early = [s_ for s_ in todo if s_ < 3]
    A(dma_wo(0))
    for s_ in early: A(dma_v(s_))
    A(dma_wo(1))
    A([Op("WAITL")] + lbar(("V", 0), ("Wo", 0)))
    A(stamp("m0", "l"))
    for x in range(0, NS):
        if x + 2 <= 15: A(dma_wo(x + 2))
        if x == 0 and 3 in todo: A(dma_v(3))
        if x >= 1 and x + 3 <= 15: A(dma_v(x + 3))
        A(stamp(f'd{x}', 'l'))
        g = [("V", x + 1), ("Wo", x + 1)] + ([("V", x + 2)] if x == NS - 1 else [])
        A(lbar(*g))
        A(stamp(f"m{x+1}", "l"))
    if NS + 2 <= 15: A(dma_wo(NS + 2))
    if NS + 3 <= 15: A(dma_v(NS + 3))
    if NF == 4:
        A(lbar(("V", 14), ("Wo", 13)))
        A(dma_wo(15)); A(lbar(("V", 15), ("Wo", 14)))
        A(lbar(("Wo", 15)))
    elif NF == 3: A(lbar(("V", 15), ("Wo", 14)) + lbar(("Wo", 15)))
    else: A(lbar(("V", 15), ("Wo", 15)))
    A(poll())
    A(need(1) + fetch(0, LINC) + [poll()])
    A(need(2) + fetch(1, LINC + 12) + addin(0, LINC))
    A(stamp("c1", "l"))
    A(BAR())
    A(fetch(3, LINC + 36) + [poll()])
    A([Op(f"ds_read_b128 {v(LZC+4*q,4)}, v{lZa} offset:{q*1024}", use=[("S0", 290)]) for q in range(4)])
    A(addin(1, LINC + 12))
    A(need(4) + fetch(2, LINC + 24) + addin(3, LINC + 36))
    A("s_nop 7")
    for q in range(16): A(f"v_add_f32 v{LZ+q}, v{LZ+q}, v{LZC+q}")
    A(f"v_xor_b32 v{t0}, 32, v{vFA}")
    A(addin(2, LINC + 24))
    A(stamp("c2", "l"))
    FK = [("S1", 300)]
    for nt in range(2):
        for jt in range(2):
            d = LPK + 4 * nt + 2 * jt; z = LZ + 8 * nt + 4 * jt
            A([cvt(d, z), cvt(d + 1, z + 2)])
            A(Op(f"ds_write_b64 v{t0 if nt else vFA}, {v(d,2)} offset:{jt*1024}", fill=FK, private=True))
    A([cvt(LPK + 8, LZ + 16), cvt(LPK + 9, LZ + 18), Op(f"ds_write_b64 v{vFA2}, {v(LPK+8,2)}", fill=FK, private=True)])
    A(Op(f"ds_read_b128 {v(LINC,4)}, v{vFB}", use=FK, private=True))
    A(Op(f"ds_read_b128 {v(LINC+4,4)}, v{vFB} offset:1024", use=FK, private=True))
    A(Op(f"ds_read_b128 {v(LINC+12,4)}, v{vFB2}", use=FK, private=True))
    A(f"buffer_store_dwordx4 {v(LINC,4)}, v{vOA}, {OUTR}, s{sOUT0} offen {P['out_mod']}")
    A(f"buffer_store_dwordx4 {v(LINC+4,4)}, v{vOB}, {OUTR}, s{sOUT0} offen {P['out_mod']}")
    A(f"buffer_store_dwordx4 {v(LINC+12,4)}, v{vOC}, {OUTR}, s{sOUT1} offen {P['out_mod']}")
    if P["dbg"]: A("s_waitcnt vmcnt(0)"); A(stamp("lend", "l"))
    A(dump())
    if P["x_amp"]:
        A(f"s_waitcnt vmcnt(0)\ns_memrealtime s[{sST}:{sST+1}]\ns_waitcnt lgkmcnt(0)\ns_sub_u32 s10, s{sST}, s{sST+4}\ns_mul_i32 s10, s10, {P['x_amp']}")
        A(f"L_amp:\ns_sleep 2\ns_memrealtime s[{sST}:{sST+1}]\ns_waitcnt lgkmcnt(0)\ns_sub_u32 s11, s{sST}, s{sST+4}\ns_cmp_lt_u32 s11, s10\ns_cbranch_scc1 L_amp")
    A("L_end:\ns_endpgm")

    A = cs.add
    A("L_compute:")
    if P["prio_c"]: A(f"s_setprio {P['prio_c']}")
    l16, g, r, c4 = t0, t1, t2, t3
    u0, u1 = ABUF, ABUF + 1
    A(f"""v_and_b32 v{l16}, 15, v0
        v_lshrrev_b32 v{g}, 4, v0
        v_bfe_u32 v{r}, v0, 2, 2
        v_and_b32 v{c4}, 3, v0
        v_and_b32 v{t5}, 1, v{g}
        v_lshl_or_b32 v{t4}, v{t5}, 2, v{r}
        s_and_b32 s10, s{sW}, 1
        s_lshl_b32 s11, s10, 2
        v_lshl_add_u32 v{u0}, v{g}, 3, v{r}
        v_lshlrev_b32 v{u0}, 8, v{u0}
        v_lshl_or_b32 v{u0}, v{c4}, 3, v{u0}
        v_xor_b32 v{u1}, s11, v{t4}
        v_lshl_or_b32 v{aW}, v{u1}, 5, v{u0}
        v_xor_b32 v{aW+1}, 32, v{aW}
        v_xor_b32 v{aW+2}, 64, v{aW}
        v_xor_b32 v{aW+3}, 0x60, v{aW}
        v_lshrrev_b32 v{u1}, 1, v{l16}
        v_xor_b32 v{u1}, v{u1}, v{g}
        v_lshlrev_b32 v{u1}, 4, v{u1}
        v_lshl_or_b32 v{u1}, v{l16}, 7, v{u1}
        s_lshr_b32 s11, s{sW}, 1
        s_lshl_b32 s30, s11, 13
        s_add_u32 s{sT0}, s30, {XB}
        v_add_u32 v{aX}, s{sT0}, v{u1}
        v_xor_b32 v{aX+1}, 64, v{aX}
        s_lshl_b32 s10, s10, 11
        s_add_u32 s10, s10, s30
        s_add_u32 s10, s10, {PB}
        v_add_u32 v{vPW}, s10, v{vL16}
        s_add_u32 s10, s{sM4}, {PB}
        v_add_u32 v{vPR}, s10, v{vL16}
        v_add_u32 v{vZ}, s{sM4}, v{vL16}
        v_lshrrev_b32 v{u0}, 1, v{g}
        v_xor_b32 v{u0}, v{u0}, v{l16}
        v_lshlrev_b32 v{u0}, 4, v{u0}
        v_lshl_or_b32 v{u0}, v{t5}, 3, v{u0}
        v_lshl_or_b32 v{u0}, v{l16}, 8, v{u0}
        s_lshl_b32 s10, s{sM4}, 2
        s_add_u32 s10, s10, {KB}
        v_add_u32 v{u0}, s10, v{u0}
        s_lshl_b32 s10, s{sFLIP}, 7
        v_xor_b32 v{kR}, s10, v{u0}""")
    for q in range(1, 8): A(f"v_xor_b32 v{kR+q}, {32*q}, v{kR}")
    late_c = ops(f"""v_lshrrev_b32 v{t3}, 2, v0
        v_bfe_u32 v{t4}, v0, 3, 2
        v_lshlrev_b32 v{t4}, 5, v{t4}
        v_and_b32 v{t5}, 3, v0
        v_lshl_or_b32 v{t4}, v{t5}, 3, v{t4}
        v_lshl_or_b32 v{t4}, v{t3}, 7, v{t4}
        v_add_u32 v{aV}, s{sM4}, v{t4}
        v_xor_b32 v{aV+1}, 32, v{aV}
        v_xor_b32 v{aV+2}, 64, v{aV}
        v_xor_b32 v{aV+3}, 0x60, v{aV}
        v_mul_u32_u24 v{t3}, 320, v{t3}
        v_lshl_add_u32 v{t3}, v{t5}, 3, v{t3}
        v_add_u32 v{t3}, {WOB}, v{t3}
        v_bfe_u32 v{t5}, v0, 4, 1
        v_lshlrev_b32 v{t5}, 5, v{t5}
        v_add_u32 v{aWo}, v{t3}, v{t5}
        v_sub_u32 v{aWo+1}, v{t3}, v{t5}
        v_add_u32 v{aWo+2}, 61440, v{aWo}
        v_add_u32 v{aWo+3}, 61440, v{aWo+1}""")
    A(f"""s_mov_b32 s{sC}, {f2u(SCALE_LOG2E)}
        s_waitcnt lgkmcnt(0)""")
    A(exchange_setup())
    cbar = lambda: [Op("WAITL"), BAR()]
    vNAN, vZERO = aWo, aV
    A(mksrd(SRD_DBG, 26, 256))
    A(f"""s_lshl_b32 s10, s{sW}, 3
        s_add_u32 s{sHS}, s{sJ}, s10
        s_lshr_b32 s{sT1}, s{sG}, 2
        s_lshl_b32 s{sT1}, s{sT1}, 4
        s_add_u32 s{sT0}, s{sPS}, 65536
        v_mov_b32 v{t2}, {OOB}
        v_cmp_gt_u32 vcc, 24, v0
        v_mov_b32 v{vNAN-1}, -1
        v_mov_b32 v{vNAN}, -1
        v_cndmask_b32 v{t3}, v{t2}, v{vL16}, vcc
        v_mov_b32 v{vNAN+1}, -1
        v_mov_b32 v{vNAN+2}, -1
        v_mov_b32 v{vZERO-1}, 0
        v_mov_b32 v{vZERO}, 0
        v_mov_b32 v{vZERO+1}, 0
        v_mov_b32 v{vZERO+2}, 0""")
    clears = [Op(f"buffer_store_dwordx4 {v(vNAN-1,4)}, v{vL16}, {WSR}, s{so} offen offset:{off} sc1", group="clr") for so in (sPS, sT0) for off in (0, 1024)]
    clears.append(Op(f"buffer_store_dwordx4 {v(vZERO-1,4)}, v{t3}, {WSR}, s{sFLM} offen sc1", group="clr"))

    def rdA1(t, i):
        s = t % 4; buf = ABUF + 8 * ((4 * t + i) % 3)
        return [Op(f"ds_read_b64_tr_b16 {v(buf+4*ss+2*h,2)}, v{aW+i} offset:{s*16384 + ss*8192 + h*1024}", use=[(f"S{s}", t)]) for ss in range(2) for h in range(2)]
    def rdB(kc):
        return [Op(f"ds_read_b128 {v(BB+32*(kc%2)+8*jt+4*ss,4)}, v{aX+ss} offset:{(kc%2)*16384 + jt*2048}", use=[(f"X{kc%2}", kc)]) for jt in range(4) for ss in range(2)]
    if P["clr"][0] < 0: A(clears)
    A(BAR())
    A(stamp("start"))
    b0 = rdB(0); a0 = rdA1(0, 0)
    A(a0[:2] + b0[:1] + a0[2:] + b0[1:] + rdA1(0, 1))
    T = Ticks()
    for t in range(20):
        kc, dh = t // 2, t % 2
        for i in range(4):
            buf = ABUF + 8 * ((4 * t + i) % 3)
            for jt in range(4):
                for ss in range(2):
                    d = ACC + 16 * (4 * dh + i) + 4 * jt
                    T.add(mfma(d, v(buf + 4 * ss, 4), v(BB + 32 * (kc % 2) + 8 * jt + 4 * ss, 4), "0" if (kc == 0 and ss == 0) else None))
                    if jt == 0 and ss == 0: T.m[-1].meta["also"] = range(buf, buf + 8)
    for t in range(20):
        b = 32 * t
        for q, o in enumerate(rdA1(t, 2)): T.put(b + q, o, 2)
        for q, o in enumerate(rdA1(t, 3)): T.put(b + 8 + q, o, 2)
        T.put(b + BP, cbar(), 1)
        if t < 19:
            for q, o in enumerate(rdA1(t + 1, 0)): T.put(b + BP + q, o, 2)
            for q, o in enumerate(rdA1(t + 1, 1)): T.put(b + 24 + q, o, 2)
            if t % 2 == 1:
                for pos, o in zip([BP + 4, BP + 5, BP + 6, 28, 29, 30, 31, 32], rdB((t + 1) // 2)): T.put(b + pos, o, 3)
        T.put(b + 31, stamp(f"w{t}"), 9)
    def qreg(sd, j4): return ACC + 32 * sd + 4 * j4
    def pack(d, e): return [cvt(d, d), cvt(d + 1, d + 2), cvt(d + 2, e), cvt(d + 3, e + 2)]
    def qcvt(sd, j4): return pack(qreg(sd, j4), qreg(sd, j4) + 16)
    def krd(b): return [Op(f"ds_read_b64 {v(BB+32*b+16*kt+4*sd+2*h,2)}, v{kR+2*sd+h} offset:{b*8192 + kt*4096}", use=[("K", 100), ("Kp", 100)]) for sd in range(4) for kt in range(2) for h in range(2)]
    b18, b19 = 32 * 18, 32 * 19
    c0, c1 = P["clr"]; assert c1 < P["hs0"] - 1
    if c0 < 0: pre_clears = clears
    else: T.spread(clears, 32 * c0 + 4, 32 * c1 + 4, 6)
    T.put(32 * (P["hs0"] - 1) + BP, Op("WAITG", group="clr"), 0.5)
    for q in range(4):
        T.put(32 * (P["hs0"] + q) + 5, [Op(f"s_cmp_lg_u32 s{sHS}, {q}"), Op(f"s_cbranch_scc1 L_hs{q}"),
              Op(f"buffer_atomic_add v{vONE}, v{vFL0}, {DBGR}, s{sT1} offen sc1", uncounted=True), Op(f"L_hs{q}:")], 7)
    T.put(32 * 16 + 5, [Op(f"s_cmp_lg_u32 s{sW}, 0"), Op("s_cbranch_scc1 L_hsl"),
          Op(f"buffer_load_dword v{t2}, v{vFL0}, {DBGR}, s{sT1} offen sc1", uncounted=True), Op("L_hsl:")], 7)
    T.put(b19 + BP, [Op(f"s_cmp_lg_u32 s{sW}, 0"), Op("s_cbranch_scc1 L_hsc"), Op("s_waitcnt vmcnt(0)", cond=True, raw=True),
          Op(f"v_readfirstlane_b32 s{sT3}, v{t2}", cond=True), Op("s_nop 1", cond=True), Op(f"s_cmp_lt_u32 s{sT3}, 16", cond=True, nohaz=True),
          Op("s_cbranch_scc1 L_hs_spin", cond=True), Op("L_hsc:")], 0.5)
    tail.extend(["L_hs_spin:", f"s_mov_b32 s{sSPIN}, 0", "L_hs_spin1:",
         f"buffer_load_dword v{t2}, v{vFL0}, {DBGR}, s{sT1} offen sc1", "s_waitcnt vmcnt(0)",
         f"v_readfirstlane_b32 s{sT3}, v{t2}", f"s_add_u32 s{sSPIN}, s{sSPIN}, 1", f"s_cmp_gt_u32 s{sSPIN}, 100000", "s_cbranch_scc1 L_hsc",
         f"s_cmp_lt_u32 s{sT3}, 16", "s_cbranch_scc1 L_hs_spin1", "s_branch L_hsc"])
    T.spread(late_c, 32 * 14, 32 * 14 + 15, 4)
    T.spread(krd(0), b18 + 4, b18 + 15, 4)
    T.spread([o for j4 in range(4) for o in qcvt(0, j4)], b18 + 20, b18 + 31, 5)
    T.spread([o for j4 in range(4) for o in qcvt(1, j4)], b19 + 4, b19 + 16, 5)
    T.spread([o for j4 in range(4) for o in qcvt(2, j4)], b19 + 20, b19 + 31, 5)
    T.flush(cs)
    A(stamp("g1"))

    def sreg(b, jt, kt): return ACC + 16 + 32 * b + 8 * jt + 4 * kt
    def softmax(b):
        tmp = ACC + 80 + 8 * b; pf = PF + 8 * b; L = []
        cols = [(sreg(b, c, 0), tmp + 4 * c) for c in range(2)]
        def both(f):
            for x, y in zip(f(*cols[0]), f(*cols[1])): L.extend([Op(x), Op(y)])
        both(lambda s, m: [f"v_max3_f32 v{m}, v{s}, v{s+1}, v{s+2}", f"v_max3_f32 v{m+1}, v{s+3}, v{s+4}, v{s+5}",
                           f"v_max3_f32 v{m}, v{m}, v{s+6}, v{s+7}", f"v_max_f32 v{m}, v{m}, v{m+1}", f"v_mov_b32 v{m+1}, v{m}",
                           f"v_permlane16_swap_b32 v{m}, v{m+1}", f"v_max_f32 v{m}, v{m}, v{m+1}", f"v_mov_b32 v{m+1}, v{m}",
                           f"v_permlane32_swap_b32 v{m}, v{m+1}", f"v_max_f32 v{m}, v{m}, v{m+1}", f"v_mul_f32 v{m}, s{sC}, v{m}"])
        both(lambda s, m: [f"v_fma_f32 v{s+q}, v{s+q}, s{sC}, -v{m}" for q in range(8)])
        both(lambda s, m: [f"v_exp_f32 v{s+q}, v{s+q}" for q in range(8)])
        both(lambda s, m: [f"v_add_f32 v{m}, v{s}, v{s+1}", f"v_add_f32 v{m+1}, v{s+2}, v{s+3}", f"v_add_f32 v{m+2}, v{s+4}, v{s+5}", f"v_add_f32 v{m+3}, v{s+6}, v{s+7}",
                           f"v_add_f32 v{m}, v{m}, v{m+1}", f"v_add_f32 v{m+2}, v{m+2}, v{m+3}", f"v_add_f32 v{m}, v{m}, v{m+2}", f"v_mov_b32 v{m+1}, v{m}",
                           f"v_permlane16_swap_b32 v{m}, v{m+1}", f"v_add_f32 v{m}, v{m}, v{m+1}", f"v_mov_b32 v{m+1}, v{m}",
                           f"v_permlane32_swap_b32 v{m}, v{m+1}", f"v_add_f32 v{m}, v{m}, v{m+1}", f"v_rcp_f32 v{m}, v{m}"])
        both(lambda s, m: [f"v_mul_f32 v{s+q}, v{s+q}, v{m}" for q in range(8)])
        if b: L.append(Op(f"s_add_u32 s{sPS}, s{sPS}, 65536"))
        for c in range(2):
            for q in range(4): L.append(cvt(pf + 4 * c + q, cols[c][0] + 2 * q))
            L.append(Op(f"buffer_store_dwordx4 {v(pf+4*c,4)}, v{vL16}, {WSR}, s{sPS} offen offset:{1024*c} sc1"))
            L.append(Op(f"ds_write_b128 v{vPW}, {v(pf+4*c,4)} offset:{b*4096 + c*1024}", fill=[("P", 300), ("Kp", 300)]))
        return L
    T = Ticks()
    for b in range(2):
        for sd in range(4):
            for kt in range(2):
                for jt in range(2):
                    T.add(mfma(sreg(b, jt, kt), v(BB + 32 * b + 16 * kt + 4 * sd, 4), v(qreg(sd, 2 * b + jt), 4), "0" if sd == 0 else None))
    T.spread(krd(1), 0, 5, 2)
    T.spread([o for j4 in range(2) for o in qcvt(3, j4)], 1, 6, 3)
    T.spread([o for j4 in range(2, 4) for o in qcvt(3, j4)], 7, 12, 3)
    T.put(P["bk"], cbar(), 1)
    sm0 = softmax(0); sm1 = softmax(1)
    T.spread(sm0[:22], 20, 31, 5)
    T.flush(cs)
    A(stamp("qk"))
    A(sm0[22:]); A(stamp("sm0")); A(sm1); A(stamp("att"))

    def rdP(gen): return [Op(f"ds_read_b128 {v(PRB[0][2*hd+jt],4)}, v{vPR} offset:{hd*2048 + jt*1024}", use=[("P", gen)]) for hd in range(2) for jt in range(2)]
    def ldP(dj):
        return ops(f"s_add_u32 s{sT2}, s{sJ}, {dj}\ns_and_b32 s{sT2}, s{sT2}, 3\ns_lshl_b32 s{sT2}, s{sT2}, 12\ns_add_u32 s{sT2}, s{sT2}, s{sPL}") + \
            [Op(f"buffer_load_dwordx4 {v(PRB[dj%2][q],4)}, v{vL16}, {WSR}, s{sT2} offen offset:{1024*q} sc1") for q in range(4)]
    def rdV(s): return [Op(f"ds_read_b64_tr_b16 {v(VF+4*i+2*h,2)}, v{aV+i} offset:{(s%4)*16384 + h*2048}", use=[(f"S{s%4}", 200 + s)]) for i in range(4) for h in range(2)]
    def pvreg(s, i, jt):
        if s < NS + 1 or NF == 1: return PVB[s % 2] + 8 * i + 4 * jt
        return fin_regs[s][2 * i + jt]
    e0, e1 = PVB[NS % 2], PVB[(NS + 1) % 2]
    fin_regs = {NS + 1: [e1 + 4 * q for q in range(8)],
                NS + 2: [e0 + 8, e0 + 12, e1 + 8, e1 + 12, e0 + 24, e0 + 28, e1 + 24, e1 + 28],
                NS + 3: [e1 + 8, e1 + 12, PRB[0][0], PRB[0][1], e1 + 24, e1 + 28, PRB[0][2], PRB[0][3]]}
    def pvm(s): return [mfma(pvreg(s, i, jt), v(VF + 4 * i, 4), v(PRB[(s // 4) % 2][2 * ((s // 2) % 2) + jt], 4), "0") for i in range(4) for jt in range(2)]
    def pvc(s): return [o for ss in range(2) for jt in range(2) for o in pack(pvreg(s, 2 * ss, jt), pvreg(s, 2 * ss + 1, jt))]
    nA = [0]
    def rdA2(s, t):
        k = s % 4; buf = A2 + 8 * (nA[0] % 4); nA[0] += 1
        ad = aWo + (t % 2) + (2 if k == 3 else 0); base = 0 if k == 3 else k * 20480
        return buf, [Op(f"ds_read_b64_tr_b16 {v(buf+4*ss+2*h,2)}, v{ad} offset:{base + ss*10240 + h*5120 + t*32}", use=[(f"Wo{k}", 200 + s)]) for ss in range(2) for h in range(2)]
    def owo(s, t, buf):
        L = [mfma(OUTA + 8 * t + 4 * jt, v(buf + 4 * ss, 4), v(pvreg(s, 2 * ss, jt), 4), "0" if (s == 0 and ss == 0) else None) for jt in range(2) for ss in range(2)]
        L[0].meta["also"] = range(buf, buf + 8)
        return L
    steps = [(s, t) for s in range(NS) for t in range(10)]
    order = [8, 9, 0, 1, 2, 3, 4, 5, 6, 7]
    steps += [(s, t) for s in range(NS, 16) for t in order[:2]] + [(s, t) for t in order[2:] for s in range(NS, 16)]
    rd = [rdA2(s, t) for s, t in steps]
    A(cbar())
    A(stamp("bp"))
    p0 = rdP(300)
    A(p0[:2] + rdV(0) + p0[2:] + rd[0][1])
    A(pvm(0)); A(rd[1][1] + rd[2][1]); A(pvc(0))
    T = Ticks(); at = []; pvat = {}
    for n, (s, t) in enumerate(steps):
        if (s < NS and t == 6) or (NS <= s < 15 and t == 8):
            pvat[s + 1] = len(T.m)
            for o in pvm(s + 1): T.add(o)
        at.append(len(T.m))
        for o in owo(s, t, rd[n][0]): T.add(o)
    fin0 = pvat[NS + 1]; BX = fin0 - 4
    BM = at[steps.index((13, 8))]
    BL2 = at[steps.index((15, 8)) - P["bl2"]] if NF >= 3 else BX
    for n in range(3, len(steps)):
        base = at[n - 3]
        if steps[n][0] > NS: base = max(base, BX)
        if steps[n][0] == 14 and NF == 4: base = max(base, BM)
        if steps[n][0] == 15: base = max(base, BL2)
        for q, o in enumerate(rd[n][1]): T.put(base + q, o, 2)
    for s in range(NS):
        b = at[10 * s]
        T.put(b + BP2, BAR(), 1)
        T.spread(rdV(s + 1), b + BP2, b + BP2 + 3, 1.5)
        T.spread(pvc(s + 1), b + 35, b + 46, 4)
        T.put(b + 47, stamp(f"o{s}"), 9)
    T.put(BX, BAR(), 1)
    if NF == 4: T.put(BM, BAR(), 1)
    if NF >= 3: T.put(BL2, BAR(), 1)
    for s2 in range(NS + 1, 16):
        T.spread(rdV(s2), pvat[s2] - 8, pvat[s2] - 5, 1.6)
        T.spread(pvc(s2), pvat[s2] + 9, pvat[s2] + 15, 1.7)
    for dj in range(1, 4):
        ps, pt = P["pld"][dj - 1]; L = ldP(dj)
        T.spread([L[:5], L[5], L[6], L[7]], at[10 * ps] + pt, at[10 * ps] + pt + 6, 6)
        chk = arrived([r_ + e for r_ in PRB[dj % 2] for e in range(4)], ldP(dj), t0)
        b = at[10 * (4 * dj - 1)] + P["pchk"]
        T.spread(chk[:-4], b - 4, b - 1, 6); T.put(b, chk[-4:] + stamp(f"pc{dj}"), 6)
    end = len(T.m); flags = []
    def done(t): return at[steps.index((15, t))] + 3
    L = []
    for m in range(4):
        L += [cvt(PK + 2 * m, OUTA + 64 + 4 * m), cvt(PK + 2 * m + 1, OUTA + 64 + 4 * m + 2),
              [Op(f"s_add_u32 s{sT2}, s{sRS}, {m*65536 + 2048}"), Op(f"buffer_store_dwordx2 {v(PK+2*m,2)}, v{vL8}, {WSR}, s{sT2} offen sc1", group=("R", -1))]]
    T.spread(L, done(9) + 3, done(9) + 8 * NF - 2, 4)
    for k in range(3):
        L = []; pk = SPARE if k % 2 == 0 else PK
        dest = f"s_add_u32 s{{0}}, s{sQ}, {k+1}\ns_and_b32 s{{0}}, s{{0}}, 3"
        for nt in range(2):
            for jt in range(2):
                z = OUTA + 8 * (2 * k + nt) + 4 * jt
                L += [cvt(pk + 4 * nt + 2 * jt, z), cvt(pk + 4 * nt + 2 * jt + 1, z + 2)]
            it = ops(dest.format(sT2) + f"\ns_lshl_b32 s{sT2}, s{sT2}, 16\ns_add_u32 s{sT3}, s{sT2}, s{sRS}") if nt == 0 else []
            L.append(it + [Op(f"buffer_store_dwordx4 {v(pk+4*nt,4)}, v{vL16}, {WSR}, s{sT3} offen offset:{1024*nt} sc1", group=("R", k))])
        T.spread(L[:5], done(2 * k) + 3, done(2 * k) + 2 * NF + 1, 4); T.spread(L[5:], done(2 * k + 1) + 3, done(2 * k + 1) + 2 * NF + 1, 4)
        fl = [Op("WAITG", group=("R", k))] + ops(dest.format(sT2) + f"\ns_lshl_b32 s{sT2}, s{sT2}, 11\ns_add_u32 s{sT2}, s{sT2}, s{sFLD}")
        fl.append(Op(f"buffer_store_dword v{vONE}, v{vFL0}, {WSR}, s{sT2} offen offset:{k*128} sc1"))
        tf = done(2 * k + 1) + 2 * NF + 1 + P["cover"]
        if tf < end: T.put(tf, fl, 6)
        else: flags.append(fl)
    T.flush(cs)
    A(stamp("g2"))
    zw = [Op(f"ds_write_b128 v{vZ}, {v(OUTA+48+4*q,4)} offset:{q*1024}", fill=[("S0", 290)], wpriv=True) for q in range(4)]
    A(flags[:-1]); A(zw); A(flags[-1:])
    A(cbar())
    A(stamp("end"))
    A(dump())
    A("s_endpgm")

    sc, sl = {}, {}
    def drop(st, pred): st.ops = [o for o in st.ops if not pred(o)]
    import re
    def hot(L):
        for name, srd_ in (("v", SRD_V), ("o", SRD_WO), ("k", SRD_K), ("w", SRD_WQ), ("x", SRD_X)):
            if name in P["x_hot"]:
                L = [Op(re.sub(r"\], s\d+ offen", "], 0 offen", o.text), **o.meta) if (o.kind in ("dma", "vld") and f"s[{srd_}:" in o.text) else o for o in L]
        return L
    clines = cs.finalize(sc); seg = []; nb = None
    for ph, V_ in enumerate(variants):
        lf = Stream(); lf.nocheck = True; lf.ops = hot(pro.ops + head + V_ + ls.ops)
        L = lf.finalize(sl); i0 = L.index(f"L_var{ph}:"); i1 = L.index("L_join:")
        seg.append((L[:i0], L[i0:i1], L[i1:]))
        assert seg[-1][0] == seg[0][0] and seg[-1][2] == seg[0][2]
        nb = check_handoffs([cs.events, lf.events]); assert nb[0] == nb[1], nb
    lines = seg[0][0] + [l for x in seg for l in x[1]] + seg[0][2] + tail + clines
    a = Asm(); kernel_begin(a, KNAME)
    for l in lines: a(l)
    a("L_code_end:")
    body = a.text().replace("CODE_SPAN", f"L_code_end-{KNAME}-4").replace("CODE_BACK", f"L_pc-{KNAME}")
    write_file(path, ["; @launch grid=(256,1,1) block=(512,1,1) lds=163840"], body, [descriptor(KNAME, 256, 256)])
    return sc, sl, nb

if __name__ == "__main__":
    out = sys.argv[1] if len(sys.argv) > 1 else f"cdna_kernels/{NAME}.s"
    kw = {}
    for x in sys.argv[2:]:
        k, val = x.split("=", 1)
        try: val = eval(val)
        except Exception: pass
        kw[k] = val
    print(build(out, **kw))
```

```python
import sys, struct
from common import *
from ops import Op, Stream, check_handoffs

def f2u(f): return struct.unpack("<I", struct.pack("<f", f))[0]
SCALE_LOG2E = 128 ** -0.5 * 1.4426950408889634
KNAME = NAME + "_kernel"

DEF = dict(
    nt_w="", nt_x="", nt_k="nt", nt_v="", nt_wo="", bpos=17, bpos2=15, code_pf=1, dbg=0, rot=1, xrot=1, flip=0,
    stamps=("start", "g1", "att", "g2", "end"), lstamps=(),
    clx=((('K0', 'K1'), 3), (('K2', 'K3'), 9)), tch={0: 1, 4: 2, 8: 3}, skip2=(1,), cap2=11, nv=4, vdma={17: 0, 18: 1}, x_hot='', cend=1, skip=(1,), cap=8, phstep=1, clr=(2, 6), bal=0, first=4, prio_l=0, prio_c=0, la=3, pfx=15, smooth=1, sm_in=16, smix=1, bk=8, nf=4, bl2=2, pld=((2, 8), (5, 8), (9, 8)), pchk=20, hs0=8, cover=80, early=0, x_nost=0,
    out_mod="sc1", ntlast=0, x_amp=0, x_nomfma=0, x_nodma=0,
)

WS_R = 0
WS_P = 16 << 20
WS_FL = 20 << 20
WS_DBG = 32 << 20
OOB = 0x40000000

XB, KB = 65536, 98304
WOB, PB = 65536, 147456

sW, sJ, sRG, sG, sBR = 3, 6, 7, 8, 9
sFLIP, sPH, sKC, sQ = 32, 33, 34, 35
SRD_X, SRD_K, SRD_V, SRD_WQ, SRD_WO, SRD_OUT, SRD_DBG, SRD_WS = 36, 40, 44, 48, 52, 56, 60, 64
sWQ0, sX0, sK0, sV0, sWO0, sM4, sM5 = 68, 69, 70, 71, 72, 73, 74
sT0, sT1, sT2, sT3 = 75, 76, 77, 78
sRS, sRL, sPS, sFLD, sPL, sC, sHS, sCT, sFLM = 79, 80, 81, 82, 83, 84, 89, 86, 98
sSPIN = 88
sOUT0, sOUT1 = 90, 91
sTCH = 87
sST = 92
WSR = f"s[{SRD_WS}:{SRD_WS+3}]"; DBGR = f"s[{SRD_DBG}:{SRD_DBG+3}]"; OUTR = f"s[{SRD_OUT}:{SRD_OUT+3}]"

vL16, vL8, vFL0, vONE = 28, 29, 30, 31
vT = 33
aW, aX, kR = 1, 5, 7
vPW, vPR, vZ = 15, 16, 17
aWo, aV = 19, 23
ABUF = 40; BB = 64; ACC = 128
PF = 40
OUTA = 176
PVB = [112, 144]
VF = 96
A2 = 64
PRB = [[40, 44, 48, 52], [56, 60, 2, 6]]
SPARE = 56
PK = 2
vW, vX, vK, vV, vWo = 1, 5, 9, 13, 17
vFLAG = 32
vFL = 22
lID = 40
lZa, vFA, vFA2, vFB, vFB2, vOA, vOB, vOC, vPF, vPF2 = 46, 47, 48, 49, 50, 51, 52, 53, 54, 55
LINC = 64
LZ = 112
LZC = 136
LPK = 152
VP = 192
vVW = 56

def v(b, n=1): return vr(b, n)
def mfma(d, A, B, C=None): return Op(f"v_mfma_f32_16x16x32_bf16 {v(d,4)}, {A}, {B}, {v(d,4) if C is None else C}")
def cvt(d, s0): return Op(f"v_cvt_pk_bf16_f32 v{d}, v{s0}, v{s0+1}")
def ops(text): return [Op(x) for x in text.split("\n") if x.strip()]

class Ticks:
    def __init__(self): self.m = []; self.f = []
    def add(self, op): self.m.append(op); self.f.append([]); return len(self.m) - 1
    def put(self, t, o, prio=5):
        if not isinstance(o, (list, tuple)): o = [o]
        self.f[t].append((prio, len(self.f[t]), [Op(x) if isinstance(x, str) else x for x in o]))
    def spread(self, items, t0, t1, prio=5):
        n = len(items)
        for q, it in enumerate(items): self.put(t0 + (q * (t1 - t0 + 1)) // n, it, prio)
    def flush(self, st):
        for m, f in zip(self.m, self.f):
            st.add(m)
            for _, _, o in sorted(f, key=lambda x: (x[0], x[1])): st.add(o)

def weave(st, main, side, first=0):
    n, m = len(main), len(side); k = 0
    for i, o in enumerate(main):
        st.add(o)
        while k < m and i >= first and (k + 1) * (n - first) <= (i + 1 - first) * m: st.add(side[k]); k += 1
    while k < m: st.add(side[k]); k += 1

def build(path, **kw):
    P = dict(DEF); P.update(kw)
    BP, BP2, LA, NF = P["bpos"], P["bpos2"], P["la"], P["nf"]
    NS = 16 - NF
    tail = []
    pro = Stream(); cs = Stream(); ls = Stream()
    for s in (pro, cs, ls): s.nocheck = True
    t0, t1, t2, t3, t4, t5, t6 = range(vT, vT + 7)
    nst = {"c": 0, "l": 0}
    def stamp(name, role="c"):
        if not P["dbg"] or name not in P["stamps" if role == "c" else "lstamps"]: return []
        nst[role] += 1; i = nst[role]; assert i <= 13
        return [Op(f"s_memtime s[{sST}:{sST+1}]"), Op("s_waitcnt lgkmcnt(0)"), Op(f"s_mov_b32 s{sreg_(i)}, s{sST}")]
    def sreg_(i): return {1: 99, 2: 100, 3: 101}.get(i, 12 + i)
    def dump():
        if not P["dbg"]: return []
        L = ops(f"""s_waitcnt vmcnt(0)
            s_memrealtime s[{sST}:{sST+1}]
            s_waitcnt lgkmcnt(0)
            v_writelane_b32 v{t6}, s{sST+2}, 0
            v_writelane_b32 v{t6}, s{sST}, 15
            v_writelane_b32 v{t6}, s{sST+4}, 14""")
        L += [Op(f"v_writelane_b32 v{t6}, s{sreg_(i)}, {i}") for i in range(1, 14)]
        L += ops(f"""s_lshl_b32 s{sT2}, s2, 3
            s_add_u32 s{sT2}, s{sT2}, s31
            s_lshl_b32 s{sT2}, s{sT2}, 8
            s_add_u32 s{sT2}, s{sT2}, {WS_DBG}
            v_lshlrev_b32 v{t0}, 2, v0
            buffer_store_dword v{t6}, v{t0}, {WSR}, s{sT2} offen""")
        return L
    BAR = lambda: Op("s_barrier")
    def mksrd(dst, ptr, n): return ops(f"s_mov_b32 s{dst+2}, {n}\ns_mov_b32 s{dst+3}, 0x00020000")
    def mod10(x, tmp): return f"s_sub_u32 s{tmp}, s{x}, 10\ns_min_u32 s{x}, s{x}, s{tmp}"
    def wo_regions(k):
        lo, hi = WOB + 20480 * k, WOB + 20480 * (k + 1); r = [f"Wo{k}"]
        if lo < XB + 16384: r.append("X0")
        if lo < KB and hi > XB + 16384: r.append("X1")
        if hi > KB: r.append("K")
        return r

    A = pro.add
    A("s_cmp_ge_u32 s2, 256\ns_cbranch_scc1 L_end")
    if P["dbg"] or P["x_amp"]: A(f"s_memtime s[{sST+2}:{sST+3}]\ns_memrealtime s[{sST+4}:{sST+5}]")
    A(f"""v_lshrrev_b32 v{t0}, 6, v0
        s_bfe_u32 s{sBR}, s2, 0x10002
        v_readfirstlane_b32 s31, v{t0}
        s_mul_i32 s10, s{sBR}, 40
        v_and_b32 v0, 63, v0
        s_add_u32 s4, s0, s10
        s_addc_u32 s5, s1, 0
        s_cmp_lt_u32 s31, 4
        s_cbranch_scc1 L_compute""")
    ids = f"""s_and_b32 s{sQ}, s2, 3
        s_bfe_u32 s{sJ}, s2, 0x20003
        s_lshr_b32 s{sRG}, s2, 5
        s_and_b32 s{sW}, s31, 3
        s_lshl_b32 s{sM4}, s{sW}, 12"""

    def exchange_setup():
        return mksrd(SRD_WS, 28, 268435456) + ops(f"""s_lshl_b32 s10, s{sBR}, 3
            s_add_u32 s10, s10, s{sRG}
            s_lshl_b32 s{sG}, s10, 2
            s_add_u32 s{sG}, s{sG}, s{sJ}
            s_lshl_b32 s10, s{sG}, 18
            s_add_u32 s10, s10, s{sM4}
            s_lshl_b32 s11, s{sQ}, 14
            s_add_u32 s{sRS}, s10, s11
            s_lshl_b32 s11, s{sQ}, 16
            s_add_u32 s{sRL}, s10, s11
            s_lshl_b32 s10, s{sBR}, 3
            s_add_u32 s10, s10, s{sRG}
            s_lshl_b32 s10, s10, 7
            s_lshl_b32 s11, s{sQ}, 3
            s_add_u32 s10, s10, s11
            s_lshl_b32 s11, s{sW}, 5
            s_add_u32 s11, s11, s10
            s_lshl_b32 s11, s11, 11
            s_add_u32 s{sPL}, s11, {WS_P}
            s_lshr_b32 s11, s{sW}, 1
            s_lshl_b32 s11, s11, 6
            s_add_u32 s10, s10, s11
            s_lshl_b32 s11, s{sJ}, 1
            s_add_u32 s10, s10, s11
            s_and_b32 s11, s{sW}, 1
            s_add_u32 s10, s10, s11
            s_lshl_b32 s10, s10, 11
            s_add_u32 s{sPS}, s10, {WS_P}
            s_lshl_b32 s10, s{sG}, 13
            s_lshl_b32 s11, s{sW}, 9
            s_add_u32 s10, s10, s11
            s_add_u32 s{sFLD}, s10, {WS_FL}
            s_lshl_b32 s11, s{sQ}, 11
            s_add_u32 s{sFLM}, s{sFLD}, s11
            v_mov_b32 v{t0}, {OOB}
            v_cmp_eq_u32 vcc, 0, v0
            v_mov_b32 v{t2}, 0
            v_mov_b32 v{vONE}, 1
            v_cndmask_b32 v{vFL0}, v{t0}, v{t2}, vcc
            v_lshlrev_b32 v{vL8}, 3, v0""")

    A = ls.add
    def dma(vo, srd_, so, q, mod, g, fill): return Op(f"buffer_load_dwordx4 v{vo}, s[{srd_}:{srd_+3}], s{so} offen offset:{(q%4)*1024} {mod} lds", group=g, fill=fill)
    def dma_w(t):
        kc, dh = t // 2, t % 2; s = t % 4; g = ("W", t); items = []
        if dh == 0:
            for q in range(4):
                it = []
                if q == 0:
                    if kc: it += [Op(f"s_add_u32 s{sKC}, s{sKC}, 1"), Op(f"s_cmp_eq_u32 s{sKC}, 10"), Op(f"s_cselect_b32 s{sKC}, 0, s{sKC}")]
                    it += [Op(f"s_lshl_b32 s{sT1}, s{sKC}, 7"), Op(f"s_add_u32 s{sT1}, s{sT1}, s{sX0}"),
                           Op(f"s_lshl_b32 s{sT0}, s{sKC}, 19"), Op(f"s_add_u32 s{sT0}, s{sT0}, s{sWQ0}"),
                           Op(f"s_add_u32 m0, s{sM4}, {XB + (kc%2)*16384}", wm0=True)]
                it.append(dma(vX + q, SRD_X, sT1, q, "nt" if t >= 20 - P["ntlast"] else P["nt_x"], g, [(f"X{kc%2}", kc)]))
                items.append(it)
        for q in range(4):
            it = []
            if q == 0:
                if dh == 1: it.append(Op(f"s_xor_b32 s{sT0}, s{sT0}, 128"))
                it.append(Op(f"s_add_u32 m0, s{sM4}, {16384*s}", wm0=True))
            it.append(dma(vW + q, SRD_WQ, sT0, q, "nt" if t >= 20 - P["ntlast"] else P["nt_w"], g, [(f"S{s}", t)]))
            items.append(it)
        return items
    def dma_k(n):
        it = []
        if n % 4 == 0:
            it += [Op(f"s_add_u32 s{sT2}, s{sK0}, {(n//8)*262144 + ((n%8)//4)*4096}"), Op(f"s_lshl_b32 s{sT3}, s{sM4}, 2"),
                   Op(f"s_add_u32 m0, s{sT3}, {KB + (n//4)*4096}")]
        it.append(dma(vK + n % 4, SRD_K, sT2, n, P["nt_k"], ("K", 0), [("K", 100), ("Kp", 100)]))
        return it
    def head_ops(s, dst): return [Op(f"s_lshl_b32 s{dst}, s{sJ}, 1"), Op(f"s_add_u32 s{dst}, s{dst}, {s//2}"), Op(f"s_and_b32 s{dst}, s{dst}, 7")]
    def dma_v(s):
        L = head_ops(s, sT2) + [Op(f"s_lshl_b32 s{sT2}, s{sT2}, 13"), Op(f"s_add_u32 s{sT2}, s{sT2}, s{sV0}")]
        if s % 2: L.append(Op(f"s_add_u32 s{sT2}, s{sT2}, 128"))
        L.append(Op(f"s_add_u32 m0, s{sM4}, {16384*(s%4)}"))
        return L + [dma(vV + q, SRD_V, sT2, q, P["nt_v"], ("V", s), [(f"S{s%4}", 200 + s)]) for q in range(4)]
    def dma_wo(s):
        k = s % 4; fill = [(r, 200 + s) for r in wo_regions(k)]
        L = head_ops(s, sT2) + [Op(f"s_mul_i32 s{sT2}, s{sT2}, {128*1280}"), Op(f"s_add_u32 s{sT2}, s{sT2}, s{sWO0}")]
        if s % 2: L.append(Op(f"s_add_u32 s{sT2}, s{sT2}, {64*1280}"))
        for q in range(5):
            if q % 4 == 0: L.append(Op(f"s_add_u32 m0, s{sM5}, {WOB + 20480*k + 1024*q}"))
            L.append(dma(vWo + q, SRD_WO, sT2, q, P["nt_wo"], ("Wo", s), fill))
        return L
    nlab = [0]
    def arrived(regs, reload, tmp):
        k = nlab[0]; nlab[0] += 1; regs = list(regs); L = []
        L.append(f"v_max3_u32 v{tmp}, v{regs[0]}, v{regs[1]}, v{regs[2]}")
        rest_ = regs[3:]
        while len(rest_) >= 2: L.append(f"v_max3_u32 v{tmp}, v{tmp}, v{rest_[0]}, v{rest_[1]}"); rest_ = rest_[2:]
        if rest_: L.append(f"v_max_u32 v{tmp}, v{tmp}, v{rest_[0]}")
        L.append(f"v_cmp_eq_u32 vcc, -1, v{tmp}")
        tail.extend([f"L_spin{k}:", f"s_mov_b32 s{sSPIN}, 0", f"L_spin{k}a:"] + [o.text for o in reload] + ["s_waitcnt vmcnt(0)"] + L +
                    [f"s_add_u32 s{sSPIN}, s{sSPIN}, 1", f"s_cmp_gt_u32 s{sSPIN}, 50000", f"s_cbranch_scc1 L_back{k}",
                     f"s_cbranch_vccnz L_spin{k}a", f"s_branch L_back{k}"])
        return [Op(x) for x in L] + [Op("s_nop 0"), Op(f"s_cbranch_vccnz L_spin{k}"), Op(f"L_back{k}:")]
    def poll(): return Op(f"buffer_load_dword v{vFLAG}, v{vFL}, {WSR}, s{sFLM} offen sc1")
    def need(mask):
        k = nlab[0]; nlab[0] += 1
        tail.extend([f"L_spin{k}:", f"s_mov_b32 s{sSPIN}, 0", f"L_spin{k}a:",
                     f"buffer_load_dword v{vFLAG}, v{vFL}, {WSR}, s{sFLM} offen sc1", "s_waitcnt vmcnt(0)",
                     f"v_cmp_ne_u32 vcc, 0, v{vFLAG}", f"s_add_u32 s{sSPIN}, s{sSPIN}, 1", f"s_cmp_gt_u32 s{sSPIN}, 100000", f"s_cbranch_scc1 L_back{k}",
                     f"s_and_b32 s{sT2}, vcc_lo, {mask}", f"s_cmp_lg_u32 s{sT2}, {mask}", f"s_cbranch_scc1 L_spin{k}a", f"s_branch L_back{k}"])
        return ops(f"v_cmp_ne_u32 vcc, 0, v{vFLAG}\ns_and_b32 s{sT2}, vcc_lo, {mask}\ns_cmp_lg_u32 s{sT2}, {mask}\ns_cbranch_scc1 L_spin{k}\nL_back{k}:")
    def fetch(k, r):
        L = ops(f"s_add_u32 s{sT2}, s{sQ}, {3 - k + 4}\ns_and_b32 s{sT2}, s{sT2}, 3\ns_lshl_b32 s{sT2}, s{sT2}, 14\ns_add_u32 s{sT2}, s{sT2}, s{sRL}")
        if k < 3: L += [Op(f"buffer_load_dwordx4 {v(r+4*nt,4)}, v{vL16}, {WSR}, s{sT2} offen offset:{1024*nt} sc1") for nt in range(2)]
        return L + [Op(f"buffer_load_dwordx2 {v(r+8,2)}, v{vL8}, {WSR}, s{sT2} offen offset:2048 sc1")]
    def addin(k, r):
        L = []
        if k < 3:
            for nt in range(2):
                for jt in range(2): L.append(mfma(LZ + 8 * nt + 4 * jt, v(lID + 2 - 2 * jt, 4), v(r + 4 * nt, 4)))
        return L + [mfma(LZ + 16, v(lID + 2, 4), v(r + 8, 4))]

    A(f"s_load_dwordx2 s[{SRD_X}:{SRD_X+1}], s[4:5], 0\ns_load_dwordx2 s[{SRD_WQ}:{SRD_WQ+1}], s[4:5], 24")
    if P["prio_l"]: A(f"s_setprio {P['prio_l']}")
    A(ids)
    xr = P["xrot"]
    A(f"""s_mul_i32 s{sKC}, s{sRG}, 5
        v_lshrrev_b32 v{t0}, 4, v0
        s_mul_i32 s10, s{sJ}, 5
        v_lshrrev_b32 v{t4}, 3, v0
        s_lshr_b32 s{sKC}, s{sKC}, 2
        v_and_b32 v{t1}, 7, v0
        s_lshr_b32 s10, s10, 1
        v_mul_u32_u24 v{t2}, 1280, v{t4}
        s_add_u32 s{sKC}, s{sKC}, s10
        v_xor_b32 v{t3}, v{t1}, v{t0}
        s_add_u32 s{sKC}, s{sKC}, {'s%d' % sQ if xr else 0}
        v_lshl_add_u32 v{vX}, v{t3}, 4, v{t2}
        {mod10(sKC, 30)}
        v_xor_b32 v{t3}, 4, v{t3}
        s_lshl_b32 s10, s{sRG}, 2
        v_lshl_add_u32 v{vX+1}, v{t3}, 4, v{t2}
        s_add_u32 s10, s10, s{sW}
        v_add_u32 v{vX+2}, {2*9216}, v{vX}
        s_mul_i32 s{sX0}, s10, 40960
        v_add_u32 v{vX+3}, {3*9216}, v{vX+1}
        s_mov_b32 s{SRD_X+2}, {SZ['x']}
        v_add_u32 v{vX+1}, 9216, v{vX+1}
        s_mov_b32 s{SRD_X+3}, 0x00020000""")
    assert xr in (0, 1)
    if not P["rot"]: A(f"s_mov_b32 s{sKC}, 0")
    wsetup = ops(f"""v_bfe_u32 v{t3}, v0, 1, 3
        s_lshl_b32 s10, s{sQ}, 2
        v_xor_b32 v{t3}, v{t3}, v{t0}
        s_add_u32 s10, s10, s{sJ}
        v_and_b32 v{t2}, 4, v{t3}
        s_lshl_b32 s{sWQ0}, s10, 9
        v_and_b32 v{t3}, 3, v{t3}
        s_lshl_b32 s10, s{sW}, 17
        v_lshlrev_b32 v{t2}, 6, v{t2}
        s_add_u32 s{sWQ0}, s{sWQ0}, s10
        v_lshl_or_b32 v{t3}, v{t3}, 5, v{t2}
        s_lshl_b32 s{sT0}, s{sKC}, 19
        v_and_b32 v{t2}, 1, v0
        s_add_u32 s{sT0}, s{sT0}, s{sWQ0}
        v_lshl_or_b32 v{t3}, v{t2}, 4, v{t3}
        s_mov_b32 s{SRD_WQ+2}, {SZ['wq']}
        v_lshl_or_b32 v{vW}, v{t0}, 13, v{t3}
        s_mov_b32 s{SRD_WQ+3}, 0x00020000
        v_add_u32 v{vW+1}, {32768 - 1024}, v{vW}
        v_xor_b32 v{vW+2}, 0x100, v{vW}
        v_add_u32 v{vW+3}, {3*(32768 - 1024)}, v{vW+2}
        v_add_u32 v{vW+2}, {2*(32768 - 1024)}, v{vW+2}""")
    A(stamp("k0", "l"))
    w0 = dma_w(0); w0[0] = [o for o in w0[0] if f"s{sT0}," not in o.text]
    A(w0[:1]); A(stamp("k1", "l")); A(w0[1:4]); A(wsetup); A(w0[4:]); A(stamp("k2", "l"))
    A(f"""s_load_dwordx2 s[{SRD_K}:{SRD_K+1}], s[4:5], 8
        s_load_dwordx2 s[{SRD_V}:{SRD_V+1}], s[4:5], 16
        s_load_dwordx2 s[{SRD_WO}:{SRD_WO+1}], s[4:5], 32
        s_load_dwordx2 s[{SRD_OUT}:{SRD_OUT+1}], s[0:1], 80
        s_load_dwordx2 s[{SRD_WS}:{SRD_WS+1}], s[0:1], 96
        v_lshlrev_b32 v{vL16}, 4, v0""")
    if P["code_pf"]:
        A("s_getpc_b64 s[22:23]\nL_pc:")
        A(f"""s_lshr_b32 s10, s2, 3
            s_lshl_b32 s10, s10, 11
            v_and_b32 v{t2}, 15, v0
            v_lshlrev_b32 v{t2}, 7, v{t2}
            v_add_u32 v{t2}, s10, v{t2}
            v_min_u32 v{t2}, CODE_SPAN, v{t2}
            s_sub_u32 s22, s22, CODE_BACK
            s_subb_u32 s23, s23, 0
            global_load_dword v{t5}, v{t2}, s[22:23]""")
    rest = mksrd(SRD_K, 14, SZ["k"]) + ops(f"""v_and_b32 v{t2}, 15, v0
        v_xor_b32 v{t2}, v{t2}, v{t0}
        v_lshlrev_b32 v{t2}, 4, v{t2}
        v_lshl_or_b32 v{vK}, v{t0}, 8, v{t2}
        v_xor_b32 v{vK+1}, 64, v{vK}
        v_xor_b32 v{vK+2}, 0x80, v{vK}
        v_xor_b32 v{vK+3}, 0xc0, v{vK}
        v_lshlrev_b32 v{t2}, 1, v{t0}
        v_xor_b32 v{t2}, v{t2}, v{t1}
        v_lshlrev_b32 v{t2}, 4, v{t2}
        v_lshl_or_b32 v{vV}, v{t4}, 8, v{t2}
        v_add_u32 v{vV+1}, 1024, v{vV}
        v_add_u32 v{vV+2}, 2048, v{vV}
        v_add_u32 v{vV+3}, 3072, v{vV}
        s_lshl_b32 s10, s{sRG}, 1
        s_lshr_b32 s11, s{sW}, 1
        s_add_u32 s10, s10, s11
        s_lshl_b32 s10, s10, 6
        s_lshl_b32 s11, s{sQ}, 3
        s_add_u32 s10, s10, s11
        s_lshl_b32 s11, s{sJ}, 1
        s_add_u32 s10, s10, s11
        s_and_b32 s11, s{sW}, 1
        s_add_u32 s10, s10, s11
        s_lshl_b32 s{sK0}, s10, 13
        s_lshr_b32 s{sPH}, s2, 3
        s_lshl_b32 s10, s{sRG}, 2
        s_add_u32 s10, s10, s{sW}
        s_lshl_b32 s10, s10, 2
        s_add_u32 s10, s10, s{sQ}
        s_lshl_b32 s{sV0}, s10, 16""") + mksrd(SRD_V, 16, SZ["v"]) + mksrd(SRD_WO, 20, SZ["wo"])
    rest += exchange_setup()
    rest += ops(f"""v_lshlrev_b32 v{vPF}, 7, v0
        v_min_u32 v{t2}, 23, v0
        v_mul_u32_u24 v{t3}, 86, v{t2}
        v_lshrrev_b32 v{t3}, 8, v{t3}
        v_mul_u32_u24 v{vPF2}, {1280 - 384}, v{t3}
        v_lshl_add_u32 v{vPF2}, v{t2}, 7, v{vPF2}
        s_lshl_b32 s10, s{sQ}, 5
        s_add_u32 s10, s10, s{sRG}
        s_lshl_b32 s10, s10, 2
        s_add_u32 s10, s10, s{sW}
        s_mul_i32 s10, s10, 10240
        s_mul_i32 s11, s{sJ}, 320
        s_and_b32 s11, s11, 0xffffff80
        s_add_u32 s{sTCH}, s10, s11
        v_mov_b32 v{t2}, {OOB}
        v_cmp_gt_u32 vcc, 3, v0
        s_nop 1
        v_cndmask_b32 v{vFL}, v{t2}, v{vPF}, vcc""")
    g1 = dma_w(1); nf = P["first"]; side = g1[:nf]; k = 0
    for i, o in enumerate(rest):
        A(o)
        if k < len(side) and (k + 1) * len(rest) <= (i + 1) * len(side): A(side[k]); k += 1
    A(side[k:])
    late = mksrd(SRD_OUT, 24, SZ["out"]) + ops(f"""s_mov_b32 s{sCT}, s{sJ}
        s_lshl_b32 s10, s{sRG}, 2
        s_add_u32 s10, s10, s{sW}
        s_mul_i32 s10, s10, {32*2560}
        s_mul_i32 s11, s{sBR}, 1280
        s_add_u32 s10, s10, s11
        s_mul_i32 s11, s{sCT}, 320
        s_add_u32 s10, s10, s11
        s_lshl_b32 s30, s{sQ}, 6
        s_add_u32 s{sOUT0}, s10, s30
        s_and_b32 s30, s{sQ}, 1
        s_mul_i32 s30, s30, {16*2560}
        s_add_u32 s10, s10, s30
        s_lshr_b32 s30, s{sQ}, 1
        s_lshl_b32 s30, s30, 5
        s_add_u32 s10, s10, s30
        s_add_u32 s{sOUT1}, s10, 256
        s_lshl_b32 s10, s{sQ}, 6
        s_add_u32 s10, s10, s{sW}
        s_mul_i32 s10, s10, {16*1280}
        s_add_u32 s{sWO0}, s10, s11
        s_mul_i32 s{sM5}, s{sW}, 5120
        s_add_u32 s10, s{sQ}, 1
        s_movk_i32 s11, 3277""")
    for q in range(5):
        late += ops(f"""v_add_u32 v{t0}, {64*q}, v0
            v_mul_u32_u24 v{t1}, s11, v{t0}
            v_lshrrev_b32 v{t1}, 16, v{t1}
            v_mul_u32_u24 v{t2}, 20, v{t1}
            v_sub_u32 v{t0}, v{t0}, v{t2}
            v_lshrrev_b32 v{t2}, 2, v{t0}
            v_add_u32 v{t3}, s10, v{t2}
            v_and_b32 v{t3}, 3, v{t3}
            v_cmp_gt_u32 vcc, 4, v{t2}
            v_and_b32 v{t0}, 3, v{t0}
            v_bfe_u32 v{t4}, v{t1}, 2, 1
            v_cndmask_b32 v{t2}, v{t2}, v{t3}, vcc
            v_lshlrev_b32 v{t4}, 1, v{t4}
            v_xor_b32 v{t0}, v{t0}, v{t4}
            v_lshlrev_b32 v{t0}, 4, v{t0}
            v_lshl_or_b32 v{t0}, v{t2}, 6, v{t0}
            v_mul_u32_u24 v{t1}, 1280, v{t1}
            v_add_u32 v{vWo+q}, v{t0}, v{t1}""")
        if q % 4: late.append(Op(f"v_subrev_u32 v{vWo+q}, {1024*(q%4)}, v{vWo+q}"))
    FA = 16384
    late += ops(f"""v_and_b32 v{t0}, 15, v0
        v_lshrrev_b32 v{t1}, 4, v0
        v_lshrrev_b32 v{t2}, 1, v{t1}
        v_bfe_u32 v{t3}, v0, 1, 2
        v_xor_b32 v{t3}, v{t3}, v{t2}
        v_lshlrev_b32 v{t3}, 4, v{t3}
        v_and_b32 v{t4}, 1, v{t1}
        v_lshl_or_b32 v{t3}, v{t4}, 3, v{t3}
        v_lshl_or_b32 v{t3}, v{t0}, 6, v{t3}
        s_add_u32 s10, s{sM4}, {FA}
        v_add_u32 v{vFA}, s10, v{t3}
        v_lshlrev_b32 v{t3}, 3, v{t1}
        v_lshl_or_b32 v{t3}, v{t0}, 5, v{t3}
        s_add_u32 s11, s10, 2048
        v_add_u32 v{vFA2}, s11, v{t3}
        v_add_u32 v{vFB2}, s11, v{vL16}
        v_lshrrev_b32 v{t0}, 2, v0
        v_and_b32 v{t1}, 3, v0
        v_bfe_u32 v{t2}, v0, 3, 2
        v_xor_b32 v{t2}, v{t2}, v{t1}
        v_lshlrev_b32 v{t2}, 4, v{t2}
        v_lshl_or_b32 v{t2}, v{t0}, 6, v{t2}
        v_add_u32 v{vFB}, s10, v{t2}
        v_mul_u32_u24 v{t0}, 2560, v{t0}
        v_lshl_or_b32 v{vOA}, v{t1}, 4, v{t0}
        v_add_u32 v{vOB}, {16*2560}, v{vOA}
        v_lshrrev_b32 v{t0}, 1, v0
        v_and_b32 v{t1}, 1, v0
        v_mul_u32_u24 v{t0}, 2560, v{t0}
        v_lshl_or_b32 v{t0}, v{t1}, 4, v{t0}
        v_mov_b32 v{t1}, {OOB}
        v_cmp_gt_u32 vcc, 32, v0
        v_add_u32 v{lZa}, s{sM4}, v{vL16}
        v_mov_b32 v{lID}, 0
        v_cndmask_b32 v{vOC}, v{t1}, v{t0}, vcc
        v_and_b32 v{t0}, 1, v0
        v_lshlrev_b32 v{t0}, 4, v{t0}
        v_mov_b32 v{t1}, 0x3f80
        v_lshlrev_b32 v{t0}, v{t0}, v{t1}
        v_lshrrev_b32 v{t1}, 4, v0
        v_bfe_u32 v{t2}, v0, 2, 2
        v_cmp_eq_u32 vcc, v{t1}, v{t2}
        v_mov_b32 v{lID+1}, 0
        v_and_b32 v{t2}, 3, v0
        v_cndmask_b32 v{t0}, v{lID}, v{t0}, vcc
        v_cmp_gt_u32 vcc, 2, v{t2}
        v_mov_b32 v{lID+4}, 0
        v_mov_b32 v{lID+5}, 0
        v_cndmask_b32 v{lID+2}, v{lID}, v{t0}, vcc
        v_cndmask_b32 v{lID+3}, v{t0}, v{lID}, vcc""")
    late += [Op(f"v_mov_b32 v{LZ+q}, 0") for q in range(20)] + [Op(f"v_mov_b32 v{LINC+12*q+10+e}, 0") for q in range(4) for e in range(2)]
    A("s_waitcnt lgkmcnt(0)")
    A(stamp("lstart", "l"))
    def lbar(*groups): return [Op("WAITG", group=g) for g in groups] + [BAR()]
    A(lbar(("W", 0))[:-1]); A(stamp("k3", "l")); A(BAR())
    clx = P["clx"]; vdma = dict(P["vdma"])
    def touch(dj):
        return ops(f"""s_add_u32 s{sT3}, s{sJ}, {dj}
            s_and_b32 s{sT3}, s{sT3}, 3
            s_mul_i32 s{sT3}, s{sT3}, {256*1280}
            s_add_u32 s{sT3}, s{sT3}, s{sTCH}
            buffer_load_dword v{t5}, v{vPF2}, s[{SRD_WO}:{SRD_WO+3}], s{sT3} offen""")
    def touch_v(hd):
        return ops(f"""s_lshl_b32 s{sT2}, s{sJ}, 14
            s_add_u32 s{sT2}, s{sT2}, s{sV0}
            s_add_u32 s{sT2}, s{sT2}, {hd*8192}
            buffer_load_dword v{t6}, v{vPF}, s[{SRD_V}:{SRD_V+3}], s{sT2} offen""")
    def piece(p):
        if p[0] == "T": return touch(int(p[1]))
        if p[0] == "U": return touch_v(int(p[1]))
        return [y for n in range(4 * int(p[1]), 4 * int(p[1]) + 4) for y in dma_k(n)]
    nl = len(late); parts = {1: late[:nl // 3], 5: late[nl // 3:2 * nl // 3], 10: late[2 * nl // 3:]}
    NV = P["nv"]; variants = []; lst = {}
    if NV > 1:
        A(f"s_and_b32 s10, s{sPH}, {NV-1}")
        for ph in range(1, NV): A(f"s_cmp_eq_u32 s10, {ph}\ns_cbranch_scc1 L_var{ph}")
    head = ls.ops
    for ph in range(NV):
        V_ = [Op(f"L_var{ph}:")]
        q_ = [(1, [Op(o.text, **o.meta) for o in it]) for it in g1[nf:]] + [(t, it) for t in range(2, 20) for it in dma_w(t)]
        quiet = set()
        for x in range(0, 20):
            cl_ = [y for pcs, xc in clx if xc + ph * P['phstep'] == x for p_ in pcs for y in piece(p_)]
            if cl_:
                quiet |= {x + d for d in P["skip"]}
            if not P["cend"]: V_ += cl_
            n = 0
            while q_ and q_[0][0] <= x + LA and (q_[0][0] <= x + 1 or (x not in quiet and (n < P["cap"] or x == 0))):
                V_ += q_.pop(0)[1]; n += 1
            if P["cend"]: V_ += cl_
            if x in parts: V_ += [Op(o.text, **o.meta) for o in parts[x]]
            if x == P["pfx"]: V_ += touch(0)
            if x in vdma:
                V_ += dma_v(vdma[x])
            V_ += lbar(("W", x + 1))
            if ph == 0: lst[x] = stamp(f"l{x}", "l")
            V_ += [Op(o.text) for o in lst[x]]
        fixed = []; cur = want = None
        for o in V_:
            if o.text.startswith("s_add_u32 m0"):
                cur = o.text
                if o.meta.get("wm0"): want = o.text
            if o.kind == "dma" and o.meta["group"][0] == "W" and cur is not None and cur != want: assert want; fixed.append(Op(want)); cur = want
            fixed.append(o)
        V_ = fixed
        V_.append(Op("s_branch L_join"))
        variants.append(V_)
    ls.ops = []
    A("L_join:")
    A(BAR())
    todo = [s_ for s_ in range(4) if s_ not in vdma.values()]
    early = [s_ for s_ in todo if s_ < 3]
    A(dma_wo(0))
    for s_ in early: A(dma_v(s_))
    A(dma_wo(1))
    A([Op("WAITL")] + lbar(("V", 0), ("Wo", 0)))
    A(stamp("m0", "l"))
    def pieces(L):
        out = [[]]
        for o in L:
            out[-1].append(o)
            if o.kind == "dma": out.append([])
        return out[:-1]
    q2 = []
    for x in range(0, NS):
        if x + 2 <= 15: q2 += [(x, x + 1, it) for it in pieces(dma_wo(x + 2))]
        if x + 3 <= 15 and (x >= 1 or 3 in todo): q2 += [(x, x + 2, it) for it in pieces(dma_v(x + 3))]
    quiet = {x + d for x in P["tch"] for d in P["skip2"]}
    for x in range(0, NS):
        n = 0
        while q2 and q2[0][0] <= x and (x == NS - 1 or any(e[1] <= x for e in q2) or (x not in quiet and n < P["cap2"])):
            A(q2.pop(0)[2]); n += 1
        if x in P["tch"]: A(touch(P["tch"][x]))
        A(stamp(f'd{x}', 'l'))
        g = [("V", x + 1), ("Wo", x + 1)] + ([("V", x + 2)] if x == NS - 1 else [])
        A(lbar(*g))
        A(stamp(f"m{x+1}", "l"))
    if NS + 2 <= 15: A(dma_wo(NS + 2))
    if NS + 3 <= 15: A(dma_v(NS + 3))
    if NF == 4:
        A(lbar(("V", 14), ("Wo", 13)))
        A(dma_wo(15)); A(lbar(("V", 15), ("Wo", 14)))
        A(lbar(("Wo", 15)))
    elif NF == 3: A(lbar(("V", 15), ("Wo", 14)) + lbar(("Wo", 15)))
    else: A(lbar(("V", 15), ("Wo", 15)))
    zrd = [Op(f"ds_read_b128 {v(LZC+4*q,4)}, v{lZa} offset:{q*1024}", use=[("S0", 290)]) for q in range(4)]
    if P["early"]:
        A(poll())
        A(need(1) + fetch(0, LINC) + [poll()])
        A(need(2) + fetch(1, LINC + 12) + addin(0, LINC))
        A(stamp("c1", "l"))
        A(BAR())
        A(fetch(3, LINC + 36) + [poll()]); A(zrd); A(addin(1, LINC + 12))
    else:
        A(BAR())
        A([poll()] + fetch(3, LINC + 36)); A(zrd)
        A(need(1) + fetch(0, LINC))
        A(need(2) + fetch(1, LINC + 12) + [poll()])
        A(stamp("c1", "l"))
        A(addin(0, LINC) + addin(1, LINC + 12))
    A(need(4) + fetch(2, LINC + 24) + addin(3, LINC + 36))
    A("s_nop 7")
    for q in range(16): A(f"v_add_f32 v{LZ+q}, v{LZ+q}, v{LZC+q}")
    A(f"v_xor_b32 v{t0}, 32, v{vFA}")
    A(addin(2, LINC + 24))
    A(stamp("c2", "l"))
    FK = [("S1", 300)]
    for nt in range(2):
        for jt in range(2):
            d = LPK + 4 * nt + 2 * jt; z = LZ + 8 * nt + 4 * jt
            A([cvt(d, z), cvt(d + 1, z + 2)])
            A(Op(f"ds_write_b64 v{t0 if nt else vFA}, {v(d,2)} offset:{jt*1024}", fill=FK, private=True))
    A([cvt(LPK + 8, LZ + 16), cvt(LPK + 9, LZ + 18), Op(f"ds_write_b64 v{vFA2}, {v(LPK+8,2)}", fill=FK, private=True)])
    A(Op(f"ds_read_b128 {v(LINC,4)}, v{vFB}", use=FK, private=True))
    A(Op(f"ds_read_b128 {v(LINC+4,4)}, v{vFB} offset:1024", use=FK, private=True))
    A(Op(f"ds_read_b128 {v(LINC+12,4)}, v{vFB2}", use=FK, private=True))
    A(f"buffer_store_dwordx4 {v(LINC,4)}, v{vOA}, {OUTR}, s{sOUT0} offen {P['out_mod']}")
    A(f"buffer_store_dwordx4 {v(LINC+4,4)}, v{vOB}, {OUTR}, s{sOUT0} offen {P['out_mod']}")
    A(f"buffer_store_dwordx4 {v(LINC+12,4)}, v{vOC}, {OUTR}, s{sOUT1} offen {P['out_mod']}")
    if P["dbg"]: A("s_waitcnt vmcnt(0)"); A(stamp("lend", "l"))
    A(dump())
    if P["x_amp"]:
        A(f"s_waitcnt vmcnt(0)\ns_memrealtime s[{sST}:{sST+1}]\ns_waitcnt lgkmcnt(0)\ns_sub_u32 s10, s{sST}, s{sST+4}\ns_mul_i32 s10, s10, {P['x_amp']}")
        A(f"L_amp:\ns_sleep 2\ns_memrealtime s[{sST}:{sST+1}]\ns_waitcnt lgkmcnt(0)\ns_sub_u32 s11, s{sST}, s{sST+4}\ns_cmp_lt_u32 s11, s10\ns_cbranch_scc1 L_amp")
    A("L_end:\ns_endpgm")

    A = cs.add
    A("L_compute:")
    A(ids)
    A(f"v_lshlrev_b32 v{vL16}, 4, v0")
    if P["prio_c"]: A(f"s_setprio {P['prio_c']}")
    l16, g, r, c4 = t0, t1, t2, t3
    u0, u1 = ABUF, ABUF + 1
    A(f"""v_and_b32 v{l16}, 15, v0
        v_lshrrev_b32 v{g}, 4, v0
        v_bfe_u32 v{r}, v0, 2, 2
        v_and_b32 v{c4}, 3, v0
        v_and_b32 v{t5}, 1, v{g}
        v_lshl_or_b32 v{t4}, v{t5}, 2, v{r}
        s_and_b32 s10, s{sW}, 1
        s_lshl_b32 s11, s10, 2
        v_lshl_add_u32 v{u0}, v{g}, 3, v{r}
        v_lshlrev_b32 v{u0}, 8, v{u0}
        v_lshl_or_b32 v{u0}, v{c4}, 3, v{u0}
        v_xor_b32 v{u1}, s11, v{t4}
        v_lshl_or_b32 v{aW}, v{u1}, 5, v{u0}
        v_xor_b32 v{aW+1}, 32, v{aW}
        v_xor_b32 v{aW+2}, 64, v{aW}
        v_xor_b32 v{aW+3}, 0x60, v{aW}
        v_lshrrev_b32 v{u1}, 1, v{l16}
        v_xor_b32 v{u1}, v{u1}, v{g}
        v_lshlrev_b32 v{u1}, 4, v{u1}
        v_lshl_or_b32 v{u1}, v{l16}, 7, v{u1}
        s_lshr_b32 s11, s{sW}, 1
        s_lshl_b32 s30, s11, 13
        s_add_u32 s{sT0}, s30, {XB}
        v_add_u32 v{aX}, s{sT0}, v{u1}
        v_xor_b32 v{aX+1}, 64, v{aX}
        s_lshl_b32 s10, s10, 11
        s_add_u32 s10, s10, s30
        s_add_u32 s10, s10, {PB}
        v_add_u32 v{vPW}, s10, v{vL16}
        s_add_u32 s10, s{sM4}, {PB}
        v_add_u32 v{vPR}, s10, v{vL16}
        v_add_u32 v{vZ}, s{sM4}, v{vL16}
        v_lshrrev_b32 v{u0}, 1, v{g}
        v_xor_b32 v{u0}, v{u0}, v{l16}
        v_lshlrev_b32 v{u0}, 4, v{u0}
        v_lshl_or_b32 v{u0}, v{t5}, 3, v{u0}
        v_lshl_or_b32 v{u0}, v{l16}, 8, v{u0}
        s_lshl_b32 s10, s{sM4}, 2
        s_add_u32 s10, s10, {KB}
        v_add_u32 v{u0}, s10, v{u0}
        v_mov_b32 v{kR}, v{u0}
        s_load_dwordx2 s[{SRD_DBG}:{SRD_DBG+1}], s[0:1], 88
        s_load_dwordx2 s[{SRD_WS}:{SRD_WS+1}], s[0:1], 96""")
    for q in range(1, 8): A(f"v_xor_b32 v{kR+q}, {32*q}, v{kR}")
    late_c = ops(f"""v_lshrrev_b32 v{t3}, 2, v0
        v_bfe_u32 v{t4}, v0, 3, 2
        v_lshlrev_b32 v{t4}, 5, v{t4}
        v_and_b32 v{t5}, 3, v0
        v_lshl_or_b32 v{t4}, v{t5}, 3, v{t4}
        v_lshl_or_b32 v{t4}, v{t3}, 7, v{t4}
        v_add_u32 v{aV}, s{sM4}, v{t4}
        v_xor_b32 v{aV+1}, 32, v{aV}
        v_xor_b32 v{aV+2}, 64, v{aV}
        v_xor_b32 v{aV+3}, 0x60, v{aV}
        v_mul_u32_u24 v{t3}, 320, v{t3}
        v_lshl_add_u32 v{t3}, v{t5}, 3, v{t3}
        v_add_u32 v{t3}, {WOB}, v{t3}
        v_bfe_u32 v{t5}, v0, 4, 1
        v_lshlrev_b32 v{t5}, 5, v{t5}
        v_add_u32 v{aWo}, v{t3}, v{t5}
        v_sub_u32 v{aWo+1}, v{t3}, v{t5}
        v_add_u32 v{aWo+2}, 61440, v{aWo}
        v_add_u32 v{aWo+3}, 61440, v{aWo+1}""")
    A(f"""s_mov_b32 s{sC}, {f2u(SCALE_LOG2E)}
        s_mov_b32 s{sC+1}, {f2u(SCALE_LOG2E)}
        s_waitcnt lgkmcnt(0)""")
    A(exchange_setup())
    cbar = lambda: [Op("WAITL"), BAR()]
    vNAN, vZERO = aWo, aV
    A(mksrd(SRD_DBG, 26, 256))
    A(f"""s_lshl_b32 s10, s{sW}, 3
        s_add_u32 s{sHS}, s{sJ}, s10
        s_lshr_b32 s{sT1}, s{sG}, 2
        s_lshl_b32 s{sT1}, s{sT1}, 4
        s_add_u32 s{sT0}, s{sPS}, 65536
        v_mov_b32 v{t2}, {OOB}
        v_cmp_gt_u32 vcc, 24, v0
        v_mov_b32 v{vNAN-1}, -1
        v_mov_b32 v{vNAN}, -1
        v_cndmask_b32 v{t3}, v{t2}, v{vL16}, vcc
        v_mov_b32 v{vNAN+1}, -1
        v_mov_b32 v{vNAN+2}, -1
        v_mov_b32 v{vZERO-1}, 0
        v_mov_b32 v{vZERO}, 0
        v_mov_b32 v{vZERO+1}, 0
        v_mov_b32 v{vZERO+2}, 0""")
    clears = [Op(f"buffer_store_dwordx4 {v(vNAN-1,4)}, v{vL16}, {WSR}, s{so} offen offset:{off} sc1", group="clr") for so in (sPS, sT0) for off in (0, 1024)]
    clears.append(Op(f"buffer_store_dwordx4 {v(vZERO-1,4)}, v{t3}, {WSR}, s{sFLM} offen sc1", group="clr"))

    def rdA1(t, i):
        s = t % 4; buf = ABUF + 8 * ((4 * t + i) % 3)
        return [Op(f"ds_read_b64_tr_b16 {v(buf+4*ss+2*h,2)}, v{aW+i} offset:{s*16384 + ss*8192 + h*1024}", use=[(f"S{s}", t)]) for ss in range(2) for h in range(2)]
    def rdB(kc):
        return [Op(f"ds_read_b128 {v(BB+32*(kc%2)+8*jt+4*ss,4)}, v{aX+ss} offset:{(kc%2)*16384 + jt*2048}", use=[(f"X{kc%2}", kc)]) for jt in range(4) for ss in range(2)]
    if P["clr"][0] < 0: A(clears)
    A(BAR())
    A(stamp("start"))
    b0 = rdB(0); a0 = rdA1(0, 0)
    A(a0[:2] + b0[:1] + a0[2:] + b0[1:] + rdA1(0, 1))
    T = Ticks()
    for t in range(20):
        kc, dh = t // 2, t % 2
        for i in range(4):
            buf = ABUF + 8 * ((4 * t + i) % 3)
            for jt in range(4):
                for ss in range(2):
                    d = ACC + 16 * (4 * dh + i) + 4 * jt
                    T.add(mfma(d, v(buf + 4 * ss, 4), v(BB + 32 * (kc % 2) + 8 * jt + 4 * ss, 4), "0" if (kc == 0 and ss == 0) else None))
                    if jt == 0 and ss == 0: T.m[-1].meta["also"] = range(buf, buf + 8)
    for t in range(20):
        b = 32 * t
        for q, o in enumerate(rdA1(t, 2)): T.put(b + q, o, 2)
        for q, o in enumerate(rdA1(t, 3)): T.put(b + 8 + q, o, 2)
        T.put(b + BP, cbar(), 1)
        if t < 19:
            for q, o in enumerate(rdA1(t + 1, 0)): T.put(b + BP + q, o, 2)
            for q, o in enumerate(rdA1(t + 1, 1)): T.put(b + 24 + q, o, 2)
            if t % 2 == 1:
                for pos, o in zip([BP + 4, BP + 5, BP + 6, 28, 29, 30, 31, 32], rdB((t + 1) // 2)): T.put(b + pos, o, 3)
        T.put(b + 31, stamp(f"w{t}"), 9)
    def qreg(sd, j4): return ACC + 32 * sd + 4 * j4
    def pack(d, e): return [cvt(d, d), cvt(d + 1, d + 2), cvt(d + 2, e), cvt(d + 3, e + 2)]
    def qcvt(sd, j4): return pack(qreg(sd, j4), qreg(sd, j4) + 16)
    def krd(b): return [Op(f"ds_read_b64 {v(BB+32*b+16*kt+4*sd+2*h,2)}, v{kR+2*sd+h} offset:{b*8192 + kt*4096}", use=[("K", 100), ("Kp", 100)]) for sd in range(4) for kt in range(2) for h in range(2)]
    b18, b19 = 32 * 18, 32 * 19
    c0, c1 = P["clr"]; assert c1 < P["hs0"] - 1
    if c0 < 0: pre_clears = clears
    else: T.spread(clears, 32 * c0 + 4, 32 * c1 + 4, 6)
    T.put(32 * (P["hs0"] - 1) + BP, Op("WAITG", group="clr"), 0.5)
    for q in range(4):
        T.put(32 * (P["hs0"] + q) + 5, [Op(f"s_cmp_lg_u32 s{sHS}, {q}"), Op(f"s_cbranch_scc1 L_hs{q}"),
              Op(f"buffer_atomic_add v{vONE}, v{vFL0}, {DBGR}, s{sT1} offen sc1", uncounted=True), Op(f"L_hs{q}:")], 7)
    T.put(32 * 16 + 5, [Op(f"s_cmp_lg_u32 s{sW}, 0"), Op("s_cbranch_scc1 L_hsl"),
          Op(f"buffer_load_dword v{t2}, v{vFL0}, {DBGR}, s{sT1} offen sc1", uncounted=True), Op("L_hsl:")], 7)
    T.put(b19 + BP, [Op(f"s_cmp_lg_u32 s{sW}, 0"), Op("s_cbranch_scc1 L_hsc"), Op("s_waitcnt vmcnt(0)", cond=True, raw=True),
          Op(f"v_readfirstlane_b32 s{sT3}, v{t2}", cond=True), Op("s_nop 1", cond=True), Op(f"s_cmp_lt_u32 s{sT3}, 16", cond=True, nohaz=True),
          Op("s_cbranch_scc1 L_hs_spin", cond=True), Op("L_hsc:")], 0.5)
    tail.extend(["L_hs_spin:", f"s_mov_b32 s{sSPIN}, 0", "L_hs_spin1:",
         f"buffer_load_dword v{t2}, v{vFL0}, {DBGR}, s{sT1} offen sc1", "s_waitcnt vmcnt(0)",
         f"v_readfirstlane_b32 s{sT3}, v{t2}", f"s_add_u32 s{sSPIN}, s{sSPIN}, 1", f"s_cmp_gt_u32 s{sSPIN}, 100000", "s_cbranch_scc1 L_hsc",
         f"s_cmp_lt_u32 s{sT3}, 16", "s_cbranch_scc1 L_hs_spin1", "s_branch L_hsc"])
    T.spread(late_c, 32 * 14, 32 * 14 + 15, 4)
    T.spread(krd(0), b18 + 4, b18 + 15, 4)
    T.spread([o for j4 in range(4) for o in qcvt(0, j4)], b18 + 20, b18 + 31, 5)
    T.spread([o for j4 in range(4) for o in qcvt(1, j4)], b19 + 4, b19 + 16, 5)
    T.spread([o for j4 in range(4) for o in qcvt(2, j4)], b19 + 20, b19 + 31, 5)
    T.flush(cs)
    A(stamp("g1"))

    def sreg(b, jt, kt): return ACC + 16 + 32 * b + 8 * jt + 4 * kt
    def softmax(b):
        tmp = ACC + 80 + 8 * b; pf = PF + 8 * b; L = []
        cols = [(sreg(b, c, 0), tmp + 4 * c) for c in range(2)]
        def both(f):
            for x, y in zip(f(*cols[0]), f(*cols[1])): L.extend([Op(x), Op(y)])
        (s0, m0_), (s1, m1_) = cols
        def across(op):
            L.extend(ops(f"""v_permlane32_swap_b32 v{m0_}, v{m1_}
                {op} v{m0_}, v{m0_}, v{m1_}
                v_mov_b32 v{m1_}, v{m0_}
                v_permlane16_swap_b32 v{m0_}, v{m1_}
                {op} v{m0_}, v{m0_}, v{m1_}"""))
        def spread_back(): L.extend(ops(f"v_mov_b32 v{m1_}, v{m0_}\nv_permlane32_swap_b32 v{m0_}, v{m1_}"))
        both(lambda s, m: [f"v_max3_f32 v{m}, v{s}, v{s+1}, v{s+2}", f"v_max3_f32 v{m+1}, v{s+3}, v{s+4}, v{s+5}",
                           f"v_max3_f32 v{m}, v{m}, v{s+6}, v{s+7}", f"v_max_f32 v{m}, v{m}, v{m+1}"])
        across("v_max_f32"); L.append(Op(f"v_mul_f32 v{m0_}, s{sC}, v{m0_}")); spread_back()
        both(lambda s, m: [f"v_pk_fma_f32 v[{s+q}:{s+q+1}], v[{s+q}:{s+q+1}], s[{sC}:{sC+1}], v[{m}:{m+1}] op_sel_hi:[1,1,0] neg_lo:[0,0,1] neg_hi:[0,0,1]" for q in range(0, 8, 2)])
        both(lambda s, m: [f"v_exp_f32 v{s+q}, v{s+q}" for q in range(8)])
        both(lambda s, m: [f"v_pk_add_f32 v[{m}:{m+1}], v[{s}:{s+1}], v[{s+2}:{s+3}]", f"v_pk_add_f32 v[{m+2}:{m+3}], v[{s+4}:{s+5}], v[{s+6}:{s+7}]",
                           f"v_pk_add_f32 v[{m}:{m+1}], v[{m}:{m+1}], v[{m+2}:{m+3}]", f"v_add_f32 v{m}, v{m}, v{m+1}"])
        across("v_add_f32"); L.append(Op(f"v_rcp_f32 v{m0_}, v{m0_}")); spread_back()
        both(lambda s, m: [f"v_pk_mul_f32 v[{s+q}:{s+q+1}], v[{s+q}:{s+q+1}], v[{m}:{m+1}] op_sel_hi:[1,0]" for q in range(0, 8, 2)])
        if b: L.append(Op(f"s_add_u32 s{sPS}, s{sPS}, 65536"))
        for c in range(2):
            for q in range(4): L.append(cvt(pf + 4 * c + q, cols[c][0] + 2 * q))
            L.append(Op(f"buffer_store_dwordx4 {v(pf+4*c,4)}, v{vL16}, {WSR}, s{sPS} offen offset:{1024*c} sc1"))
            L.append(Op(f"ds_write_b128 v{vPW}, {v(pf+4*c,4)} offset:{b*4096 + c*1024}", fill=[("P", 300), ("Kp", 300)]))
        return L
    T = Ticks()
    for b in range(2):
        for sd in range(4):
            for kt in range(2):
                for jt in range(2):
                    T.add(mfma(sreg(b, jt, kt), v(BB + 32 * b + 16 * kt + 4 * sd, 4), v(qreg(sd, 2 * b + jt), 4), "0" if sd == 0 else None))
    T.spread(krd(1), 0, 5, 2)
    T.spread([o for j4 in range(2) for o in qcvt(3, j4)], 1, 6, 3)
    T.spread([o for j4 in range(2, 4) for o in qcvt(3, j4)], 7, 12, 3)
    T.put(P["bk"], cbar(), 1)
    sm0 = softmax(0); sm1 = softmax(1)
    n0 = P['sm_in']; T.spread(sm0[:n0], 20, 31, 5)
    T.flush(cs)
    A(stamp("qk"))
    if P["smix"]:
        a_, b_ = sm0[n0:], sm1
        k_ = [i for i, o in enumerate(b_) if o.text.startswith("s_add_u32")][0]
        mix = a_[:4]; i_, j_ = 4, 0
        while i_ < len(a_) or j_ < len(b_):
            if j_ < len(b_) and (j_ < k_ or i_ >= len(a_)): mix.append(b_[j_]); j_ += 1
            if i_ < len(a_): mix.append(a_[i_]); i_ += 1
        A(mix)
    else: A(sm0[n0:]); A(stamp("sm0")); A(sm1)
    A(stamp("att"))

    def rdP(gen): return [Op(f"ds_read_b128 {v(PRB[0][2*hd+jt],4)}, v{vPR} offset:{hd*2048 + jt*1024}", use=[("P", gen)]) for hd in range(2) for jt in range(2)]
    def ldP(dj):
        return ops(f"s_add_u32 s{sT2}, s{sJ}, {dj}\ns_and_b32 s{sT2}, s{sT2}, 3\ns_lshl_b32 s{sT2}, s{sT2}, 12\ns_add_u32 s{sT2}, s{sT2}, s{sPL}") + \
            [Op(f"buffer_load_dwordx4 {v(PRB[dj%2][q],4)}, v{vL16}, {WSR}, s{sT2} offen offset:{1024*q} sc1") for q in range(4)]
    def rdV(s): return [Op(f"ds_read_b64_tr_b16 {v(VF+4*i+2*h,2)}, v{aV+i} offset:{(s%4)*16384 + h*2048}", use=[(f"S{s%4}", 200 + s)]) for i in range(4) for h in range(2)]
    def pvreg(s, i, jt):
        if s < NS + 1 or NF == 1: return PVB[s % 2] + 8 * i + 4 * jt
        return fin_regs[s][2 * i + jt]
    e0, e1 = PVB[NS % 2], PVB[(NS + 1) % 2]
    fin_regs = {NS + 1: [e1 + 4 * q for q in range(8)],
                NS + 2: [e0 + 8, e0 + 12, e1 + 8, e1 + 12, e0 + 24, e0 + 28, e1 + 24, e1 + 28],
                NS + 3: [e1 + 8, e1 + 12, PRB[0][0], PRB[0][1], e1 + 24, e1 + 28, PRB[0][2], PRB[0][3]]}
    def pvm(s): return [mfma(pvreg(s, i, jt), v(VF + 4 * i, 4), v(PRB[(s // 4) % 2][2 * ((s // 2) % 2) + jt], 4), "0") for i in range(4) for jt in range(2)]
    _pvm = pvm
    def pvm(s):
        L = _pvm(s); L[0].meta["also"] = range(VF, VF + 8); L[4].meta["also"] = range(VF + 8, VF + 16)
        return L
    def pvc(s): return [o for ss in range(2) for jt in range(2) for o in pack(pvreg(s, 2 * ss, jt), pvreg(s, 2 * ss + 1, jt))]
    nA = [0]
    def rdA2(s, t):
        k = s % 4; buf = A2 + 8 * (nA[0] % 4); nA[0] += 1
        ad = aWo + (t % 2) + (2 if k == 3 else 0); base = 0 if k == 3 else k * 20480
        return buf, [Op(f"ds_read_b64_tr_b16 {v(buf+4*ss+2*h,2)}, v{ad} offset:{base + ss*10240 + h*5120 + t*32}", use=[(f"Wo{k}", 200 + s)]) for ss in range(2) for h in range(2)]
    def owo(s, t, buf):
        L = [mfma(OUTA + 8 * t + 4 * jt, v(buf + 4 * ss, 4), v(pvreg(s, 2 * ss, jt), 4), "0" if (s == 0 and ss == 0) else None) for jt in range(2) for ss in range(2)]
        L[0].meta["also"] = range(buf, buf + 8)
        return L
    steps = [(s, t) for s in range(NS) for t in range(10)]
    order = [8, 9, 0, 1, 2, 3, 4, 5, 6, 7]
    steps += [(s, t) for s in range(NS, 16) for t in order[:2]] + [(s, t) for t in order[2:] for s in range(NS, 16)]
    rd = [rdA2(s, t) for s, t in steps]
    A(cbar())
    A(stamp("bp"))
    p0 = rdP(300)
    A(p0[:2] + rdV(0) + p0[2:] + rd[0][1])
    A(pvm(0)); A(rd[1][1] + rd[2][1]); A(pvc(0))
    T = Ticks(); at = []; pvat = {}
    for n, (s, t) in enumerate(steps):
        if (s < NS and t == 6) or (NS <= s < 15 and t == 8):
            pvat[s + 1] = len(T.m)
            for o in pvm(s + 1): T.add(o)
        at.append(len(T.m))
        for o in owo(s, t, rd[n][0]): T.add(o)
    fin0 = pvat[NS + 1]; BX = fin0 - 4
    BM = at[steps.index((13, 8))]
    BL2 = at[steps.index((15, 8)) - P["bl2"]] if NF >= 3 else BX
    for n in range(3, len(steps)):
        base = at[n - 3]
        if P["smooth"] and n < 10 * NS and steps[n][1] in (8, 9): base = pvat[steps[n][0] + 1] + 4 * (steps[n][1] - 8)
        if steps[n][0] > NS: base = max(base, BX)
        if steps[n][0] == 14 and NF == 4: base = max(base, BM)
        if steps[n][0] == 15: base = max(base, BL2)
        for q, o in enumerate(rd[n][1]): T.put(base + q, o, 2)
    for s in range(NS):
        b = at[10 * s]
        T.put(b + BP2, BAR(), 1)
        if P["smooth"]:
            T.spread(rdV(s + 1), b + BP2, b + BP2 + 7, 1.5)
            c_ = pvc(s + 1); T.spread(c_[:8], b + 31, b + 34, 4); T.spread(c_[8:], b + 35, b + 44, 4)
        else:
            T.spread(rdV(s + 1), b + BP2, b + BP2 + 3, 1.5)
            T.spread(pvc(s + 1), b + 35, b + 46, 4)
        T.put(b + 47, stamp(f"o{s}"), 9)
    T.put(BX, BAR(), 1)
    if NF == 4: T.put(BM, BAR(), 1)
    if NF >= 3: T.put(BL2, BAR(), 1)
    for s2 in range(NS + 1, 16):
        T.spread(rdV(s2), pvat[s2] - 8, pvat[s2] - 5, 1.6)
        T.spread(pvc(s2), pvat[s2] + 9, pvat[s2] + 15, 1.7)
    for dj in range(1, 4):
        ps, pt = P["pld"][dj - 1]; L = ldP(dj)
        T.spread([L[:5], L[5], L[6], L[7]], at[10 * ps] + pt, at[10 * ps] + pt + 6, 6)
        chk = arrived([r_ + e for r_ in PRB[dj % 2] for e in range(4)], ldP(dj), t0)
        b = at[10 * (4 * dj - 1)] + P["pchk"]
        T.spread(chk[:-4], b - 4, b - 1, 6); T.put(b, chk[-4:] + stamp(f"pc{dj}"), 6)
    end = len(T.m); flags = []
    def done(t): return at[steps.index((15, t))] + 3
    T.put(BX - 1, stamp("bx0"), 9); T.put(BX, stamp("bx1"), 1.1); T.put(BL2 - 1, stamp("bl0"), 9); T.put(BL2, stamp("bl1"), 1.1)
    for t_ in (9, 1, 3, 5): T.put(done(t_), stamp(f"f{t_}"), 9)
    L = []
    for m in range(4):
        L += [cvt(PK + 2 * m, OUTA + 64 + 4 * m), cvt(PK + 2 * m + 1, OUTA + 64 + 4 * m + 2),
              [Op(f"s_add_u32 s{sT2}, s{sRS}, {m*65536 + 2048}"), Op(f"buffer_store_dwordx2 {v(PK+2*m,2)}, v{vL8}, {WSR}, s{sT2} offen sc1", group=("R", -1))]]
    T.spread(L, done(9) + 3, done(9) + 8 * NF - 2, 4)
    for k in range(3):
        L = []; pk = SPARE if k % 2 == 0 else PK
        dest = f"s_add_u32 s{{0}}, s{sQ}, {k+1}\ns_and_b32 s{{0}}, s{{0}}, 3"
        for nt in range(2):
            for jt in range(2):
                z = OUTA + 8 * (2 * k + nt) + 4 * jt
                L += [cvt(pk + 4 * nt + 2 * jt, z), cvt(pk + 4 * nt + 2 * jt + 1, z + 2)]
            it = ops(dest.format(sT2) + f"\ns_lshl_b32 s{sT2}, s{sT2}, 16\ns_add_u32 s{sT3}, s{sT2}, s{sRS}") if nt == 0 else []
            L.append(it + [Op(f"buffer_store_dwordx4 {v(pk+4*nt,4)}, v{vL16}, {WSR}, s{sT3} offen offset:{1024*nt} sc1", group=("R", k))])
        T.spread(L[:5], done(2 * k) + 3, done(2 * k) + 2 * NF + 1, 4); T.spread(L[5:], done(2 * k + 1) + 3, done(2 * k + 1) + 2 * NF + 1, 4)
        fl = [Op("WAITG", group=("R", k))] + ops(dest.format(sT2) + f"\ns_lshl_b32 s{sT2}, s{sT2}, 11\ns_add_u32 s{sT2}, s{sT2}, s{sFLD}")
        fl.append(Op(f"buffer_store_dword v{vONE}, v{vFL0}, {WSR}, s{sT2} offen offset:{k*128} sc1"))
        tf = done(2 * k + 1) + 2 * NF + 1 + P["cover"]
        if tf < end: T.put(tf, fl, 6)
        else: flags.append(fl)
    T.flush(cs)
    A(stamp("g2"))
    zw = [Op(f"ds_write_b128 v{vZ}, {v(OUTA+48+4*q,4)} offset:{q*1024}", fill=[("S0", 290)], wpriv=True) for q in range(4)]
    A(flags[:-1]); A(zw); A(flags[-1:])
    A(cbar())
    A(stamp("end"))
    A(dump())
    A("s_endpgm")

    sc, sl = {}, {}
    def drop(st, pred): st.ops = [o for o in st.ops if not pred(o)]
    import re
    def hot(L):
        for name, srd_ in (("v", SRD_V), ("o", SRD_WO), ("k", SRD_K), ("w", SRD_WQ), ("x", SRD_X)):
            if name in P["x_hot"]:
                L = [Op(re.sub(r"\], s\d+ offen", "], 0 offen", o.text), **o.meta) if (o.kind in ("dma", "vld") and f"s[{srd_}:" in o.text) else o for o in L]
        return L
    if P['x_nost']: drop(cs, lambda o: o.kind == 'vst' and isinstance(o.meta.get('group'), tuple))
    clines = cs.finalize(sc); seg = []; nb = None
    for ph, V_ in enumerate(variants):
        lf = Stream(); lf.nocheck = True; lf.ops = hot(pro.ops + head + V_ + ls.ops)
        L = lf.finalize(sl); i0 = L.index(f"L_var{ph}:"); i1 = L.index("L_join:")
        seg.append((L[:i0], L[i0:i1], L[i1:]))
        assert seg[-1][0] == seg[0][0] and seg[-1][2] == seg[0][2]
        nb = check_handoffs([cs.events, lf.events]); assert nb[0] == nb[1], nb
    lines = seg[0][0] + [l for x in seg for l in x[1]] + seg[0][2] + tail + clines
    a = Asm(); kernel_begin(a, KNAME)
    for l in lines: a(l)
    a("L_code_end:")
    body = a.text().replace("CODE_SPAN", f"L_code_end-{KNAME}-4").replace("CODE_BACK", f"L_pc-{KNAME}")
    write_file(path, ["; @launch grid=(256,1,1) block=(512,1,1) lds=163840"], body, [descriptor(KNAME, 256, 256)])
    return sc, sl, nb

if __name__ == "__main__":
    out = sys.argv[1] if len(sys.argv) > 1 else f"cdna_kernels/{NAME}.s"
    kw = {}
    for x in sys.argv[2:]:
        k, val = x.split("=", 1)
        try: val = eval(val)
        except Exception: pass
        kw[k] = val
    print(build(out, **kw))
```

```python
import sys, struct
from common import *
from ops import Op, Stream, check_handoffs

def f2u(f): return struct.unpack("<I", struct.pack("<f", f))[0]
SCALE_LOG2E = 128 ** -0.5 * 1.4426950408889634
KNAME = NAME + "_kernel"

DEF = dict(
    nt_w="", nt_x="", nt_k="nt", nt_v="", nt_wo="", bpos=17, bpos2=15, code_pf=1, dbg=0, rot=1, xrot=1, flip=0,
    stamps=("start", "g1", "att", "g2", "end"), lstamps=(),
    clx=((('K0', 'K1'), 3), (('K2', 'K3'), 9)), tch={0: 1, 4: 2, 8: 3}, skip2=(1,), cap2=11, nv=4, vdma={17: 0, 18: 1}, x_hot='', cend=1, skip=(1,), cap=8, phstep=1, clr=(2, 6), bal=0, first=4, prio_l=0, prio_c=0, la=3, pfx=15, smooth=1, sm_in=16, smix=1, bk=8, nf=4, bl2=2, pld=((2, 8), (5, 8), (9, 8)), pchk=20, hs0=8, bt0=None, bt1=16, x_nost=0,
    out_mod="sc1", ntlast=0, x_amp=0, x_nomfma=0, x_nodma=0,
)

WS_R = 0
WS_P = 16 << 20
WS_FL = 20 << 20
WS_DBG = 32 << 20
OOB = 0x40000000

XB, KB = 65536, 98304
WOB, PB = 65536, 147456

sW, sJ, sRG, sG, sBR = 3, 6, 7, 8, 9
sFLIP, sPH, sKC, sQ = 32, 33, 34, 35
SRD_X, SRD_K, SRD_V, SRD_WQ, SRD_WO, SRD_OUT, SRD_DBG, SRD_WS = 36, 40, 44, 48, 52, 56, 60, 64
sWQ0, sX0, sK0, sV0, sWO0, sM4, sM5 = 68, 69, 70, 71, 72, 73, 74
sT0, sT1, sT2, sT3 = 75, 76, 77, 78
sRS, sRL, sPS, sFLD, sPL, sC, sHS, sCT, sFLM = 79, 80, 81, 82, 83, 84, 89, 86, 98
sSPIN = 88
sOUT0, sOUT1 = 90, 91
sTCH = 87
sST = 92
WSR = f"s[{SRD_WS}:{SRD_WS+3}]"; DBGR = f"s[{SRD_DBG}:{SRD_DBG+3}]"; OUTR = f"s[{SRD_OUT}:{SRD_OUT+3}]"

vL16, vL8, vFL0, vONE, vL4 = 28, 29, 30, 31, 27
vT = 33
aW, aX, kR = 1, 5, 7
vPW, vPR, vZ = 15, 16, 17
aWo, aV = 19, 23
ABUF = 40; BB = 64; ACC = 128
PF = 40
OUTA = 176
PVB = [112, 144]
VF = 96
A2 = 64
PRB = [[40, 44, 48, 52], [56, 60, 2, 6]]
SPARE = 56
PK = 2
vW, vX, vK, vV, vWo = 1, 5, 9, 13, 17
vFLAG = 32
vFL = 22
lID = 40
lZa, vFA, vFA2, vFB, vFB2, vOA, vOB, vOC, vPF, vPF2, lZm = 46, 47, 48, 49, 50, 51, 52, 53, 54, 55, 56
LINC = 64
LCK = 60
LZ = 112
LZC = 132
LPK = 152
VP = 192
vVW = 56

def v(b, n=1): return vr(b, n)
def mfma(d, A, B, C=None): return Op(f"v_mfma_f32_16x16x32_bf16 {v(d,4)}, {A}, {B}, {v(d,4) if C is None else C}")
def cvt(d, s0): return Op(f"v_cvt_pk_bf16_f32 v{d}, v{s0}, v{s0+1}")
def ops(text): return [Op(x) for x in text.split("\n") if x.strip()]

class Ticks:
    def __init__(self): self.m = []; self.f = []
    def add(self, op): self.m.append(op); self.f.append([]); return len(self.m) - 1
    def put(self, t, o, prio=5):
        if not isinstance(o, (list, tuple)): o = [o]
        self.f[t].append((prio, len(self.f[t]), [Op(x) if isinstance(x, str) else x for x in o]))
    def spread(self, items, t0, t1, prio=5):
        n = len(items)
        for q, it in enumerate(items): self.put(t0 + (q * (t1 - t0 + 1)) // n, it, prio)
    def flush(self, st):
        for m, f in zip(self.m, self.f):
            st.add(m)
            for _, _, o in sorted(f, key=lambda x: (x[0], x[1])): st.add(o)

def weave(st, main, side, first=0):
    n, m = len(main), len(side); k = 0
    for i, o in enumerate(main):
        st.add(o)
        while k < m and i >= first and (k + 1) * (n - first) <= (i + 1 - first) * m: st.add(side[k]); k += 1
    while k < m: st.add(side[k]); k += 1

def build(path, **kw):
    P = dict(DEF); P.update(kw)
    BP, BP2, LA, NF = P["bpos"], P["bpos2"], P["la"], P["nf"]
    NS = 16 - NF
    tail = []
    pro = Stream(); cs = Stream(); ls = Stream()
    for s in (pro, cs, ls): s.nocheck = True
    t0, t1, t2, t3, t4, t5, t6 = range(vT, vT + 7)
    nst = {"c": 0, "l": 0}
    def stamp(name, role="c"):
        if not P["dbg"] or name not in P["stamps" if role == "c" else "lstamps"]: return []
        nst[role] += 1; i = nst[role]; assert i <= 13
        return [Op(f"s_memtime s[{sST}:{sST+1}]"), Op("s_waitcnt lgkmcnt(0)"), Op(f"s_mov_b32 s{sreg_(i)}, s{sST}")]
    def sreg_(i): return {1: 99, 2: 100, 3: 101}.get(i, 12 + i)
    def dump():
        if not P["dbg"]: return []
        L = ops(f"""s_waitcnt vmcnt(0)
            s_memrealtime s[{sST}:{sST+1}]
            s_waitcnt lgkmcnt(0)
            v_writelane_b32 v{t6}, s{sST+2}, 0
            v_writelane_b32 v{t6}, s{sST}, 15
            v_writelane_b32 v{t6}, s{sST+4}, 14""")
        L += [Op(f"v_writelane_b32 v{t6}, s{sreg_(i)}, {i}") for i in range(1, 14)]
        L += ops(f"""s_lshl_b32 s{sT2}, s2, 3
            s_add_u32 s{sT2}, s{sT2}, s31
            s_lshl_b32 s{sT2}, s{sT2}, 8
            s_add_u32 s{sT2}, s{sT2}, {WS_DBG}
            v_lshlrev_b32 v{t0}, 2, v0
            buffer_store_dword v{t6}, v{t0}, {WSR}, s{sT2} offen""")
        return L
    BAR = lambda: Op("s_barrier")
    def mksrd(dst, ptr, n): return ops(f"s_mov_b32 s{dst+2}, {n}\ns_mov_b32 s{dst+3}, 0x00020000")
    def mod10(x, tmp): return f"s_sub_u32 s{tmp}, s{x}, 10\ns_min_u32 s{x}, s{x}, s{tmp}"
    def wo_regions(k):
        lo, hi = WOB + 20480 * k, WOB + 20480 * (k + 1); r = [f"Wo{k}"]
        if lo < XB + 16384: r.append("X0")
        if lo < KB and hi > XB + 16384: r.append("X1")
        if hi > KB: r.append("K")
        return r

    A = pro.add
    A("s_cmp_ge_u32 s2, 256\ns_cbranch_scc1 L_end")
    if P["dbg"] or P["x_amp"]: A(f"s_memtime s[{sST+2}:{sST+3}]\ns_memrealtime s[{sST+4}:{sST+5}]")
    A(f"""v_lshrrev_b32 v{t0}, 6, v0
        s_bfe_u32 s{sBR}, s2, 0x10002
        v_readfirstlane_b32 s31, v{t0}
        s_mul_i32 s10, s{sBR}, 40
        v_and_b32 v0, 63, v0
        s_add_u32 s4, s0, s10
        s_addc_u32 s5, s1, 0
        s_cmp_lt_u32 s31, 4
        s_cbranch_scc1 L_compute""")
    ids = f"""s_and_b32 s{sQ}, s2, 3
        s_bfe_u32 s{sJ}, s2, 0x20003
        s_lshr_b32 s{sRG}, s2, 5
        s_and_b32 s{sW}, s31, 3
        s_lshl_b32 s{sM4}, s{sW}, 12"""

    def exchange_setup():
        return mksrd(SRD_WS, 28, 268435456) + ops(f"""s_lshl_b32 s10, s{sBR}, 3
            s_add_u32 s10, s10, s{sRG}
            s_lshl_b32 s{sG}, s10, 2
            s_add_u32 s{sG}, s{sG}, s{sJ}
            s_lshl_b32 s10, s{sG}, 18
            s_add_u32 s10, s10, s{sM4}
            s_lshl_b32 s11, s{sQ}, 14
            s_add_u32 s{sRS}, s10, s11
            s_lshl_b32 s11, s{sQ}, 16
            s_add_u32 s{sRL}, s10, s11
            s_lshl_b32 s10, s{sBR}, 3
            s_add_u32 s10, s10, s{sRG}
            s_lshl_b32 s10, s10, 7
            s_lshl_b32 s11, s{sQ}, 3
            s_add_u32 s10, s10, s11
            s_lshl_b32 s11, s{sW}, 5
            s_add_u32 s11, s11, s10
            s_lshl_b32 s11, s11, 11
            s_add_u32 s{sPL}, s11, {WS_P}
            s_lshr_b32 s11, s{sW}, 1
            s_lshl_b32 s11, s11, 6
            s_add_u32 s10, s10, s11
            s_lshl_b32 s11, s{sJ}, 1
            s_add_u32 s10, s10, s11
            s_and_b32 s11, s{sW}, 1
            s_add_u32 s10, s10, s11
            s_lshl_b32 s10, s10, 11
            s_add_u32 s{sPS}, s10, {WS_P}
            s_lshl_b32 s10, s{sG}, 14
            s_lshl_b32 s11, s{sW}, 10
            s_add_u32 s10, s10, s11
            s_add_u32 s{sFLD}, s10, {WS_FL}
            s_lshl_b32 s11, s{sQ}, 12
            s_add_u32 s{sFLM}, s{sFLD}, s11
            v_mov_b32 v{t0}, {OOB}
            v_cmp_eq_u32 vcc, 0, v0
            v_mov_b32 v{t2}, 0
            v_mov_b32 v{vONE}, 1
            v_cndmask_b32 v{vFL0}, v{t0}, v{t2}, vcc
            v_lshlrev_b32 v{vL8}, 3, v0
            v_lshlrev_b32 v{vL4}, 2, v0""")

    A = ls.add
    def dma(vo, srd_, so, q, mod, g, fill): return Op(f"buffer_load_dwordx4 v{vo}, s[{srd_}:{srd_+3}], s{so} offen offset:{(q%4)*1024} {mod} lds", group=g, fill=fill)
    def dma_w(t):
        kc, dh = t // 2, t % 2; s = t % 4; g = ("W", t); items = []
        if dh == 0:
            for q in range(4):
                it = []
                if q == 0:
                    if kc: it += [Op(f"s_add_u32 s{sKC}, s{sKC}, 1"), Op(f"s_cmp_eq_u32 s{sKC}, 10"), Op(f"s_cselect_b32 s{sKC}, 0, s{sKC}")]
                    it += [Op(f"s_lshl_b32 s{sT1}, s{sKC}, 7"), Op(f"s_add_u32 s{sT1}, s{sT1}, s{sX0}"),
                           Op(f"s_lshl_b32 s{sT0}, s{sKC}, 19"), Op(f"s_add_u32 s{sT0}, s{sT0}, s{sWQ0}"),
                           Op(f"s_add_u32 m0, s{sM4}, {XB + (kc%2)*16384}", wm0=True)]
                it.append(dma(vX + q, SRD_X, sT1, q, "nt" if t >= 20 - P["ntlast"] else P["nt_x"], g, [(f"X{kc%2}", kc)]))
                items.append(it)
        for q in range(4):
            it = []
            if q == 0:
                if dh == 1: it.append(Op(f"s_xor_b32 s{sT0}, s{sT0}, 128"))
                it.append(Op(f"s_add_u32 m0, s{sM4}, {16384*s}", wm0=True))
            it.append(dma(vW + q, SRD_WQ, sT0, q, "nt" if t >= 20 - P["ntlast"] else P["nt_w"], g, [(f"S{s}", t)]))
            items.append(it)
        return items
    def dma_k(n):
        it = []
        if n % 4 == 0:
            it += [Op(f"s_add_u32 s{sT2}, s{sK0}, {(n//8)*262144 + ((n%8)//4)*4096}"), Op(f"s_lshl_b32 s{sT3}, s{sM4}, 2"),
                   Op(f"s_add_u32 m0, s{sT3}, {KB + (n//4)*4096}")]
        it.append(dma(vK + n % 4, SRD_K, sT2, n, P["nt_k"], ("K", 0), [("K", 100), ("Kp", 100)]))
        return it
    def head_ops(s, dst): return [Op(f"s_lshl_b32 s{dst}, s{sJ}, 1"), Op(f"s_add_u32 s{dst}, s{dst}, {s//2}"), Op(f"s_and_b32 s{dst}, s{dst}, 7")]
    def dma_v(s):
        L = head_ops(s, sT2) + [Op(f"s_lshl_b32 s{sT2}, s{sT2}, 13"), Op(f"s_add_u32 s{sT2}, s{sT2}, s{sV0}")]
        if s % 2: L.append(Op(f"s_add_u32 s{sT2}, s{sT2}, 128"))
        L.append(Op(f"s_add_u32 m0, s{sM4}, {16384*(s%4)}"))
        return L + [dma(vV + q, SRD_V, sT2, q, P["nt_v"], ("V", s), [(f"S{s%4}", 200 + s)]) for q in range(4)]
    def dma_wo(s):
        k = s % 4; fill = [(r, 200 + s) for r in wo_regions(k)]
        L = head_ops(s, sT2) + [Op(f"s_mul_i32 s{sT2}, s{sT2}, {128*1280}"), Op(f"s_add_u32 s{sT2}, s{sT2}, s{sWO0}")]
        if s % 2: L.append(Op(f"s_add_u32 s{sT2}, s{sT2}, {64*1280}"))
        for q in range(5):
            if q % 4 == 0: L.append(Op(f"s_add_u32 m0, s{sM5}, {WOB + 20480*k + 1024*q}"))
            L.append(dma(vWo + q, SRD_WO, sT2, q, P["nt_wo"], ("Wo", s), fill))
        return L
    nlab = [0]
    def arrived(regs, reload, tmp):
        k = nlab[0]; nlab[0] += 1; regs = list(regs); L = []
        L.append(f"v_max3_u32 v{tmp}, v{regs[0]}, v{regs[1]}, v{regs[2]}")
        rest_ = regs[3:]
        while len(rest_) >= 2: L.append(f"v_max3_u32 v{tmp}, v{tmp}, v{rest_[0]}, v{rest_[1]}"); rest_ = rest_[2:]
        if rest_: L.append(f"v_max_u32 v{tmp}, v{tmp}, v{rest_[0]}")
        L.append(f"v_cmp_eq_u32 vcc, -1, v{tmp}")
        tail.extend([f"L_spin{k}:", f"s_mov_b32 s{sSPIN}, 0", f"L_spin{k}a:"] + [o.text for o in reload] + ["s_waitcnt vmcnt(0)"] + L +
                    [f"s_add_u32 s{sSPIN}, s{sSPIN}, 1", f"s_cmp_gt_u32 s{sSPIN}, 50000", f"s_cbranch_scc1 L_back{k}",
                     f"s_cbranch_vccnz L_spin{k}a", f"s_branch L_back{k}"])
        return [Op(x) for x in L] + [Op("s_nop 0"), Op(f"s_cbranch_vccnz L_spin{k}"), Op(f"L_back{k}:")]
    def checksum(dst, regs):
        L = [f"v_add3_u32 v{dst}, v{regs[0]}, v{regs[1]}, v{regs[2]}"]; regs = list(regs[3:])
        while len(regs) >= 2: L.append(f"v_add3_u32 v{dst}, v{dst}, v{regs[0]}, v{regs[1]}"); regs = regs[2:]
        if regs: L.append(f"v_add_u32 v{dst}, v{dst}, v{regs[0]}")
        return [Op(x) for x in L + [f"v_or_b32 v{dst}, 1, v{dst}"]]
    def verified(k, r):
        n = nlab[0]; nlab[0] += 1
        L = checksum(t1, range(r, r + 10)) + [Op(f"v_cmp_ne_u32 vcc, v{t1}, v{LCK+k}")]
        tail.extend([f"L_spin{n}:", f"s_mov_b32 s{sSPIN}, 0", f"L_spin{n}a:"] + [o.text for o in fetch(k, r)] + ["s_waitcnt vmcnt(0)"] + [o.text for o in L] +
                    [f"s_add_u32 s{sSPIN}, s{sSPIN}, 1", f"s_cmp_gt_u32 s{sSPIN}, 50000", f"s_cbranch_scc1 L_back{n}",
                     f"s_cbranch_vccnz L_spin{n}a", f"s_branch L_back{n}"])
        return L + [Op("s_nop 0"), Op(f"s_cbranch_vccnz L_spin{n}"), Op(f"L_back{n}:")]
    def fetch(k, r):
        L = ops(f"s_add_u32 s{sT2}, s{sQ}, {3 - k + 4}\ns_and_b32 s{sT2}, s{sT2}, 3\ns_lshl_b32 s{sT2}, s{sT2}, 14\ns_add_u32 s{sT2}, s{sT2}, s{sRL}")
        if k < 3: L += [Op(f"buffer_load_dword v{LCK+k}, v{vL4}, {WSR}, s{sFLM} offen offset:{256*k} sc1")] + [Op(f"buffer_load_dwordx4 {v(r+4*nt,4)}, v{vL16}, {WSR}, s{sT2} offen offset:{1024*nt} sc1") for nt in range(2)]
        return L + [Op(f"buffer_load_dwordx2 {v(r+8,2)}, v{vL8}, {WSR}, s{sT2} offen offset:2048 sc1")]
    def addin(k, r):
        L = []
        if k < 3:
            for nt in range(2):
                for jt in range(2): L.append(mfma(LZ + 8 * nt + 4 * jt, v(lID + 2 - 2 * jt, 4), v(r + 4 * nt, 4)))
        return L + [mfma(LZ + 16, v(lID + 2, 4), v(r + 8, 4))]

    A(f"s_load_dwordx2 s[{SRD_X}:{SRD_X+1}], s[4:5], 0\ns_load_dwordx2 s[{SRD_WQ}:{SRD_WQ+1}], s[4:5], 24")
    if P["prio_l"]: A(f"s_setprio {P['prio_l']}")
    A(ids)
    xr = P["xrot"]
    A(f"""s_mul_i32 s{sKC}, s{sRG}, 5
        v_lshrrev_b32 v{t0}, 4, v0
        s_mul_i32 s10, s{sJ}, 5
        v_lshrrev_b32 v{t4}, 3, v0
        s_lshr_b32 s{sKC}, s{sKC}, 2
        v_and_b32 v{t1}, 7, v0
        s_lshr_b32 s10, s10, 1
        v_mul_u32_u24 v{t2}, 1280, v{t4}
        s_add_u32 s{sKC}, s{sKC}, s10
        v_xor_b32 v{t3}, v{t1}, v{t0}
        s_add_u32 s{sKC}, s{sKC}, {'s%d' % sQ if xr else 0}
        v_lshl_add_u32 v{vX}, v{t3}, 4, v{t2}
        {mod10(sKC, 30)}
        v_xor_b32 v{t3}, 4, v{t3}
        s_lshl_b32 s10, s{sRG}, 2
        v_lshl_add_u32 v{vX+1}, v{t3}, 4, v{t2}
        s_add_u32 s10, s10, s{sW}
        v_add_u32 v{vX+2}, {2*9216}, v{vX}
        s_mul_i32 s{sX0}, s10, 40960
        v_add_u32 v{vX+3}, {3*9216}, v{vX+1}
        s_mov_b32 s{SRD_X+2}, {SZ['x']}
        v_add_u32 v{vX+1}, 9216, v{vX+1}
        s_mov_b32 s{SRD_X+3}, 0x00020000""")
    assert xr in (0, 1)
    if not P["rot"]: A(f"s_mov_b32 s{sKC}, 0")
    wsetup = ops(f"""v_bfe_u32 v{t3}, v0, 1, 3
        s_lshl_b32 s10, s{sQ}, 2
        v_xor_b32 v{t3}, v{t3}, v{t0}
        s_add_u32 s10, s10, s{sJ}
        v_and_b32 v{t2}, 4, v{t3}
        s_lshl_b32 s{sWQ0}, s10, 9
        v_and_b32 v{t3}, 3, v{t3}
        s_lshl_b32 s10, s{sW}, 17
        v_lshlrev_b32 v{t2}, 6, v{t2}
        s_add_u32 s{sWQ0}, s{sWQ0}, s10
        v_lshl_or_b32 v{t3}, v{t3}, 5, v{t2}
        s_lshl_b32 s{sT0}, s{sKC}, 19
        v_and_b32 v{t2}, 1, v0
        s_add_u32 s{sT0}, s{sT0}, s{sWQ0}
        v_lshl_or_b32 v{t3}, v{t2}, 4, v{t3}
        s_mov_b32 s{SRD_WQ+2}, {SZ['wq']}
        v_lshl_or_b32 v{vW}, v{t0}, 13, v{t3}
        s_mov_b32 s{SRD_WQ+3}, 0x00020000
        v_add_u32 v{vW+1}, {32768 - 1024}, v{vW}
        v_xor_b32 v{vW+2}, 0x100, v{vW}
        v_add_u32 v{vW+3}, {3*(32768 - 1024)}, v{vW+2}
        v_add_u32 v{vW+2}, {2*(32768 - 1024)}, v{vW+2}""")
    A(stamp("k0", "l"))
    w0 = dma_w(0); w0[0] = [o for o in w0[0] if f"s{sT0}," not in o.text]
    A(w0[:1]); A(stamp("k1", "l")); A(w0[1:4]); A(wsetup); A(w0[4:]); A(stamp("k2", "l"))
    A(f"""s_load_dwordx2 s[{SRD_K}:{SRD_K+1}], s[4:5], 8
        s_load_dwordx2 s[{SRD_V}:{SRD_V+1}], s[4:5], 16
        s_load_dwordx2 s[{SRD_WO}:{SRD_WO+1}], s[4:5], 32
        s_load_dwordx2 s[{SRD_OUT}:{SRD_OUT+1}], s[0:1], 80
        s_load_dwordx2 s[{SRD_WS}:{SRD_WS+1}], s[0:1], 96
        v_lshlrev_b32 v{vL16}, 4, v0""")
    if P["code_pf"]:
        A("s_getpc_b64 s[22:23]\nL_pc:")
        A(f"""s_lshr_b32 s10, s2, 3
            s_lshl_b32 s10, s10, 11
            v_and_b32 v{t2}, 15, v0
            v_lshlrev_b32 v{t2}, 7, v{t2}
            v_add_u32 v{t2}, s10, v{t2}
            v_min_u32 v{t2}, CODE_SPAN, v{t2}
            s_sub_u32 s22, s22, CODE_BACK
            s_subb_u32 s23, s23, 0
            global_load_dword v{t5}, v{t2}, s[22:23]""")
    rest = mksrd(SRD_K, 14, SZ["k"]) + ops(f"""v_and_b32 v{t2}, 15, v0
        v_xor_b32 v{t2}, v{t2}, v{t0}
        v_lshlrev_b32 v{t2}, 4, v{t2}
        v_lshl_or_b32 v{vK}, v{t0}, 8, v{t2}
        v_xor_b32 v{vK+1}, 64, v{vK}
        v_xor_b32 v{vK+2}, 0x80, v{vK}
        v_xor_b32 v{vK+3}, 0xc0, v{vK}
        v_lshlrev_b32 v{t2}, 1, v{t0}
        v_xor_b32 v{t2}, v{t2}, v{t1}
        v_lshlrev_b32 v{t2}, 4, v{t2}
        v_lshl_or_b32 v{vV}, v{t4}, 8, v{t2}
        v_add_u32 v{vV+1}, 1024, v{vV}
        v_add_u32 v{vV+2}, 2048, v{vV}
        v_add_u32 v{vV+3}, 3072, v{vV}
        s_lshl_b32 s10, s{sRG}, 1
        s_lshr_b32 s11, s{sW}, 1
        s_add_u32 s10, s10, s11
        s_lshl_b32 s10, s10, 6
        s_lshl_b32 s11, s{sQ}, 3
        s_add_u32 s10, s10, s11
        s_lshl_b32 s11, s{sJ}, 1
        s_add_u32 s10, s10, s11
        s_and_b32 s11, s{sW}, 1
        s_add_u32 s10, s10, s11
        s_lshl_b32 s{sK0}, s10, 13
        s_lshr_b32 s{sPH}, s2, 3
        s_lshl_b32 s10, s{sRG}, 2
        s_add_u32 s10, s10, s{sW}
        s_lshl_b32 s10, s10, 2
        s_add_u32 s10, s10, s{sQ}
        s_lshl_b32 s{sV0}, s10, 16""") + mksrd(SRD_V, 16, SZ["v"]) + mksrd(SRD_WO, 20, SZ["wo"])
    rest += exchange_setup()
    rest += ops(f"""v_lshlrev_b32 v{vPF}, 7, v0
        v_min_u32 v{t2}, 23, v0
        v_mul_u32_u24 v{t3}, 86, v{t2}
        v_lshrrev_b32 v{t3}, 8, v{t3}
        v_mul_u32_u24 v{vPF2}, {1280 - 384}, v{t3}
        v_lshl_add_u32 v{vPF2}, v{t2}, 7, v{vPF2}
        s_lshl_b32 s10, s{sQ}, 5
        s_add_u32 s10, s10, s{sRG}
        s_lshl_b32 s10, s10, 2
        s_add_u32 s10, s10, s{sW}
        s_mul_i32 s10, s10, 10240
        s_mul_i32 s11, s{sJ}, 320
        s_and_b32 s11, s11, 0xffffff80
        s_add_u32 s{sTCH}, s10, s11
        s_nop 0""")
    g1 = dma_w(1); nf = P["first"]; side = g1[:nf]; k = 0
    for i, o in enumerate(rest):
        A(o)
        if k < len(side) and (k + 1) * len(rest) <= (i + 1) * len(side): A(side[k]); k += 1
    A(side[k:])
    late = mksrd(SRD_OUT, 24, SZ["out"]) + ops(f"""s_mov_b32 s{sCT}, s{sJ}
        s_lshl_b32 s10, s{sRG}, 2
        s_add_u32 s10, s10, s{sW}
        s_mul_i32 s10, s10, {32*2560}
        s_mul_i32 s11, s{sBR}, 1280
        s_add_u32 s10, s10, s11
        s_mul_i32 s11, s{sCT}, 320
        s_add_u32 s10, s10, s11
        s_lshl_b32 s30, s{sQ}, 6
        s_add_u32 s{sOUT0}, s10, s30
        s_and_b32 s30, s{sQ}, 1
        s_mul_i32 s30, s30, {16*2560}
        s_add_u32 s10, s10, s30
        s_lshr_b32 s30, s{sQ}, 1
        s_lshl_b32 s30, s30, 5
        s_add_u32 s10, s10, s30
        s_add_u32 s{sOUT1}, s10, 256
        s_lshl_b32 s10, s{sQ}, 6
        s_add_u32 s10, s10, s{sW}
        s_mul_i32 s10, s10, {16*1280}
        s_add_u32 s{sWO0}, s10, s11
        s_mul_i32 s{sM5}, s{sW}, 5120
        s_add_u32 s10, s{sQ}, 1
        s_movk_i32 s11, 3277""")
    for q in range(5):
        late += ops(f"""v_add_u32 v{t0}, {64*q}, v0
            v_mul_u32_u24 v{t1}, s11, v{t0}
            v_lshrrev_b32 v{t1}, 16, v{t1}
            v_mul_u32_u24 v{t2}, 20, v{t1}
            v_sub_u32 v{t0}, v{t0}, v{t2}
            v_lshrrev_b32 v{t2}, 2, v{t0}
            v_add_u32 v{t3}, s10, v{t2}
            v_and_b32 v{t3}, 3, v{t3}
            v_cmp_gt_u32 vcc, 4, v{t2}
            v_and_b32 v{t0}, 3, v{t0}
            v_bfe_u32 v{t4}, v{t1}, 2, 1
            v_cndmask_b32 v{t2}, v{t2}, v{t3}, vcc
            v_lshlrev_b32 v{t4}, 1, v{t4}
            v_xor_b32 v{t0}, v{t0}, v{t4}
            v_lshlrev_b32 v{t0}, 4, v{t0}
            v_lshl_or_b32 v{t0}, v{t2}, 6, v{t0}
            v_mul_u32_u24 v{t1}, 1280, v{t1}
            v_add_u32 v{vWo+q}, v{t0}, v{t1}""")
        if q % 4: late.append(Op(f"v_subrev_u32 v{vWo+q}, {1024*(q%4)}, v{vWo+q}"))
    FA = 16384
    late += ops(f"""v_and_b32 v{t0}, 15, v0
        v_lshrrev_b32 v{t1}, 4, v0
        v_lshrrev_b32 v{t2}, 1, v{t1}
        v_bfe_u32 v{t3}, v0, 1, 2
        v_xor_b32 v{t3}, v{t3}, v{t2}
        v_lshlrev_b32 v{t3}, 4, v{t3}
        v_and_b32 v{t4}, 1, v{t1}
        v_lshl_or_b32 v{t3}, v{t4}, 3, v{t3}
        v_lshl_or_b32 v{t3}, v{t0}, 6, v{t3}
        s_add_u32 s10, s{sM4}, {FA}
        v_add_u32 v{vFA}, s10, v{t3}
        v_lshlrev_b32 v{t3}, 3, v{t1}
        v_lshl_or_b32 v{t3}, v{t0}, 5, v{t3}
        s_add_u32 s11, s10, 2048
        v_add_u32 v{vFA2}, s11, v{t3}
        v_add_u32 v{vFB2}, s11, v{vL16}
        v_lshrrev_b32 v{t0}, 2, v0
        v_and_b32 v{t1}, 3, v0
        v_bfe_u32 v{t2}, v0, 3, 2
        v_xor_b32 v{t2}, v{t2}, v{t1}
        v_lshlrev_b32 v{t2}, 4, v{t2}
        v_lshl_or_b32 v{t2}, v{t0}, 6, v{t2}
        v_add_u32 v{vFB}, s10, v{t2}
        v_mul_u32_u24 v{t0}, 2560, v{t0}
        v_lshl_or_b32 v{vOA}, v{t1}, 4, v{t0}
        v_add_u32 v{vOB}, {16*2560}, v{vOA}
        v_lshrrev_b32 v{t0}, 1, v0
        v_and_b32 v{t1}, 1, v0
        v_mul_u32_u24 v{t0}, 2560, v{t0}
        v_lshl_or_b32 v{t0}, v{t1}, 4, v{t0}
        v_mov_b32 v{t1}, {OOB}
        v_cmp_gt_u32 vcc, 32, v0
        v_add_u32 v{lZa}, s{sM4}, v{vL16}
        s_lshl_b32 s10, s{sQ}, 10
        s_add_u32 s10, s10, 32768
        v_add_u32 v{lZm}, s10, v{lZa}
        v_mov_b32 v{lID}, 0
        v_cndmask_b32 v{vOC}, v{t1}, v{t0}, vcc
        v_and_b32 v{t0}, 1, v0
        v_lshlrev_b32 v{t0}, 4, v{t0}
        v_mov_b32 v{t1}, 0x3f80
        v_lshlrev_b32 v{t0}, v{t0}, v{t1}
        v_lshrrev_b32 v{t1}, 4, v0
        v_bfe_u32 v{t2}, v0, 2, 2
        v_cmp_eq_u32 vcc, v{t1}, v{t2}
        v_mov_b32 v{lID+1}, 0
        v_and_b32 v{t2}, 3, v0
        v_cndmask_b32 v{t0}, v{lID}, v{t0}, vcc
        v_cmp_gt_u32 vcc, 2, v{t2}
        v_mov_b32 v{lID+4}, 0
        v_mov_b32 v{lID+5}, 0
        v_cndmask_b32 v{lID+2}, v{lID}, v{t0}, vcc
        v_cndmask_b32 v{lID+3}, v{t0}, v{lID}, vcc""")
    late += [Op(f"v_mov_b32 v{LZ+q}, 0") for q in range(20)] + [Op(f"v_mov_b32 v{LINC+12*q+10+e}, 0") for q in range(4) for e in range(2)]
    A("s_waitcnt lgkmcnt(0)")
    A(stamp("lstart", "l"))
    def lbar(*groups): return [Op("WAITG", group=g) for g in groups] + [BAR()]
    A(lbar(("W", 0))[:-1]); A(stamp("k3", "l")); A(BAR())
    clx = P["clx"]; vdma = dict(P["vdma"])
    def touch(dj):
        return ops(f"""s_add_u32 s{sT3}, s{sJ}, {dj}
            s_and_b32 s{sT3}, s{sT3}, 3
            s_mul_i32 s{sT3}, s{sT3}, {256*1280}
            s_add_u32 s{sT3}, s{sT3}, s{sTCH}
            buffer_load_dword v{t5}, v{vPF2}, s[{SRD_WO}:{SRD_WO+3}], s{sT3} offen""")
    def touch_v(hd):
        return ops(f"""s_lshl_b32 s{sT2}, s{sJ}, 14
            s_add_u32 s{sT2}, s{sT2}, s{sV0}
            s_add_u32 s{sT2}, s{sT2}, {hd*8192}
            buffer_load_dword v{t6}, v{vPF}, s[{SRD_V}:{SRD_V+3}], s{sT2} offen""")
    def piece(p):
        if p[0] == "T": return touch(int(p[1]))
        if p[0] == "U": return touch_v(int(p[1]))
        return [y for n in range(4 * int(p[1]), 4 * int(p[1]) + 4) for y in dma_k(n)]
    nl = len(late); parts = {1: late[:nl // 3], 5: late[nl // 3:2 * nl // 3], 10: late[2 * nl // 3:]}
    NV = P["nv"]; variants = []; lst = {}
    if NV > 1:
        A(f"s_and_b32 s10, s{sPH}, {NV-1}")
        for ph in range(1, NV): A(f"s_cmp_eq_u32 s10, {ph}\ns_cbranch_scc1 L_var{ph}")
    head = ls.ops
    for ph in range(NV):
        V_ = [Op(f"L_var{ph}:")]
        q_ = [(1, [Op(o.text, **o.meta) for o in it]) for it in g1[nf:]] + [(t, it) for t in range(2, 20) for it in dma_w(t)]
        quiet = set()
        for x in range(0, 20):
            cl_ = [y for pcs, xc in clx if xc + ph * P['phstep'] == x for p_ in pcs for y in piece(p_)]
            if cl_:
                quiet |= {x + d for d in P["skip"]}
            if not P["cend"]: V_ += cl_
            n = 0
            while q_ and q_[0][0] <= x + LA and (q_[0][0] <= x + 1 or (x not in quiet and (n < P["cap"] or x == 0))):
                V_ += q_.pop(0)[1]; n += 1
            if P["cend"]: V_ += cl_
            if x in parts: V_ += [Op(o.text, **o.meta) for o in parts[x]]
            if x == P["pfx"]: V_ += touch(0)
            if x in vdma:
                V_ += dma_v(vdma[x])
            V_ += lbar(("W", x + 1))
            if ph == 0: lst[x] = stamp(f"l{x}", "l")
            V_ += [Op(o.text) for o in lst[x]]
        fixed = []; cur = want = None
        for o in V_:
            if o.text.startswith("s_add_u32 m0"):
                cur = o.text
                if o.meta.get("wm0"): want = o.text
            if o.kind == "dma" and o.meta["group"][0] == "W" and cur is not None and cur != want: assert want; fixed.append(Op(want)); cur = want
            fixed.append(o)
        V_ = fixed
        V_.append(Op("s_branch L_join"))
        variants.append(V_)
    ls.ops = []
    A("L_join:")
    A(BAR())
    todo = [s_ for s_ in range(4) if s_ not in vdma.values()]
    early = [s_ for s_ in todo if s_ < 3]
    A(dma_wo(0))
    for s_ in early: A(dma_v(s_))
    A(dma_wo(1))
    A([Op("WAITL")] + lbar(("V", 0), ("Wo", 0)))
    A(stamp("m0", "l"))
    def pieces(L):
        out = [[]]
        for o in L:
            out[-1].append(o)
            if o.kind == "dma": out.append([])
        return out[:-1]
    q2 = []
    for x in range(0, NS):
        if x + 2 <= 15: q2 += [(x, x + 1, it) for it in pieces(dma_wo(x + 2))]
        if x + 3 <= 15 and (x >= 1 or 3 in todo): q2 += [(x, x + 2, it) for it in pieces(dma_v(x + 3))]
    quiet = {x + d for x in P["tch"] for d in P["skip2"]}
    for x in range(0, NS):
        n = 0
        while q2 and q2[0][0] <= x and (x == NS - 1 or any(e[1] <= x for e in q2) or (x not in quiet and n < P["cap2"])):
            A(q2.pop(0)[2]); n += 1
        if x in P["tch"]: A(touch(P["tch"][x]))
        A(stamp(f'd{x}', 'l'))
        g = [("V", x + 1), ("Wo", x + 1)] + ([("V", x + 2)] if x == NS - 1 else [])
        A(lbar(*g))
        A(stamp(f"m{x+1}", "l"))
    if NS + 2 <= 15: A(dma_wo(NS + 2))
    if NS + 3 <= 15: A(dma_v(NS + 3))
    if NF == 4:
        A(lbar(("V", 14), ("Wo", 13)))
        A(dma_wo(15)); A(lbar(("V", 15), ("Wo", 14)))
        A(lbar(("Wo", 15)))
    elif NF == 3: A(lbar(("V", 15), ("Wo", 14)) + lbar(("Wo", 15)))
    else: A(lbar(("V", 15), ("Wo", 15)))
    zrd = [Op(f"ds_read_b128 {v(LZC+4*q,4)}, v{lZa} offset:{q*1024}", use=[("S0", 290)]) for q in range(4)]
    zrd.append(Op(f"ds_read_b128 {v(LZC+16,4)}, v{lZm}", use=[("S2", 290)]))
    if P["bt0"] is not None: A(BAR()); A(fetch(0, LINC))
    A(BAR())
    if P["bt0"] is None: A(fetch(0, LINC))
    A(fetch(1, LINC + 12) + fetch(2, LINC + 24))
    A(BAR())
    A(zrd)
    A(verified(0, LINC) + addin(0, LINC) + verified(1, LINC + 12) + addin(1, LINC + 12))
    A(stamp("c1", "l"))
    A("s_nop 7")
    for q in range(20): A(f"v_add_f32 v{LZ+q}, v{LZ+q}, v{LZC+q}")
    A(f"v_xor_b32 v{t0}, 32, v{vFA}")
    A(verified(2, LINC + 24) + addin(2, LINC + 24))
    A(stamp("c2", "l"))
    FK = [("S1", 300)]
    for nt in range(2):
        for jt in range(2):
            d = LPK + 4 * nt + 2 * jt; z = LZ + 8 * nt + 4 * jt
            A([cvt(d, z), cvt(d + 1, z + 2)])
            A(Op(f"ds_write_b64 v{t0 if nt else vFA}, {v(d,2)} offset:{jt*1024}", fill=FK, private=True))
    A([cvt(LPK + 8, LZ + 16), cvt(LPK + 9, LZ + 18), Op(f"ds_write_b64 v{vFA2}, {v(LPK+8,2)}", fill=FK, private=True)])
    A(Op(f"ds_read_b128 {v(LINC,4)}, v{vFB}", use=FK, private=True))
    A(Op(f"ds_read_b128 {v(LINC+4,4)}, v{vFB} offset:1024", use=FK, private=True))
    A(Op(f"ds_read_b128 {v(LINC+12,4)}, v{vFB2}", use=FK, private=True))
    A(f"buffer_store_dwordx4 {v(LINC,4)}, v{vOA}, {OUTR}, s{sOUT0} offen {P['out_mod']}")
    A(f"buffer_store_dwordx4 {v(LINC+4,4)}, v{vOB}, {OUTR}, s{sOUT0} offen {P['out_mod']}")
    A(f"buffer_store_dwordx4 {v(LINC+12,4)}, v{vOC}, {OUTR}, s{sOUT1} offen {P['out_mod']}")
    if P["dbg"]: A("s_waitcnt vmcnt(0)"); A(stamp("lend", "l"))
    A(dump())
    if P["x_amp"]:
        A(f"s_waitcnt vmcnt(0)\ns_memrealtime s[{sST}:{sST+1}]\ns_waitcnt lgkmcnt(0)\ns_sub_u32 s10, s{sST}, s{sST+4}\ns_mul_i32 s10, s10, {P['x_amp']}")
        A(f"L_amp:\ns_sleep 2\ns_memrealtime s[{sST}:{sST+1}]\ns_waitcnt lgkmcnt(0)\ns_sub_u32 s11, s{sST}, s{sST+4}\ns_cmp_lt_u32 s11, s10\ns_cbranch_scc1 L_amp")
    A("L_end:\ns_endpgm")

    A = cs.add
    A("L_compute:")
    A(ids)
    A(f"v_lshlrev_b32 v{vL16}, 4, v0")
    if P["prio_c"]: A(f"s_setprio {P['prio_c']}")
    l16, g, r, c4 = t0, t1, t2, t3
    u0, u1 = ABUF, ABUF + 1
    A(f"""v_and_b32 v{l16}, 15, v0
        v_lshrrev_b32 v{g}, 4, v0
        v_bfe_u32 v{r}, v0, 2, 2
        v_and_b32 v{c4}, 3, v0
        v_and_b32 v{t5}, 1, v{g}
        v_lshl_or_b32 v{t4}, v{t5}, 2, v{r}
        s_and_b32 s10, s{sW}, 1
        s_lshl_b32 s11, s10, 2
        v_lshl_add_u32 v{u0}, v{g}, 3, v{r}
        v_lshlrev_b32 v{u0}, 8, v{u0}
        v_lshl_or_b32 v{u0}, v{c4}, 3, v{u0}
        v_xor_b32 v{u1}, s11, v{t4}
        v_lshl_or_b32 v{aW}, v{u1}, 5, v{u0}
        v_xor_b32 v{aW+1}, 32, v{aW}
        v_xor_b32 v{aW+2}, 64, v{aW}
        v_xor_b32 v{aW+3}, 0x60, v{aW}
        v_lshrrev_b32 v{u1}, 1, v{l16}
        v_xor_b32 v{u1}, v{u1}, v{g}
        v_lshlrev_b32 v{u1}, 4, v{u1}
        v_lshl_or_b32 v{u1}, v{l16}, 7, v{u1}
        s_lshr_b32 s11, s{sW}, 1
        s_lshl_b32 s30, s11, 13
        s_add_u32 s{sT0}, s30, {XB}
        v_add_u32 v{aX}, s{sT0}, v{u1}
        v_xor_b32 v{aX+1}, 64, v{aX}
        s_lshl_b32 s10, s10, 11
        s_add_u32 s10, s10, s30
        s_add_u32 s10, s10, {PB}
        v_add_u32 v{vPW}, s10, v{vL16}
        s_add_u32 s10, s{sM4}, {PB}
        v_add_u32 v{vPR}, s10, v{vL16}
        v_add_u32 v{vZ}, s{sM4}, v{vL16}
        v_lshrrev_b32 v{u0}, 1, v{g}
        v_xor_b32 v{u0}, v{u0}, v{l16}
        v_lshlrev_b32 v{u0}, 4, v{u0}
        v_lshl_or_b32 v{u0}, v{t5}, 3, v{u0}
        v_lshl_or_b32 v{u0}, v{l16}, 8, v{u0}
        s_lshl_b32 s10, s{sM4}, 2
        s_add_u32 s10, s10, {KB}
        v_add_u32 v{u0}, s10, v{u0}
        v_mov_b32 v{kR}, v{u0}
        s_load_dwordx2 s[{SRD_DBG}:{SRD_DBG+1}], s[0:1], 88
        s_load_dwordx2 s[{SRD_WS}:{SRD_WS+1}], s[0:1], 96""")
    for q in range(1, 8): A(f"v_xor_b32 v{kR+q}, {32*q}, v{kR}")
    late_c = ops(f"""v_lshrrev_b32 v{t3}, 2, v0
        v_bfe_u32 v{t4}, v0, 3, 2
        v_lshlrev_b32 v{t4}, 5, v{t4}
        v_and_b32 v{t5}, 3, v0
        v_lshl_or_b32 v{t4}, v{t5}, 3, v{t4}
        v_lshl_or_b32 v{t4}, v{t3}, 7, v{t4}
        v_add_u32 v{aV}, s{sM4}, v{t4}
        v_xor_b32 v{aV+1}, 32, v{aV}
        v_xor_b32 v{aV+2}, 64, v{aV}
        v_xor_b32 v{aV+3}, 0x60, v{aV}
        v_mul_u32_u24 v{t3}, 320, v{t3}
        v_lshl_add_u32 v{t3}, v{t5}, 3, v{t3}
        v_add_u32 v{t3}, {WOB}, v{t3}
        v_bfe_u32 v{t5}, v0, 4, 1
        v_lshlrev_b32 v{t5}, 5, v{t5}
        v_add_u32 v{aWo}, v{t3}, v{t5}
        v_sub_u32 v{aWo+1}, v{t3}, v{t5}
        v_add_u32 v{aWo+2}, 61440, v{aWo}
        v_add_u32 v{aWo+3}, 61440, v{aWo+1}""")
    A(f"""s_mov_b32 s{sC}, {f2u(SCALE_LOG2E)}
        s_mov_b32 s{sC+1}, {f2u(SCALE_LOG2E)}
        s_waitcnt lgkmcnt(0)""")
    A(exchange_setup())
    cbar = lambda: [Op("WAITL"), BAR()]
    vNAN, vZERO = aWo, aV
    A(mksrd(SRD_DBG, 26, 256))
    A(f"""s_lshl_b32 s10, s{sW}, 3
        s_add_u32 s{sHS}, s{sJ}, s10
        s_lshr_b32 s{sT1}, s{sG}, 2
        s_lshl_b32 s{sT1}, s{sT1}, 4
        s_add_u32 s{sT0}, s{sPS}, 65536
        v_mov_b32 v{t2}, {OOB}
        v_cmp_gt_u32 vcc, 48, v0
        v_mov_b32 v{vNAN-1}, -1
        v_mov_b32 v{vNAN}, -1
        v_cndmask_b32 v{t3}, v{t2}, v{vL16}, vcc
        v_mov_b32 v{vNAN+1}, -1
        v_mov_b32 v{vNAN+2}, -1
        v_mov_b32 v{vZERO-1}, 0
        v_mov_b32 v{vZERO}, 0
        v_mov_b32 v{vZERO+1}, 0
        v_mov_b32 v{vZERO+2}, 0""")
    clears = [Op(f"buffer_store_dwordx4 {v(vNAN-1,4)}, v{vL16}, {WSR}, s{so} offen offset:{off} sc1", group="clr") for so in (sPS, sT0) for off in (0, 1024)]
    clears.append(Op(f"buffer_store_dwordx4 {v(vZERO-1,4)}, v{t3}, {WSR}, s{sFLM} offen sc1", group="clr"))

    def rdA1(t, i):
        s = t % 4; buf = ABUF + 8 * ((4 * t + i) % 3)
        return [Op(f"ds_read_b64_tr_b16 {v(buf+4*ss+2*h,2)}, v{aW+i} offset:{s*16384 + ss*8192 + h*1024}", use=[(f"S{s}", t)]) for ss in range(2) for h in range(2)]
    def rdB(kc):
        return [Op(f"ds_read_b128 {v(BB+32*(kc%2)+8*jt+4*ss,4)}, v{aX+ss} offset:{(kc%2)*16384 + jt*2048}", use=[(f"X{kc%2}", kc)]) for jt in range(4) for ss in range(2)]
    if P["clr"][0] < 0: A(clears)
    A(BAR())
    A(stamp("start"))
    b0 = rdB(0); a0 = rdA1(0, 0)
    A(a0[:2] + b0[:1] + a0[2:] + b0[1:] + rdA1(0, 1))
    T = Ticks()
    for t in range(20):
        kc, dh = t // 2, t % 2
        for i in range(4):
            buf = ABUF + 8 * ((4 * t + i) % 3)
            for jt in range(4):
                for ss in range(2):
                    d = ACC + 16 * (4 * dh + i) + 4 * jt
                    T.add(mfma(d, v(buf + 4 * ss, 4), v(BB + 32 * (kc % 2) + 8 * jt + 4 * ss, 4), "0" if (kc == 0 and ss == 0) else None))
                    if jt == 0 and ss == 0: T.m[-1].meta["also"] = range(buf, buf + 8)
    for t in range(20):
        b = 32 * t
        for q, o in enumerate(rdA1(t, 2)): T.put(b + q, o, 2)
        for q, o in enumerate(rdA1(t, 3)): T.put(b + 8 + q, o, 2)
        T.put(b + BP, cbar(), 1)
        if t < 19:
            for q, o in enumerate(rdA1(t + 1, 0)): T.put(b + BP + q, o, 2)
            for q, o in enumerate(rdA1(t + 1, 1)): T.put(b + 24 + q, o, 2)
            if t % 2 == 1:
                for pos, o in zip([BP + 4, BP + 5, BP + 6, 28, 29, 30, 31, 32], rdB((t + 1) // 2)): T.put(b + pos, o, 3)
        T.put(b + 31, stamp(f"w{t}"), 9)
    def qreg(sd, j4): return ACC + 32 * sd + 4 * j4
    def pack(d, e): return [cvt(d, d), cvt(d + 1, d + 2), cvt(d + 2, e), cvt(d + 3, e + 2)]
    def qcvt(sd, j4): return pack(qreg(sd, j4), qreg(sd, j4) + 16)
    def krd(b): return [Op(f"ds_read_b64 {v(BB+32*b+16*kt+4*sd+2*h,2)}, v{kR+2*sd+h} offset:{b*8192 + kt*4096}", use=[("K", 100), ("Kp", 100)]) for sd in range(4) for kt in range(2) for h in range(2)]
    b18, b19 = 32 * 18, 32 * 19
    c0, c1 = P["clr"]; assert c1 < P["hs0"] - 1
    if c0 < 0: pre_clears = clears
    else: T.spread(clears, 32 * c0 + 4, 32 * c1 + 4, 6)
    T.put(32 * (P["hs0"] - 1) + BP, Op("WAITG", group="clr"), 0.5)
    for q in range(4):
        T.put(32 * (P["hs0"] + q) + 5, [Op(f"s_cmp_lg_u32 s{sHS}, {q}"), Op(f"s_cbranch_scc1 L_hs{q}"),
              Op(f"buffer_atomic_add v{vONE}, v{vFL0}, {DBGR}, s{sT1} offen sc1", uncounted=True), Op(f"L_hs{q}:")], 7)
    T.put(32 * 16 + 5, [Op(f"s_cmp_lg_u32 s{sW}, 0"), Op("s_cbranch_scc1 L_hsl"),
          Op(f"buffer_load_dword v{t2}, v{vFL0}, {DBGR}, s{sT1} offen sc1", uncounted=True), Op("L_hsl:")], 7)
    T.put(b19 + BP, [Op(f"s_cmp_lg_u32 s{sW}, 0"), Op("s_cbranch_scc1 L_hsc"), Op("s_waitcnt vmcnt(0)", cond=True, raw=True),
          Op(f"v_readfirstlane_b32 s{sT3}, v{t2}", cond=True), Op("s_nop 1", cond=True), Op(f"s_cmp_lt_u32 s{sT3}, 16", cond=True, nohaz=True),
          Op("s_cbranch_scc1 L_hs_spin", cond=True), Op("L_hsc:")], 0.5)
    tail.extend(["L_hs_spin:", f"s_mov_b32 s{sSPIN}, 0", "L_hs_spin1:",
         f"buffer_load_dword v{t2}, v{vFL0}, {DBGR}, s{sT1} offen sc1", "s_waitcnt vmcnt(0)",
         f"v_readfirstlane_b32 s{sT3}, v{t2}", f"s_add_u32 s{sSPIN}, s{sSPIN}, 1", f"s_cmp_gt_u32 s{sSPIN}, 100000", "s_cbranch_scc1 L_hsc",
         f"s_cmp_lt_u32 s{sT3}, 16", "s_cbranch_scc1 L_hs_spin1", "s_branch L_hsc"])
    T.spread(late_c, 32 * 14, 32 * 14 + 15, 4)
    T.spread(krd(0), b18 + 4, b18 + 15, 4)
    T.spread([o for j4 in range(4) for o in qcvt(0, j4)], b18 + 20, b18 + 31, 5)
    T.spread([o for j4 in range(4) for o in qcvt(1, j4)], b19 + 4, b19 + 16, 5)
    T.spread([o for j4 in range(4) for o in qcvt(2, j4)], b19 + 20, b19 + 31, 5)
    T.flush(cs)
    A(stamp("g1"))

    def sreg(b, jt, kt): return ACC + 16 + 32 * b + 8 * jt + 4 * kt
    def softmax(b):
        tmp = ACC + 80 + 8 * b; pf = PF + 8 * b; L = []
        cols = [(sreg(b, c, 0), tmp + 4 * c) for c in range(2)]
        def both(f):
            for x, y in zip(f(*cols[0]), f(*cols[1])): L.extend([Op(x), Op(y)])
        (s0, m0_), (s1, m1_) = cols
        def across(op):
            L.extend(ops(f"""v_permlane32_swap_b32 v{m0_}, v{m1_}
                {op} v{m0_}, v{m0_}, v{m1_}
                v_mov_b32 v{m1_}, v{m0_}
                v_permlane16_swap_b32 v{m0_}, v{m1_}
                {op} v{m0_}, v{m0_}, v{m1_}"""))
        def spread_back(): L.extend(ops(f"v_mov_b32 v{m1_}, v{m0_}\nv_permlane32_swap_b32 v{m0_}, v{m1_}"))
        both(lambda s, m: [f"v_max3_f32 v{m}, v{s}, v{s+1}, v{s+2}", f"v_max3_f32 v{m+1}, v{s+3}, v{s+4}, v{s+5}",
                           f"v_max3_f32 v{m}, v{m}, v{s+6}, v{s+7}", f"v_max_f32 v{m}, v{m}, v{m+1}"])
        across("v_max_f32"); L.append(Op(f"v_mul_f32 v{m0_}, s{sC}, v{m0_}")); spread_back()
        both(lambda s, m: [f"v_pk_fma_f32 v[{s+q}:{s+q+1}], v[{s+q}:{s+q+1}], s[{sC}:{sC+1}], v[{m}:{m+1}] op_sel_hi:[1,1,0] neg_lo:[0,0,1] neg_hi:[0,0,1]" for q in range(0, 8, 2)])
        both(lambda s, m: [f"v_exp_f32 v{s+q}, v{s+q}" for q in range(8)])
        both(lambda s, m: [f"v_pk_add_f32 v[{m}:{m+1}], v[{s}:{s+1}], v[{s+2}:{s+3}]", f"v_pk_add_f32 v[{m+2}:{m+3}], v[{s+4}:{s+5}], v[{s+6}:{s+7}]",
                           f"v_pk_add_f32 v[{m}:{m+1}], v[{m}:{m+1}], v[{m+2}:{m+3}]", f"v_add_f32 v{m}, v{m}, v{m+1}"])
        across("v_add_f32"); L.append(Op(f"v_rcp_f32 v{m0_}, v{m0_}")); spread_back()
        both(lambda s, m: [f"v_pk_mul_f32 v[{s+q}:{s+q+1}], v[{s+q}:{s+q+1}], v[{m}:{m+1}] op_sel_hi:[1,0]" for q in range(0, 8, 2)])
        if b: L.append(Op(f"s_add_u32 s{sPS}, s{sPS}, 65536"))
        for c in range(2):
            for q in range(4): L.append(cvt(pf + 4 * c + q, cols[c][0] + 2 * q))
            L.append(Op(f"buffer_store_dwordx4 {v(pf+4*c,4)}, v{vL16}, {WSR}, s{sPS} offen offset:{1024*c} sc1"))
            L.append(Op(f"ds_write_b128 v{vPW}, {v(pf+4*c,4)} offset:{b*4096 + c*1024}", fill=[("P", 300), ("Kp", 300)]))
        return L
    T = Ticks()
    for b in range(2):
        for sd in range(4):
            for kt in range(2):
                for jt in range(2):
                    T.add(mfma(sreg(b, jt, kt), v(BB + 32 * b + 16 * kt + 4 * sd, 4), v(qreg(sd, 2 * b + jt), 4), "0" if sd == 0 else None))
    T.spread(krd(1), 0, 5, 2)
    T.spread([o for j4 in range(2) for o in qcvt(3, j4)], 1, 6, 3)
    T.spread([o for j4 in range(2, 4) for o in qcvt(3, j4)], 7, 12, 3)
    T.put(P["bk"], cbar(), 1)
    sm0 = softmax(0); sm1 = softmax(1)
    n0 = P['sm_in']; T.spread(sm0[:n0], 20, 31, 5)
    T.flush(cs)
    A(stamp("qk"))
    if P["smix"]:
        a_, b_ = sm0[n0:], sm1
        k_ = [i for i, o in enumerate(b_) if o.text.startswith("s_add_u32")][0]
        mix = a_[:4]; i_, j_ = 4, 0
        while i_ < len(a_) or j_ < len(b_):
            if j_ < len(b_) and (j_ < k_ or i_ >= len(a_)): mix.append(b_[j_]); j_ += 1
            if i_ < len(a_): mix.append(a_[i_]); i_ += 1
        A(mix)
    else: A(sm0[n0:]); A(stamp("sm0")); A(sm1)
    A(stamp("att"))

    def rdP(gen): return [Op(f"ds_read_b128 {v(PRB[0][2*hd+jt],4)}, v{vPR} offset:{hd*2048 + jt*1024}", use=[("P", gen)]) for hd in range(2) for jt in range(2)]
    def ldP(dj):
        return ops(f"s_add_u32 s{sT2}, s{sJ}, {dj}\ns_and_b32 s{sT2}, s{sT2}, 3\ns_lshl_b32 s{sT2}, s{sT2}, 12\ns_add_u32 s{sT2}, s{sT2}, s{sPL}") + \
            [Op(f"buffer_load_dwordx4 {v(PRB[dj%2][q],4)}, v{vL16}, {WSR}, s{sT2} offen offset:{1024*q} sc1") for q in range(4)]
    def rdV(s): return [Op(f"ds_read_b64_tr_b16 {v(VF+4*i+2*h,2)}, v{aV+i} offset:{(s%4)*16384 + h*2048}", use=[(f"S{s%4}", 200 + s)], private=True) for i in range(4) for h in range(2)]
    def pvreg(s, i, jt):
        if s < NS + 1 or NF == 1: return PVB[s % 2] + 8 * i + 4 * jt
        return fin_regs[s][2 * i + jt]
    e0, e1 = PVB[NS % 2], PVB[(NS + 1) % 2]
    fin_regs = {NS + 1: [e1 + 4 * q for q in range(8)],
                NS + 2: [e0 + 8, e0 + 12, e1 + 8, e1 + 12, e0 + 24, e0 + 28, e1 + 24, e1 + 28],
                NS + 3: [e1 + 8, e1 + 12, PRB[0][0], PRB[0][1], e1 + 24, e1 + 28, PRB[0][2], PRB[0][3]]}
    def pvm(s): return [mfma(pvreg(s, i, jt), v(VF + 4 * i, 4), v(PRB[(s // 4) % 2][2 * ((s // 2) % 2) + jt], 4), "0") for i in range(4) for jt in range(2)]
    _pvm = pvm
    def pvm(s):
        L = _pvm(s); L[0].meta["also"] = range(VF, VF + 8); L[4].meta["also"] = range(VF + 8, VF + 16)
        return L
    def pvc(s): return [o for ss in range(2) for jt in range(2) for o in pack(pvreg(s, 2 * ss, jt), pvreg(s, 2 * ss + 1, jt))]
    nA = [0]
    def rdA2(s, t):
        k = s % 4; buf = A2 + 8 * (nA[0] % 4); nA[0] += 1
        ad = aWo + (t % 2) + (2 if k == 3 else 0); base = 0 if k == 3 else k * 20480
        return buf, [Op(f"ds_read_b64_tr_b16 {v(buf+4*ss+2*h,2)}, v{ad} offset:{base + ss*10240 + h*5120 + t*32}", use=[(f"Wo{k}", 200 + s)]) for ss in range(2) for h in range(2)]
    def owo(s, t, buf):
        L = [mfma(OUTA + 8 * t + 4 * jt, v(buf + 4 * ss, 4), v(pvreg(s, 2 * ss, jt), 4), "0" if (s == 0 and ss == 0) else None) for jt in range(2) for ss in range(2)]
        L[0].meta["also"] = range(buf, buf + 8)
        return L
    steps = [(s, t) for s in range(NS) for t in range(10)]
    order = [8, 9, 0, 1, 2, 3, 4, 5, 6, 7]
    steps += [(s, t) for s in range(NS, 16) for t in order[:2]] + [(s, t) for t in order[2:] for s in range(NS, 16)]
    rd = [rdA2(s, t) for s, t in steps]
    A(cbar())
    A(stamp("bp"))
    p0 = rdP(300)
    A(p0[:2] + rdV(0) + p0[2:] + rd[0][1])
    A(pvm(0)); A(rd[1][1] + rd[2][1]); A(pvc(0))
    T = Ticks(); at = []; pvat = {}
    for n, (s, t) in enumerate(steps):
        if (s < NS and t == 6) or (NS <= s < 15 and t == 8):
            pvat[s + 1] = len(T.m)
            for o in pvm(s + 1): T.add(o)
        at.append(len(T.m))
        for o in owo(s, t, rd[n][0]): T.add(o)
    fin0 = pvat[NS + 1]; BX = fin0 - 4
    BM = at[steps.index((13, 8))]
    BL2 = at[steps.index((15, 8)) - P["bl2"]] if NF >= 3 else BX
    for n in range(3, len(steps)):
        base = at[n - 3]
        if P["smooth"] and n < 10 * NS and steps[n][1] in (8, 9): base = pvat[steps[n][0] + 1] + 4 * (steps[n][1] - 8)
        if steps[n][0] > NS: base = max(base, BX)
        if steps[n][0] == 14 and NF == 4: base = max(base, BM)
        if steps[n][0] == 15: base = max(base, BL2)
        for q, o in enumerate(rd[n][1]): T.put(base + q, o, 2)
    for s in range(NS):
        b = at[10 * s]
        T.put(b + BP2, BAR(), 1)
        if P["smooth"]:
            T.spread(rdV(s + 1), b + BP2, b + BP2 + 7, 1.5)
            c_ = pvc(s + 1); T.spread(c_[:8], b + 31, b + 34, 4); T.spread(c_[8:], b + 35, b + 44, 4)
        else:
            T.spread(rdV(s + 1), b + BP2, b + BP2 + 3, 1.5)
            T.spread(pvc(s + 1), b + 35, b + 46, 4)
        T.put(b + 47, stamp(f"o{s}"), 9)
    T.put(BX, BAR(), 1)
    if NF == 4: T.put(BM, BAR(), 1)
    if NF >= 3: T.put(BL2, BAR(), 1)
    for s2 in range(NS + 1, 16):
        T.spread(rdV(s2), pvat[s2] - 8, pvat[s2] - 5, 1.6)
        T.spread(pvc(s2), pvat[s2] + 9, pvat[s2] + 15, 1.7)
    for dj in range(1, 4):
        ps, pt = P["pld"][dj - 1]; L = ldP(dj)
        T.spread([L[:5], L[5], L[6], L[7]], at[10 * ps] + pt, at[10 * ps] + pt + 6, 6)
        chk = arrived([r_ + e for r_ in PRB[dj % 2] for e in range(4)], ldP(dj), t0)
        b = at[10 * (4 * dj - 1)] + P["pchk"]
        T.spread(chk[:-4], b - 4, b - 1, 6); T.put(b, chk[-4:] + stamp(f"pc{dj}"), 6)
    end = len(T.m); flags = []
    def done(t): return at[steps.index((15, t))] + 3
    T.put(BX - 1, stamp("bx0"), 9); T.put(BX, stamp("bx1"), 1.1); T.put(BL2 - 1, stamp("bl0"), 9); T.put(BL2, stamp("bl1"), 1.1)
    for t_ in (9, 1, 3, 5): T.put(done(t_), stamp(f"f{t_}"), 9)
    L = []
    for m in range(4):
        L += [cvt(PK + 2 * m, OUTA + 64 + 4 * m), cvt(PK + 2 * m + 1, OUTA + 64 + 4 * m + 2),
              [Op(f"s_add_u32 s{sT2}, s{sRS}, {m*65536 + 2048}"), Op(f"s_cmp_eq_u32 s{sQ}, {m}"), Op(f"s_cselect_b32 s{sT2}, {OOB}, s{sT2}"), Op(f"buffer_store_dwordx2 {v(PK+2*m,2)}, v{vL8}, {WSR}, s{sT2} offen sc1", group=("R", -1))]]
    L += [Op(f"ds_write_b128 v{vZ}, {v(OUTA+64+4*m,4)} offset:{32768 + m*1024}", fill=[("S2", 290)], wpriv=True) for m in range(4)]
    ms = [10, 11, 12, 13]; ra = [t0, t1, t5, 14]
    L += [Op(f"v_add_u32 v{ms[m]}, v{PK+2*m}, v{PK+2*m+1}") for m in range(4)]
    L.append(ops(f"s_add_u32 s{sT2}, s{sQ}, 1\ns_bitcmp1_b32 s{sT2}, 0\ns_cselect_b64 s[10:11], -1, 0\ns_bitcmp1_b32 s{sT2}, 1\ns_cselect_b64 s[12:13], -1, 0"))
    L += [Op(f"v_cndmask_b32 v{ra[i]}, v{ms[i]}, v{ms[(i+1)%4]}, s[10:11]") for i in range(4)]
    L += [Op(f"v_cndmask_b32 v{t2+k}, v{ra[k]}, v{ra[(k+2)%4]}, s[12:13]") for k in range(3)]
    T.spread(L, done(9) + 3, done(9) + 8 * NF - 2, 4)
    for k in range(3):
        L = []; pk = SPARE if k % 2 == 0 else PK
        dest = f"s_add_u32 s{{0}}, s{sQ}, {k+1}\ns_and_b32 s{{0}}, s{{0}}, 3"
        for nt in range(2):
            for jt in range(2):
                z = OUTA + 8 * (2 * k + nt) + 4 * jt
                L += [cvt(pk + 4 * nt + 2 * jt, z), cvt(pk + 4 * nt + 2 * jt + 1, z + 2)]
            it = ops(dest.format(sT2) + f"\ns_lshl_b32 s{sT2}, s{sT2}, 16\ns_add_u32 s{sT3}, s{sT2}, s{sRS}") if nt == 0 else []
            L.append(it + [Op(f"buffer_store_dwordx4 {v(pk+4*nt,4)}, v{vL16}, {WSR}, s{sT3} offen offset:{1024*nt} sc1", group=("R", k))])
        T.spread(L[:5], done(2 * k) + 3, done(2 * k) + 2 * NF + 1, 4); T.spread(L[5:], done(2 * k + 1) + 3, done(2 * k + 1) + 2 * NF + 1, 4)
        ck = t2 + k; b_ = done(2 * k + 1) + 2 * NF + 2
        fl = ops(dest.format(sT2) + f"\ns_lshl_b32 s{sT2}, s{sT2}, 12\ns_add_u32 s{sT2}, s{sT2}, s{sFLD}")
        fl.append(Op(f"buffer_store_dword v{ck}, v{vL4}, {WSR}, s{sT2} offen offset:{k*256} sc1"))
        T.spread(checksum(ck, [ck] + list(range(pk, pk + 8))) + [fl], b_, min(b_ + 5, end - 1), 4)
    if P["bt0"] is not None: T.put(done(3) + P["bt0"], BAR(), 8)
    T.put(min(done(5) + P["bt1"], end - 1), BAR(), 8)
    T.flush(cs)
    A(stamp("g2"))
    zw = [Op(f"ds_write_b128 v{vZ}, {v(OUTA+48+4*q,4)} offset:{q*1024}", fill=[("S0", 290)], wpriv=True) for q in range(4)]
    A(zw)
    A(cbar())
    A(stamp("end"))
    A(dump())
    A("s_endpgm")

    sc, sl = {}, {}
    def drop(st, pred): st.ops = [o for o in st.ops if not pred(o)]
    import re
    def hot(L):
        for name, srd_ in (("v", SRD_V), ("o", SRD_WO), ("k", SRD_K), ("w", SRD_WQ), ("x", SRD_X)):
            if name in P["x_hot"]:
                L = [Op(re.sub(r"\], s\d+ offen", "], 0 offen", o.text), **o.meta) if (o.kind in ("dma", "vld") and f"s[{srd_}:" in o.text) else o for o in L]
        return L
    if P['x_nost']: drop(cs, lambda o: o.kind == 'vst' and isinstance(o.meta.get('group'), tuple))
    clines = cs.finalize(sc); seg = []; nb = None
    for ph, V_ in enumerate(variants):
        lf = Stream(); lf.nocheck = True; lf.ops = hot(pro.ops + head + V_ + ls.ops)
        L = lf.finalize(sl); i0 = L.index(f"L_var{ph}:"); i1 = L.index("L_join:")
        seg.append((L[:i0], L[i0:i1], L[i1:]))
        assert seg[-1][0] == seg[0][0] and seg[-1][2] == seg[0][2]
        nb = check_handoffs([cs.events, lf.events]); assert nb[0] == nb[1], nb
    lines = seg[0][0] + [l for x in seg for l in x[1]] + seg[0][2] + tail + clines
    a = Asm(); kernel_begin(a, KNAME)
    for l in lines: a(l)
    a("L_code_end:")
    body = a.text().replace("CODE_SPAN", f"L_code_end-{KNAME}-4").replace("CODE_BACK", f"L_pc-{KNAME}")
    write_file(path, ["; @launch grid=(256,1,1) block=(512,1,1) lds=163840"], body, [descriptor(KNAME, 256, 256)])
    return sc, sl, nb

if __name__ == "__main__":
    out = sys.argv[1] if len(sys.argv) > 1 else f"cdna_kernels/{NAME}.s"
    kw = {}
    for x in sys.argv[2:]:
        k, val = x.split("=", 1)
        try: val = eval(val)
        except Exception: pass
        kw[k] = val
    print(build(out, **kw))
```

```python
import sys, struct
from common import *
from ops import Op, Stream, check_handoffs

def f2u(f): return struct.unpack("<I", struct.pack("<f", f))[0]
SCALE_LOG2E = 128 ** -0.5 * 1.4426950408889634
KNAME = NAME + "_kernel"

DEF = dict(
    nt_w="", nt_x="", nt_k="nt", nt_v="", nt_wo="", bpos=17, bpos2=15, code_pf=1, dbg=0, rot=1, xrot=1, flip=0,
    stamps=("start", "g1", "att", "g2", "end"), lstamps=(),
    clx=((('K0', 'K1'), 3), (('K2', 'K3'), 9)), tch={0: 1, 4: 2, 8: 3}, skip2=(1,), cap2=11, nv=4, vdma={17: 0, 18: 1}, x_hot='', cend=1, skip=(1,), cap=8, cap0=99, phstep=1, clr=(2, 6), bal=0, first=4, prio_l=0, prio_c=0, la=3, pfx=15, smooth=1, sm_in=16, smix=1, bk=8, nf=4, bl2=2, pld=((2, 8), (5, 8), (9, 8)), pchk=20, hs0=8, cover=80, early=0, bt1=12, x_nost=0,
    out_mod="sc1", ntlast=0, x_amp=0, x_seg=None, x_nomfma=0, x_nodma=0,
)

WS_R = 0
WS_P = 16 << 20
WS_FL = 20 << 20
WS_DBG = 32 << 20
OOB = 0x40000000

XB, KB = 65536, 98304
WOB, PB = 65536, 147456

sW, sJ, sRG, sG, sBR = 3, 6, 7, 8, 9
sFLIP, sPH, sKC, sQ = 32, 33, 34, 35
SRD_X, SRD_K, SRD_V, SRD_WQ, SRD_WO, SRD_OUT, SRD_DBG, SRD_WS = 36, 40, 44, 48, 52, 56, 60, 64
sWQ0, sX0, sK0, sV0, sWO0, sM4, sM5 = 68, 69, 70, 71, 72, 73, 74
sT0, sT1, sT2, sT3 = 75, 76, 77, 78
sRS, sRL, sPS, sFLD, sPL, sC, sHS, sCT, sFLM = 79, 80, 81, 82, 83, 84, 89, 86, 98
sSPIN = 88
sOUT0, sOUT1 = 90, 91
sTCH = 87
sST = 92
WSR = f"s[{SRD_WS}:{SRD_WS+3}]"; DBGR = f"s[{SRD_DBG}:{SRD_DBG+3}]"; OUTR = f"s[{SRD_OUT}:{SRD_OUT+3}]"

vL16, vL8, vFL0, vONE = 28, 29, 30, 31
vT = 33
aW, aX, kR = 1, 5, 7
vPW, vPR, vZ = 15, 16, 17
aWo, aV = 19, 23
ABUF = 40; BB = 64; ACC = 128
PF = 40
OUTA = 176
PVB = [112, 144]
VF = 96
A2 = 64
PRB = [[40, 44, 48, 52], [56, 60, 2, 6]]
SPARE = 56
PK = 2
vW, vX, vK, vV, vWo = 1, 5, 9, 13, 17
vFLAG = 32
vFL = 22
lID = 40
lZa, vFA, vFA2, vFB, vFB2, vOA, vOB, vOC, vPF, vPF2 = 46, 47, 48, 49, 50, 51, 52, 53, 54, 55
LINC = 64
LZ = 112
LZC = 136
LPK = 152
VP = 192
vVW = 56

def v(b, n=1): return vr(b, n)
def mfma(d, A, B, C=None): return Op(f"v_mfma_f32_16x16x32_bf16 {v(d,4)}, {A}, {B}, {v(d,4) if C is None else C}")
def cvt(d, s0): return Op(f"v_cvt_pk_bf16_f32 v{d}, v{s0}, v{s0+1}")
def ops(text): return [Op(x) for x in text.split("\n") if x.strip()]

class Ticks:
    def __init__(self): self.m = []; self.f = []
    def add(self, op): self.m.append(op); self.f.append([]); return len(self.m) - 1
    def put(self, t, o, prio=5):
        if not isinstance(o, (list, tuple)): o = [o]
        self.f[t].append((prio, len(self.f[t]), [Op(x) if isinstance(x, str) else x for x in o]))
    def spread(self, items, t0, t1, prio=5):
        n = len(items)
        for q, it in enumerate(items): self.put(t0 + (q * (t1 - t0 + 1)) // n, it, prio)
    def flush(self, st):
        for m, f in zip(self.m, self.f):
            st.add(m)
            for _, _, o in sorted(f, key=lambda x: (x[0], x[1])): st.add(o)

def weave(st, main, side, first=0):
    n, m = len(main), len(side); k = 0
    for i, o in enumerate(main):
        st.add(o)
        while k < m and i >= first and (k + 1) * (n - first) <= (i + 1 - first) * m: st.add(side[k]); k += 1
    while k < m: st.add(side[k]); k += 1

def build(path, **kw):
    P = dict(DEF); P.update(kw)
    BP, BP2, LA, NF = P["bpos"], P["bpos2"], P["la"], P["nf"]
    NS = 16 - NF
    tail = []
    pro = Stream(); cs = Stream(); ls = Stream()
    for s in (pro, cs, ls): s.nocheck = True
    t0, t1, t2, t3, t4, t5, t6 = range(vT, vT + 7)
    nst = {"c": 0, "l": 0}
    def stamp(name, role="c"):
        if P["x_seg"] and role == "l" and name in P["x_seg"]:
            r_ = 14 + 2 * P["x_seg"].index(name)
            return [Op(f"s_memrealtime s[{r_}:{r_+1}]"), Op("s_waitcnt lgkmcnt(0)")]
        if not P["dbg"] or name not in P["stamps" if role == "c" else "lstamps"]: return []
        nst[role] += 1; i = nst[role]; assert i <= 13
        return [Op(f"s_memtime s[{sST}:{sST+1}]"), Op("s_waitcnt lgkmcnt(0)"), Op(f"s_mov_b32 s{sreg_(i)}, s{sST}")]
    def sreg_(i): return {1: 99, 2: 100, 3: 101}.get(i, 12 + i)
    def dump():
        if not P["dbg"]: return []
        L = ops(f"""s_waitcnt vmcnt(0)
            s_memrealtime s[{sST}:{sST+1}]
            s_waitcnt lgkmcnt(0)
            v_writelane_b32 v{t6}, s{sST+2}, 0
            v_writelane_b32 v{t6}, s{sST}, 15
            v_writelane_b32 v{t6}, s{sST+4}, 14""")
        L += [Op(f"v_writelane_b32 v{t6}, s{sreg_(i)}, {i}") for i in range(1, 14)]
        L += ops(f"""s_lshl_b32 s{sT2}, s2, 3
            s_add_u32 s{sT2}, s{sT2}, s31
            s_lshl_b32 s{sT2}, s{sT2}, 8
            s_add_u32 s{sT2}, s{sT2}, {WS_DBG}
            v_lshlrev_b32 v{t0}, 2, v0
            buffer_store_dword v{t6}, v{t0}, {WSR}, s{sT2} offen""")
        return L
    BAR = lambda: Op("s_barrier")
    def mksrd(dst, ptr, n): return ops(f"s_mov_b32 s{dst+2}, {n}\ns_mov_b32 s{dst+3}, 0x00020000")
    def mod10(x, tmp): return f"s_sub_u32 s{tmp}, s{x}, 10\ns_min_u32 s{x}, s{x}, s{tmp}"
    def wo_regions(k):
        lo, hi = WOB + 20480 * k, WOB + 20480 * (k + 1); r = [f"Wo{k}"]
        if lo < XB + 16384: r.append("X0")
        if lo < KB and hi > XB + 16384: r.append("X1")
        if hi > KB: r.append("K")
        return r

    A = pro.add
    A("s_cmp_ge_u32 s2, 256\ns_cbranch_scc1 L_end")
    if P["dbg"] or P["x_amp"]: A(f"s_memtime s[{sST+2}:{sST+3}]\ns_memrealtime s[{sST+4}:{sST+5}]")
    A(f"""v_lshrrev_b32 v{t0}, 6, v0
        s_bfe_u32 s{sBR}, s2, 0x10002
        v_readfirstlane_b32 s31, v{t0}
        s_mul_i32 s10, s{sBR}, 40
        v_and_b32 v0, 63, v0
        s_add_u32 s4, s0, s10
        s_addc_u32 s5, s1, 0
        s_cmp_lt_u32 s31, 4
        s_cbranch_scc1 L_compute""")
    ids = f"""s_and_b32 s{sQ}, s2, 3
        s_bfe_u32 s{sJ}, s2, 0x20003
        s_lshr_b32 s{sRG}, s2, 5
        s_and_b32 s{sW}, s31, 3
        s_lshl_b32 s{sM4}, s{sW}, 12"""

    def exchange_setup():
        return mksrd(SRD_WS, 28, 268435456) + ops(f"""s_lshl_b32 s10, s{sBR}, 3
            s_add_u32 s10, s10, s{sRG}
            s_lshl_b32 s{sG}, s10, 2
            s_add_u32 s{sG}, s{sG}, s{sJ}
            s_lshl_b32 s10, s{sG}, 18
            s_add_u32 s10, s10, s{sM4}
            s_lshl_b32 s11, s{sQ}, 14
            s_add_u32 s{sRS}, s10, s11
            s_lshl_b32 s11, s{sQ}, 16
            s_add_u32 s{sRL}, s10, s11
            s_lshl_b32 s10, s{sBR}, 3
            s_add_u32 s10, s10, s{sRG}
            s_lshl_b32 s10, s10, 7
            s_lshl_b32 s11, s{sQ}, 3
            s_add_u32 s10, s10, s11
            s_lshl_b32 s11, s{sW}, 5
            s_add_u32 s11, s11, s10
            s_lshl_b32 s11, s11, 11
            s_add_u32 s{sPL}, s11, {WS_P}
            s_lshr_b32 s11, s{sW}, 1
            s_lshl_b32 s11, s11, 6
            s_add_u32 s10, s10, s11
            s_lshl_b32 s11, s{sJ}, 1
            s_add_u32 s10, s10, s11
            s_and_b32 s11, s{sW}, 1
            s_add_u32 s10, s10, s11
            s_lshl_b32 s10, s10, 11
            s_add_u32 s{sPS}, s10, {WS_P}
            s_lshl_b32 s10, s{sG}, 13
            s_lshl_b32 s11, s{sW}, 9
            s_add_u32 s10, s10, s11
            s_add_u32 s{sFLD}, s10, {WS_FL}
            s_lshl_b32 s11, s{sQ}, 11
            s_add_u32 s{sFLM}, s{sFLD}, s11
            v_mov_b32 v{t0}, {OOB}
            v_cmp_eq_u32 vcc, 0, v0
            v_mov_b32 v{t2}, 0
            v_mov_b32 v{vONE}, 1
            v_cndmask_b32 v{vFL0}, v{t0}, v{t2}, vcc
            v_lshlrev_b32 v{vL8}, 3, v0""")

    A = ls.add
    def dma(vo, srd_, so, q, mod, g, fill): return Op(f"buffer_load_dwordx4 v{vo}, s[{srd_}:{srd_+3}], s{so} offen offset:{(q%4)*1024} {mod} lds", group=g, fill=fill)
    def dma_w(t):
        kc, dh = t // 2, t % 2; s = t % 4; g = ("W", t); items = []
        if dh == 0:
            for q in range(4):
                it = []
                if q == 0:
                    if kc: it += [Op(f"s_add_u32 s{sKC}, s{sKC}, 1"), Op(f"s_cmp_eq_u32 s{sKC}, 10"), Op(f"s_cselect_b32 s{sKC}, 0, s{sKC}")]
                    it += [Op(f"s_lshl_b32 s{sT1}, s{sKC}, 7"), Op(f"s_add_u32 s{sT1}, s{sT1}, s{sX0}"),
                           Op(f"s_lshl_b32 s{sT0}, s{sKC}, 19"), Op(f"s_add_u32 s{sT0}, s{sT0}, s{sWQ0}"),
                           Op(f"s_add_u32 m0, s{sM4}, {XB + (kc%2)*16384}", wm0=True)]
                it.append(dma(vX + q, SRD_X, sT1, q, "nt" if t >= 20 - P["ntlast"] else P["nt_x"], g, [(f"X{kc%2}", kc)]))
                items.append(it)
        for q in range(4):
            it = []
            if q == 0:
                if dh == 1: it.append(Op(f"s_xor_b32 s{sT0}, s{sT0}, 128"))
                it.append(Op(f"s_add_u32 m0, s{sM4}, {16384*s}", wm0=True))
            it.append(dma(vW + q, SRD_WQ, sT0, q, "nt" if t >= 20 - P["ntlast"] else P["nt_w"], g, [(f"S{s}", t)]))
            items.append(it)
        return items
    def dma_k(n):
        it = []
        if n % 4 == 0:
            it += [Op(f"s_add_u32 s{sT2}, s{sK0}, {(n//8)*262144 + ((n%8)//4)*4096}"), Op(f"s_lshl_b32 s{sT3}, s{sM4}, 2"),
                   Op(f"s_add_u32 m0, s{sT3}, {KB + (n//4)*4096}")]
        it.append(dma(vK + n % 4, SRD_K, sT2, n, P["nt_k"], ("K", 0), [("K", 100), ("Kp", 100)]))
        return it
    def head_ops(s, dst): return [Op(f"s_lshl_b32 s{dst}, s{sJ}, 1"), Op(f"s_add_u32 s{dst}, s{dst}, {s//2}"), Op(f"s_and_b32 s{dst}, s{dst}, 7")]
    def dma_v(s):
        L = head_ops(s, sT2) + [Op(f"s_lshl_b32 s{sT2}, s{sT2}, 13"), Op(f"s_add_u32 s{sT2}, s{sT2}, s{sV0}")]
        if s % 2: L.append(Op(f"s_add_u32 s{sT2}, s{sT2}, 128"))
        L.append(Op(f"s_add_u32 m0, s{sM4}, {16384*(s%4)}"))
        return L + [dma(vV + q, SRD_V, sT2, q, P["nt_v"], ("V", s), [(f"S{s%4}", 200 + s)]) for q in range(4)]
    def dma_wo(s):
        k = s % 4; fill = [(r, 200 + s) for r in wo_regions(k)]
        L = head_ops(s, sT2) + [Op(f"s_mul_i32 s{sT2}, s{sT2}, {128*1280}"), Op(f"s_add_u32 s{sT2}, s{sT2}, s{sWO0}")]
        if s % 2: L.append(Op(f"s_add_u32 s{sT2}, s{sT2}, {64*1280}"))
        for q in range(5):
            if q % 4 == 0: L.append(Op(f"s_add_u32 m0, s{sM5}, {WOB + 20480*k + 1024*q}"))
            L.append(dma(vWo + q, SRD_WO, sT2, q, P["nt_wo"], ("Wo", s), fill))
        return L
    nlab = [0]
    def arrived(regs, reload, tmp):
        k = nlab[0]; nlab[0] += 1; regs = list(regs); L = []
        L.append(f"v_max3_u32 v{tmp}, v{regs[0]}, v{regs[1]}, v{regs[2]}")
        rest_ = regs[3:]
        while len(rest_) >= 2: L.append(f"v_max3_u32 v{tmp}, v{tmp}, v{rest_[0]}, v{rest_[1]}"); rest_ = rest_[2:]
        if rest_: L.append(f"v_max_u32 v{tmp}, v{tmp}, v{rest_[0]}")
        L.append(f"v_cmp_eq_u32 vcc, -1, v{tmp}")
        tail.extend([f"L_spin{k}:", f"s_mov_b32 s{sSPIN}, 0", f"L_spin{k}a:"] + [o.text for o in reload] + ["s_waitcnt vmcnt(0)"] + L +
                    [f"s_add_u32 s{sSPIN}, s{sSPIN}, 1", f"s_cmp_gt_u32 s{sSPIN}, 50000", f"s_cbranch_scc1 L_back{k}",
                     f"s_cbranch_vccnz L_spin{k}a", f"s_branch L_back{k}"])
        return [Op(x) for x in L] + [Op("s_nop 0"), Op(f"s_cbranch_vccnz L_spin{k}"), Op(f"L_back{k}:")]
    def poll(): return Op(f"buffer_load_dword v{vFLAG}, v{vFL}, {WSR}, s{sFLM} offen sc1")
    def need(mask):
        k = nlab[0]; nlab[0] += 1
        tail.extend([f"L_spin{k}:", f"s_mov_b32 s{sSPIN}, 0", f"L_spin{k}a:",
                     f"buffer_load_dword v{vFLAG}, v{vFL}, {WSR}, s{sFLM} offen sc1", "s_waitcnt vmcnt(0)",
                     f"v_cmp_ne_u32 vcc, 0, v{vFLAG}", f"s_add_u32 s{sSPIN}, s{sSPIN}, 1", f"s_cmp_gt_u32 s{sSPIN}, 100000", f"s_cbranch_scc1 L_back{k}",
                     f"s_and_b32 s{sT2}, vcc_lo, {mask}", f"s_cmp_lg_u32 s{sT2}, {mask}", f"s_cbranch_scc1 L_spin{k}a", f"s_branch L_back{k}"])
        return ops(f"v_cmp_ne_u32 vcc, 0, v{vFLAG}\ns_and_b32 s{sT2}, vcc_lo, {mask}\ns_cmp_lg_u32 s{sT2}, {mask}\ns_cbranch_scc1 L_spin{k}\nL_back{k}:")
    def fetch(k, r):
        L = ops(f"s_add_u32 s{sT2}, s{sQ}, {3 - k + 4}\ns_and_b32 s{sT2}, s{sT2}, 3\ns_lshl_b32 s{sT2}, s{sT2}, 14\ns_add_u32 s{sT2}, s{sT2}, s{sRL}")
        if k < 3: L += [Op(f"buffer_load_dwordx4 {v(r+4*nt,4)}, v{vL16}, {WSR}, s{sT2} offen offset:{1024*nt} sc1") for nt in range(2)]
        return L + [Op(f"buffer_load_dwordx2 {v(r+8,2)}, v{vL8}, {WSR}, s{sT2} offen offset:2048 sc1")]
    def addin(k, r):
        L = []
        if k < 3:
            for nt in range(2):
                for jt in range(2): L.append(mfma(LZ + 8 * nt + 4 * jt, v(lID + 2 - 2 * jt, 4), v(r + 4 * nt, 4)))
        return L + [mfma(LZ + 16, v(lID + 2, 4), v(r + 8, 4))]

    A(f"s_load_dwordx2 s[{SRD_X}:{SRD_X+1}], s[4:5], 0\ns_load_dwordx2 s[{SRD_WQ}:{SRD_WQ+1}], s[4:5], 24")
    if P["prio_l"]: A(f"s_setprio {P['prio_l']}")
    A(ids)
    xr = P["xrot"]
    A(f"""s_mul_i32 s{sKC}, s{sRG}, 5
        v_lshrrev_b32 v{t0}, 4, v0
        s_mul_i32 s10, s{sJ}, 5
        v_lshrrev_b32 v{t4}, 3, v0
        s_lshr_b32 s{sKC}, s{sKC}, 2
        v_and_b32 v{t1}, 7, v0
        s_lshr_b32 s10, s10, 1
        v_mul_u32_u24 v{t2}, 1280, v{t4}
        s_add_u32 s{sKC}, s{sKC}, s10
        v_xor_b32 v{t3}, v{t1}, v{t0}
        s_add_u32 s{sKC}, s{sKC}, {'s%d' % sQ if xr else 0}
        v_lshl_add_u32 v{vX}, v{t3}, 4, v{t2}
        {mod10(sKC, 30)}
        v_xor_b32 v{t3}, 4, v{t3}
        s_lshl_b32 s10, s{sRG}, 2
        v_lshl_add_u32 v{vX+1}, v{t3}, 4, v{t2}
        s_add_u32 s10, s10, s{sW}
        v_add_u32 v{vX+2}, {2*9216}, v{vX}
        s_mul_i32 s{sX0}, s10, 40960
        v_add_u32 v{vX+3}, {3*9216}, v{vX+1}
        s_mov_b32 s{SRD_X+2}, {SZ['x']}
        v_add_u32 v{vX+1}, 9216, v{vX+1}
        s_mov_b32 s{SRD_X+3}, 0x00020000""")
    assert xr in (0, 1)
    if not P["rot"]: A(f"s_mov_b32 s{sKC}, 0")
    wsetup = ops(f"""v_bfe_u32 v{t3}, v0, 1, 3
        s_lshl_b32 s10, s{sQ}, 2
        v_xor_b32 v{t3}, v{t3}, v{t0}
        s_add_u32 s10, s10, s{sJ}
        v_and_b32 v{t2}, 4, v{t3}
        s_lshl_b32 s{sWQ0}, s10, 9
        v_and_b32 v{t3}, 3, v{t3}
        s_lshl_b32 s10, s{sW}, 17
        v_lshlrev_b32 v{t2}, 6, v{t2}
        s_add_u32 s{sWQ0}, s{sWQ0}, s10
        v_lshl_or_b32 v{t3}, v{t3}, 5, v{t2}
        s_lshl_b32 s{sT0}, s{sKC}, 19
        v_and_b32 v{t2}, 1, v0
        s_add_u32 s{sT0}, s{sT0}, s{sWQ0}
        v_lshl_or_b32 v{t3}, v{t2}, 4, v{t3}
        s_mov_b32 s{SRD_WQ+2}, {SZ['wq']}
        v_lshl_or_b32 v{vW}, v{t0}, 13, v{t3}
        s_mov_b32 s{SRD_WQ+3}, 0x00020000
        v_add_u32 v{vW+1}, {32768 - 1024}, v{vW}
        v_xor_b32 v{vW+2}, 0x100, v{vW}
        v_add_u32 v{vW+3}, {3*(32768 - 1024)}, v{vW+2}
        v_add_u32 v{vW+2}, {2*(32768 - 1024)}, v{vW+2}""")
    A(stamp("k0", "l"))
    w0 = dma_w(0); w0[0] = [o for o in w0[0] if f"s{sT0}," not in o.text]
    A(w0[:1]); A(stamp("k1", "l")); A(w0[1:4]); A(wsetup); A(w0[4:]); A(stamp("k2", "l"))
    A(f"""s_load_dwordx2 s[{SRD_K}:{SRD_K+1}], s[4:5], 8
        s_load_dwordx2 s[{SRD_V}:{SRD_V+1}], s[4:5], 16
        s_load_dwordx2 s[{SRD_WO}:{SRD_WO+1}], s[4:5], 32
        s_load_dwordx2 s[{SRD_OUT}:{SRD_OUT+1}], s[0:1], 80
        s_load_dwordx2 s[{SRD_WS}:{SRD_WS+1}], s[0:1], 96
        v_lshlrev_b32 v{vL16}, 4, v0""")
    if P["code_pf"]:
        A("s_getpc_b64 s[22:23]\nL_pc:")
        A(f"""s_lshr_b32 s10, s2, 3
            s_lshl_b32 s10, s10, 11
            v_and_b32 v{t2}, 15, v0
            v_lshlrev_b32 v{t2}, 7, v{t2}
            v_add_u32 v{t2}, s10, v{t2}
            v_min_u32 v{t2}, CODE_SPAN, v{t2}
            s_sub_u32 s22, s22, CODE_BACK
            s_subb_u32 s23, s23, 0
            global_load_dword v{t5}, v{t2}, s[22:23]""")
    rest = mksrd(SRD_K, 14, SZ["k"]) + ops(f"""v_and_b32 v{t2}, 15, v0
        v_xor_b32 v{t2}, v{t2}, v{t0}
        v_lshlrev_b32 v{t2}, 4, v{t2}
        v_lshl_or_b32 v{vK}, v{t0}, 8, v{t2}
        v_xor_b32 v{vK+1}, 64, v{vK}
        v_xor_b32 v{vK+2}, 0x80, v{vK}
        v_xor_b32 v{vK+3}, 0xc0, v{vK}
        v_lshlrev_b32 v{t2}, 1, v{t0}
        v_xor_b32 v{t2}, v{t2}, v{t1}
        v_lshlrev_b32 v{t2}, 4, v{t2}
        v_lshl_or_b32 v{vV}, v{t4}, 8, v{t2}
        v_add_u32 v{vV+1}, 1024, v{vV}
        v_add_u32 v{vV+2}, 2048, v{vV}
        v_add_u32 v{vV+3}, 3072, v{vV}
        s_lshl_b32 s10, s{sRG}, 1
        s_lshr_b32 s11, s{sW}, 1
        s_add_u32 s10, s10, s11
        s_lshl_b32 s10, s10, 6
        s_lshl_b32 s11, s{sQ}, 3
        s_add_u32 s10, s10, s11
        s_lshl_b32 s11, s{sJ}, 1
        s_add_u32 s10, s10, s11
        s_and_b32 s11, s{sW}, 1
        s_add_u32 s10, s10, s11
        s_lshl_b32 s{sK0}, s10, 13
        s_lshr_b32 s{sPH}, s2, 3
        s_lshl_b32 s10, s{sRG}, 2
        s_add_u32 s10, s10, s{sW}
        s_lshl_b32 s10, s10, 2
        s_add_u32 s10, s10, s{sQ}
        s_lshl_b32 s{sV0}, s10, 16""") + mksrd(SRD_V, 16, SZ["v"]) + mksrd(SRD_WO, 20, SZ["wo"])
    rest += exchange_setup()
    rest += ops(f"""v_lshlrev_b32 v{vPF}, 7, v0
        v_min_u32 v{t2}, 23, v0
        v_mul_u32_u24 v{t3}, 86, v{t2}
        v_lshrrev_b32 v{t3}, 8, v{t3}
        v_mul_u32_u24 v{vPF2}, {1280 - 384}, v{t3}
        v_lshl_add_u32 v{vPF2}, v{t2}, 7, v{vPF2}
        s_lshl_b32 s10, s{sQ}, 5
        s_add_u32 s10, s10, s{sRG}
        s_lshl_b32 s10, s10, 2
        s_add_u32 s10, s10, s{sW}
        s_mul_i32 s10, s10, 10240
        s_mul_i32 s11, s{sJ}, 320
        s_and_b32 s11, s11, 0xffffff80
        s_add_u32 s{sTCH}, s10, s11
        v_mov_b32 v{t2}, {OOB}
        v_cmp_gt_u32 vcc, 3, v0
        s_nop 1
        v_cndmask_b32 v{vFL}, v{t2}, v{vPF}, vcc""")
    g1 = dma_w(1); nf = P["first"]; side = g1[:nf]; k = 0
    for i, o in enumerate(rest):
        A(o)
        if k < len(side) and (k + 1) * len(rest) <= (i + 1) * len(side): A(side[k]); k += 1
    A(side[k:])
    if P["bal"]:
        A(f"""s_mul_i32 s10, s{sRG}, 5
            s_lshr_b32 s10, s10, 2
            s_sub_u32 s10, s{sKC}, s10
            s_lshr_b32 s11, s{sRG}, 2
            s_mul_i32 s11, s11, 5
            s_add_u32 s10, s10, s11
            s_add_u32 s10, s10, 14
            {mod10(10, 30)}
            {mod10(10, 30)}
            s_lshl_b32 s10, s10, 19
            s_and_b32 s11, s{sRG}, 3
            s_lshl_b32 s11, s11, 17
            s_add_u32 s10, s10, s11
            s_lshl_b32 s11, s{sW}, 15
            s_add_u32 s10, s10, s11
            s_and_b32 s11, s{sWQ0}, 0x1fff
            s_add_u32 s10, s10, s11
            v_bfe_u32 v{t2}, v0, 2, 2
            v_and_b32 v{t3}, 3, v0
            v_lshlrev_b32 v{t3}, 7, v{t3}
            v_lshl_or_b32 v{t2}, v{t2}, 13, v{t3}
            buffer_load_dword v{t6}, v{t2}, s[{SRD_WQ}:{SRD_WQ+3}], s10 offen""")
    if P["bal"] > 1:
        A(f"""s_add_u32 s10, s{sKC}, 4
            {mod10(10, 30)}
            s_lshl_b32 s10, s10, 7
            s_lshl_b32 s11, s{sRG}, 3
            s_add_u32 s11, s11, s{sW}
            s_mul_i32 s11, s11, 20480
            s_add_u32 s10, s10, s11
            s_bitcmp1_b32 s{sJ}, 0
            s_cselect_b32 s10, {OOB}, s10
            v_and_b32 v{t3}, 15, v0
            v_mul_u32_u24 v{t3}, 1280, v{t3}
            buffer_load_dword v{vPF2+2}, v{t3}, s[{SRD_X}:{SRD_X+3}], s10 offen""")
    late = mksrd(SRD_OUT, 24, SZ["out"]) + ops(f"""s_mov_b32 s{sCT}, s{sJ}
        s_lshl_b32 s10, s{sRG}, 2
        s_add_u32 s10, s10, s{sW}
        s_mul_i32 s10, s10, {32*2560}
        s_mul_i32 s11, s{sBR}, 1280
        s_add_u32 s10, s10, s11
        s_mul_i32 s11, s{sCT}, 320
        s_add_u32 s10, s10, s11
        s_lshl_b32 s30, s{sQ}, 6
        s_add_u32 s{sOUT0}, s10, s30
        s_and_b32 s30, s{sQ}, 1
        s_mul_i32 s30, s30, {16*2560}
        s_add_u32 s10, s10, s30
        s_lshr_b32 s30, s{sQ}, 1
        s_lshl_b32 s30, s30, 5
        s_add_u32 s10, s10, s30
        s_add_u32 s{sOUT1}, s10, 256
        s_lshl_b32 s10, s{sQ}, 6
        s_add_u32 s10, s10, s{sW}
        s_mul_i32 s10, s10, {16*1280}
        s_add_u32 s{sWO0}, s10, s11
        s_mul_i32 s{sM5}, s{sW}, 5120
        s_add_u32 s10, s{sQ}, 1
        s_movk_i32 s11, 3277""")
    for q in range(5):
        late += ops(f"""v_add_u32 v{t0}, {64*q}, v0
            v_mul_u32_u24 v{t1}, s11, v{t0}
            v_lshrrev_b32 v{t1}, 16, v{t1}
            v_mul_u32_u24 v{t2}, 20, v{t1}
            v_sub_u32 v{t0}, v{t0}, v{t2}
            v_lshrrev_b32 v{t2}, 2, v{t0}
            v_add_u32 v{t3}, s10, v{t2}
            v_and_b32 v{t3}, 3, v{t3}
            v_cmp_gt_u32 vcc, 4, v{t2}
            v_and_b32 v{t0}, 3, v{t0}
            v_bfe_u32 v{t4}, v{t1}, 2, 1
            v_cndmask_b32 v{t2}, v{t2}, v{t3}, vcc
            v_lshlrev_b32 v{t4}, 1, v{t4}
            v_xor_b32 v{t0}, v{t0}, v{t4}
            v_lshlrev_b32 v{t0}, 4, v{t0}
            v_lshl_or_b32 v{t0}, v{t2}, 6, v{t0}
            v_mul_u32_u24 v{t1}, 1280, v{t1}
            v_add_u32 v{vWo+q}, v{t0}, v{t1}""")
        if q % 4: late.append(Op(f"v_subrev_u32 v{vWo+q}, {1024*(q%4)}, v{vWo+q}"))
    FA = 16384
    late += ops(f"""v_and_b32 v{t0}, 15, v0
        v_lshrrev_b32 v{t1}, 4, v0
        v_lshrrev_b32 v{t2}, 1, v{t1}
        v_bfe_u32 v{t3}, v0, 1, 2
        v_xor_b32 v{t3}, v{t3}, v{t2}
        v_lshlrev_b32 v{t3}, 4, v{t3}
        v_and_b32 v{t4}, 1, v{t1}
        v_lshl_or_b32 v{t3}, v{t4}, 3, v{t3}
        v_lshl_or_b32 v{t3}, v{t0}, 6, v{t3}
        s_add_u32 s10, s{sM4}, {FA}
        v_add_u32 v{vFA}, s10, v{t3}
        v_lshlrev_b32 v{t3}, 3, v{t1}
        v_lshl_or_b32 v{t3}, v{t0}, 5, v{t3}
        s_add_u32 s11, s10, 2048
        v_add_u32 v{vFA2}, s11, v{t3}
        v_add_u32 v{vFB2}, s11, v{vL16}
        v_lshrrev_b32 v{t0}, 2, v0
        v_and_b32 v{t1}, 3, v0
        v_bfe_u32 v{t2}, v0, 3, 2
        v_xor_b32 v{t2}, v{t2}, v{t1}
        v_lshlrev_b32 v{t2}, 4, v{t2}
        v_lshl_or_b32 v{t2}, v{t0}, 6, v{t2}
        v_add_u32 v{vFB}, s10, v{t2}
        v_mul_u32_u24 v{t0}, 2560, v{t0}
        v_lshl_or_b32 v{vOA}, v{t1}, 4, v{t0}
        v_add_u32 v{vOB}, {16*2560}, v{vOA}
        v_lshrrev_b32 v{t0}, 1, v0
        v_and_b32 v{t1}, 1, v0
        v_mul_u32_u24 v{t0}, 2560, v{t0}
        v_lshl_or_b32 v{t0}, v{t1}, 4, v{t0}
        v_mov_b32 v{t1}, {OOB}
        v_cmp_gt_u32 vcc, 32, v0
        v_add_u32 v{lZa}, s{sM4}, v{vL16}
        v_mov_b32 v{lID}, 0
        v_cndmask_b32 v{vOC}, v{t1}, v{t0}, vcc
        v_and_b32 v{t0}, 1, v0
        v_lshlrev_b32 v{t0}, 4, v{t0}
        v_mov_b32 v{t1}, 0x3f80
        v_lshlrev_b32 v{t0}, v{t0}, v{t1}
        v_lshrrev_b32 v{t1}, 4, v0
        v_bfe_u32 v{t2}, v0, 2, 2
        v_cmp_eq_u32 vcc, v{t1}, v{t2}
        v_mov_b32 v{lID+1}, 0
        v_and_b32 v{t2}, 3, v0
        v_cndmask_b32 v{t0}, v{lID}, v{t0}, vcc
        v_cmp_gt_u32 vcc, 2, v{t2}
        v_mov_b32 v{lID+4}, 0
        v_mov_b32 v{lID+5}, 0
        v_cndmask_b32 v{lID+2}, v{lID}, v{t0}, vcc
        v_cndmask_b32 v{lID+3}, v{t0}, v{lID}, vcc""")
    late += [Op(f"v_mov_b32 v{LZ+q}, 0") for q in range(20)] + [Op(f"v_mov_b32 v{LINC+12*q+10+e}, 0") for q in range(4) for e in range(2)]
    A("s_waitcnt lgkmcnt(0)")
    A(stamp("lstart", "l"))
    def lbar(*groups): return [Op("WAITG", group=g) for g in groups] + [BAR()]
    A(lbar(("W", 0))[:-1]); A(stamp("k3", "l")); A(BAR())
    clx = P["clx"]; vdma = dict(P["vdma"])
    def touch(dj):
        return ops(f"""s_add_u32 s{sT3}, s{sJ}, {dj}
            s_and_b32 s{sT3}, s{sT3}, 3
            s_mul_i32 s{sT3}, s{sT3}, {256*1280}
            s_add_u32 s{sT3}, s{sT3}, s{sTCH}
            buffer_load_dword v{t5}, v{vPF2}, s[{SRD_WO}:{SRD_WO+3}], s{sT3} offen""")
    def touch_v(hd):
        return ops(f"""s_lshl_b32 s{sT2}, s{sJ}, 14
            s_add_u32 s{sT2}, s{sT2}, s{sV0}
            s_add_u32 s{sT2}, s{sT2}, {hd*8192}
            buffer_load_dword v{t6}, v{vPF}, s[{SRD_V}:{SRD_V+3}], s{sT2} offen""")
    def piece(p):
        if p[0] == "T": return touch(int(p[1]))
        if p[0] == "U": return touch_v(int(p[1]))
        return [y for n in range(4 * int(p[1]), 4 * int(p[1]) + 4) for y in dma_k(n)]
    nl = len(late); parts = {1: late[:nl // 3], 5: late[nl // 3:2 * nl // 3], 10: late[2 * nl // 3:]}
    NV = P["nv"]; variants = []; lst = {}
    if NV > 1:
        A(f"s_and_b32 s10, s{sPH}, {NV-1}")
        for ph in range(1, NV): A(f"s_cmp_eq_u32 s10, {ph}\ns_cbranch_scc1 L_var{ph}")
    head = ls.ops
    for ph in range(NV):
        V_ = [Op(f"L_var{ph}:")]
        q_ = [(1, [Op(o.text, **o.meta) for o in it]) for it in g1[nf:]] + [(t, it) for t in range(2, 20) for it in dma_w(t)]
        quiet = set()
        for x in range(0, 20):
            cl_ = [y for pcs, xc in clx if xc + ph * P['phstep'] == x for p_ in pcs for y in piece(p_)]
            if cl_:
                quiet |= {x + d for d in P["skip"]}
            if not P["cend"]: V_ += cl_
            n = 0
            while q_ and q_[0][0] <= x + LA and (q_[0][0] <= x + 1 or (x not in quiet and n < (P["cap0"] if x == 0 else P["cap"]))):
                V_ += q_.pop(0)[1]; n += 1
            if P["cend"]: V_ += cl_
            if x in parts: V_ += [Op(o.text, **o.meta) for o in parts[x]]
            if x == P["pfx"]: V_ += touch(0)
            if x in vdma:
                V_ += dma_v(vdma[x])
            V_ += lbar(("W", x + 1))
            if ph == 0: lst[x] = stamp(f"l{x}", "l")
            V_ += [Op(o.text) for o in lst[x]]
        fixed = []; cur = want = None
        for o in V_:
            if o.text.startswith("s_add_u32 m0"):
                cur = o.text
                if o.meta.get("wm0"): want = o.text
            if o.kind == "dma" and o.meta["group"][0] == "W" and cur is not None and cur != want: assert want; fixed.append(Op(want)); cur = want
            fixed.append(o)
        V_ = fixed
        V_.append(Op("s_branch L_join"))
        variants.append(V_)
    ls.ops = []
    A("L_join:")
    A(BAR())
    todo = [s_ for s_ in range(4) if s_ not in vdma.values()]
    early = [s_ for s_ in todo if s_ < 3]
    A(dma_wo(0))
    for s_ in early: A(dma_v(s_))
    A(dma_wo(1))
    A([Op("WAITL")] + lbar(("V", 0), ("Wo", 0)))
    A(stamp("m0", "l"))
    def pieces(L):
        out = [[]]
        for o in L:
            out[-1].append(o)
            if o.kind == "dma": out.append([])
        return out[:-1]
    q2 = []
    for x in range(0, NS):
        if x + 2 <= 15: q2 += [(x, x + 1, it) for it in pieces(dma_wo(x + 2))]
        if x + 3 <= 15 and (x >= 1 or 3 in todo): q2 += [(x, x + 2, it) for it in pieces(dma_v(x + 3))]
    quiet = {x + d for x in P["tch"] for d in P["skip2"]}
    for x in range(0, NS):
        n = 0
        while q2 and q2[0][0] <= x and (x == NS - 1 or any(e[1] <= x for e in q2) or (x not in quiet and n < P["cap2"])):
            A(q2.pop(0)[2]); n += 1
        if x in P["tch"]: A(touch(P["tch"][x]))
        A(stamp(f'd{x}', 'l'))
        g = [("V", x + 1), ("Wo", x + 1)] + ([("V", x + 2)] if x == NS - 1 else [])
        A(lbar(*g))
        A(stamp(f"m{x+1}", "l"))
    if NS + 2 <= 15: A(dma_wo(NS + 2))
    if NS + 3 <= 15: A(dma_v(NS + 3))
    if NF == 4:
        A(lbar(("V", 14), ("Wo", 13)))
        A(dma_wo(15)); A(lbar(("V", 15), ("Wo", 14)))
        A(lbar(("Wo", 15)))
    elif NF == 3: A(lbar(("V", 15), ("Wo", 14)) + lbar(("Wo", 15)))
    else: A(lbar(("V", 15), ("Wo", 15)))
    zrd = [Op(f"ds_read_b128 {v(LZC+4*q,4)}, v{lZa} offset:{q*1024}", use=[("S0", 290)]) for q in range(4)]
    if P["early"]:
        if P["early"] == 2: A(BAR())
        A(poll())
        A(need(1) + fetch(0, LINC) + [poll()])
        A(need(2) + fetch(1, LINC + 12) + addin(0, LINC))
        A(stamp("c1", "l"))
        A(BAR())
        A(fetch(3, LINC + 36) + [poll()]); A(zrd); A(addin(1, LINC + 12))
    else:
        A(BAR()); A(stamp("bt1", "l"))
        A([poll()] + fetch(3, LINC + 36)); A(zrd)
        A(need(1) + fetch(0, LINC))
        A(need(2) + fetch(1, LINC + 12) + [poll()])
        A(stamp("c1", "l"))
        A(addin(0, LINC) + addin(1, LINC + 12))
    A(need(4) + fetch(2, LINC + 24) + addin(3, LINC + 36))
    A("s_nop 7")
    for q in range(16): A(f"v_add_f32 v{LZ+q}, v{LZ+q}, v{LZC+q}")
    A(f"v_xor_b32 v{t0}, 32, v{vFA}")
    A(addin(2, LINC + 24))
    A(stamp("c2", "l"))
    FK = [("S1", 300)]
    for nt in range(2):
        for jt in range(2):
            d = LPK + 4 * nt + 2 * jt; z = LZ + 8 * nt + 4 * jt
            A([cvt(d, z), cvt(d + 1, z + 2)])
            A(Op(f"ds_write_b64 v{t0 if nt else vFA}, {v(d,2)} offset:{jt*1024}", fill=FK, private=True))
    A([cvt(LPK + 8, LZ + 16), cvt(LPK + 9, LZ + 18), Op(f"ds_write_b64 v{vFA2}, {v(LPK+8,2)}", fill=FK, private=True)])
    A(Op(f"ds_read_b128 {v(LINC,4)}, v{vFB}", use=FK, private=True))
    A(Op(f"ds_read_b128 {v(LINC+4,4)}, v{vFB} offset:1024", use=FK, private=True))
    A(Op(f"ds_read_b128 {v(LINC+12,4)}, v{vFB2}", use=FK, private=True))
    A(f"buffer_store_dwordx4 {v(LINC,4)}, v{vOA}, {OUTR}, s{sOUT0} offen {P['out_mod']}")
    A(f"buffer_store_dwordx4 {v(LINC+4,4)}, v{vOB}, {OUTR}, s{sOUT0} offen {P['out_mod']}")
    A(f"buffer_store_dwordx4 {v(LINC+12,4)}, v{vOC}, {OUTR}, s{sOUT1} offen {P['out_mod']}")
    if P["dbg"] or P["x_seg"]: A("s_waitcnt vmcnt(0)"); A(stamp("lend", "l"))
    if P["x_seg"]:
        A(f"s_sub_u32 s10, s16, s14\ns_mul_i32 s10, s10, 8\ns_memrealtime s[14:15]\ns_waitcnt lgkmcnt(0)")
        A(f"L_amp:\ns_sleep 2\ns_memrealtime s[16:17]\ns_waitcnt lgkmcnt(0)\ns_sub_u32 s11, s16, s14\ns_cmp_lt_u32 s11, s10\ns_cbranch_scc1 L_amp")
    A(dump())
    if P["x_amp"]:
        A(f"s_waitcnt vmcnt(0)\ns_memrealtime s[{sST}:{sST+1}]\ns_waitcnt lgkmcnt(0)\ns_sub_u32 s10, s{sST}, s{sST+4}\ns_mul_i32 s10, s10, {P['x_amp']}")
        A(f"L_amp:\ns_sleep 2\ns_memrealtime s[{sST}:{sST+1}]\ns_waitcnt lgkmcnt(0)\ns_sub_u32 s11, s{sST}, s{sST+4}\ns_cmp_lt_u32 s11, s10\ns_cbranch_scc1 L_amp")
    A("L_end:\ns_endpgm")

    A = cs.add
    A("L_compute:")
    A(ids)
    A(f"v_lshlrev_b32 v{vL16}, 4, v0")
    if P["prio_c"]: A(f"s_setprio {P['prio_c']}")
    l16, g, r, c4 = t0, t1, t2, t3
    u0, u1 = ABUF, ABUF + 1
    A(f"""v_and_b32 v{l16}, 15, v0
        v_lshrrev_b32 v{g}, 4, v0
        v_bfe_u32 v{r}, v0, 2, 2
        v_and_b32 v{c4}, 3, v0
        v_and_b32 v{t5}, 1, v{g}
        v_lshl_or_b32 v{t4}, v{t5}, 2, v{r}
        s_and_b32 s10, s{sW}, 1
        s_lshl_b32 s11, s10, 2
        v_lshl_add_u32 v{u0}, v{g}, 3, v{r}
        v_lshlrev_b32 v{u0}, 8, v{u0}
        v_lshl_or_b32 v{u0}, v{c4}, 3, v{u0}
        v_xor_b32 v{u1}, s11, v{t4}
        v_lshl_or_b32 v{aW}, v{u1}, 5, v{u0}
        v_xor_b32 v{aW+1}, 32, v{aW}
        v_xor_b32 v{aW+2}, 64, v{aW}
        v_xor_b32 v{aW+3}, 0x60, v{aW}
        v_lshrrev_b32 v{u1}, 1, v{l16}
        v_xor_b32 v{u1}, v{u1}, v{g}
        v_lshlrev_b32 v{u1}, 4, v{u1}
        v_lshl_or_b32 v{u1}, v{l16}, 7, v{u1}
        s_lshr_b32 s11, s{sW}, 1
        s_lshl_b32 s30, s11, 13
        s_add_u32 s{sT0}, s30, {XB}
        v_add_u32 v{aX}, s{sT0}, v{u1}
        v_xor_b32 v{aX+1}, 64, v{aX}
        s_lshl_b32 s10, s10, 11
        s_add_u32 s10, s10, s30
        s_add_u32 s10, s10, {PB}
        v_add_u32 v{vPW}, s10, v{vL16}
        s_add_u32 s10, s{sM4}, {PB}
        v_add_u32 v{vPR}, s10, v{vL16}
        v_add_u32 v{vZ}, s{sM4}, v{vL16}
        v_lshrrev_b32 v{u0}, 1, v{g}
        v_xor_b32 v{u0}, v{u0}, v{l16}
        v_lshlrev_b32 v{u0}, 4, v{u0}
        v_lshl_or_b32 v{u0}, v{t5}, 3, v{u0}
        v_lshl_or_b32 v{u0}, v{l16}, 8, v{u0}
        s_lshl_b32 s10, s{sM4}, 2
        s_add_u32 s10, s10, {KB}
        v_add_u32 v{u0}, s10, v{u0}
        v_mov_b32 v{kR}, v{u0}
        s_load_dwordx2 s[{SRD_DBG}:{SRD_DBG+1}], s[0:1], 88
        s_load_dwordx2 s[{SRD_WS}:{SRD_WS+1}], s[0:1], 96""")
    for q in range(1, 8): A(f"v_xor_b32 v{kR+q}, {32*q}, v{kR}")
    late_c = ops(f"""v_lshrrev_b32 v{t3}, 2, v0
        v_bfe_u32 v{t4}, v0, 3, 2
        v_lshlrev_b32 v{t4}, 5, v{t4}
        v_and_b32 v{t5}, 3, v0
        v_lshl_or_b32 v{t4}, v{t5}, 3, v{t4}
        v_lshl_or_b32 v{t4}, v{t3}, 7, v{t4}
        v_add_u32 v{aV}, s{sM4}, v{t4}
        v_xor_b32 v{aV+1}, 32, v{aV}
        v_xor_b32 v{aV+2}, 64, v{aV}
        v_xor_b32 v{aV+3}, 0x60, v{aV}
        v_mul_u32_u24 v{t3}, 320, v{t3}
        v_lshl_add_u32 v{t3}, v{t5}, 3, v{t3}
        v_add_u32 v{t3}, {WOB}, v{t3}
        v_bfe_u32 v{t5}, v0, 4, 1
        v_lshlrev_b32 v{t5}, 5, v{t5}
        v_add_u32 v{aWo}, v{t3}, v{t5}
        v_sub_u32 v{aWo+1}, v{t3}, v{t5}
        v_add_u32 v{aWo+2}, 61440, v{aWo}
        v_add_u32 v{aWo+3}, 61440, v{aWo+1}""")
    A(f"""s_mov_b32 s{sC}, {f2u(SCALE_LOG2E)}
        s_mov_b32 s{sC+1}, {f2u(SCALE_LOG2E)}
        s_waitcnt lgkmcnt(0)""")
    A(exchange_setup())
    cbar = lambda: [Op("WAITL"), BAR()]
    vNAN, vZERO = aWo, aV
    A(mksrd(SRD_DBG, 26, 256))
    A(f"""s_lshl_b32 s10, s{sW}, 3
        s_add_u32 s{sHS}, s{sJ}, s10
        s_lshr_b32 s{sT1}, s{sG}, 2
        s_lshl_b32 s{sT1}, s{sT1}, 4
        s_add_u32 s{sT0}, s{sPS}, 65536
        v_mov_b32 v{t2}, {OOB}
        v_cmp_gt_u32 vcc, 24, v0
        v_mov_b32 v{vNAN-1}, -1
        v_mov_b32 v{vNAN}, -1
        v_cndmask_b32 v{t3}, v{t2}, v{vL16}, vcc
        v_mov_b32 v{vNAN+1}, -1
        v_mov_b32 v{vNAN+2}, -1
        v_mov_b32 v{vZERO-1}, 0
        v_mov_b32 v{vZERO}, 0
        v_mov_b32 v{vZERO+1}, 0
        v_mov_b32 v{vZERO+2}, 0""")
    clears = [Op(f"buffer_store_dwordx4 {v(vNAN-1,4)}, v{vL16}, {WSR}, s{so} offen offset:{off} sc1", group="clr") for so in (sPS, sT0) for off in (0, 1024)]
    clears.append(Op(f"buffer_store_dwordx4 {v(vZERO-1,4)}, v{t3}, {WSR}, s{sFLM} offen sc1", group="clr"))

    def rdA1(t, i):
        s = t % 4; buf = ABUF + 8 * ((4 * t + i) % 3)
        return [Op(f"ds_read_b64_tr_b16 {v(buf+4*ss+2*h,2)}, v{aW+i} offset:{s*16384 + ss*8192 + h*1024}", use=[(f"S{s}", t)]) for ss in range(2) for h in range(2)]
    def rdB(kc):
        return [Op(f"ds_read_b128 {v(BB+32*(kc%2)+8*jt+4*ss,4)}, v{aX+ss} offset:{(kc%2)*16384 + jt*2048}", use=[(f"X{kc%2}", kc)]) for jt in range(4) for ss in range(2)]
    if P["clr"][0] < 0: A(clears)
    A(BAR())
    A(stamp("start"))
    b0 = rdB(0); a0 = rdA1(0, 0)
    A(a0[:2] + b0[:1] + a0[2:] + b0[1:] + rdA1(0, 1))
    T = Ticks()
    for t in range(20):
        kc, dh = t // 2, t % 2
        for i in range(4):
            buf = ABUF + 8 * ((4 * t + i) % 3)
            for jt in range(4):
                for ss in range(2):
                    d = ACC + 16 * (4 * dh + i) + 4 * jt
                    T.add(mfma(d, v(buf + 4 * ss, 4), v(BB + 32 * (kc % 2) + 8 * jt + 4 * ss, 4), "0" if (kc == 0 and ss == 0) else None))
                    if jt == 0 and ss == 0: T.m[-1].meta["also"] = range(buf, buf + 8)
    for t in range(20):
        b = 32 * t
        for q, o in enumerate(rdA1(t, 2)): T.put(b + q, o, 2)
        for q, o in enumerate(rdA1(t, 3)): T.put(b + 8 + q, o, 2)
        T.put(b + BP, cbar(), 1)
        if t < 19:
            for q, o in enumerate(rdA1(t + 1, 0)): T.put(b + BP + q, o, 2)
            for q, o in enumerate(rdA1(t + 1, 1)): T.put(b + 24 + q, o, 2)
            if t % 2 == 1:
                for pos, o in zip([BP + 4, BP + 5, BP + 6, 28, 29, 30, 31, 32], rdB((t + 1) // 2)): T.put(b + pos, o, 3)
        T.put(b + 31, stamp(f"w{t}"), 9)
    def qreg(sd, j4): return ACC + 32 * sd + 4 * j4
    def pack(d, e): return [cvt(d, d), cvt(d + 1, d + 2), cvt(d + 2, e), cvt(d + 3, e + 2)]
    def qcvt(sd, j4): return pack(qreg(sd, j4), qreg(sd, j4) + 16)
    def krd(b): return [Op(f"ds_read_b64 {v(BB+32*b+16*kt+4*sd+2*h,2)}, v{kR+2*sd+h} offset:{b*8192 + kt*4096}", use=[("K", 100), ("Kp", 100)]) for sd in range(4) for kt in range(2) for h in range(2)]
    b18, b19 = 32 * 18, 32 * 19
    c0, c1 = P["clr"]; assert c1 < P["hs0"] - 1
    if c0 < 0: pre_clears = clears
    else: T.spread(clears, 32 * c0 + 4, 32 * c1 + 4, 6)
    T.put(32 * (P["hs0"] - 1) + BP, Op("WAITG", group="clr"), 0.5)
    for q in range(4):
        T.put(32 * (P["hs0"] + q) + 5, [Op(f"s_cmp_lg_u32 s{sHS}, {q}"), Op(f"s_cbranch_scc1 L_hs{q}"),
              Op(f"buffer_atomic_add v{vONE}, v{vFL0}, {DBGR}, s{sT1} offen sc1", uncounted=True), Op(f"L_hs{q}:")], 7)
    T.put(32 * 16 + 5, [Op(f"s_cmp_lg_u32 s{sW}, 0"), Op("s_cbranch_scc1 L_hsl"),
          Op(f"buffer_load_dword v{t2}, v{vFL0}, {DBGR}, s{sT1} offen sc1", uncounted=True), Op("L_hsl:")], 7)
    T.put(b19 + BP, [Op(f"s_cmp_lg_u32 s{sW}, 0"), Op("s_cbranch_scc1 L_hsc"), Op("s_waitcnt vmcnt(0)", cond=True, raw=True),
          Op(f"v_readfirstlane_b32 s{sT3}, v{t2}", cond=True), Op("s_nop 1", cond=True), Op(f"s_cmp_lt_u32 s{sT3}, 16", cond=True, nohaz=True),
          Op("s_cbranch_scc1 L_hs_spin", cond=True), Op("L_hsc:")], 0.5)
    tail.extend(["L_hs_spin:", f"s_mov_b32 s{sSPIN}, 0", "L_hs_spin1:",
         f"buffer_load_dword v{t2}, v{vFL0}, {DBGR}, s{sT1} offen sc1", "s_waitcnt vmcnt(0)",
         f"v_readfirstlane_b32 s{sT3}, v{t2}", f"s_add_u32 s{sSPIN}, s{sSPIN}, 1", f"s_cmp_gt_u32 s{sSPIN}, 100000", "s_cbranch_scc1 L_hsc",
         f"s_cmp_lt_u32 s{sT3}, 16", "s_cbranch_scc1 L_hs_spin1", "s_branch L_hsc"])
    T.spread(late_c, 32 * 14, 32 * 14 + 15, 4)
    T.spread(krd(0), b18 + 4, b18 + 15, 4)
    T.spread([o for j4 in range(4) for o in qcvt(0, j4)], b18 + 20, b18 + 31, 5)
    T.spread([o for j4 in range(4) for o in qcvt(1, j4)], b19 + 4, b19 + 16, 5)
    T.spread([o for j4 in range(4) for o in qcvt(2, j4)], b19 + 20, b19 + 31, 5)
    T.flush(cs)
    A(stamp("g1"))

    def sreg(b, jt, kt): return ACC + 16 + 32 * b + 8 * jt + 4 * kt
    def softmax(b):
        tmp = ACC + 80 + 8 * b; pf = PF + 8 * b; L = []
        cols = [(sreg(b, c, 0), tmp + 4 * c) for c in range(2)]
        def both(f):
            for x, y in zip(f(*cols[0]), f(*cols[1])): L.extend([Op(x), Op(y)])
        (s0, m0_), (s1, m1_) = cols
        def across(op):
            L.extend(ops(f"""v_permlane32_swap_b32 v{m0_}, v{m1_}
                {op} v{m0_}, v{m0_}, v{m1_}
                v_mov_b32 v{m1_}, v{m0_}
                v_permlane16_swap_b32 v{m0_}, v{m1_}
                {op} v{m0_}, v{m0_}, v{m1_}"""))
        def spread_back(): L.extend(ops(f"v_mov_b32 v{m1_}, v{m0_}\nv_permlane32_swap_b32 v{m0_}, v{m1_}"))
        both(lambda s, m: [f"v_max3_f32 v{m}, v{s}, v{s+1}, v{s+2}", f"v_max3_f32 v{m+1}, v{s+3}, v{s+4}, v{s+5}",
                           f"v_max3_f32 v{m}, v{m}, v{s+6}, v{s+7}", f"v_max_f32 v{m}, v{m}, v{m+1}"])
        across("v_max_f32"); L.append(Op(f"v_mul_f32 v{m0_}, s{sC}, v{m0_}")); spread_back()
        both(lambda s, m: [f"v_pk_fma_f32 v[{s+q}:{s+q+1}], v[{s+q}:{s+q+1}], s[{sC}:{sC+1}], v[{m}:{m+1}] op_sel_hi:[1,1,0] neg_lo:[0,0,1] neg_hi:[0,0,1]" for q in range(0, 8, 2)])
        both(lambda s, m: [f"v_exp_f32 v{s+q}, v{s+q}" for q in range(8)])
        both(lambda s, m: [f"v_pk_add_f32 v[{m}:{m+1}], v[{s}:{s+1}], v[{s+2}:{s+3}]", f"v_pk_add_f32 v[{m+2}:{m+3}], v[{s+4}:{s+5}], v[{s+6}:{s+7}]",
                           f"v_pk_add_f32 v[{m}:{m+1}], v[{m}:{m+1}], v[{m+2}:{m+3}]", f"v_add_f32 v{m}, v{m}, v{m+1}"])
        across("v_add_f32"); L.append(Op(f"v_rcp_f32 v{m0_}, v{m0_}")); spread_back()
        both(lambda s, m: [f"v_pk_mul_f32 v[{s+q}:{s+q+1}], v[{s+q}:{s+q+1}], v[{m}:{m+1}] op_sel_hi:[1,0]" for q in range(0, 8, 2)])
        if b: L.append(Op(f"s_add_u32 s{sPS}, s{sPS}, 65536"))
        for c in range(2):
            for q in range(4): L.append(cvt(pf + 4 * c + q, cols[c][0] + 2 * q))
            L.append(Op(f"buffer_store_dwordx4 {v(pf+4*c,4)}, v{vL16}, {WSR}, s{sPS} offen offset:{1024*c} sc1"))
            L.append(Op(f"ds_write_b128 v{vPW}, {v(pf+4*c,4)} offset:{b*4096 + c*1024}", fill=[("P", 300), ("Kp", 300)]))
        return L
    T = Ticks()
    for b in range(2):
        for sd in range(4):
            for kt in range(2):
                for jt in range(2):
                    T.add(mfma(sreg(b, jt, kt), v(BB + 32 * b + 16 * kt + 4 * sd, 4), v(qreg(sd, 2 * b + jt), 4), "0" if sd == 0 else None))
    T.spread(krd(1), 0, 5, 2)
    T.spread([o for j4 in range(2) for o in qcvt(3, j4)], 1, 6, 3)
    T.spread([o for j4 in range(2, 4) for o in qcvt(3, j4)], 7, 12, 3)
    T.put(P["bk"], cbar(), 1)
    sm0 = softmax(0); sm1 = softmax(1)
    n0 = P['sm_in']; T.spread(sm0[:n0], 20, 31, 5)
    T.flush(cs)
    A(stamp("qk"))
    if P["smix"]:
        a_, b_ = sm0[n0:], sm1
        k_ = [i for i, o in enumerate(b_) if o.text.startswith("s_add_u32")][0]
        mix = a_[:4]; i_, j_ = 4, 0
        while i_ < len(a_) or j_ < len(b_):
            if j_ < len(b_) and (j_ < k_ or i_ >= len(a_)): mix.append(b_[j_]); j_ += 1
            if i_ < len(a_): mix.append(a_[i_]); i_ += 1
        A(mix)
    else: A(sm0[n0:]); A(stamp("sm0")); A(sm1)
    A(stamp("att"))

    def rdP(gen): return [Op(f"ds_read_b128 {v(PRB[0][2*hd+jt],4)}, v{vPR} offset:{hd*2048 + jt*1024}", use=[("P", gen)]) for hd in range(2) for jt in range(2)]
    def ldP(dj):
        return ops(f"s_add_u32 s{sT2}, s{sJ}, {dj}\ns_and_b32 s{sT2}, s{sT2}, 3\ns_lshl_b32 s{sT2}, s{sT2}, 12\ns_add_u32 s{sT2}, s{sT2}, s{sPL}") + \
            [Op(f"buffer_load_dwordx4 {v(PRB[dj%2][q],4)}, v{vL16}, {WSR}, s{sT2} offen offset:{1024*q} sc1") for q in range(4)]
    def rdV(s): return [Op(f"ds_read_b64_tr_b16 {v(VF+4*i+2*h,2)}, v{aV+i} offset:{(s%4)*16384 + h*2048}", use=[(f"S{s%4}", 200 + s)]) for i in range(4) for h in range(2)]
    def pvreg(s, i, jt):
        if s < NS + 1 or NF == 1: return PVB[s % 2] + 8 * i + 4 * jt
        return fin_regs[s][2 * i + jt]
    e0, e1 = PVB[NS % 2], PVB[(NS + 1) % 2]
    fin_regs = {NS + 1: [e1 + 4 * q for q in range(8)],
                NS + 2: [e0 + 8, e0 + 12, e1 + 8, e1 + 12, e0 + 24, e0 + 28, e1 + 24, e1 + 28],
                NS + 3: [e1 + 8, e1 + 12, PRB[0][0], PRB[0][1], e1 + 24, e1 + 28, PRB[0][2], PRB[0][3]]}
    def pvm(s): return [mfma(pvreg(s, i, jt), v(VF + 4 * i, 4), v(PRB[(s // 4) % 2][2 * ((s // 2) % 2) + jt], 4), "0") for i in range(4) for jt in range(2)]
    _pvm = pvm
    def pvm(s):
        L = _pvm(s); L[0].meta["also"] = range(VF, VF + 8); L[4].meta["also"] = range(VF + 8, VF + 16)
        return L
    def pvc(s): return [o for ss in range(2) for jt in range(2) for o in pack(pvreg(s, 2 * ss, jt), pvreg(s, 2 * ss + 1, jt))]
    nA = [0]
    def rdA2(s, t):
        k = s % 4; buf = A2 + 8 * (nA[0] % 4); nA[0] += 1
        ad = aWo + (t % 2) + (2 if k == 3 else 0); base = 0 if k == 3 else k * 20480
        return buf, [Op(f"ds_read_b64_tr_b16 {v(buf+4*ss+2*h,2)}, v{ad} offset:{base + ss*10240 + h*5120 + t*32}", use=[(f"Wo{k}", 200 + s)]) for ss in range(2) for h in range(2)]
    def owo(s, t, buf):
        L = [mfma(OUTA + 8 * t + 4 * jt, v(buf + 4 * ss, 4), v(pvreg(s, 2 * ss, jt), 4), "0" if (s == 0 and ss == 0) else None) for jt in range(2) for ss in range(2)]
        L[0].meta["also"] = range(buf, buf + 8)
        return L
    steps = [(s, t) for s in range(NS) for t in range(10)]
    order = [8, 9, 0, 1, 2, 3, 4, 5, 6, 7]
    steps += [(s, t) for s in range(NS, 16) for t in order[:2]] + [(s, t) for t in order[2:] for s in range(NS, 16)]
    rd = [rdA2(s, t) for s, t in steps]
    A(cbar())
    A(stamp("bp"))
    p0 = rdP(300)
    A(p0[:2] + rdV(0) + p0[2:] + rd[0][1])
    A(pvm(0)); A(rd[1][1] + rd[2][1]); A(pvc(0))
    T = Ticks(); at = []; pvat = {}
    for n, (s, t) in enumerate(steps):
        if (s < NS and t == 6) or (NS <= s < 15 and t == 8):
            pvat[s + 1] = len(T.m)
            for o in pvm(s + 1): T.add(o)
        at.append(len(T.m))
        for o in owo(s, t, rd[n][0]): T.add(o)
    fin0 = pvat[NS + 1]; BX = fin0 - 4
    BM = at[steps.index((13, 8))]
    BL2 = at[steps.index((15, 8)) - P["bl2"]] if NF >= 3 else BX
    for n in range(3, len(steps)):
        base = at[n - 3]
        if P["smooth"] and n < 10 * NS and steps[n][1] in (8, 9): base = pvat[steps[n][0] + 1] + 4 * (steps[n][1] - 8)
        if steps[n][0] > NS: base = max(base, BX)
        if steps[n][0] == 14 and NF == 4: base = max(base, BM)
        if steps[n][0] == 15: base = max(base, BL2)
        for q, o in enumerate(rd[n][1]): T.put(base + q, o, 2)
    for s in range(NS):
        b = at[10 * s]
        T.put(b + BP2, BAR(), 1)
        if P["smooth"]:
            T.spread(rdV(s + 1), b + BP2, b + BP2 + 7, 1.5)
            c_ = pvc(s + 1); T.spread(c_[:8], b + 31, b + 34, 4); T.spread(c_[8:], b + 35, b + 44, 4)
        else:
            T.spread(rdV(s + 1), b + BP2, b + BP2 + 3, 1.5)
            T.spread(pvc(s + 1), b + 35, b + 46, 4)
        T.put(b + 47, stamp(f"o{s}"), 9)
    T.put(BX, BAR(), 1)
    if NF == 4: T.put(BM, BAR(), 1)
    if NF >= 3: T.put(BL2, BAR(), 1)
    for s2 in range(NS + 1, 16):
        T.spread(rdV(s2), pvat[s2] - 8, pvat[s2] - 5, 1.6)
        T.spread(pvc(s2), pvat[s2] + 9, pvat[s2] + 15, 1.7)
    for dj in range(1, 4):
        ps, pt = P["pld"][dj - 1]; L = ldP(dj)
        T.spread([L[:5], L[5], L[6], L[7]], at[10 * ps] + pt, at[10 * ps] + pt + 6, 6)
        chk = arrived([r_ + e for r_ in PRB[dj % 2] for e in range(4)], ldP(dj), t0)
        b = at[10 * (4 * dj - 1)] + P["pchk"]
        T.spread(chk[:-4], b - 4, b - 1, 6); T.put(b, chk[-4:] + stamp(f"pc{dj}"), 6)
    end = len(T.m); flags = []
    def done(t): return at[steps.index((15, t))] + 3
    T.put(BX - 1, stamp("bx0"), 9); T.put(BX, stamp("bx1"), 1.1); T.put(BL2 - 1, stamp("bl0"), 9); T.put(BL2, stamp("bl1"), 1.1)
    for t_ in (9, 1, 3, 5): T.put(done(t_), stamp(f"f{t_}"), 9)
    L = []
    for m in range(4):
        L += [cvt(PK + 2 * m, OUTA + 64 + 4 * m), cvt(PK + 2 * m + 1, OUTA + 64 + 4 * m + 2),
              [Op(f"s_add_u32 s{sT2}, s{sRS}, {m*65536 + 2048}"), Op(f"buffer_store_dwordx2 {v(PK+2*m,2)}, v{vL8}, {WSR}, s{sT2} offen sc1", group=("R", -1))]]
    T.spread(L, done(9) + 3, done(9) + 8 * NF - 2, 4)
    for k in range(3):
        L = []; pk = SPARE if k % 2 == 0 else PK
        dest = f"s_add_u32 s{{0}}, s{sQ}, {k+1}\ns_and_b32 s{{0}}, s{{0}}, 3"
        for nt in range(2):
            for jt in range(2):
                z = OUTA + 8 * (2 * k + nt) + 4 * jt
                L += [cvt(pk + 4 * nt + 2 * jt, z), cvt(pk + 4 * nt + 2 * jt + 1, z + 2)]
            it = ops(dest.format(sT2) + f"\ns_lshl_b32 s{sT2}, s{sT2}, 16\ns_add_u32 s{sT3}, s{sT2}, s{sRS}") if nt == 0 else []
            L.append(it + [Op(f"buffer_store_dwordx4 {v(pk+4*nt,4)}, v{vL16}, {WSR}, s{sT3} offen offset:{1024*nt} sc1", group=("R", k))])
        T.spread(L[:5], done(2 * k) + 3, done(2 * k) + 2 * NF + 1, 4); T.spread(L[5:], done(2 * k + 1) + 3, done(2 * k + 1) + 2 * NF + 1, 4)
        fl = [Op("WAITG", group=("R", k))] + ops(dest.format(sT2) + f"\ns_lshl_b32 s{sT2}, s{sT2}, 11\ns_add_u32 s{sT2}, s{sT2}, s{sFLD}")
        fl.append(Op(f"buffer_store_dword v{vONE}, v{vFL0}, {WSR}, s{sT2} offen offset:{k*128} sc1"))
        tf = done(2 * k + 1) + 2 * NF + 1 + P["cover"]
        if tf < end: T.put(tf, fl, 6)
        else: flags.append(fl)
    if P["early"] == 2: T.put(min(done(5) + P["bt1"], end - 1), BAR(), 8)
    T.flush(cs)
    A(stamp("g2"))
    zw = [Op(f"ds_write_b128 v{vZ}, {v(OUTA+48+4*q,4)} offset:{q*1024}", fill=[("S0", 290)], wpriv=True) for q in range(4)]
    A(flags[:-1]); A(zw); A(flags[-1:])
    A(cbar())
    A(stamp("end"))
    A(dump())
    A("s_endpgm")

    sc, sl = {}, {}
    def drop(st, pred): st.ops = [o for o in st.ops if not pred(o)]
    import re
    def hot(L):
        for name, srd_ in (("v", SRD_V), ("o", SRD_WO), ("k", SRD_K), ("w", SRD_WQ), ("x", SRD_X)):
            if name in P["x_hot"]:
                L = [Op(re.sub(r"\], s\d+ offen", "], 0 offen", o.text), **o.meta) if (o.kind in ("dma", "vld") and f"s[{srd_}:" in o.text) else o for o in L]
        return L
    if P['x_nost']: drop(cs, lambda o: o.kind == 'vst' and isinstance(o.meta.get('group'), tuple))
    clines = cs.finalize(sc); seg = []; nb = None
    for ph, V_ in enumerate(variants):
        lf = Stream(); lf.nocheck = True; lf.ops = hot(pro.ops + head + V_ + ls.ops)
        L = lf.finalize(sl); i0 = L.index(f"L_var{ph}:"); i1 = L.index("L_join:")
        seg.append((L[:i0], L[i0:i1], L[i1:]))
        assert seg[-1][0] == seg[0][0] and seg[-1][2] == seg[0][2]
        nb = check_handoffs([cs.events, lf.events]); assert nb[0] == nb[1], nb
    lines = seg[0][0] + [l for x in seg for l in x[1]] + seg[0][2] + tail + clines
    a = Asm(); kernel_begin(a, KNAME)
    for l in lines: a(l)
    a("L_code_end:")
    body = a.text().replace("CODE_SPAN", f"L_code_end-{KNAME}-4").replace("CODE_BACK", f"L_pc-{KNAME}")
    write_file(path, ["; @launch grid=(256,1,1) block=(512,1,1) lds=163840"], body, [descriptor(KNAME, 256, 256)])
    return sc, sl, nb

if __name__ == "__main__":
    out = sys.argv[1] if len(sys.argv) > 1 else f"cdna_kernels/{NAME}.s"
    kw = {}
    for x in sys.argv[2:]:
        k, val = x.split("=", 1)
        try: val = eval(val)
        except Exception: pass
        kw[k] = val
    print(build(out, **kw))
```

```python
import sys, struct
from common import *
from ops import Op, Stream, check_handoffs

def f2u(f): return struct.unpack("<I", struct.pack("<f", f))[0]
SCALE_LOG2E = 128 ** -0.5 * 1.4426950408889634
KNAME = NAME + "_kernel"

DEF = dict(
    nt_w="", nt_x="", nt_k="nt", nt_v="", nt_wo="", bpos=17, bpos2=19, code_pf=1, dbg=0, rot=1, xrot=1, flip=0,
    stamps=("start", "g1", "att", "g2", "end"), lstamps=(),
    clx=((('K0', 'K1'), 3), (('K2', 'K3'), 9)), tch={0: 1, 4: 2, 8: 3}, skip2=(1,), cap2=11, nv=4, vdma={17: 0, 18: 1}, x_hot='', cend=1, skip=(1,), cap=8, tlb=99, cap0=99, phstep=1, clr=(2, 6), bal=0, first=4, prio_l=0, prio_c=0, la=3, pfx=15, smooth=1, sm_in=16, smix=1, bk=8, nf=4, bl2=2, pld=((2, 8), (5, 8), (9, 8)), pchk=24, hs0=8, cover=80, early=0, bt1=12, fsm=1, pvt=7, dist=3, p1=0, chain=1, x_nost=0,
    out_mod="sc1", ntlast=0, x_amp=0, x_seg=None, x_nomfma=0, x_nodma=0,
)

WS_R = 0
WS_P = 16 << 20
WS_FL = 20 << 20
WS_DBG = 32 << 20
OOB = 0x40000000

XB, KB = 65536, 98304
WOB, PB = 65536, 147456

sW, sJ, sRG, sG, sBR = 3, 6, 7, 8, 9
sFLIP, sPH, sKC, sQ = 32, 33, 34, 35
SRD_X, SRD_K, SRD_V, SRD_WQ, SRD_WO, SRD_OUT, SRD_DBG, SRD_WS = 36, 40, 44, 48, 52, 56, 60, 64
sWQ0, sX0, sK0, sV0, sWO0, sM4, sM5 = 68, 69, 70, 71, 72, 73, 74
sT0, sT1, sT2, sT3 = 75, 76, 77, 78
sRS, sRL, sPS, sFLD, sPL, sC, sHS, sCT, sFLM = 79, 80, 81, 82, 83, 84, 89, 86, 98
sSPIN = 88
sOUT0, sOUT1 = 90, 91
sTCH = 87
sST = 92
WSR = f"s[{SRD_WS}:{SRD_WS+3}]"; DBGR = f"s[{SRD_DBG}:{SRD_DBG+3}]"; OUTR = f"s[{SRD_OUT}:{SRD_OUT+3}]"

vL16, vL8, vFL0, vONE = 28, 29, 30, 31
vT = 33
aW, aX, kR = 1, 5, 7
vPW, vPR, vZ = 15, 16, 17
aWo, aV = 19, 23
ABUF = 40; BB = 64; ACC = 128
PF = 40
OUTA = 176
PVB = [112, 144]
VF = 96
A2 = 64
PRB = [[40, 44, 48, 52], [56, 60, 2, 6]]
SPARE = 56
PK = 2
vW, vX, vK, vV, vWo = 1, 5, 9, 13, 17
vFLAG = 32
vFL = 22
lID = 40
lZa, vFA, vFA2, vFB, vFB2, vOA, vOB, vOC, vPF, vPF2 = 46, 47, 48, 49, 50, 51, 52, 53, 54, 55
LINC = 64
LZ = 112
LZC = 136
LPK = 152
VP = 192
vVW = 56

def v(b, n=1): return vr(b, n)
def mfma(d, A, B, C=None): return Op(f"v_mfma_f32_16x16x32_bf16 {v(d,4)}, {A}, {B}, {v(d,4) if C is None else C}")
def cvt(d, s0): return Op(f"v_cvt_pk_bf16_f32 v{d}, v{s0}, v{s0+1}")
def ops(text): return [Op(x) for x in text.split("\n") if x.strip()]

class Ticks:
    def __init__(self): self.m = []; self.f = []
    def add(self, op): self.m.append(op); self.f.append([]); return len(self.m) - 1
    def put(self, t, o, prio=5):
        if not isinstance(o, (list, tuple)): o = [o]
        self.f[t].append((prio, len(self.f[t]), [Op(x) if isinstance(x, str) else x for x in o]))
    def spread(self, items, t0, t1, prio=5):
        n = len(items)
        for q, it in enumerate(items): self.put(t0 + (q * (t1 - t0 + 1)) // n, it, prio)
    def flush(self, st):
        for m, f in zip(self.m, self.f):
            st.add(m)
            for _, _, o in sorted(f, key=lambda x: (x[0], x[1])): st.add(o)

def weave(st, main, side, first=0):
    n, m = len(main), len(side); k = 0
    for i, o in enumerate(main):
        st.add(o)
        while k < m and i >= first and (k + 1) * (n - first) <= (i + 1 - first) * m: st.add(side[k]); k += 1
    while k < m: st.add(side[k]); k += 1

def build(path, **kw):
    P = dict(DEF); P.update(kw)
    BP, BP2, LA, NF = P["bpos"], P["bpos2"], P["la"], P["nf"]
    NS = 16 - NF
    tail = []
    pro = Stream(); cs = Stream(); ls = Stream()
    for s in (pro, cs, ls): s.nocheck = True
    t0, t1, t2, t3, t4, t5, t6 = range(vT, vT + 7)
    nst = {"c": 0, "l": 0}
    def stamp(name, role="c"):
        if P["x_seg"] and role == "l" and name in P["x_seg"]:
            r_ = 14 + 2 * P["x_seg"].index(name)
            return [Op(f"s_memrealtime s[{r_}:{r_+1}]"), Op("s_waitcnt lgkmcnt(0)")]
        if not P["dbg"] or name not in P["stamps" if role == "c" else "lstamps"]: return []
        nst[role] += 1; i = nst[role]; assert i <= 13
        return [Op(f"s_memtime s[{sST}:{sST+1}]"), Op("s_waitcnt lgkmcnt(0)"), Op(f"s_mov_b32 s{sreg_(i)}, s{sST}")]
    def sreg_(i): return {1: 99, 2: 100, 3: 101}.get(i, 12 + i)
    def dump():
        if not P["dbg"]: return []
        L = ops(f"""s_waitcnt vmcnt(0)
            s_memrealtime s[{sST}:{sST+1}]
            s_waitcnt lgkmcnt(0)
            v_writelane_b32 v{t6}, s{sST+2}, 0
            v_writelane_b32 v{t6}, s{sST}, 15
            v_writelane_b32 v{t6}, s{sST+4}, 14""")
        L += [Op(f"v_writelane_b32 v{t6}, s{sreg_(i)}, {i}") for i in range(1, 14)]
        L += ops(f"""s_lshl_b32 s{sT2}, s2, 3
            s_add_u32 s{sT2}, s{sT2}, s31
            s_lshl_b32 s{sT2}, s{sT2}, 8
            s_add_u32 s{sT2}, s{sT2}, {WS_DBG}
            v_lshlrev_b32 v{t0}, 2, v0
            buffer_store_dword v{t6}, v{t0}, {WSR}, s{sT2} offen""")
        return L
    BAR = lambda: Op("s_barrier")
    def mksrd(dst, ptr, n): return ops(f"s_mov_b32 s{dst+2}, {n}\ns_mov_b32 s{dst+3}, 0x00020000")
    def mod10(x, tmp): return f"s_sub_u32 s{tmp}, s{x}, 10\ns_min_u32 s{x}, s{x}, s{tmp}"
    def wo_regions(k):
        lo, hi = WOB + 20480 * k, WOB + 20480 * (k + 1); r = [f"Wo{k}"]
        if lo < XB + 16384: r.append("X0")
        if lo < KB and hi > XB + 16384: r.append("X1")
        if hi > KB: r.append("K")
        return r

    A = pro.add
    A("s_cmp_ge_u32 s2, 256\ns_cbranch_scc1 L_end")
    if P["dbg"] or P["x_amp"]: A(f"s_memtime s[{sST+2}:{sST+3}]\ns_memrealtime s[{sST+4}:{sST+5}]")
    A(f"""v_lshrrev_b32 v{t0}, 6, v0
        s_bfe_u32 s{sBR}, s2, 0x10002
        v_readfirstlane_b32 s31, v{t0}
        s_mul_i32 s10, s{sBR}, 40
        v_and_b32 v0, 63, v0
        s_add_u32 s4, s0, s10
        s_addc_u32 s5, s1, 0
        s_cmp_lt_u32 s31, 4
        s_cbranch_scc1 L_compute""")
    ids = f"""s_and_b32 s{sQ}, s2, 3
        s_bfe_u32 s{sJ}, s2, 0x20003
        s_lshr_b32 s{sRG}, s2, 5
        s_and_b32 s{sW}, s31, 3
        s_lshl_b32 s{sM4}, s{sW}, 12"""

    def exchange_setup():
        return mksrd(SRD_WS, 28, 268435456) + ops(f"""s_lshl_b32 s10, s{sBR}, 3
            s_add_u32 s10, s10, s{sRG}
            s_lshl_b32 s{sG}, s10, 2
            s_add_u32 s{sG}, s{sG}, s{sJ}
            s_lshl_b32 s10, s{sG}, 18
            s_add_u32 s10, s10, s{sM4}
            s_lshl_b32 s11, s{sQ}, 14
            s_add_u32 s{sRS}, s10, s11
            s_lshl_b32 s11, s{sQ}, 16
            s_add_u32 s{sRL}, s10, s11
            s_lshl_b32 s10, s{sBR}, 3
            s_add_u32 s10, s10, s{sRG}
            s_lshl_b32 s10, s10, 7
            s_lshl_b32 s11, s{sQ}, 3
            s_add_u32 s10, s10, s11
            s_lshl_b32 s11, s{sW}, 5
            s_add_u32 s11, s11, s10
            s_lshl_b32 s11, s11, 11
            s_add_u32 s{sPL}, s11, {WS_P}
            s_lshr_b32 s11, s{sW}, 1
            s_lshl_b32 s11, s11, 6
            s_add_u32 s10, s10, s11
            s_lshl_b32 s11, s{sJ}, 1
            s_add_u32 s10, s10, s11
            s_and_b32 s11, s{sW}, 1
            s_add_u32 s10, s10, s11
            s_lshl_b32 s10, s10, 11
            s_add_u32 s{sPS}, s10, {WS_P}
            s_lshl_b32 s10, s{sG}, 13
            s_lshl_b32 s11, s{sW}, 9
            s_add_u32 s10, s10, s11
            s_add_u32 s{sFLD}, s10, {WS_FL}
            s_lshl_b32 s11, s{sQ}, 11
            s_add_u32 s{sFLM}, s{sFLD}, s11
            v_mov_b32 v{t0}, {OOB}
            v_cmp_eq_u32 vcc, 0, v0
            v_mov_b32 v{t2}, 0
            v_mov_b32 v{vONE}, 1
            v_cndmask_b32 v{vFL0}, v{t0}, v{t2}, vcc
            v_lshlrev_b32 v{vL8}, 3, v0""")

    A = ls.add
    def dma(vo, srd_, so, q, mod, g, fill): return Op(f"buffer_load_dwordx4 v{vo}, s[{srd_}:{srd_+3}], s{so} offen offset:{(q%4)*1024} {mod} lds", group=g, fill=fill)
    def dma_w(t):
        kc, dh = t // 2, t % 2; s = t % 4; g = ("W", t); items = []
        if dh == 0:
            for q in range(4):
                it = []
                if q == 0:
                    if kc: it += [Op(f"s_add_u32 s{sKC}, s{sKC}, 1"), Op(f"s_cmp_eq_u32 s{sKC}, 10"), Op(f"s_cselect_b32 s{sKC}, 0, s{sKC}")]
                    it += [Op(f"s_lshl_b32 s{sT1}, s{sKC}, 7"), Op(f"s_add_u32 s{sT1}, s{sT1}, s{sX0}"),
                           Op(f"s_lshl_b32 s{sT0}, s{sKC}, 19"), Op(f"s_add_u32 s{sT0}, s{sT0}, s{sWQ0}"),
                           Op(f"s_add_u32 m0, s{sM4}, {XB + (kc%2)*16384}", wm0=True)]
                it.append(dma(vX + q, SRD_X, sT1, q, "nt" if t >= 20 - P["ntlast"] else P["nt_x"], g, [(f"X{kc%2}", kc)]))
                items.append(it)
        for q in range(4):
            it = []
            if q == 0:
                if dh == 1: it.append(Op(f"s_xor_b32 s{sT0}, s{sT0}, 128"))
                it.append(Op(f"s_add_u32 m0, s{sM4}, {16384*s}", wm0=True))
            it.append(dma(vW + q, SRD_WQ, sT0, q, "nt" if t >= 20 - P["ntlast"] else P["nt_w"], g, [(f"S{s}", t)]))
            items.append(it)
        return items
    def dma_k(n):
        it = []
        if n % 4 == 0:
            it += [Op(f"s_add_u32 s{sT2}, s{sK0}, {(n//8)*262144 + ((n%8)//4)*4096}"), Op(f"s_lshl_b32 s{sT3}, s{sM4}, 2"),
                   Op(f"s_add_u32 m0, s{sT3}, {KB + (n//4)*4096}")]
        it.append(dma(vK + n % 4, SRD_K, sT2, n, P["nt_k"], ("K", 0), [("K", 100), ("Kp", 100)]))
        return it
    def head_ops(s, dst): return [Op(f"s_lshl_b32 s{dst}, s{sJ}, 1"), Op(f"s_add_u32 s{dst}, s{dst}, {s//2}"), Op(f"s_and_b32 s{dst}, s{dst}, 7")]
    def dma_v(s):
        L = head_ops(s, sT2) + [Op(f"s_lshl_b32 s{sT2}, s{sT2}, 13"), Op(f"s_add_u32 s{sT2}, s{sT2}, s{sV0}")]
        if s % 2: L.append(Op(f"s_add_u32 s{sT2}, s{sT2}, 128"))
        L.append(Op(f"s_add_u32 m0, s{sM4}, {16384*(s%4)}"))
        return L + [dma(vV + q, SRD_V, sT2, q, P["nt_v"], ("V", s), [(f"S{s%4}", 200 + s)]) for q in range(4)]
    def dma_wo(s):
        k = s % 4; fill = [(r, 200 + s) for r in wo_regions(k)]
        L = head_ops(s, sT2) + [Op(f"s_mul_i32 s{sT2}, s{sT2}, {128*1280}"), Op(f"s_add_u32 s{sT2}, s{sT2}, s{sWO0}")]
        if s % 2: L.append(Op(f"s_add_u32 s{sT2}, s{sT2}, {64*1280}"))
        for q in range(5):
            if q % 4 == 0: L.append(Op(f"s_add_u32 m0, s{sM5}, {WOB + 20480*k + 1024*q}"))
            L.append(dma(vWo + q, SRD_WO, sT2, q, P["nt_wo"], ("Wo", s), fill))
        return L
    nlab = [0]
    def arrived(regs, reload, tmp):
        k = nlab[0]; nlab[0] += 1; regs = list(regs); L = []
        L.append(f"v_max3_u32 v{tmp}, v{regs[0]}, v{regs[1]}, v{regs[2]}")
        rest_ = regs[3:]
        while len(rest_) >= 2: L.append(f"v_max3_u32 v{tmp}, v{tmp}, v{rest_[0]}, v{rest_[1]}"); rest_ = rest_[2:]
        if rest_: L.append(f"v_max_u32 v{tmp}, v{tmp}, v{rest_[0]}")
        L.append(f"v_cmp_eq_u32 vcc, -1, v{tmp}")
        tail.extend([f"L_spin{k}:", f"s_mov_b32 s{sSPIN}, 0", f"L_spin{k}a:"] + [o.text for o in reload] + ["s_waitcnt vmcnt(0)"] + L +
                    [f"s_add_u32 s{sSPIN}, s{sSPIN}, 1", f"s_cmp_gt_u32 s{sSPIN}, 50000", f"s_cbranch_scc1 L_back{k}",
                     f"s_cbranch_vccnz L_spin{k}a", f"s_branch L_back{k}"])
        return [Op(x) for x in L] + [Op("s_nop 0"), Op(f"s_cbranch_vccnz L_spin{k}"), Op(f"L_back{k}:")]
    def poll(): return Op(f"buffer_load_dword v{vFLAG}, v{vFL}, {WSR}, s{sFLM} offen sc1")
    def need(mask):
        k = nlab[0]; nlab[0] += 1
        tail.extend([f"L_spin{k}:", f"s_mov_b32 s{sSPIN}, 0", f"L_spin{k}a:",
                     f"buffer_load_dword v{vFLAG}, v{vFL}, {WSR}, s{sFLM} offen sc1", "s_waitcnt vmcnt(0)",
                     f"v_cmp_ne_u32 vcc, 0, v{vFLAG}", f"s_add_u32 s{sSPIN}, s{sSPIN}, 1", f"s_cmp_gt_u32 s{sSPIN}, 100000", f"s_cbranch_scc1 L_back{k}",
                     f"s_and_b32 s{sT2}, vcc_lo, {mask}", f"s_cmp_lg_u32 s{sT2}, {mask}", f"s_cbranch_scc1 L_spin{k}a", f"s_branch L_back{k}"])
        return ops(f"v_cmp_ne_u32 vcc, 0, v{vFLAG}\ns_and_b32 s{sT2}, vcc_lo, {mask}\ns_cmp_lg_u32 s{sT2}, {mask}\ns_cbranch_scc1 L_spin{k}\nL_back{k}:")
    def fetch(k, r):
        L = ops(f"s_add_u32 s{sT2}, s{sQ}, {3 - k + 4}\ns_and_b32 s{sT2}, s{sT2}, 3\ns_lshl_b32 s{sT2}, s{sT2}, 14\ns_add_u32 s{sT2}, s{sT2}, s{sRL}")
        if k < 3: L += [Op(f"buffer_load_dwordx4 {v(r+4*nt,4)}, v{vL16}, {WSR}, s{sT2} offen offset:{1024*nt} sc1") for nt in range(2)]
        return L + [Op(f"buffer_load_dwordx2 {v(r+8,2)}, v{vL8}, {WSR}, s{sT2} offen offset:2048 sc1")]
    def addin(k, r):
        L = []
        if k < 3:
            for nt in range(2):
                for jt in range(2): L.append(mfma(LZ + 8 * nt + 4 * jt, v(lID + 2 - 2 * jt, 4), v(r + 4 * nt, 4)))
        return L + [mfma(LZ + 16, v(lID + 2, 4), v(r + 8, 4))]

    A(f"s_load_dwordx2 s[{SRD_X}:{SRD_X+1}], s[4:5], 0\ns_load_dwordx2 s[{SRD_WQ}:{SRD_WQ+1}], s[4:5], 24")
    if P["prio_l"]: A(f"s_setprio {P['prio_l']}")
    A(ids)
    xr = P["xrot"]
    A(f"""s_mul_i32 s{sKC}, s{sRG}, 5
        v_lshrrev_b32 v{t0}, 4, v0
        s_mul_i32 s10, s{sJ}, 5
        v_lshrrev_b32 v{t4}, 3, v0
        s_lshr_b32 s{sKC}, s{sKC}, 2
        v_and_b32 v{t1}, 7, v0
        s_lshr_b32 s10, s10, 1
        v_mul_u32_u24 v{t2}, 1280, v{t4}
        s_add_u32 s{sKC}, s{sKC}, s10
        v_xor_b32 v{t3}, v{t1}, v{t0}
        s_add_u32 s{sKC}, s{sKC}, {'s%d' % sQ if xr else 0}
        v_lshl_add_u32 v{vX}, v{t3}, 4, v{t2}
        {mod10(sKC, 30)}
        v_xor_b32 v{t3}, 4, v{t3}
        s_lshl_b32 s10, s{sRG}, 2
        v_lshl_add_u32 v{vX+1}, v{t3}, 4, v{t2}
        s_add_u32 s10, s10, s{sW}
        v_add_u32 v{vX+2}, {2*9216}, v{vX}
        s_mul_i32 s{sX0}, s10, 40960
        v_add_u32 v{vX+3}, {3*9216}, v{vX+1}
        s_mov_b32 s{SRD_X+2}, {SZ['x']}
        v_add_u32 v{vX+1}, 9216, v{vX+1}
        s_mov_b32 s{SRD_X+3}, 0x00020000""")
    assert xr in (0, 1)
    if not P["rot"]: A(f"s_mov_b32 s{sKC}, 0")
    wsetup = ops(f"""v_bfe_u32 v{t3}, v0, 1, 3
        s_lshl_b32 s10, s{sQ}, 2
        v_xor_b32 v{t3}, v{t3}, v{t0}
        s_add_u32 s10, s10, s{sJ}
        v_and_b32 v{t2}, 4, v{t3}
        s_lshl_b32 s{sWQ0}, s10, 9
        v_and_b32 v{t3}, 3, v{t3}
        s_lshl_b32 s10, s{sW}, 17
        v_lshlrev_b32 v{t2}, 6, v{t2}
        s_add_u32 s{sWQ0}, s{sWQ0}, s10
        v_lshl_or_b32 v{t3}, v{t3}, 5, v{t2}
        s_lshl_b32 s{sT0}, s{sKC}, 19
        v_and_b32 v{t2}, 1, v0
        s_add_u32 s{sT0}, s{sT0}, s{sWQ0}
        v_lshl_or_b32 v{t3}, v{t2}, 4, v{t3}
        s_mov_b32 s{SRD_WQ+2}, {SZ['wq']}
        v_lshl_or_b32 v{vW}, v{t0}, 13, v{t3}
        s_mov_b32 s{SRD_WQ+3}, 0x00020000
        v_add_u32 v{vW+1}, {32768 - 1024}, v{vW}
        v_xor_b32 v{vW+2}, 0x100, v{vW}
        v_add_u32 v{vW+3}, {3*(32768 - 1024)}, v{vW+2}
        v_add_u32 v{vW+2}, {2*(32768 - 1024)}, v{vW+2}""")
    A(stamp("k0", "l"))
    w0 = dma_w(0); w0[0] = [o for o in w0[0] if f"s{sT0}," not in o.text]
    A(w0[:1]); A(stamp("k1", "l")); A(w0[1:4]); A(wsetup); A(w0[4:]); A(stamp("k2", "l"))
    A(f"""s_load_dwordx2 s[{SRD_K}:{SRD_K+1}], s[4:5], 8
        s_load_dwordx2 s[{SRD_V}:{SRD_V+1}], s[4:5], 16
        s_load_dwordx2 s[{SRD_WO}:{SRD_WO+1}], s[4:5], 32
        s_load_dwordx2 s[{SRD_OUT}:{SRD_OUT+1}], s[0:1], 80
        s_load_dwordx2 s[{SRD_WS}:{SRD_WS+1}], s[0:1], 96
        v_lshlrev_b32 v{vL16}, 4, v0""")
    if P["code_pf"]:
        A("s_getpc_b64 s[22:23]\nL_pc:")
        A(f"""s_lshr_b32 s10, s2, 3
            s_lshl_b32 s10, s10, 11
            v_and_b32 v{t2}, 15, v0
            v_lshlrev_b32 v{t2}, 7, v{t2}
            v_add_u32 v{t2}, s10, v{t2}
            v_min_u32 v{t2}, CODE_SPAN, v{t2}
            s_sub_u32 s22, s22, CODE_BACK
            s_subb_u32 s23, s23, 0
            global_load_dword v{t5}, v{t2}, s[22:23]""")
    rest = mksrd(SRD_K, 14, SZ["k"]) + ops(f"""v_and_b32 v{t2}, 15, v0
        v_xor_b32 v{t2}, v{t2}, v{t0}
        v_lshlrev_b32 v{t2}, 4, v{t2}
        v_lshl_or_b32 v{vK}, v{t0}, 8, v{t2}
        v_xor_b32 v{vK+1}, 64, v{vK}
        v_xor_b32 v{vK+2}, 0x80, v{vK}
        v_xor_b32 v{vK+3}, 0xc0, v{vK}
        v_lshlrev_b32 v{t2}, 1, v{t0}
        v_xor_b32 v{t2}, v{t2}, v{t1}
        v_lshlrev_b32 v{t2}, 4, v{t2}
        v_lshl_or_b32 v{vV}, v{t4}, 8, v{t2}
        v_add_u32 v{vV+1}, 1024, v{vV}
        v_add_u32 v{vV+2}, 2048, v{vV}
        v_add_u32 v{vV+3}, 3072, v{vV}
        s_lshl_b32 s10, s{sRG}, 1
        s_lshr_b32 s11, s{sW}, 1
        s_add_u32 s10, s10, s11
        s_lshl_b32 s10, s10, 6
        s_lshl_b32 s11, s{sQ}, 3
        s_add_u32 s10, s10, s11
        s_lshl_b32 s11, s{sJ}, 1
        s_add_u32 s10, s10, s11
        s_and_b32 s11, s{sW}, 1
        s_add_u32 s10, s10, s11
        s_lshl_b32 s{sK0}, s10, 13
        s_lshr_b32 s{sPH}, s2, 3
        s_lshl_b32 s10, s{sRG}, 2
        s_add_u32 s10, s10, s{sW}
        s_lshl_b32 s10, s10, 2
        s_add_u32 s10, s10, s{sQ}
        s_lshl_b32 s{sV0}, s10, 16""") + mksrd(SRD_V, 16, SZ["v"]) + mksrd(SRD_WO, 20, SZ["wo"])
    rest += exchange_setup()
    rest += ops(f"""v_lshlrev_b32 v{vPF}, 7, v0
        v_min_u32 v{t2}, 23, v0
        v_mul_u32_u24 v{t3}, 86, v{t2}
        v_lshrrev_b32 v{t3}, 8, v{t3}
        v_mul_u32_u24 v{vPF2}, {1280 - 384}, v{t3}
        v_lshl_add_u32 v{vPF2}, v{t2}, 7, v{vPF2}
        s_lshl_b32 s10, s{sQ}, 5
        s_add_u32 s10, s10, s{sRG}
        s_lshl_b32 s10, s10, 2
        s_add_u32 s10, s10, s{sW}
        s_mul_i32 s10, s10, 10240
        s_mul_i32 s11, s{sJ}, 320
        s_and_b32 s11, s11, 0xffffff80
        s_add_u32 s{sTCH}, s10, s11
        v_mov_b32 v{t2}, {OOB}
        v_cmp_gt_u32 vcc, 3, v0
        s_nop 1
        v_cndmask_b32 v{vFL}, v{t2}, v{vPF}, vcc""")
    g1 = dma_w(1); nf = P["first"]; side = g1[:nf]; k = 0
    for i, o in enumerate(rest):
        A(o)
        if k < len(side) and (k + 1) * len(rest) <= (i + 1) * len(side): A(side[k]); k += 1
    A(side[k:])
    if P["bal"]:
        A(f"""s_mul_i32 s10, s{sRG}, 5
            s_lshr_b32 s10, s10, 2
            s_sub_u32 s10, s{sKC}, s10
            s_lshr_b32 s11, s{sRG}, 2
            s_mul_i32 s11, s11, 5
            s_add_u32 s10, s10, s11
            s_add_u32 s10, s10, 14
            {mod10(10, 30)}
            {mod10(10, 30)}
            s_lshl_b32 s10, s10, 19
            s_and_b32 s11, s{sRG}, 3
            s_lshl_b32 s11, s11, 17
            s_add_u32 s10, s10, s11
            s_lshl_b32 s11, s{sW}, 15
            s_add_u32 s10, s10, s11
            s_and_b32 s11, s{sWQ0}, 0x1fff
            s_add_u32 s10, s10, s11
            v_bfe_u32 v{t2}, v0, 2, 2
            v_and_b32 v{t3}, 3, v0
            v_lshlrev_b32 v{t3}, 7, v{t3}
            v_lshl_or_b32 v{t2}, v{t2}, 13, v{t3}
            buffer_load_dword v{t6}, v{t2}, s[{SRD_WQ}:{SRD_WQ+3}], s10 offen""")
    if P["bal"] > 1:
        A(f"""s_add_u32 s10, s{sKC}, 4
            {mod10(10, 30)}
            s_lshl_b32 s10, s10, 7
            s_lshl_b32 s11, s{sRG}, 3
            s_add_u32 s11, s11, s{sW}
            s_mul_i32 s11, s11, 20480
            s_add_u32 s10, s10, s11
            s_bitcmp1_b32 s{sJ}, 0
            s_cselect_b32 s10, {OOB}, s10
            v_and_b32 v{t3}, 15, v0
            v_mul_u32_u24 v{t3}, 1280, v{t3}
            buffer_load_dword v{vPF2+2}, v{t3}, s[{SRD_X}:{SRD_X+3}], s10 offen""")
    late = mksrd(SRD_OUT, 24, SZ["out"]) + ops(f"""s_mov_b32 s{sCT}, s{sJ}
        s_lshl_b32 s10, s{sRG}, 2
        s_add_u32 s10, s10, s{sW}
        s_mul_i32 s10, s10, {32*2560}
        s_mul_i32 s11, s{sBR}, 1280
        s_add_u32 s10, s10, s11
        s_mul_i32 s11, s{sCT}, 320
        s_add_u32 s10, s10, s11
        s_lshl_b32 s30, s{sQ}, 6
        s_add_u32 s{sOUT0}, s10, s30
        s_and_b32 s30, s{sQ}, 1
        s_mul_i32 s30, s30, {16*2560}
        s_add_u32 s10, s10, s30
        s_lshr_b32 s30, s{sQ}, 1
        s_lshl_b32 s30, s30, 5
        s_add_u32 s10, s10, s30
        s_add_u32 s{sOUT1}, s10, 256
        s_lshl_b32 s10, s{sQ}, 6
        s_add_u32 s10, s10, s{sW}
        s_mul_i32 s10, s10, {16*1280}
        s_add_u32 s{sWO0}, s10, s11
        s_mul_i32 s{sM5}, s{sW}, 5120
        s_add_u32 s10, s{sQ}, 1
        s_movk_i32 s11, 3277""")
    for q in range(5):
        late += ops(f"""v_add_u32 v{t0}, {64*q}, v0
            v_mul_u32_u24 v{t1}, s11, v{t0}
            v_lshrrev_b32 v{t1}, 16, v{t1}
            v_mul_u32_u24 v{t2}, 20, v{t1}
            v_sub_u32 v{t0}, v{t0}, v{t2}
            v_lshrrev_b32 v{t2}, 2, v{t0}
            v_add_u32 v{t3}, s10, v{t2}
            v_and_b32 v{t3}, 3, v{t3}
            v_cmp_gt_u32 vcc, 4, v{t2}
            v_and_b32 v{t0}, 3, v{t0}
            v_bfe_u32 v{t4}, v{t1}, 2, 1
            v_cndmask_b32 v{t2}, v{t2}, v{t3}, vcc
            v_lshlrev_b32 v{t4}, 1, v{t4}
            v_xor_b32 v{t0}, v{t0}, v{t4}
            v_lshlrev_b32 v{t0}, 4, v{t0}
            v_lshl_or_b32 v{t0}, v{t2}, 6, v{t0}
            v_mul_u32_u24 v{t1}, 1280, v{t1}
            v_add_u32 v{vWo+q}, v{t0}, v{t1}""")
        if q % 4: late.append(Op(f"v_subrev_u32 v{vWo+q}, {1024*(q%4)}, v{vWo+q}"))
    FA = 16384
    late += ops(f"""v_and_b32 v{t0}, 15, v0
        v_lshrrev_b32 v{t1}, 4, v0
        v_lshrrev_b32 v{t2}, 1, v{t1}
        v_bfe_u32 v{t3}, v0, 1, 2
        v_xor_b32 v{t3}, v{t3}, v{t2}
        v_lshlrev_b32 v{t3}, 4, v{t3}
        v_and_b32 v{t4}, 1, v{t1}
        v_lshl_or_b32 v{t3}, v{t4}, 3, v{t3}
        v_lshl_or_b32 v{t3}, v{t0}, 6, v{t3}
        s_add_u32 s10, s{sM4}, {FA}
        v_add_u32 v{vFA}, s10, v{t3}
        v_lshlrev_b32 v{t3}, 3, v{t1}
        v_lshl_or_b32 v{t3}, v{t0}, 5, v{t3}
        s_add_u32 s11, s10, 2048
        v_add_u32 v{vFA2}, s11, v{t3}
        v_add_u32 v{vFB2}, s11, v{vL16}
        v_lshrrev_b32 v{t0}, 2, v0
        v_and_b32 v{t1}, 3, v0
        v_bfe_u32 v{t2}, v0, 3, 2
        v_xor_b32 v{t2}, v{t2}, v{t1}
        v_lshlrev_b32 v{t2}, 4, v{t2}
        v_lshl_or_b32 v{t2}, v{t0}, 6, v{t2}
        v_add_u32 v{vFB}, s10, v{t2}
        v_mul_u32_u24 v{t0}, 2560, v{t0}
        v_lshl_or_b32 v{vOA}, v{t1}, 4, v{t0}
        v_add_u32 v{vOB}, {16*2560}, v{vOA}
        v_lshrrev_b32 v{t0}, 1, v0
        v_and_b32 v{t1}, 1, v0
        v_mul_u32_u24 v{t0}, 2560, v{t0}
        v_lshl_or_b32 v{t0}, v{t1}, 4, v{t0}
        v_mov_b32 v{t1}, {OOB}
        v_cmp_gt_u32 vcc, 32, v0
        v_add_u32 v{lZa}, s{sM4}, v{vL16}
        v_mov_b32 v{lID}, 0
        v_cndmask_b32 v{vOC}, v{t1}, v{t0}, vcc
        v_and_b32 v{t0}, 1, v0
        v_lshlrev_b32 v{t0}, 4, v{t0}
        v_mov_b32 v{t1}, 0x3f80
        v_lshlrev_b32 v{t0}, v{t0}, v{t1}
        v_lshrrev_b32 v{t1}, 4, v0
        v_bfe_u32 v{t2}, v0, 2, 2
        v_cmp_eq_u32 vcc, v{t1}, v{t2}
        v_mov_b32 v{lID+1}, 0
        v_and_b32 v{t2}, 3, v0
        v_cndmask_b32 v{t0}, v{lID}, v{t0}, vcc
        v_cmp_gt_u32 vcc, 2, v{t2}
        v_mov_b32 v{lID+4}, 0
        v_mov_b32 v{lID+5}, 0
        v_cndmask_b32 v{lID+2}, v{lID}, v{t0}, vcc
        v_cndmask_b32 v{lID+3}, v{t0}, v{lID}, vcc""")
    late += [Op(f"v_mov_b32 v{LZ+q}, 0") for q in range(20)] + [Op(f"v_mov_b32 v{LINC+12*q+10+e}, 0") for q in range(4) for e in range(2)]
    A("s_waitcnt lgkmcnt(0)")
    A(stamp("lstart", "l"))
    def lbar(*groups): return [Op("WAITG", group=g) for g in groups] + [BAR()]
    A(lbar(("W", 0))[:-1]); A(stamp("k3", "l")); A(BAR())
    clx = P["clx"]; vdma = dict(P["vdma"])
    def touch(dj):
        return ops(f"""s_add_u32 s{sT3}, s{sJ}, {dj}
            s_and_b32 s{sT3}, s{sT3}, 3
            s_mul_i32 s{sT3}, s{sT3}, {256*1280}
            s_add_u32 s{sT3}, s{sT3}, s{sTCH}
            buffer_load_dword v{t5}, v{vPF2}, s[{SRD_WO}:{SRD_WO+3}], s{sT3} offen""")
    def touch_v(hd):
        return ops(f"""s_lshl_b32 s{sT2}, s{sJ}, 14
            s_add_u32 s{sT2}, s{sT2}, s{sV0}
            s_add_u32 s{sT2}, s{sT2}, {hd*8192}
            buffer_load_dword v{t6}, v{vPF}, s[{SRD_V}:{SRD_V+3}], s{sT2} offen""")
    def piece(p):
        if p[0] == "T": return touch(int(p[1]))
        if p[0] == "U": return touch_v(int(p[1]))
        return [y for n in range(4 * int(p[1]), 4 * int(p[1]) + 4) for y in dma_k(n)]
    nl = len(late); parts = {1: late[:nl // 3], 5: late[nl // 3:2 * nl // 3], 10: late[2 * nl // 3:]}
    NV = P["nv"]; variants = []; lst = {}
    if NV > 1:
        A(f"s_and_b32 s10, s{sPH}, {NV-1}")
        for ph in range(1, NV): A(f"s_cmp_eq_u32 s10, {ph}\ns_cbranch_scc1 L_var{ph}")
    head = ls.ops
    for ph in range(NV):
        V_ = [Op(f"L_var{ph}:")]
        q_ = [(1, [Op(o.text, **o.meta) for o in it]) for it in g1[nf:]] + [(t, it) for t in range(2, 20) for it in dma_w(t)]
        quiet = set()
        for x in range(0, 20):
            cl_ = [y for pcs, xc in clx if xc + ph * P['phstep'] == x for p_ in pcs for y in piece(p_)]
            if cl_:
                quiet |= {x + d for d in P["skip"]}
            if not P["cend"]: V_ += cl_
            n = 0
            while q_ and q_[0][0] <= x + LA and (q_[0][0] <= x + 1 or (x not in quiet and n < (P["cap0"] if x == 0 else P["cap"]))):
                V_ += q_.pop(0)[1]; n += 1
            if P["cend"]: V_ += cl_
            if x in parts: V_ += [Op(o.text, **o.meta) for o in parts[x]]
            if x == P["pfx"]: V_ += touch(0)
            if x in vdma:
                V_ += dma_v(vdma[x])
            V_ += lbar(("W", x + 1))
            if ph == 0: lst[x] = stamp(f"l{x}", "l")
            V_ += [Op(o.text) for o in lst[x]]
        fixed = []; cur = want = None
        for o in V_:
            if o.text.startswith("s_add_u32 m0"):
                cur = o.text
                if o.meta.get("wm0"): want = o.text
            if o.kind == "dma" and o.meta["group"][0] == "W" and cur is not None and cur != want: assert want; fixed.append(Op(want)); cur = want
            fixed.append(o)
        V_ = fixed
        V_.append(Op("s_branch L_join"))
        variants.append(V_)
    ls.ops = []
    A("L_join:")
    A(BAR())
    todo = [s_ for s_ in range(4) if s_ not in vdma.values()]
    early = [s_ for s_ in todo if s_ < 3]
    A(dma_wo(0))
    for s_ in early: A(dma_v(s_))
    A(dma_wo(1))
    A([Op("WAITL")] + lbar(("V", 0), ("Wo", 0)))
    A(stamp("m0", "l"))
    def pieces(L):
        out = [[]]
        for o in L:
            out[-1].append(o)
            if o.kind == "dma": out.append([])
        return out[:-1]
    q2 = []
    for x in range(0, NS):
        if x + 2 <= 15: q2 += [(x, x + 1, it) for it in pieces(dma_wo(x + 2))]
        if x + 3 <= 15 and (x >= 1 or 3 in todo): q2 += [(x, x + 2, it) for it in pieces(dma_v(x + 3))]
    quiet = {x + d for x in P["tch"] for d in P["skip2"]}
    for x in range(0, NS):
        n = 0
        while q2 and q2[0][0] <= x and (x == NS - 1 or any(e[1] <= x for e in q2) or (x not in quiet and n < P["cap2"])):
            A(q2.pop(0)[2]); n += 1
        if x in P["tch"]: A(touch(P["tch"][x]))
        if x == P["tlb"]:
            A(f"""buffer_load_dword v{vPF2+3}, v{vFL0}, {WSR}, s{sRL} offen offset:3072
                buffer_load_dword v{vPF2+4}, v{vFL0}, {WSR}, s{sFLM} offen offset:896 sc1
                buffer_load_dword v{t6}, v{vFL0}, {OUTR}, s{sOUT0} offen""")
        A(stamp(f'd{x}', 'l'))
        g = [("V", x + 1), ("Wo", x + 1)] + ([("V", x + 2)] if x == NS - 1 else [])
        A(lbar(*g))
        A(stamp(f"m{x+1}", "l"))
    if NS + 2 <= 15: A(dma_wo(NS + 2))
    if NS + 3 <= 15: A(dma_v(NS + 3))
    if NF == 4:
        A(lbar(("V", 14), ("Wo", 13)))
        A(dma_wo(15)); A(lbar(("V", 15), ("Wo", 14)))
        A(lbar(("Wo", 15)))
    elif NF == 3: A(lbar(("V", 15), ("Wo", 14)) + lbar(("Wo", 15)))
    else: A(lbar(("V", 15), ("Wo", 15)))
    zrd = [Op(f"ds_read_b128 {v(LZC+4*q,4)}, v{lZa} offset:{q*1024}", use=[("S0", 290)]) for q in range(4)]
    if P["early"]:
        if P["early"] == 2: A(BAR())
        A(poll())
        A(need(1) + fetch(0, LINC) + [poll()])
        A(need(2) + fetch(1, LINC + 12) + addin(0, LINC))
        A(stamp("c1", "l"))
        A(BAR())
        A(fetch(3, LINC + 36) + [poll()]); A(zrd); A(addin(1, LINC + 12))
    else:
        A(BAR()); A(stamp("bt1", "l"))
        A([poll()] + fetch(3, LINC + 36)); A(zrd)
        A(need(1) + fetch(0, LINC))
        A(need(2) + fetch(1, LINC + 12) + [poll()])
        A(stamp("c1", "l"))
        A(addin(0, LINC) + addin(1, LINC + 12))
    A(need(4) + fetch(2, LINC + 24) + addin(3, LINC + 36))
    A("s_nop 7")
    for q in range(16): A(f"v_add_f32 v{LZ+q}, v{LZ+q}, v{LZC+q}")
    A(f"v_xor_b32 v{t0}, 32, v{vFA}")
    A(addin(2, LINC + 24))
    A(stamp("c2", "l"))
    FK = [("S1", 300)]
    for nt in range(2):
        for jt in range(2):
            d = LPK + 4 * nt + 2 * jt; z = LZ + 8 * nt + 4 * jt
            A([cvt(d, z), cvt(d + 1, z + 2)])
            A(Op(f"ds_write_b64 v{t0 if nt else vFA}, {v(d,2)} offset:{jt*1024}", fill=FK, private=True))
    A([cvt(LPK + 8, LZ + 16), cvt(LPK + 9, LZ + 18), Op(f"ds_write_b64 v{vFA2}, {v(LPK+8,2)}", fill=FK, private=True)])
    A(Op(f"ds_read_b128 {v(LINC,4)}, v{vFB}", use=FK, private=True))
    A(Op(f"ds_read_b128 {v(LINC+4,4)}, v{vFB} offset:1024", use=FK, private=True))
    A(Op(f"ds_read_b128 {v(LINC+12,4)}, v{vFB2}", use=FK, private=True))
    A(f"buffer_store_dwordx4 {v(LINC,4)}, v{vOA}, {OUTR}, s{sOUT0} offen {P['out_mod']}")
    A(f"buffer_store_dwordx4 {v(LINC+4,4)}, v{vOB}, {OUTR}, s{sOUT0} offen {P['out_mod']}")
    A(f"buffer_store_dwordx4 {v(LINC+12,4)}, v{vOC}, {OUTR}, s{sOUT1} offen {P['out_mod']}")
    if P["dbg"] or P["x_seg"]: A("s_waitcnt vmcnt(0)"); A(stamp("lend", "l"))
    if P["x_seg"]:
        A(f"s_sub_u32 s10, s16, s14\ns_mul_i32 s10, s10, 8\ns_memrealtime s[14:15]\ns_waitcnt lgkmcnt(0)")
        A(f"L_amp:\ns_sleep 2\ns_memrealtime s[16:17]\ns_waitcnt lgkmcnt(0)\ns_sub_u32 s11, s16, s14\ns_cmp_lt_u32 s11, s10\ns_cbranch_scc1 L_amp")
    A(dump())
    if P["x_amp"]:
        A(f"s_waitcnt vmcnt(0)\ns_memrealtime s[{sST}:{sST+1}]\ns_waitcnt lgkmcnt(0)\ns_sub_u32 s10, s{sST}, s{sST+4}\ns_mul_i32 s10, s10, {P['x_amp']}")
        A(f"L_amp:\ns_sleep 2\ns_memrealtime s[{sST}:{sST+1}]\ns_waitcnt lgkmcnt(0)\ns_sub_u32 s11, s{sST}, s{sST+4}\ns_cmp_lt_u32 s11, s10\ns_cbranch_scc1 L_amp")
    A("L_end:\ns_endpgm")

    A = cs.add
    A("L_compute:")
    A(ids)
    A(f"v_lshlrev_b32 v{vL16}, 4, v0")
    if P["prio_c"]: A(f"s_setprio {P['prio_c']}")
    l16, g, r, c4 = t0, t1, t2, t3
    u0, u1 = ABUF, ABUF + 1
    A(f"""v_and_b32 v{l16}, 15, v0
        v_lshrrev_b32 v{g}, 4, v0
        v_bfe_u32 v{r}, v0, 2, 2
        v_and_b32 v{c4}, 3, v0
        v_and_b32 v{t5}, 1, v{g}
        v_lshl_or_b32 v{t4}, v{t5}, 2, v{r}
        s_and_b32 s10, s{sW}, 1
        s_lshl_b32 s11, s10, 2
        v_lshl_add_u32 v{u0}, v{g}, 3, v{r}
        v_lshlrev_b32 v{u0}, 8, v{u0}
        v_lshl_or_b32 v{u0}, v{c4}, 3, v{u0}
        v_xor_b32 v{u1}, s11, v{t4}
        v_lshl_or_b32 v{aW}, v{u1}, 5, v{u0}
        v_xor_b32 v{aW+1}, 32, v{aW}
        v_xor_b32 v{aW+2}, 64, v{aW}
        v_xor_b32 v{aW+3}, 0x60, v{aW}
        v_lshrrev_b32 v{u1}, 1, v{l16}
        v_xor_b32 v{u1}, v{u1}, v{g}
        v_lshlrev_b32 v{u1}, 4, v{u1}
        v_lshl_or_b32 v{u1}, v{l16}, 7, v{u1}
        s_lshr_b32 s11, s{sW}, 1
        s_lshl_b32 s30, s11, 13
        s_add_u32 s{sT0}, s30, {XB}
        v_add_u32 v{aX}, s{sT0}, v{u1}
        v_xor_b32 v{aX+1}, 64, v{aX}
        s_lshl_b32 s10, s10, 11
        s_add_u32 s10, s10, s30
        s_add_u32 s10, s10, {PB}
        v_add_u32 v{vPW}, s10, v{vL16}
        s_add_u32 s10, s{sM4}, {PB}
        v_add_u32 v{vPR}, s10, v{vL16}
        v_add_u32 v{vZ}, s{sM4}, v{vL16}
        v_lshrrev_b32 v{u0}, 1, v{g}
        v_xor_b32 v{u0}, v{u0}, v{l16}
        v_lshlrev_b32 v{u0}, 4, v{u0}
        v_lshl_or_b32 v{u0}, v{t5}, 3, v{u0}
        v_lshl_or_b32 v{u0}, v{l16}, 8, v{u0}
        s_lshl_b32 s10, s{sM4}, 2
        s_add_u32 s10, s10, {KB}
        v_add_u32 v{u0}, s10, v{u0}
        v_mov_b32 v{kR}, v{u0}
        s_load_dwordx2 s[{SRD_DBG}:{SRD_DBG+1}], s[0:1], 88
        s_load_dwordx2 s[{SRD_WS}:{SRD_WS+1}], s[0:1], 96""")
    for q in range(1, 8): A(f"v_xor_b32 v{kR+q}, {32*q}, v{kR}")
    late_c = ops(f"""v_lshrrev_b32 v{t3}, 2, v0
        v_bfe_u32 v{t4}, v0, 3, 2
        v_lshlrev_b32 v{t4}, 5, v{t4}
        v_and_b32 v{t5}, 3, v0
        v_lshl_or_b32 v{t4}, v{t5}, 3, v{t4}
        v_lshl_or_b32 v{t4}, v{t3}, 7, v{t4}
        v_add_u32 v{aV}, s{sM4}, v{t4}
        v_xor_b32 v{aV+1}, 32, v{aV}
        v_xor_b32 v{aV+2}, 64, v{aV}
        v_xor_b32 v{aV+3}, 0x60, v{aV}
        v_mul_u32_u24 v{t3}, 320, v{t3}
        v_lshl_add_u32 v{t3}, v{t5}, 3, v{t3}
        v_add_u32 v{t3}, {WOB}, v{t3}
        v_bfe_u32 v{t5}, v0, 4, 1
        v_lshlrev_b32 v{t5}, 5, v{t5}
        v_add_u32 v{aWo}, v{t3}, v{t5}
        v_sub_u32 v{aWo+1}, v{t3}, v{t5}
        v_add_u32 v{aWo+2}, 61440, v{aWo}
        v_add_u32 v{aWo+3}, 61440, v{aWo+1}""")
    A(f"""s_mov_b32 s{sC}, {f2u(SCALE_LOG2E)}
        s_mov_b32 s{sC+1}, {f2u(SCALE_LOG2E)}
        s_waitcnt lgkmcnt(0)""")
    A(exchange_setup())
    cbar = lambda: [Op("WAITL"), BAR()]
    vNAN, vZERO = aWo, aV
    A(mksrd(SRD_DBG, 26, 256))
    A(f"""s_lshl_b32 s10, s{sW}, 3
        s_add_u32 s{sHS}, s{sJ}, s10
        s_lshr_b32 s{sT1}, s{sG}, 2
        s_lshl_b32 s{sT1}, s{sT1}, 4
        s_add_u32 s{sT0}, s{sPS}, 65536
        v_mov_b32 v{t2}, {OOB}
        v_cmp_gt_u32 vcc, 24, v0
        v_mov_b32 v{vNAN-1}, -1
        v_mov_b32 v{vNAN}, -1
        v_cndmask_b32 v{t3}, v{t2}, v{vL16}, vcc
        v_mov_b32 v{vNAN+1}, -1
        v_mov_b32 v{vNAN+2}, -1
        v_mov_b32 v{vZERO-1}, 0
        v_mov_b32 v{vZERO}, 0
        v_mov_b32 v{vZERO+1}, 0
        v_mov_b32 v{vZERO+2}, 0""")
    clears = [Op(f"buffer_store_dwordx4 {v(vNAN-1,4)}, v{vL16}, {WSR}, s{so} offen offset:{off} sc1", group="clr") for so in (sPS, sT0) for off in (0, 1024)]
    clears.append(Op(f"buffer_store_dwordx4 {v(vZERO-1,4)}, v{t3}, {WSR}, s{sFLM} offen sc1", group="clr"))

    def rdA1(t, i):
        s = t % 4; buf = ABUF + 8 * ((4 * t + i) % 3)
        return [Op(f"ds_read_b64_tr_b16 {v(buf+4*ss+2*h,2)}, v{aW+i} offset:{s*16384 + ss*8192 + h*1024}", use=[(f"S{s}", t)]) for ss in range(2) for h in range(2)]
    def rdB(kc):
        return [Op(f"ds_read_b128 {v(BB+32*(kc%2)+8*jt+4*ss,4)}, v{aX+ss} offset:{(kc%2)*16384 + jt*2048}", use=[(f"X{kc%2}", kc)]) for jt in range(4) for ss in range(2)]
    if P["clr"][0] < 0: A(clears)
    A(BAR())
    A(stamp("start"))
    b0 = rdB(0); a0 = rdA1(0, 0)
    A(a0[:2] + b0[:1] + a0[2:] + b0[1:] + rdA1(0, 1))
    T = Ticks()
    for t in range(20):
        kc, dh = t // 2, t % 2
        for i in range(4):
            buf = ABUF + 8 * ((4 * t + i) % 3)
            for jt, ss in ([(a_, b_) for a_ in range(4) for b_ in range(2)] if P["chain"] else [(a_, b_) for b_ in range(2) for a_ in range(4)]):
                if True:
                    d = ACC + 16 * (4 * dh + i) + 4 * jt
                    T.add(mfma(d, v(buf + 4 * ss, 4), v(BB + 32 * (kc % 2) + 8 * jt + 4 * ss, 4), "0" if (kc == 0 and ss == 0) else None))
                    if jt == 0 and ss == 0: T.m[-1].meta["also"] = range(buf, buf + 8)
    for t in range(20):
        b = 32 * t
        if P["p1"] == 0:
            for q, o in enumerate(rdA1(t, 2)): T.put(b + q, o, 2)
            for q, o in enumerate(rdA1(t, 3)): T.put(b + 8 + q, o, 2)
        elif P["p1"] == 1:
            for q, o in enumerate(rdA1(t, 2)): T.put(b + 2 * q, o, 2)
            for q, o in enumerate(rdA1(t, 3)): T.put(b + 8 + q, o, 2)
        T.put(b + BP, cbar(), 1)
        if t < 19:
            for q, o in enumerate(rdA1(t + 1, 0)): T.put(b + BP + q, o, 2)
            for q, o in enumerate(rdA1(t + 1, 1)): T.put(b + 24 + (q if t % 2 or P["p1"] == 0 else 2 * q), o, 2)
            if t % 2 == 1:
                for pos, o in zip([min(BP + 4, 23), min(BP + 5, 23), min(BP + 6, 23), 28, 29, 30, 31, 32], rdB((t + 1) // 2)): T.put(b + pos, o, 3)
        T.put(b + 31, stamp(f"w{t}"), 9)
    def qreg(sd, j4): return ACC + 32 * sd + 4 * j4
    def pack(d, e): return [cvt(d, d), cvt(d + 1, d + 2), cvt(d + 2, e), cvt(d + 3, e + 2)]
    def qcvt(sd, j4): return pack(qreg(sd, j4), qreg(sd, j4) + 16)
    def krd(b): return [Op(f"ds_read_b64 {v(BB+32*b+16*kt+4*sd+2*h,2)}, v{kR+2*sd+h} offset:{b*8192 + kt*4096}", use=[("K", 100), ("Kp", 100)]) for sd in range(4) for kt in range(2) for h in range(2)]
    b18, b19 = 32 * 18, 32 * 19
    c0, c1 = P["clr"]; assert c1 < P["hs0"] - 1
    if c0 < 0: pre_clears = clears
    else: T.spread(clears, 32 * c0 + 4, 32 * c1 + 4, 6)
    T.put(32 * (P["hs0"] - 1) + BP, Op("WAITG", group="clr"), 0.5)
    for q in range(4):
        T.put(32 * (P["hs0"] + q) + 5, [Op(f"s_cmp_lg_u32 s{sHS}, {q}"), Op(f"s_cbranch_scc1 L_hs{q}"),
              Op(f"buffer_atomic_add v{vONE}, v{vFL0}, {DBGR}, s{sT1} offen sc1", uncounted=True), Op(f"L_hs{q}:")], 7)
    T.put(32 * 16 + 5, [Op(f"s_cmp_lg_u32 s{sW}, 0"), Op("s_cbranch_scc1 L_hsl"),
          Op(f"buffer_load_dword v{t2}, v{vFL0}, {DBGR}, s{sT1} offen sc1", uncounted=True), Op("L_hsl:")], 7)
    T.put(b19 + BP, [Op(f"s_cmp_lg_u32 s{sW}, 0"), Op("s_cbranch_scc1 L_hsc"), Op("s_waitcnt vmcnt(0)", cond=True, raw=True),
          Op(f"v_readfirstlane_b32 s{sT3}, v{t2}", cond=True), Op("s_nop 1", cond=True), Op(f"s_cmp_lt_u32 s{sT3}, 16", cond=True, nohaz=True),
          Op("s_cbranch_scc1 L_hs_spin", cond=True), Op("L_hsc:")], 0.5)
    tail.extend(["L_hs_spin:", f"s_mov_b32 s{sSPIN}, 0", "L_hs_spin1:",
         f"buffer_load_dword v{t2}, v{vFL0}, {DBGR}, s{sT1} offen sc1", "s_waitcnt vmcnt(0)",
         f"v_readfirstlane_b32 s{sT3}, v{t2}", f"s_add_u32 s{sSPIN}, s{sSPIN}, 1", f"s_cmp_gt_u32 s{sSPIN}, 100000", "s_cbranch_scc1 L_hsc",
         f"s_cmp_lt_u32 s{sT3}, 16", "s_cbranch_scc1 L_hs_spin1", "s_branch L_hsc"])
    T.spread(late_c, 32 * 14, 32 * 14 + 15, 4)
    T.spread(krd(0), b18 + 4, b18 + 15, 4)
    T.spread([o for j4 in range(4) for o in qcvt(0, j4)], b18 + 20, b18 + 31, 5)
    T.spread([o for j4 in range(4) for o in qcvt(1, j4)], b19 + 4, b19 + 16, 5)
    T.spread([o for j4 in range(4) for o in qcvt(2, j4)], b19 + 20, b19 + 31, 5)
    T.flush(cs)
    A(stamp("g1"))

    def sreg(b, jt, kt): return ACC + 16 + 32 * b + 8 * jt + 4 * kt
    def softmax(b):
        tmp = ACC + 80 + 8 * b; pf = PF + 8 * b; L = []
        cols = [(sreg(b, c, 0), tmp + 4 * c) for c in range(2)]
        def both(f):
            for x, y in zip(f(*cols[0]), f(*cols[1])): L.extend([Op(x), Op(y)])
        (s0, m0_), (s1, m1_) = cols
        def across(op):
            L.extend(ops(f"""v_permlane32_swap_b32 v{m0_}, v{m1_}
                {op} v{m0_}, v{m0_}, v{m1_}
                v_mov_b32 v{m1_}, v{m0_}
                v_permlane16_swap_b32 v{m0_}, v{m1_}
                {op} v{m0_}, v{m0_}, v{m1_}"""))
        def spread_back(): L.extend(ops(f"v_mov_b32 v{m1_}, v{m0_}\nv_permlane32_swap_b32 v{m0_}, v{m1_}"))
        both(lambda s, m: [f"v_max3_f32 v{m}, v{s}, v{s+1}, v{s+2}", f"v_max3_f32 v{m+1}, v{s+3}, v{s+4}, v{s+5}",
                           f"v_max3_f32 v{m}, v{m}, v{s+6}, v{s+7}", f"v_max_f32 v{m}, v{m}, v{m+1}"])
        across("v_max_f32"); L.append(Op(f"v_mul_f32 v{m0_}, s{sC}, v{m0_}")); spread_back()
        both(lambda s, m: [f"v_pk_fma_f32 v[{s+q}:{s+q+1}], v[{s+q}:{s+q+1}], s[{sC}:{sC+1}], v[{m}:{m+1}] op_sel_hi:[1,1,0] neg_lo:[0,0,1] neg_hi:[0,0,1]" for q in range(0, 8, 2)])
        both(lambda s, m: [f"v_exp_f32 v{s+q}, v{s+q}" for q in range(8)])
        both(lambda s, m: [f"v_pk_add_f32 v[{m}:{m+1}], v[{s}:{s+1}], v[{s+2}:{s+3}]", f"v_pk_add_f32 v[{m+2}:{m+3}], v[{s+4}:{s+5}], v[{s+6}:{s+7}]",
                           f"v_pk_add_f32 v[{m}:{m+1}], v[{m}:{m+1}], v[{m+2}:{m+3}]", f"v_add_f32 v{m}, v{m}, v{m+1}"])
        across("v_add_f32"); L.append(Op(f"v_rcp_f32 v{m0_}, v{m0_}")); spread_back()
        both(lambda s, m: [f"v_pk_mul_f32 v[{s+q}:{s+q+1}], v[{s+q}:{s+q+1}], v[{m}:{m+1}] op_sel_hi:[1,0]" for q in range(0, 8, 2)])
        if b: L.append(Op(f"s_add_u32 s{sPS}, s{sPS}, 65536"))
        for c in range(2):
            for q in range(4): L.append(cvt(pf + 4 * c + q, cols[c][0] + 2 * q))
            L.append(Op(f"buffer_store_dwordx4 {v(pf+4*c,4)}, v{vL16}, {WSR}, s{sPS} offen offset:{1024*c} sc1"))
            L.append(Op(f"ds_write_b128 v{vPW}, {v(pf+4*c,4)} offset:{b*4096 + c*1024}", fill=[("P", 300), ("Kp", 300)]))
        return L
    T = Ticks()
    for b in range(2):
        for sd in range(4):
            for kt in range(2):
                for jt in range(2):
                    T.add(mfma(sreg(b, jt, kt), v(BB + 32 * b + 16 * kt + 4 * sd, 4), v(qreg(sd, 2 * b + jt), 4), "0" if sd == 0 else None))
    T.spread(krd(1), 0, 5, 2)
    T.spread([o for j4 in range(2) for o in qcvt(3, j4)], 1, 6, 3)
    T.spread([o for j4 in range(2, 4) for o in qcvt(3, j4)], 7, 12, 3)
    T.put(P["bk"], cbar(), 1)
    sm0 = softmax(0); sm1 = softmax(1)
    n0 = P['sm_in']; T.spread(sm0[:n0], 20, 31, 5)
    T.flush(cs)
    A(stamp("qk"))
    if P["smix"]:
        a_, b_ = sm0[n0:], sm1
        k_ = [i for i, o in enumerate(b_) if o.text.startswith("s_add_u32")][0]
        mix = a_[:4]; i_, j_ = 4, 0
        while i_ < len(a_) or j_ < len(b_):
            if j_ < len(b_) and (j_ < k_ or i_ >= len(a_)): mix.append(b_[j_]); j_ += 1
            if i_ < len(a_): mix.append(a_[i_]); i_ += 1
        A(mix)
    else: A(sm0[n0:]); A(stamp("sm0")); A(sm1)
    A(stamp("att"))

    def rdP(gen): return [Op(f"ds_read_b128 {v(PRB[0][2*hd+jt],4)}, v{vPR} offset:{hd*2048 + jt*1024}", use=[("P", gen)]) for hd in range(2) for jt in range(2)]
    def ldP(dj):
        return ops(f"s_add_u32 s{sT2}, s{sJ}, {dj}\ns_and_b32 s{sT2}, s{sT2}, 3\ns_lshl_b32 s{sT2}, s{sT2}, 12\ns_add_u32 s{sT2}, s{sT2}, s{sPL}") + \
            [Op(f"buffer_load_dwordx4 {v(PRB[dj%2][q],4)}, v{vL16}, {WSR}, s{sT2} offen offset:{1024*q} sc1") for q in range(4)]
    def rdV(s): return [Op(f"ds_read_b64_tr_b16 {v(VF+4*i+2*h,2)}, v{aV+i} offset:{(s%4)*16384 + h*2048}", use=[(f"S{s%4}", 200 + s)]) for i in range(4) for h in range(2)]
    def pvreg(s, i, jt):
        if s < NS + 1 or NF == 1: return PVB[s % 2] + 8 * i + 4 * jt
        return fin_regs[s][2 * i + jt]
    e0, e1 = PVB[NS % 2], PVB[(NS + 1) % 2]
    fin_regs = {NS + 1: [e1 + 4 * q for q in range(8)],
                NS + 2: [e0 + 8, e0 + 12, PRB[0][0], PRB[0][1], e0 + 24, e0 + 28, PRB[0][2], PRB[0][3]],
                NS + 3: [e1 + 8, e1 + 12, 56, 60, e1 + 24, e1 + 28, 10, t1]}
    def pvm(s): return [mfma(pvreg(s, i, jt), v(VF + 4 * i, 4), v(PRB[(s // 4) % 2][2 * ((s // 2) % 2) + jt], 4), "0") for i in range(4) for jt in range(2)]
    _pvm = pvm
    def pvm(s):
        L = _pvm(s); L[0].meta["also"] = range(VF, VF + 8); L[4].meta["also"] = range(VF + 8, VF + 16)
        return L
    def pvc(s): return [o for ss in range(2) for jt in range(2) for o in pack(pvreg(s, 2 * ss, jt), pvreg(s, 2 * ss + 1, jt))]
    nA = [0]
    def rdA2(s, t):
        k = s % 4; buf = A2 + 8 * (nA[0] % 4); nA[0] += 1
        ad = aWo + (t % 2) + (2 if k == 3 else 0); base = 0 if k == 3 else k * 20480
        return buf, [Op(f"ds_read_b64_tr_b16 {v(buf+4*ss+2*h,2)}, v{ad} offset:{base + ss*10240 + h*5120 + t*32}", use=[(f"Wo{k}", 200 + s)]) for ss in range(2) for h in range(2)]
    def owo(s, t, buf):
        L = [mfma(OUTA + 8 * t + 4 * jt, v(buf + 4 * ss, 4), v(pvreg(s, 2 * ss, jt), 4), "0" if (s == 0 and ss == 0) else None) for jt in range(2) for ss in range(2)]
        L[0].meta["also"] = range(buf, buf + 8)
        return L
    steps = [(s, t) for s in range(NS) for t in range(10)]
    order = [8, 9, 0, 1, 2, 3, 4, 5, 6, 7]
    steps += [(s, t) for s in range(NS, 16) for t in order[:2]] + [(s, t) for t in order[2:] for s in range(NS, 16)]
    rd = [rdA2(s, t) for s, t in steps]
    A(cbar())
    A(stamp("bp"))
    p0 = rdP(300)
    A(p0[:2] + rdV(0) + p0[2:] + rd[0][1])
    A(pvm(0)); A(rd[1][1] + rd[2][1]); A(pvc(0))
    T = Ticks(); at = []; pvat = {}
    for n, (s, t) in enumerate(steps):
        if (s < NS and t == P['pvt']) or (NS <= s < 15 and t == 8):
            pvat[s + 1] = len(T.m)
            for o in pvm(s + 1): T.add(o)
        at.append(len(T.m))
        for o in owo(s, t, rd[n][0]): T.add(o)
    fin0 = pvat[NS + 1]; BX = fin0 - 4
    BM = at[steps.index((13, 8))]
    BL2 = at[steps.index((15, 8)) - P["bl2"]] if NF >= 3 else BX
    for n in range(3, len(steps)):
        base = at[n - 3]
        if P["smooth"] and n < 10 * NS and steps[n][1] in (P["pvt"] + 2, P["pvt"] + 3): base = pvat[steps[n][0] + 1] + 4 * (steps[n][1] - P["pvt"] - 2)
        if steps[n][0] > NS: base = max(base, BX)
        if steps[n][0] == 14 and NF == 4: base = max(base, BM)
        if steps[n][0] == 15: base = max(base, BL2)
        for q, o in enumerate(rd[n][1]): T.put(base + q, o, 2)
    for s in range(NS):
        b = at[10 * s]
        T.put(b + BP2, BAR(), 1)
        if P["smooth"]:
            T.spread(rdV(s + 1), b + BP2, b + BP2 + 7, 1.5)
            c_ = pvc(s + 1); e_ = pvat[s + 1] + 7; T.spread(c_[:8], e_, e_ + 3, 4); T.spread(c_[8:], e_ + 4, min(e_ + 13, b + 46), 4)
        else:
            T.spread(rdV(s + 1), b + BP2, b + BP2 + 3, 1.5)
            T.spread(pvc(s + 1), b + 35, b + 46, 4)
        T.put(b + 47, stamp(f"o{s}"), 9)
    T.put(BX, BAR(), 1)
    if NF == 4: T.put(BM, BAR(), 1)
    if NF >= 3: T.put(BL2, BAR(), 1)
    for s2 in range(NS + 1, 16):
        T.spread(rdV(s2), pvat[s2] - 8, pvat[s2] - 5, 1.6)
        T.spread(pvc(s2), pvat[s2] + 9, pvat[s2] + (15 if s2 == 15 or not P['fsm'] else 22), 1.7)
    for dj in range(1, 4):
        ps, pt = P["pld"][dj - 1]; L = ldP(dj)
        T.spread([L[:5], L[5], L[6], L[7]], at[10 * ps] + pt, at[10 * ps] + pt + 6, 6)
        chk = arrived([r_ + e for r_ in PRB[dj % 2] for e in range(4)], ldP(dj), t0)
        b = at[10 * (4 * dj - 1)] + P["pchk"]
        T.spread(chk[:-4], b - 4, b - 1, 6); T.put(b, chk[-4:] + stamp(f"pc{dj}"), 6)
    end = len(T.m); flags = []
    def done(t): return at[steps.index((15, t))] + 3
    T.put(BX - 1, stamp("bx0"), 9); T.put(BX, stamp("bx1"), 1.1); T.put(BL2 - 1, stamp("bl0"), 9); T.put(BL2, stamp("bl1"), 1.1)
    for t_ in (9, 1, 3, 5): T.put(done(t_), stamp(f"f{t_}"), 9)
    L = []
    for m in range(4):
        L += [cvt(PK + 2 * m, OUTA + 64 + 4 * m), cvt(PK + 2 * m + 1, OUTA + 64 + 4 * m + 2),
              [Op(f"s_add_u32 s{sT2}, s{sRS}, {m*65536 + 2048}"), Op(f"buffer_store_dwordx2 {v(PK+2*m,2)}, v{vL8}, {WSR}, s{sT2} offen sc1", group=("R", -1))]]
    T.spread(L, done(9) + 3, done(9) + 8 * NF - 2, 4)
    for k in range(3):
        L = []; pk = SPARE if k % 2 == 0 else PK
        dest = f"s_add_u32 s{{0}}, s{sQ}, {k+1}\ns_and_b32 s{{0}}, s{{0}}, 3"
        for nt in range(2):
            for jt in range(2):
                z = OUTA + 8 * (2 * k + nt) + 4 * jt
                L += [cvt(pk + 4 * nt + 2 * jt, z), cvt(pk + 4 * nt + 2 * jt + 1, z + 2)]
            it = ops(dest.format(sT2) + f"\ns_lshl_b32 s{sT2}, s{sT2}, 16\ns_add_u32 s{sT3}, s{sT2}, s{sRS}") if nt == 0 else []
            L.append(it + [Op(f"buffer_store_dwordx4 {v(pk+4*nt,4)}, v{vL16}, {WSR}, s{sT3} offen offset:{1024*nt} sc1", group=("R", k))])
        T.spread(L[:5], done(2 * k) + 3, done(2 * k) + 2 * NF + 1, 4); T.spread(L[5:], done(2 * k + 1) + 3, done(2 * k + 1) + 2 * NF + 1, 4)
        fl = [Op("WAITG", group=("R", k))] + ops(dest.format(sT2) + f"\ns_lshl_b32 s{sT2}, s{sT2}, 11\ns_add_u32 s{sT2}, s{sT2}, s{sFLD}")
        fl.append(Op(f"buffer_store_dword v{vONE}, v{vFL0}, {WSR}, s{sT2} offen offset:{k*128} sc1"))
        tf = done(2 * k + 1) + 2 * NF + 1 + P["cover"]
        if tf < end: T.put(tf, fl, 6)
        else: flags.append(fl)
    if P["early"] == 2: T.put(min(done(5) + P["bt1"], end - 1), BAR(), 8)
    T.flush(cs)
    A(stamp("g2"))
    zw = [Op(f"ds_write_b128 v{vZ}, {v(OUTA+48+4*q,4)} offset:{q*1024}", fill=[("S0", 290)], wpriv=True) for q in range(4)]
    A(flags[:-1]); A(zw); A(flags[-1:])
    A(cbar())
    A(stamp("end"))
    A(dump())
    A("s_endpgm")

    sc, sl = {}, {}
    def drop(st, pred): st.ops = [o for o in st.ops if not pred(o)]
    import re
    def hot(L):
        for name, srd_ in (("v", SRD_V), ("o", SRD_WO), ("k", SRD_K), ("w", SRD_WQ), ("x", SRD_X)):
            if name in P["x_hot"]:
                L = [Op(re.sub(r"\], s\d+ offen", "], 0 offen", o.text), **o.meta) if (o.kind in ("dma", "vld") and f"s[{srd_}:" in o.text) else o for o in L]
        return L
    if P['x_nost']: drop(cs, lambda o: o.kind == 'vst' and isinstance(o.meta.get('group'), tuple))
    clines = cs.finalize(sc); seg = []; nb = None
    for ph, V_ in enumerate(variants):
        lf = Stream(); lf.nocheck = True; lf.ops = hot(pro.ops + head + V_ + ls.ops)
        L = lf.finalize(sl); i0 = L.index(f"L_var{ph}:"); i1 = L.index("L_join:")
        seg.append((L[:i0], L[i0:i1], L[i1:]))
        assert seg[-1][0] == seg[0][0] and seg[-1][2] == seg[0][2]
        nb = check_handoffs([cs.events, lf.events]); assert nb[0] == nb[1], nb
    lines = seg[0][0] + [l for x in seg for l in x[1]] + seg[0][2] + tail + clines
    a = Asm(); kernel_begin(a, KNAME)
    for l in lines: a(l)
    a("L_code_end:")
    body = a.text().replace("CODE_SPAN", f"L_code_end-{KNAME}-4").replace("CODE_BACK", f"L_pc-{KNAME}")
    write_file(path, ["; @launch grid=(256,1,1) block=(512,1,1) lds=163840"], body, [descriptor(KNAME, 256, 256)])
    return sc, sl, nb

if __name__ == "__main__":
    out = sys.argv[1] if len(sys.argv) > 1 else f"cdna_kernels/{NAME}.s"
    kw = {}
    for x in sys.argv[2:]:
        k, val = x.split("=", 1)
        try: val = eval(val)
        except Exception: pass
        kw[k] = val
    print(build(out, **kw))
```

```python
import sys, struct
from common import *
from ops import Op, Stream, check_handoffs

def f2u(f): return struct.unpack("<I", struct.pack("<f", f))[0]
SCALE_LOG2E = 128 ** -0.5 * 1.4426950408889634
KNAME = NAME + "_kernel"

DEF = dict(
    nt_w="", nt_x="", nt_k="nt", nt_v="", nt_wo="", bpos=17, bpos2=19, code_pf=1, dbg=0, rot=1, xrot=1, flip=0,
    stamps=("start", "g1", "att", "g2", "end"), lstamps=(),
    clx=((('K0', 'K1'), 3), (('K2', 'K3'), 9)), tch={0: 1}, skip2=(1,), cap2=11, nv=4, vdma={17: 0, 18: 1}, x_hot='', cend=1, skip=(1,), cap=8, tlb=99, cap0=99, phstep=1, clr=(2, 6), bal=0, first=4, prio_l=0, prio_c=0, la=3, pfx=15, smooth=1, sm_in=16, smix=1, bk=8, nf=4, bl2=2, pld=((2, 8), (4, 8), (8, 8)), pwide=1, ctm=1, pchk=24, hs0=8, cover=80, early=0, bt1=12, fsm=1, pvt=7, dist=3, p1=0, chain=1, x_nost=0, x_drop='',
    out_mod="sc1", ntlast=0, x_amp=0, x_seg=None, x_nomfma=0, x_nodma=0,
)

NOTES = """
Generated by my own script (straight-line code, waits and wait states derived from the dependences).
One fused kernel, one workgroup per CU: waves 0-3 compute (MFMA 16x16x32 bf16), waves 4-7 stream operands into LDS (LDS-DMA).
Workgroup id -> branch (bit 2), head group q of 8 heads (bits 0-1), head pair j (bits 3-4), row group rg of 4 batches (bits 5-7).
Phase 1: Q^T = Wq^T X^T for 4 batches x 2 heads (k order rotated per workgroup), S^T = K Q^T, softmax with the true row
  maximum, P packed to bf16.  P goes to d_ws for the three workgroups that share rows and head group.
Phase 2: 160 output columns of the 4 batches over the group's 8 heads: O^T = V^T P^T, out^T += Wo^T O^T, own heads first.
  The last two heads run tile by tile; the tiles owned by the other three head groups are sent as bf16 partial sums through
  d_ws, the loader waves add them up (selector MFMAs) and write the output.
Hand-offs between workgroups: write-through (sc1) stores and sc1 loads only.  Every workgroup first empties its P slots
  (all ones) and its flag lines (zero) and counts that in d_debug; the count is checked before any slot or flag is used.
  P is taken once no dword is all ones; partial sums are announced by a flag stored after their stores have completed.
  All waiting loops are bounded.  Which XCD a workgroup runs on only matters for speed.
"""

WS_R = 0
WS_P = 16 << 20
WS_FL = 20 << 20
WS_DBG = 32 << 20
OOB = 0x40000000

XB, KB = 65536, 98304
WOB, PB = 65536, 147456

sW, sJ, sRG, sG, sBR = 3, 6, 7, 8, 9
sFLIP, sPH, sKC, sQ = 32, 33, 34, 35
SRD_X, SRD_K, SRD_V, SRD_WQ, SRD_WO, SRD_OUT, SRD_DBG, SRD_WS = 36, 40, 44, 48, 52, 56, 60, 64
sWQ0, sX0, sK0, sV0, sWO0, sM4, sM5 = 68, 69, 70, 71, 72, 73, 74
sT0, sT1, sT2, sT3 = 75, 76, 77, 78
sRS, sRL, sPS, sFLD, sPL, sC, sHS, sCT, sFLM = 79, 80, 81, 82, 83, 84, 89, 86, 98
sSPIN = 88
sOUT0, sOUT1 = 90, 91
sTCH = 87
sST = 92
WSR = f"s[{SRD_WS}:{SRD_WS+3}]"; DBGR = f"s[{SRD_DBG}:{SRD_DBG+3}]"; OUTR = f"s[{SRD_OUT}:{SRD_OUT+3}]"

vL16, vL8, vFL0, vONE = 28, 29, 30, 31
vT = 33
aW, aX, kR = 1, 5, 7
vPW, vPR, vZ = 15, 16, 17
aWo, aV = 19, 23
ABUF = 40; BB = 64; ACC = 128
PF = 40
OUTA = 176
PVB = [112, 144]
VF = 96
A2 = 64
PRB = [[40, 44, 48, 52], [56, 60, 2, 6]]
SPARE = 56
PK = 2
vW, vX, vK, vV, vWo = 1, 5, 9, 13, 17
vFLAG = 32
vFL = 22
lID = 40
lZa, vFA, vFA2, vFB, vFB2, vOA, vOB, vOC, vPF, vPF2 = 46, 47, 48, 49, 50, 51, 52, 53, 54, 55
LINC = 64
LZ = 112
LZC = 136
LPK = 152
VP = 192
vVW = 56

def v(b, n=1): return vr(b, n)
def mfma(d, A, B, C=None): return Op(f"v_mfma_f32_16x16x32_bf16 {v(d,4)}, {A}, {B}, {v(d,4) if C is None else C}")
def cvt(d, s0): return Op(f"v_cvt_pk_bf16_f32 v{d}, v{s0}, v{s0+1}")
def ops(text): return [Op(x) for x in text.split("\n") if x.strip()]

class Ticks:
    def __init__(self): self.m = []; self.f = []
    def add(self, op): self.m.append(op); self.f.append([]); return len(self.m) - 1
    def put(self, t, o, prio=5):
        if not isinstance(o, (list, tuple)): o = [o]
        self.f[t].append((prio, len(self.f[t]), [Op(x) if isinstance(x, str) else x for x in o]))
    def spread(self, items, t0, t1, prio=5):
        n = len(items)
        for q, it in enumerate(items): self.put(t0 + (q * (t1 - t0 + 1)) // n, it, prio)
    def flush(self, st):
        for m, f in zip(self.m, self.f):
            st.add(m)
            for _, _, o in sorted(f, key=lambda x: (x[0], x[1])): st.add(o)

def weave(st, main, side, first=0):
    n, m = len(main), len(side); k = 0
    for i, o in enumerate(main):
        st.add(o)
        while k < m and i >= first and (k + 1) * (n - first) <= (i + 1 - first) * m: st.add(side[k]); k += 1
    while k < m: st.add(side[k]); k += 1

def build(path, **kw):
    P = dict(DEF); P.update(kw)
    BP, BP2, LA, NF = P["bpos"], P["bpos2"], P["la"], P["nf"]
    NS = 16 - NF
    tail = []
    pro = Stream(); cs = Stream(); ls = Stream()
    for s in (pro, cs, ls): s.nocheck = True
    t0, t1, t2, t3, t4, t5, t6 = range(vT, vT + 7)
    nst = {"c": 0, "l": 0}
    def stamp(name, role="c"):
        if P["x_seg"] and role == "l" and name in P["x_seg"]:
            r_ = 14 + 2 * P["x_seg"].index(name)
            return [Op(f"s_memrealtime s[{r_}:{r_+1}]"), Op("s_waitcnt lgkmcnt(0)")]
        if not P["dbg"] or name not in P["stamps" if role == "c" else "lstamps"]: return []
        nst[role] += 1; i = nst[role]; assert i <= 13
        return [Op(f"s_memtime s[{sST}:{sST+1}]"), Op("s_waitcnt lgkmcnt(0)"), Op(f"s_mov_b32 s{sreg_(i)}, s{sST}")]
    def sreg_(i): return {1: 99, 2: 100, 3: 101}.get(i, 12 + i)
    def dump():
        if not P["dbg"]: return []
        L = ops(f"""s_waitcnt vmcnt(0)
            s_memrealtime s[{sST}:{sST+1}]
            s_waitcnt lgkmcnt(0)
            v_writelane_b32 v{t6}, s{sST+2}, 0
            v_writelane_b32 v{t6}, s{sST}, 15
            v_writelane_b32 v{t6}, s{sST+4}, 14""")
        L += [Op(f"v_writelane_b32 v{t6}, s{sreg_(i)}, {i}") for i in range(1, 14)]
        L += ops(f"""s_lshl_b32 s{sT2}, s2, 3
            s_add_u32 s{sT2}, s{sT2}, s31
            s_lshl_b32 s{sT2}, s{sT2}, 8
            s_add_u32 s{sT2}, s{sT2}, {WS_DBG}
            v_lshlrev_b32 v{t0}, 2, v0
            buffer_store_dword v{t6}, v{t0}, {WSR}, s{sT2} offen""")
        return L
    BAR = lambda: Op("s_barrier")
    def mksrd(dst, ptr, n): return ops(f"s_mov_b32 s{dst+2}, {n}\ns_mov_b32 s{dst+3}, 0x00020000")
    def mod10(x, tmp): return f"s_sub_u32 s{tmp}, s{x}, 10\ns_min_u32 s{x}, s{x}, s{tmp}"
    def wo_regions(k):
        lo, hi = WOB + 20480 * k, WOB + 20480 * (k + 1); r = [f"Wo{k}"]
        if lo < XB + 16384: r.append("X0")
        if lo < KB and hi > XB + 16384: r.append("X1")
        if hi > KB: r.append("K")
        return r

    A = pro.add
    A("s_cmp_ge_u32 s2, 256\ns_cbranch_scc1 L_end")
    if P["dbg"] or P["x_amp"]: A(f"s_memtime s[{sST+2}:{sST+3}]\ns_memrealtime s[{sST+4}:{sST+5}]")
    A(f"""v_lshrrev_b32 v{t0}, 6, v0
        s_bfe_u32 s{sBR}, s2, 0x10002
        v_readfirstlane_b32 s31, v{t0}
        s_mul_i32 s10, s{sBR}, 40
        v_and_b32 v0, 63, v0
        s_add_u32 s4, s0, s10
        s_addc_u32 s5, s1, 0
        s_cmp_lt_u32 s31, 4
        s_cbranch_scc1 L_compute""")
    ids = f"""s_and_b32 s{sQ}, s2, 3
        s_bfe_u32 s{sJ}, s2, 0x20003
        s_lshr_b32 s{sRG}, s2, 5
        s_and_b32 s{sW}, s31, 3
        s_lshl_b32 s{sM4}, s{sW}, 12"""

    def exchange_setup():
        return mksrd(SRD_WS, 28, 268435456) + ops(f"""s_lshl_b32 s10, s{sBR}, 3
            s_add_u32 s10, s10, s{sRG}
            s_lshl_b32 s{sG}, s10, 2
            s_add_u32 s{sG}, s{sG}, s{sJ}
            s_lshl_b32 s10, s{sG}, 18
            s_add_u32 s10, s10, s{sM4}
            s_lshl_b32 s11, s{sQ}, 14
            s_add_u32 s{sRS}, s10, s11
            s_lshl_b32 s11, s{sQ}, 16
            s_add_u32 s{sRL}, s10, s11
            s_lshl_b32 s10, s{sBR}, 3
            s_add_u32 s10, s10, s{sRG}
            s_lshl_b32 s10, s10, 7
            s_lshl_b32 s11, s{sQ}, 3
            s_add_u32 s10, s10, s11
            s_lshl_b32 s11, s{sW}, 5
            s_add_u32 s11, s11, s10
            s_lshl_b32 s11, s11, 11
            s_add_u32 s{sPL}, s11, {WS_P}
            s_lshr_b32 s11, s{sW}, 1
            s_lshl_b32 s11, s11, 6
            s_add_u32 s10, s10, s11
            s_lshl_b32 s11, s{sJ}, 1
            s_add_u32 s10, s10, s11
            s_and_b32 s11, s{sW}, 1
            s_add_u32 s10, s10, s11
            s_lshl_b32 s10, s10, 11
            s_add_u32 s{sPS}, s10, {WS_P}
            s_lshl_b32 s10, s{sG}, 13
            s_lshl_b32 s11, s{sW}, 9
            s_add_u32 s10, s10, s11
            s_add_u32 s{sFLD}, s10, {WS_FL}
            s_lshl_b32 s11, s{sQ}, 11
            s_add_u32 s{sFLM}, s{sFLD}, s11
            v_mov_b32 v{t0}, {OOB}
            v_cmp_eq_u32 vcc, 0, v0
            v_mov_b32 v{t2}, 0
            v_mov_b32 v{vONE}, 1
            v_cndmask_b32 v{vFL0}, v{t0}, v{t2}, vcc
            v_lshlrev_b32 v{vL8}, 3, v0""")

    A = ls.add
    def dma(vo, srd_, so, q, mod, g, fill): return Op(f"buffer_load_dwordx4 v{vo}, s[{srd_}:{srd_+3}], s{so} offen offset:{(q%4)*1024} {mod} lds", group=g, fill=fill)
    def dma_w(t):
        kc, dh = t // 2, t % 2; s = t % 4; g = ("W", t); items = []
        if dh == 0:
            for q in range(4):
                it = []
                if q == 0:
                    if kc: it += [Op(f"s_add_u32 s{sKC}, s{sKC}, 1"), Op(f"s_cmp_eq_u32 s{sKC}, 10"), Op(f"s_cselect_b32 s{sKC}, 0, s{sKC}")]
                    it += [Op(f"s_lshl_b32 s{sT1}, s{sKC}, 7"), Op(f"s_add_u32 s{sT1}, s{sT1}, s{sX0}"),
                           Op(f"s_lshl_b32 s{sT0}, s{sKC}, 19"), Op(f"s_add_u32 s{sT0}, s{sT0}, s{sWQ0}"),
                           Op(f"s_add_u32 m0, s{sM4}, {XB + (kc%2)*16384}", wm0=True)]
                it.append(dma(vX + q, SRD_X, sT1, q, "nt" if t >= 20 - P["ntlast"] else P["nt_x"], g, [(f"X{kc%2}", kc)]))
                items.append(it)
        for q in range(4):
            it = []
            if q == 0:
                if dh == 1: it.append(Op(f"s_xor_b32 s{sT0}, s{sT0}, 128"))
                it.append(Op(f"s_add_u32 m0, s{sM4}, {16384*s}", wm0=True))
            it.append(dma(vW + q, SRD_WQ, sT0, q, "nt" if t >= 20 - P["ntlast"] else P["nt_w"], g, [(f"S{s}", t)]))
            items.append(it)
        return items
    def dma_k(n):
        it = []
        if n % 4 == 0:
            it += [Op(f"s_add_u32 s{sT2}, s{sK0}, {(n//8)*262144 + ((n%8)//4)*4096}"), Op(f"s_lshl_b32 s{sT3}, s{sM4}, 2"),
                   Op(f"s_add_u32 m0, s{sT3}, {KB + (n//4)*4096}")]
        it.append(dma(vK + n % 4, SRD_K, sT2, n, P["nt_k"], ("K", 0), [("K", 100), ("Kp", 100)]))
        return it
    def head_ops(s, dst): return [Op(f"s_lshl_b32 s{dst}, s{sJ}, 1"), Op(f"s_add_u32 s{dst}, s{dst}, {s//2}"), Op(f"s_and_b32 s{dst}, s{dst}, 7")]
    def dma_v(s):
        L = head_ops(s, sT2) + [Op(f"s_lshl_b32 s{sT2}, s{sT2}, 13"), Op(f"s_add_u32 s{sT2}, s{sT2}, s{sV0}")]
        if s % 2: L.append(Op(f"s_add_u32 s{sT2}, s{sT2}, 128"))
        L.append(Op(f"s_add_u32 m0, s{sM4}, {16384*(s%4)}"))
        return L + [dma(vV + q, SRD_V, sT2, q, P["nt_v"], ("V", s), [(f"S{s%4}", 200 + s)]) for q in range(4)]
    def dma_wo(s):
        k = s % 4; fill = [(r, 200 + s) for r in wo_regions(k)]
        L = head_ops(s, sT2) + [Op(f"s_mul_i32 s{sT2}, s{sT2}, {128*1280}"), Op(f"s_add_u32 s{sT2}, s{sT2}, s{sWO0}")]
        if s % 2: L.append(Op(f"s_add_u32 s{sT2}, s{sT2}, {64*1280}"))
        for q in range(5):
            if q % 4 == 0: L.append(Op(f"s_add_u32 m0, s{sM5}, {WOB + 20480*k + 1024*q}"))
            L.append(dma(vWo + q, SRD_WO, sT2, q, P["nt_wo"], ("Wo", s), fill))
        return L
    nlab = [0]
    def arrived(regs, reload, tmp):
        k = nlab[0]; nlab[0] += 1; regs = list(regs); L = []
        L.append(f"v_max3_u32 v{tmp}, v{regs[0]}, v{regs[1]}, v{regs[2]}")
        rest_ = regs[3:]
        while len(rest_) >= 2: L.append(f"v_max3_u32 v{tmp}, v{tmp}, v{rest_[0]}, v{rest_[1]}"); rest_ = rest_[2:]
        if rest_: L.append(f"v_max_u32 v{tmp}, v{tmp}, v{rest_[0]}")
        L.append(f"v_cmp_eq_u32 vcc, -1, v{tmp}")
        tail.extend([f"L_spin{k}:", f"s_mov_b32 s{sSPIN}, 0", f"L_spin{k}a:"] + [o.text for o in reload] + ["s_waitcnt vmcnt(0)"] + L +
                    [f"s_add_u32 s{sSPIN}, s{sSPIN}, 1", f"s_cmp_gt_u32 s{sSPIN}, 400000", f"s_cbranch_scc1 L_back{k}",
                     f"s_cbranch_vccnz L_spin{k}a", f"s_branch L_back{k}"])
        return [Op(x) for x in L] + [Op("s_nop 0"), Op(f"s_cbranch_vccnz L_spin{k}"), Op(f"L_back{k}:")]
    def poll(): return Op(f"buffer_load_dword v{vFLAG}, v{vFL}, {WSR}, s{sFLM} offen sc1")
    def need(mask):
        k = nlab[0]; nlab[0] += 1
        tail.extend([f"L_spin{k}:", f"s_mov_b32 s{sSPIN}, 0", f"L_spin{k}a:",
                     f"buffer_load_dword v{vFLAG}, v{vFL}, {WSR}, s{sFLM} offen sc1", "s_waitcnt vmcnt(0)",
                     f"v_cmp_ne_u32 vcc, 0, v{vFLAG}", f"s_add_u32 s{sSPIN}, s{sSPIN}, 1", f"s_cmp_gt_u32 s{sSPIN}, 400000", f"s_cbranch_scc1 L_back{k}",
                     f"s_and_b32 s{sT2}, vcc_lo, {mask}", f"s_cmp_lg_u32 s{sT2}, {mask}", f"s_cbranch_scc1 L_spin{k}a", f"s_branch L_back{k}"])
        return ops(f"v_cmp_ne_u32 vcc, 0, v{vFLAG}\ns_and_b32 s{sT2}, vcc_lo, {mask}\ns_cmp_lg_u32 s{sT2}, {mask}\ns_cbranch_scc1 L_spin{k}\nL_back{k}:")
    def fetch(k, r):
        L = ops(f"s_add_u32 s{sT2}, s{sQ}, {3 - k + 4}\ns_and_b32 s{sT2}, s{sT2}, 3\ns_lshl_b32 s{sT2}, s{sT2}, 14\ns_add_u32 s{sT2}, s{sT2}, s{sRL}")
        if k < 3: L += [Op(f"buffer_load_dwordx4 {v(r+4*nt,4)}, v{vL16}, {WSR}, s{sT2} offen offset:{1024*nt} sc1") for nt in range(2)]
        return L + [Op(f"buffer_load_dwordx2 {v(r+8,2)}, v{vL8}, {WSR}, s{sT2} offen offset:2048 sc1")]
    def addin(k, r):
        L = []
        if k < 3:
            for nt in range(2):
                for jt in range(2): L.append(mfma(LZ + 8 * nt + 4 * jt, v(lID + 2 - 2 * jt, 4), v(r + 4 * nt, 4)))
        return L + [mfma(LZ + 16, v(lID + 2, 4), v(r + 8, 4))]

    A(f"s_load_dwordx2 s[{SRD_X}:{SRD_X+1}], s[4:5], 0\ns_load_dwordx2 s[{SRD_WQ}:{SRD_WQ+1}], s[4:5], 24")
    if P["prio_l"]: A(f"s_setprio {P['prio_l']}")
    A(ids)
    xr = P["xrot"]
    A(f"""s_mul_i32 s{sKC}, s{sRG}, 5
        v_lshrrev_b32 v{t0}, 4, v0
        s_mul_i32 s10, s{sJ}, 5
        v_lshrrev_b32 v{t4}, 3, v0
        s_lshr_b32 s{sKC}, s{sKC}, 2
        v_and_b32 v{t1}, 7, v0
        s_lshr_b32 s10, s10, 1
        v_mul_u32_u24 v{t2}, 1280, v{t4}
        s_add_u32 s{sKC}, s{sKC}, s10
        v_xor_b32 v{t3}, v{t1}, v{t0}
        s_add_u32 s{sKC}, s{sKC}, {'s%d' % sQ if xr else 0}
        v_lshl_add_u32 v{vX}, v{t3}, 4, v{t2}
        {mod10(sKC, 30)}
        v_xor_b32 v{t3}, 4, v{t3}
        s_lshl_b32 s10, s{sRG}, 2
        v_lshl_add_u32 v{vX+1}, v{t3}, 4, v{t2}
        s_add_u32 s10, s10, s{sW}
        v_add_u32 v{vX+2}, {2*9216}, v{vX}
        s_mul_i32 s{sX0}, s10, 40960
        v_add_u32 v{vX+3}, {3*9216}, v{vX+1}
        s_mov_b32 s{SRD_X+2}, {SZ['x']}
        v_add_u32 v{vX+1}, 9216, v{vX+1}
        s_mov_b32 s{SRD_X+3}, 0x00020000""")
    assert xr in (0, 1)
    if not P["rot"]: A(f"s_mov_b32 s{sKC}, 0")
    wsetup = ops(f"""v_bfe_u32 v{t3}, v0, 1, 3
        s_lshl_b32 s10, s{sQ}, 2
        v_xor_b32 v{t3}, v{t3}, v{t0}
        s_add_u32 s10, s10, s{sJ}
        v_and_b32 v{t2}, 4, v{t3}
        s_lshl_b32 s{sWQ0}, s10, 9
        v_and_b32 v{t3}, 3, v{t3}
        s_lshl_b32 s10, s{sW}, 17
        v_lshlrev_b32 v{t2}, 6, v{t2}
        s_add_u32 s{sWQ0}, s{sWQ0}, s10
        v_lshl_or_b32 v{t3}, v{t3}, 5, v{t2}
        s_lshl_b32 s{sT0}, s{sKC}, 19
        v_and_b32 v{t2}, 1, v0
        s_add_u32 s{sT0}, s{sT0}, s{sWQ0}
        v_lshl_or_b32 v{t3}, v{t2}, 4, v{t3}
        s_mov_b32 s{SRD_WQ+2}, {SZ['wq']}
        v_lshl_or_b32 v{vW}, v{t0}, 13, v{t3}
        s_mov_b32 s{SRD_WQ+3}, 0x00020000
        v_add_u32 v{vW+1}, {32768 - 1024}, v{vW}
        v_xor_b32 v{vW+2}, 0x100, v{vW}
        v_add_u32 v{vW+3}, {3*(32768 - 1024)}, v{vW+2}
        v_add_u32 v{vW+2}, {2*(32768 - 1024)}, v{vW+2}""")
    A(stamp("k0", "l"))
    w0 = dma_w(0); w0[0] = [o for o in w0[0] if f"s{sT0}," not in o.text]
    A(w0[:1]); A(stamp("k1", "l")); A(w0[1:4]); A(wsetup); A(w0[4:]); A(stamp("k2", "l"))
    A(f"""s_load_dwordx2 s[{SRD_K}:{SRD_K+1}], s[4:5], 8
        s_load_dwordx2 s[{SRD_V}:{SRD_V+1}], s[4:5], 16
        s_load_dwordx2 s[{SRD_WO}:{SRD_WO+1}], s[4:5], 32
        s_load_dwordx2 s[{SRD_OUT}:{SRD_OUT+1}], s[0:1], 80
        s_load_dwordx2 s[{SRD_WS}:{SRD_WS+1}], s[0:1], 96
        v_lshlrev_b32 v{vL16}, 4, v0""")
    if P["code_pf"]:
        A("s_getpc_b64 s[22:23]\nL_pc:")
        A(f"""s_lshr_b32 s10, s2, 3
            s_lshl_b32 s10, s10, 11
            v_and_b32 v{t2}, 15, v0
            v_lshlrev_b32 v{t2}, 7, v{t2}
            v_add_u32 v{t2}, s10, v{t2}
            v_min_u32 v{t2}, CODE_SPAN, v{t2}
            s_sub_u32 s22, s22, CODE_BACK
            s_subb_u32 s23, s23, 0
            global_load_dword v{t5}, v{t2}, s[22:23]""")
    rest = mksrd(SRD_K, 14, SZ["k"]) + ops(f"""v_and_b32 v{t2}, 15, v0
        v_xor_b32 v{t2}, v{t2}, v{t0}
        v_lshlrev_b32 v{t2}, 4, v{t2}
        v_lshl_or_b32 v{vK}, v{t0}, 8, v{t2}
        v_xor_b32 v{vK+1}, 64, v{vK}
        v_xor_b32 v{vK+2}, 0x80, v{vK}
        v_xor_b32 v{vK+3}, 0xc0, v{vK}
        v_lshlrev_b32 v{t2}, 1, v{t0}
        v_xor_b32 v{t2}, v{t2}, v{t1}
        v_lshlrev_b32 v{t2}, 4, v{t2}
        v_lshl_or_b32 v{vV}, v{t4}, 8, v{t2}
        v_add_u32 v{vV+1}, 1024, v{vV}
        v_add_u32 v{vV+2}, 2048, v{vV}
        v_add_u32 v{vV+3}, 3072, v{vV}
        s_lshl_b32 s10, s{sRG}, 1
        s_lshr_b32 s11, s{sW}, 1
        s_add_u32 s10, s10, s11
        s_lshl_b32 s10, s10, 6
        s_lshl_b32 s11, s{sQ}, 3
        s_add_u32 s10, s10, s11
        s_lshl_b32 s11, s{sJ}, 1
        s_add_u32 s10, s10, s11
        s_and_b32 s11, s{sW}, 1
        s_add_u32 s10, s10, s11
        s_lshl_b32 s{sK0}, s10, 13
        s_lshr_b32 s{sPH}, s2, 3
        s_lshl_b32 s10, s{sRG}, 2
        s_add_u32 s10, s10, s{sW}
        s_lshl_b32 s10, s10, 2
        s_add_u32 s10, s10, s{sQ}
        s_lshl_b32 s{sV0}, s10, 16""") + mksrd(SRD_V, 16, SZ["v"]) + mksrd(SRD_WO, 20, SZ["wo"])
    rest += exchange_setup()
    rest += ops(f"""v_lshlrev_b32 v{vPF}, 7, v0
        v_min_u32 v{t2}, {47 if P["ctm"] else 23}, v0
        v_mul_u32_u24 v{t3}, 86, v{t2}
        v_lshrrev_b32 v{t3}, 8, v{t3}
        v_mul_u32_u24 v{vPF2}, {1280 - 384}, v{t3}
        v_lshl_add_u32 v{vPF2}, v{t2}, 7, v{vPF2}
        s_and_b32 s{sCT}, s{sRG}, {P["ctm"]}
        s_lshl_b32 s{sCT}, s{sCT}, 1
        s_add_u32 s{sCT}, s{sCT}, s{sJ}
        s_and_b32 s{sCT}, s{sCT}, 3
        s_lshl_b32 s10, s{sQ}, 7
        s_andn2_b32 s11, s{sRG}, {P["ctm"]}
        s_lshl_b32 s11, s11, 2
        s_add_u32 s10, s10, s11
        s_lshl_b32 s11, s{sW}, {P["ctm"]}
        s_add_u32 s10, s10, s11
        s_mul_i32 s10, s10, 10240
        s_mul_i32 s11, s{sCT}, 320
        s_and_b32 s11, s11, 0xffffff80
        s_add_u32 s{sTCH}, s10, s11
        v_mov_b32 v{t2}, {OOB}
        v_cmp_gt_u32 vcc, 3, v0
        s_nop 1
        v_cndmask_b32 v{vFL}, v{t2}, v{vPF}, vcc""")
    g1 = dma_w(1); nf = P["first"]; side = g1[:nf]; k = 0
    for i, o in enumerate(rest):
        A(o)
        if k < len(side) and (k + 1) * len(rest) <= (i + 1) * len(side): A(side[k]); k += 1
    A(side[k:])
    if P["bal"]:
        A(f"""s_mul_i32 s10, s{sRG}, 5
            s_lshr_b32 s10, s10, 2
            s_sub_u32 s10, s{sKC}, s10
            s_lshr_b32 s11, s{sRG}, 2
            s_mul_i32 s11, s11, 5
            s_add_u32 s10, s10, s11
            s_add_u32 s10, s10, 14
            {mod10(10, 30)}
            {mod10(10, 30)}
            s_lshl_b32 s10, s10, 19
            s_and_b32 s11, s{sRG}, 3
            s_lshl_b32 s11, s11, 17
            s_add_u32 s10, s10, s11
            s_lshl_b32 s11, s{sW}, 15
            s_add_u32 s10, s10, s11
            s_and_b32 s11, s{sWQ0}, 0x1fff
            s_add_u32 s10, s10, s11
            v_bfe_u32 v{t2}, v0, 2, 2
            v_and_b32 v{t3}, 3, v0
            v_lshlrev_b32 v{t3}, 7, v{t3}
            v_lshl_or_b32 v{t2}, v{t2}, 13, v{t3}
            buffer_load_dword v{t6}, v{t2}, s[{SRD_WQ}:{SRD_WQ+3}], s10 offen""")
    if P["bal"] > 1:
        A(f"""s_add_u32 s10, s{sKC}, 4
            {mod10(10, 30)}
            s_lshl_b32 s10, s10, 7
            s_lshl_b32 s11, s{sRG}, 3
            s_add_u32 s11, s11, s{sW}
            s_mul_i32 s11, s11, 20480
            s_add_u32 s10, s10, s11
            s_bitcmp1_b32 s{sJ}, 0
            s_cselect_b32 s10, {OOB}, s10
            v_and_b32 v{t3}, 15, v0
            v_mul_u32_u24 v{t3}, 1280, v{t3}
            buffer_load_dword v{vPF2+2}, v{t3}, s[{SRD_X}:{SRD_X+3}], s10 offen""")
    late = mksrd(SRD_OUT, 24, SZ["out"]) + ops(f"""        s_lshl_b32 s10, s{sRG}, 2
        s_add_u32 s10, s10, s{sW}
        s_mul_i32 s10, s10, {32*2560}
        s_mul_i32 s11, s{sBR}, 1280
        s_add_u32 s10, s10, s11
        s_mul_i32 s11, s{sCT}, 320
        s_add_u32 s10, s10, s11
        s_lshl_b32 s30, s{sQ}, 6
        s_add_u32 s{sOUT0}, s10, s30
        s_and_b32 s30, s{sQ}, 1
        s_mul_i32 s30, s30, {16*2560}
        s_add_u32 s10, s10, s30
        s_lshr_b32 s30, s{sQ}, 1
        s_lshl_b32 s30, s30, 5
        s_add_u32 s10, s10, s30
        s_add_u32 s{sOUT1}, s10, 256
        s_lshl_b32 s10, s{sQ}, 6
        s_add_u32 s10, s10, s{sW}
        s_mul_i32 s10, s10, {16*1280}
        s_add_u32 s{sWO0}, s10, s11
        s_mul_i32 s{sM5}, s{sW}, 5120
        s_add_u32 s10, s{sQ}, 1
        s_movk_i32 s11, 3277""")
    for q in range(5):
        late += ops(f"""v_add_u32 v{t0}, {64*q}, v0
            v_mul_u32_u24 v{t1}, s11, v{t0}
            v_lshrrev_b32 v{t1}, 16, v{t1}
            v_mul_u32_u24 v{t2}, 20, v{t1}
            v_sub_u32 v{t0}, v{t0}, v{t2}
            v_lshrrev_b32 v{t2}, 2, v{t0}
            v_add_u32 v{t3}, s10, v{t2}
            v_and_b32 v{t3}, 3, v{t3}
            v_cmp_gt_u32 vcc, 4, v{t2}
            v_and_b32 v{t0}, 3, v{t0}
            v_bfe_u32 v{t4}, v{t1}, 2, 1
            v_cndmask_b32 v{t2}, v{t2}, v{t3}, vcc
            v_lshlrev_b32 v{t4}, 1, v{t4}
            v_xor_b32 v{t0}, v{t0}, v{t4}
            v_lshlrev_b32 v{t0}, 4, v{t0}
            v_lshl_or_b32 v{t0}, v{t2}, 6, v{t0}
            v_mul_u32_u24 v{t1}, 1280, v{t1}
            v_add_u32 v{vWo+q}, v{t0}, v{t1}""")
        if q % 4: late.append(Op(f"v_subrev_u32 v{vWo+q}, {1024*(q%4)}, v{vWo+q}"))
    FA = 16384
    late += ops(f"""v_and_b32 v{t0}, 15, v0
        v_lshrrev_b32 v{t1}, 4, v0
        v_lshrrev_b32 v{t2}, 1, v{t1}
        v_bfe_u32 v{t3}, v0, 1, 2
        v_xor_b32 v{t3}, v{t3}, v{t2}
        v_lshlrev_b32 v{t3}, 4, v{t3}
        v_and_b32 v{t4}, 1, v{t1}
        v_lshl_or_b32 v{t3}, v{t4}, 3, v{t3}
        v_lshl_or_b32 v{t3}, v{t0}, 6, v{t3}
        s_add_u32 s10, s{sM4}, {FA}
        v_add_u32 v{vFA}, s10, v{t3}
        v_lshlrev_b32 v{t3}, 3, v{t1}
        v_lshl_or_b32 v{t3}, v{t0}, 5, v{t3}
        s_add_u32 s11, s10, 2048
        v_add_u32 v{vFA2}, s11, v{t3}
        v_add_u32 v{vFB2}, s11, v{vL16}
        v_lshrrev_b32 v{t0}, 2, v0
        v_and_b32 v{t1}, 3, v0
        v_bfe_u32 v{t2}, v0, 3, 2
        v_xor_b32 v{t2}, v{t2}, v{t1}
        v_lshlrev_b32 v{t2}, 4, v{t2}
        v_lshl_or_b32 v{t2}, v{t0}, 6, v{t2}
        v_add_u32 v{vFB}, s10, v{t2}
        v_mul_u32_u24 v{t0}, 2560, v{t0}
        v_lshl_or_b32 v{vOA}, v{t1}, 4, v{t0}
        v_add_u32 v{vOB}, {16*2560}, v{vOA}
        v_lshrrev_b32 v{t0}, 1, v0
        v_and_b32 v{t1}, 1, v0
        v_mul_u32_u24 v{t0}, 2560, v{t0}
        v_lshl_or_b32 v{t0}, v{t1}, 4, v{t0}
        v_mov_b32 v{t1}, {OOB}
        v_cmp_gt_u32 vcc, 32, v0
        v_add_u32 v{lZa}, s{sM4}, v{vL16}
        v_mov_b32 v{lID}, 0
        v_cndmask_b32 v{vOC}, v{t1}, v{t0}, vcc
        v_and_b32 v{t0}, 1, v0
        v_lshlrev_b32 v{t0}, 4, v{t0}
        v_mov_b32 v{t1}, 0x3f80
        v_lshlrev_b32 v{t0}, v{t0}, v{t1}
        v_lshrrev_b32 v{t1}, 4, v0
        v_bfe_u32 v{t2}, v0, 2, 2
        v_cmp_eq_u32 vcc, v{t1}, v{t2}
        v_mov_b32 v{lID+1}, 0
        v_and_b32 v{t2}, 3, v0
        v_cndmask_b32 v{t0}, v{lID}, v{t0}, vcc
        v_cmp_gt_u32 vcc, 2, v{t2}
        v_mov_b32 v{lID+4}, 0
        v_mov_b32 v{lID+5}, 0
        v_cndmask_b32 v{lID+2}, v{lID}, v{t0}, vcc
        v_cndmask_b32 v{lID+3}, v{t0}, v{lID}, vcc""")
    late += [Op(f"v_mov_b32 v{LZ+q}, 0") for q in range(20)] + [Op(f"v_mov_b32 v{LINC+12*q+10+e}, 0") for q in range(4) for e in range(2)]
    A("s_waitcnt lgkmcnt(0)")
    A(stamp("lstart", "l"))
    def lbar(*groups): return [Op("WAITG", group=g) for g in groups] + [BAR()]
    A(lbar(("W", 0))[:-1]); A(stamp("k3", "l")); A(BAR())
    clx = P["clx"]; vdma = dict(P["vdma"])
    def touch(dj):
        return ops(f"""s_add_u32 s{sT3}, s{sJ}, {dj}
            s_and_b32 s{sT3}, s{sT3}, 3
            s_mul_i32 s{sT3}, s{sT3}, {256*1280}
            s_add_u32 s{sT3}, s{sT3}, s{sTCH}
            buffer_load_dword v{t5}, v{vPF2}, s[{SRD_WO}:{SRD_WO+3}], s{sT3} offen""")
    def touch_v(hd):
        return ops(f"""s_lshl_b32 s{sT2}, s{sJ}, 14
            s_add_u32 s{sT2}, s{sT2}, s{sV0}
            s_add_u32 s{sT2}, s{sT2}, {hd*8192}
            buffer_load_dword v{t6}, v{vPF}, s[{SRD_V}:{SRD_V+3}], s{sT2} offen""")
    def piece(p):
        if p[0] == "T": return touch(int(p[1]))
        if p[0] == "U": return touch_v(int(p[1]))
        return [y for n in range(4 * int(p[1]), 4 * int(p[1]) + 4) for y in dma_k(n)]
    nl = len(late); parts = {1: late[:nl // 3], 5: late[nl // 3:2 * nl // 3], 10: late[2 * nl // 3:]}
    NV = P["nv"]; variants = []; lst = {}
    if NV > 1:
        A(f"s_and_b32 s10, s{sPH}, {NV-1}")
        for ph in range(1, NV): A(f"s_cmp_eq_u32 s10, {ph}\ns_cbranch_scc1 L_var{ph}")
    head = ls.ops
    for ph in range(NV):
        V_ = [Op(f"L_var{ph}:")]
        q_ = [(1, [Op(o.text, **o.meta) for o in it]) for it in g1[nf:]] + [(t, it) for t in range(2, 20) for it in dma_w(t)]
        quiet = set()
        for x in range(0, 20):
            cl_ = [y for pcs, xc in clx if xc + ph * P['phstep'] == x for p_ in pcs for y in piece(p_)]
            if cl_:
                quiet |= {x + d for d in P["skip"]}
            if not P["cend"]: V_ += cl_
            n = 0
            while q_ and q_[0][0] <= x + LA and (q_[0][0] <= x + 1 or (x not in quiet and n < (P["cap0"] if x == 0 else P["cap"]))):
                V_ += q_.pop(0)[1]; n += 1
            if P["cend"]: V_ += cl_
            if x in parts: V_ += [Op(o.text, **o.meta) for o in parts[x]]
            if x == P["pfx"]: V_ += touch(0)
            if x in vdma:
                V_ += dma_v(vdma[x])
            V_ += lbar(("W", x + 1))
            if ph == 0: lst[x] = stamp(f"l{x}", "l")
            V_ += [Op(o.text) for o in lst[x]]
        fixed = []; cur = want = None
        for o in V_:
            if o.text.startswith("s_add_u32 m0"):
                cur = o.text
                if o.meta.get("wm0"): want = o.text
            if o.kind == "dma" and o.meta["group"][0] == "W" and cur is not None and cur != want: assert want; fixed.append(Op(want)); cur = want
            fixed.append(o)
        V_ = fixed
        V_.append(Op("s_branch L_join"))
        variants.append(V_)
    ls.ops = []
    A("L_join:")
    A(BAR())
    todo = [s_ for s_ in range(4) if s_ not in vdma.values()]
    early = [s_ for s_ in todo if s_ < 3]
    A(dma_wo(0))
    for s_ in early: A(dma_v(s_))
    A(dma_wo(1))
    A([Op("WAITL")] + lbar(("V", 0), ("Wo", 0)))
    A(stamp("m0", "l"))
    def pieces(L):
        out = [[]]
        for o in L:
            out[-1].append(o)
            if o.kind == "dma": out.append([])
        return out[:-1]
    q2 = []
    for x in range(0, NS):
        if x + 2 <= 15: q2 += [(x, x + 1, it) for it in pieces(dma_wo(x + 2))]
        if x + 3 <= 15 and (x >= 1 or 3 in todo): q2 += [(x, x + 2, it) for it in pieces(dma_v(x + 3))]
    quiet = {x + d for x in P["tch"] for d in P["skip2"]}
    for x in range(0, NS):
        n = 0
        while q2 and q2[0][0] <= x and (x == NS - 1 or any(e[1] <= x for e in q2) or (x not in quiet and n < P["cap2"])):
            A(q2.pop(0)[2]); n += 1
        if x in P["tch"]: A(touch(P["tch"][x]))
        if x == P["tlb"]:
            A(f"""buffer_load_dword v{vPF2+3}, v{vFL0}, {WSR}, s{sRL} offen offset:3072
                buffer_load_dword v{vPF2+4}, v{vFL0}, {WSR}, s{sFLM} offen offset:896 sc1
                buffer_load_dword v{t6}, v{vFL0}, {OUTR}, s{sOUT0} offen""")
        A(stamp(f'd{x}', 'l'))
        g = [("V", x + 1), ("Wo", x + 1)] + ([("V", x + 2)] if x == NS - 1 else [])
        A(lbar(*g))
        A(stamp(f"m{x+1}", "l"))
    if NS + 2 <= 15: A(dma_wo(NS + 2))
    if NS + 3 <= 15: A(dma_v(NS + 3))
    if NF == 4:
        A(lbar(("V", 14), ("Wo", 13)))
        A(dma_wo(15)); A(lbar(("V", 15), ("Wo", 14)))
        A(lbar(("Wo", 15)))
    elif NF == 3: A(lbar(("V", 15), ("Wo", 14)) + lbar(("Wo", 15)))
    else: A(lbar(("V", 15), ("Wo", 15)))
    zrd = [Op(f"ds_read_b128 {v(LZC+4*q,4)}, v{lZa} offset:{q*1024}", use=[("S0", 290)]) for q in range(4)]
    if P["early"]:
        if P["early"] == 2: A(BAR())
        A(poll())
        A(need(1) + fetch(0, LINC) + [poll()])
        A(need(2) + fetch(1, LINC + 12) + addin(0, LINC))
        A(stamp("c1", "l"))
        A(BAR())
        A(fetch(3, LINC + 36) + [poll()]); A(zrd); A(addin(1, LINC + 12))
    else:
        A(BAR()); A(stamp("bt1", "l"))
        A([poll()] + fetch(3, LINC + 36)); A(zrd)
        A(need(1) + fetch(0, LINC))
        A(need(2) + fetch(1, LINC + 12) + [poll()])
        A(stamp("c1", "l"))
        A(addin(0, LINC) + addin(1, LINC + 12))
    A(need(4) + fetch(2, LINC + 24) + addin(3, LINC + 36))
    A("s_nop 7")
    for q in range(16): A(f"v_add_f32 v{LZ+q}, v{LZ+q}, v{LZC+q}")
    A(f"v_xor_b32 v{t0}, 32, v{vFA}")
    A(addin(2, LINC + 24))
    A(stamp("c2", "l"))
    FK = [("S1", 300)]
    for nt in range(2):
        for jt in range(2):
            d = LPK + 4 * nt + 2 * jt; z = LZ + 8 * nt + 4 * jt
            A([cvt(d, z), cvt(d + 1, z + 2)])
            A(Op(f"ds_write_b64 v{t0 if nt else vFA}, {v(d,2)} offset:{jt*1024}", fill=FK, private=True))
    A([cvt(LPK + 8, LZ + 16), cvt(LPK + 9, LZ + 18), Op(f"ds_write_b64 v{vFA2}, {v(LPK+8,2)}", fill=FK, private=True)])
    A(Op(f"ds_read_b128 {v(LINC,4)}, v{vFB}", use=FK, private=True))
    A(Op(f"ds_read_b128 {v(LINC+4,4)}, v{vFB} offset:1024", use=FK, private=True))
    A(Op(f"ds_read_b128 {v(LINC+12,4)}, v{vFB2}", use=FK, private=True))
    A(f"buffer_store_dwordx4 {v(LINC,4)}, v{vOA}, {OUTR}, s{sOUT0} offen {P['out_mod']}")
    A(f"buffer_store_dwordx4 {v(LINC+4,4)}, v{vOB}, {OUTR}, s{sOUT0} offen {P['out_mod']}")
    A(f"buffer_store_dwordx4 {v(LINC+12,4)}, v{vOC}, {OUTR}, s{sOUT1} offen {P['out_mod']}")
    if P["dbg"] or P["x_seg"]: A("s_waitcnt vmcnt(0)"); A(stamp("lend", "l"))
    if P["x_seg"]:
        A(f"s_sub_u32 s10, s16, s14\ns_mul_i32 s10, s10, 8\ns_memrealtime s[14:15]\ns_waitcnt lgkmcnt(0)")
        A(f"L_amp:\ns_sleep 2\ns_memrealtime s[16:17]\ns_waitcnt lgkmcnt(0)\ns_sub_u32 s11, s16, s14\ns_cmp_lt_u32 s11, s10\ns_cbranch_scc1 L_amp")
    A(dump())
    if P["x_amp"]:
        A(f"s_waitcnt vmcnt(0)\ns_memrealtime s[{sST}:{sST+1}]\ns_waitcnt lgkmcnt(0)\ns_sub_u32 s10, s{sST}, s{sST+4}\ns_mul_i32 s10, s10, {P['x_amp']}")
        A(f"L_amp:\ns_sleep 2\ns_memrealtime s[{sST}:{sST+1}]\ns_waitcnt lgkmcnt(0)\ns_sub_u32 s11, s{sST}, s{sST+4}\ns_cmp_lt_u32 s11, s10\ns_cbranch_scc1 L_amp")
    A("L_end:\ns_endpgm")

    A = cs.add
    A("L_compute:")
    A(ids)
    A(f"v_lshlrev_b32 v{vL16}, 4, v0")
    if P["prio_c"]: A(f"s_setprio {P['prio_c']}")
    l16, g, r, c4 = t0, t1, t2, t3
    u0, u1 = ABUF, ABUF + 1
    A(f"""v_and_b32 v{l16}, 15, v0
        v_lshrrev_b32 v{g}, 4, v0
        v_bfe_u32 v{r}, v0, 2, 2
        v_and_b32 v{c4}, 3, v0
        v_and_b32 v{t5}, 1, v{g}
        v_lshl_or_b32 v{t4}, v{t5}, 2, v{r}
        s_and_b32 s10, s{sW}, 1
        s_lshl_b32 s11, s10, 2
        v_lshl_add_u32 v{u0}, v{g}, 3, v{r}
        v_lshlrev_b32 v{u0}, 8, v{u0}
        v_lshl_or_b32 v{u0}, v{c4}, 3, v{u0}
        v_xor_b32 v{u1}, s11, v{t4}
        v_lshl_or_b32 v{aW}, v{u1}, 5, v{u0}
        v_xor_b32 v{aW+1}, 32, v{aW}
        v_xor_b32 v{aW+2}, 64, v{aW}
        v_xor_b32 v{aW+3}, 0x60, v{aW}
        v_lshrrev_b32 v{u1}, 1, v{l16}
        v_xor_b32 v{u1}, v{u1}, v{g}
        v_lshlrev_b32 v{u1}, 4, v{u1}
        v_lshl_or_b32 v{u1}, v{l16}, 7, v{u1}
        s_lshr_b32 s11, s{sW}, 1
        s_lshl_b32 s30, s11, 13
        s_add_u32 s{sT0}, s30, {XB}
        v_add_u32 v{aX}, s{sT0}, v{u1}
        v_xor_b32 v{aX+1}, 64, v{aX}
        s_lshl_b32 s10, s10, 11
        s_add_u32 s10, s10, s30
        s_add_u32 s10, s10, {PB}
        v_add_u32 v{vPW}, s10, v{vL16}
        s_add_u32 s10, s{sM4}, {PB}
        v_add_u32 v{vPR}, s10, v{vL16}
        v_add_u32 v{vZ}, s{sM4}, v{vL16}
        v_lshrrev_b32 v{u0}, 1, v{g}
        v_xor_b32 v{u0}, v{u0}, v{l16}
        v_lshlrev_b32 v{u0}, 4, v{u0}
        v_lshl_or_b32 v{u0}, v{t5}, 3, v{u0}
        v_lshl_or_b32 v{u0}, v{l16}, 8, v{u0}
        s_lshl_b32 s10, s{sM4}, 2
        s_add_u32 s10, s10, {KB}
        v_add_u32 v{u0}, s10, v{u0}
        v_mov_b32 v{kR}, v{u0}
        s_load_dwordx2 s[{SRD_DBG}:{SRD_DBG+1}], s[0:1], 88
        s_load_dwordx2 s[{SRD_WS}:{SRD_WS+1}], s[0:1], 96""")
    for q in range(1, 8): A(f"v_xor_b32 v{kR+q}, {32*q}, v{kR}")
    late_c = ops(f"""v_lshrrev_b32 v{t3}, 2, v0
        v_bfe_u32 v{t4}, v0, 3, 2
        v_lshlrev_b32 v{t4}, 5, v{t4}
        v_and_b32 v{t5}, 3, v0
        v_lshl_or_b32 v{t4}, v{t5}, 3, v{t4}
        v_lshl_or_b32 v{t4}, v{t3}, 7, v{t4}
        v_add_u32 v{aV}, s{sM4}, v{t4}
        v_xor_b32 v{aV+1}, 32, v{aV}
        v_xor_b32 v{aV+2}, 64, v{aV}
        v_xor_b32 v{aV+3}, 0x60, v{aV}
        v_mul_u32_u24 v{t3}, 320, v{t3}
        v_lshl_add_u32 v{t3}, v{t5}, 3, v{t3}
        v_add_u32 v{t3}, {WOB}, v{t3}
        v_bfe_u32 v{t5}, v0, 4, 1
        v_lshlrev_b32 v{t5}, 5, v{t5}
        v_add_u32 v{aWo}, v{t3}, v{t5}
        v_sub_u32 v{aWo+1}, v{t3}, v{t5}
        v_add_u32 v{aWo+2}, 61440, v{aWo}
        v_add_u32 v{aWo+3}, 61440, v{aWo+1}""")
    A(f"""s_mov_b32 s{sC}, {f2u(SCALE_LOG2E)}
        s_mov_b32 s{sC+1}, {f2u(SCALE_LOG2E)}
        s_waitcnt lgkmcnt(0)""")
    A(exchange_setup())
    cbar = lambda: [Op("WAITL"), BAR()]
    vNAN, vZERO = aWo, aV
    A(mksrd(SRD_DBG, 26, 256))
    A(f"""s_lshl_b32 s10, s{sW}, 3
        s_add_u32 s{sHS}, s{sJ}, s10
        s_lshr_b32 s{sT1}, s{sG}, 2
        s_lshl_b32 s{sT1}, s{sT1}, 4
        s_add_u32 s{sT0}, s{sPS}, 65536
        v_mov_b32 v{t2}, {OOB}
        v_cmp_gt_u32 vcc, 24, v0
        v_mov_b32 v{vNAN-1}, -1
        v_mov_b32 v{vNAN}, -1
        v_cndmask_b32 v{t3}, v{t2}, v{vL16}, vcc
        v_mov_b32 v{vNAN+1}, -1
        v_mov_b32 v{vNAN+2}, -1
        v_mov_b32 v{vZERO-1}, 0
        v_mov_b32 v{vZERO}, 0
        v_mov_b32 v{vZERO+1}, 0
        v_mov_b32 v{vZERO+2}, 0""")
    clears = [Op(f"buffer_store_dwordx4 {v(vNAN-1,4)}, v{vL16}, {WSR}, s{so} offen offset:{off} sc1", group="clr") for so in (sPS, sT0) for off in (0, 1024)]
    clears.append(Op(f"buffer_store_dwordx4 {v(vZERO-1,4)}, v{t3}, {WSR}, s{sFLM} offen sc1", group="clr"))

    def rdA1(t, i):
        s = t % 4; buf = ABUF + 8 * ((4 * t + i) % 3)
        return [Op(f"ds_read_b64_tr_b16 {v(buf+4*ss+2*h,2)}, v{aW+i} offset:{s*16384 + ss*8192 + h*1024}", use=[(f"S{s}", t)]) for ss in range(2) for h in range(2)]
    def rdB(kc):
        return [Op(f"ds_read_b128 {v(BB+32*(kc%2)+8*jt+4*ss,4)}, v{aX+ss} offset:{(kc%2)*16384 + jt*2048}", use=[(f"X{kc%2}", kc)]) for jt in range(4) for ss in range(2)]
    if P["clr"][0] < 0: A(clears)
    A(BAR())
    A(stamp("start"))
    b0 = rdB(0); a0 = rdA1(0, 0)
    A(a0[:2] + b0[:1] + a0[2:] + b0[1:] + rdA1(0, 1))
    T = Ticks()
    for t in range(20):
        kc, dh = t // 2, t % 2
        for i in range(4):
            buf = ABUF + 8 * ((4 * t + i) % 3)
            for jt, ss in ([(a_, b_) for a_ in range(4) for b_ in range(2)] if P["chain"] else [(a_, b_) for b_ in range(2) for a_ in range(4)]):
                if True:
                    d = ACC + 16 * (4 * dh + i) + 4 * jt
                    T.add(mfma(d, v(buf + 4 * ss, 4), v(BB + 32 * (kc % 2) + 8 * jt + 4 * ss, 4), "0" if (kc == 0 and ss == 0) else None))
                    if jt == 0 and ss == 0: T.m[-1].meta["also"] = range(buf, buf + 8)
    for t in range(20):
        b = 32 * t
        if P["p1"] == 0:
            for q, o in enumerate(rdA1(t, 2)): T.put(b + q, o, 2)
            for q, o in enumerate(rdA1(t, 3)): T.put(b + 8 + q, o, 2)
        elif P["p1"] == 1:
            for q, o in enumerate(rdA1(t, 2)): T.put(b + 2 * q, o, 2)
            for q, o in enumerate(rdA1(t, 3)): T.put(b + 8 + q, o, 2)
        T.put(b + BP, cbar(), 1)
        if t < 19:
            for q, o in enumerate(rdA1(t + 1, 0)): T.put(b + BP + q, o, 2)
            for q, o in enumerate(rdA1(t + 1, 1)): T.put(b + 24 + (q if t % 2 or P["p1"] == 0 else 2 * q), o, 2)
            if t % 2 == 1:
                for pos, o in zip([min(BP + 4, 23), min(BP + 5, 23), min(BP + 6, 23), 28, 29, 30, 31, 32], rdB((t + 1) // 2)): T.put(b + pos, o, 3)
        T.put(b + 31, stamp(f"w{t}"), 9)
    def qreg(sd, j4): return ACC + 32 * sd + 4 * j4
    def pack(d, e): return [cvt(d, d), cvt(d + 1, d + 2), cvt(d + 2, e), cvt(d + 3, e + 2)]
    def qcvt(sd, j4): return pack(qreg(sd, j4), qreg(sd, j4) + 16)
    def krd(b): return [Op(f"ds_read_b64 {v(BB+32*b+16*kt+4*sd+2*h,2)}, v{kR+2*sd+h} offset:{b*8192 + kt*4096}", use=[("K", 100), ("Kp", 100)]) for sd in range(4) for kt in range(2) for h in range(2)]
    b18, b19 = 32 * 18, 32 * 19
    c0, c1 = P["clr"]; assert c1 < P["hs0"] - 1
    if c0 < 0: pre_clears = clears
    else: T.spread(clears, 32 * c0 + 4, 32 * c1 + 4, 6)
    T.put(32 * (P["hs0"] - 1) + BP, Op("WAITG", group="clr"), 0.5)
    for q in range(4):
        T.put(32 * (P["hs0"] + q) + 5, [Op(f"s_cmp_lg_u32 s{sHS}, {q}"), Op(f"s_cbranch_scc1 L_hs{q}"),
              Op(f"buffer_atomic_add v{vONE}, v{vFL0}, {DBGR}, s{sT1} offen sc1", uncounted=True), Op(f"L_hs{q}:")], 7)
    T.put(32 * 16 + 5, [Op(f"s_cmp_lg_u32 s{sW}, 0"), Op("s_cbranch_scc1 L_hsl"),
          Op(f"buffer_load_dword v{t2}, v{vFL0}, {DBGR}, s{sT1} offen sc1", uncounted=True), Op("L_hsl:")], 7)
    T.put(b19 + BP, [Op(f"s_cmp_lg_u32 s{sW}, 0"), Op("s_cbranch_scc1 L_hsc"), Op("s_waitcnt vmcnt(0)", cond=True, raw=True),
          Op(f"v_readfirstlane_b32 s{sT3}, v{t2}", cond=True), Op("s_nop 1", cond=True), Op(f"s_cmp_lt_u32 s{sT3}, 16", cond=True, nohaz=True),
          Op("s_cbranch_scc1 L_hs_spin", cond=True), Op("L_hsc:")], 0.5)
    tail.extend(["L_hs_spin:", f"s_mov_b32 s{sSPIN}, 0", "L_hs_spin1:",
         f"buffer_load_dword v{t2}, v{vFL0}, {DBGR}, s{sT1} offen sc1", "s_waitcnt vmcnt(0)",
         f"v_readfirstlane_b32 s{sT3}, v{t2}", f"s_add_u32 s{sSPIN}, s{sSPIN}, 1", f"s_cmp_gt_u32 s{sSPIN}, 400000", "s_cbranch_scc1 L_hsc",
         f"s_cmp_lt_u32 s{sT3}, 16", "s_cbranch_scc1 L_hs_spin1", "s_branch L_hsc"])
    T.spread(late_c, 32 * 14, 32 * 14 + 15, 4)
    T.spread(krd(0), b18 + 4, b18 + 15, 4)
    T.spread([o for j4 in range(4) for o in qcvt(0, j4)], b18 + 20, b18 + 31, 5)
    T.spread([o for j4 in range(4) for o in qcvt(1, j4)], b19 + 4, b19 + 16, 5)
    T.spread([o for j4 in range(4) for o in qcvt(2, j4)], b19 + 20, b19 + 31, 5)
    T.flush(cs)
    A(stamp("g1"))

    def sreg(b, jt, kt): return ACC + 16 + 32 * b + 8 * jt + 4 * kt
    def softmax(b):
        tmp = ACC + 80 + 8 * b; pf = PF + 8 * b; L = []
        cols = [(sreg(b, c, 0), tmp + 4 * c) for c in range(2)]
        def both(f):
            for x, y in zip(f(*cols[0]), f(*cols[1])): L.extend([Op(x), Op(y)])
        (s0, m0_), (s1, m1_) = cols
        def across(op):
            L.extend(ops(f"""v_permlane32_swap_b32 v{m0_}, v{m1_}
                {op} v{m0_}, v{m0_}, v{m1_}
                v_mov_b32 v{m1_}, v{m0_}
                v_permlane16_swap_b32 v{m0_}, v{m1_}
                {op} v{m0_}, v{m0_}, v{m1_}"""))
        def spread_back(): L.extend(ops(f"v_mov_b32 v{m1_}, v{m0_}\nv_permlane32_swap_b32 v{m0_}, v{m1_}"))
        both(lambda s, m: [f"v_max3_f32 v{m}, v{s}, v{s+1}, v{s+2}", f"v_max3_f32 v{m+1}, v{s+3}, v{s+4}, v{s+5}",
                           f"v_max3_f32 v{m}, v{m}, v{s+6}, v{s+7}", f"v_max_f32 v{m}, v{m}, v{m+1}"])
        across("v_max_f32"); L.append(Op(f"v_mul_f32 v{m0_}, s{sC}, v{m0_}")); spread_back()
        both(lambda s, m: [f"v_pk_fma_f32 v[{s+q}:{s+q+1}], v[{s+q}:{s+q+1}], s[{sC}:{sC+1}], v[{m}:{m+1}] op_sel_hi:[1,1,0] neg_lo:[0,0,1] neg_hi:[0,0,1]" for q in range(0, 8, 2)])
        both(lambda s, m: [f"v_exp_f32 v{s+q}, v{s+q}" for q in range(8)])
        both(lambda s, m: [f"v_pk_add_f32 v[{m}:{m+1}], v[{s}:{s+1}], v[{s+2}:{s+3}]", f"v_pk_add_f32 v[{m+2}:{m+3}], v[{s+4}:{s+5}], v[{s+6}:{s+7}]",
                           f"v_pk_add_f32 v[{m}:{m+1}], v[{m}:{m+1}], v[{m+2}:{m+3}]", f"v_add_f32 v{m}, v{m}, v{m+1}"])
        across("v_add_f32"); L.append(Op(f"v_rcp_f32 v{m0_}, v{m0_}")); spread_back()
        both(lambda s, m: [f"v_pk_mul_f32 v[{s+q}:{s+q+1}], v[{s+q}:{s+q+1}], v[{m}:{m+1}] op_sel_hi:[1,0]" for q in range(0, 8, 2)])
        if b: L.append(Op(f"s_add_u32 s{sPS}, s{sPS}, 65536"))
        for c in range(2):
            for q in range(4): L.append(cvt(pf + 4 * c + q, cols[c][0] + 2 * q))
            L.append(Op(f"buffer_store_dwordx4 {v(pf+4*c,4)}, v{vL16}, {WSR}, s{sPS} offen offset:{1024*c} sc1"))
            L.append(Op(f"ds_write_b128 v{vPW}, {v(pf+4*c,4)} offset:{b*4096 + c*1024}", fill=[("P", 300), ("Kp", 300)]))
        return L
    T = Ticks()
    for b in range(2):
        for sd in range(4):
            for kt in range(2):
                for jt in range(2):
                    T.add(mfma(sreg(b, jt, kt), v(BB + 32 * b + 16 * kt + 4 * sd, 4), v(qreg(sd, 2 * b + jt), 4), "0" if sd == 0 else None))
    T.spread(krd(1), 0, 5, 2)
    T.spread([o for j4 in range(2) for o in qcvt(3, j4)], 1, 6, 3)
    T.spread([o for j4 in range(2, 4) for o in qcvt(3, j4)], 7, 12, 3)
    T.put(P["bk"], cbar(), 1)
    sm0 = softmax(0); sm1 = softmax(1)
    n0 = P['sm_in']; T.spread(sm0[:n0], 20, 31, 5)
    T.flush(cs)
    A(stamp("qk"))
    if P["smix"]:
        a_, b_ = sm0[n0:], sm1
        k_ = [i for i, o in enumerate(b_) if o.text.startswith("s_add_u32")][0]
        mix = a_[:4]; i_, j_ = 4, 0
        while i_ < len(a_) or j_ < len(b_):
            if j_ < len(b_) and (j_ < k_ or i_ >= len(a_)): mix.append(b_[j_]); j_ += 1
            if i_ < len(a_): mix.append(a_[i_]); i_ += 1
        A(mix)
    else: A(sm0[n0:]); A(stamp("sm0")); A(sm1)
    A(stamp("att"))

    def rdP(gen): return [Op(f"ds_read_b128 {v(PRB[0][2*hd+jt],4)}, v{vPR} offset:{hd*2048 + jt*1024}", use=[("P", gen)]) for hd in range(2) for jt in range(2)]
    def ldP(dj):
        return ops(f"s_add_u32 s{sT2}, s{sJ}, {dj}\ns_and_b32 s{sT2}, s{sT2}, 3\ns_lshl_b32 s{sT2}, s{sT2}, 12\ns_add_u32 s{sT2}, s{sT2}, s{sPL}") + \
            [Op(f"buffer_load_dwordx4 {v(PRB[dj%2][q],4)}, v{vL16}, {WSR}, s{sT2} offen offset:{1024*q} sc1") for q in range(4)]
    def rdV(s): return [Op(f"ds_read_b64_tr_b16 {v(VF+4*i+2*h,2)}, v{aV+i} offset:{(s%4)*16384 + h*2048}", use=[(f"S{s%4}", 200 + s)]) for i in range(4) for h in range(2)]
    def pvreg(s, i, jt):
        if s < NS + 1 or NF == 1: return PVB[s % 2] + 8 * i + 4 * jt
        return fin_regs[s][2 * i + jt]
    e0, e1 = PVB[NS % 2], PVB[(NS + 1) % 2]
    fin_regs = {NS + 1: [e1 + 4 * q for q in range(8)],
                NS + 2: [e0 + 8, e0 + 12, PRB[0][0], PRB[0][1], e0 + 24, e0 + 28, PRB[0][2], PRB[0][3]],
                NS + 3: [e1 + 8, e1 + 12, 56, 60, e1 + 24, e1 + 28, 10, t1]}
    def pvm(s): return [mfma(pvreg(s, i, jt), v(VF + 4 * i, 4), v(PRB[(s // 4) % 2][2 * ((s // 2) % 2) + jt], 4), "0") for i in range(4) for jt in range(2)]
    _pvm = pvm
    def pvm(s):
        L = _pvm(s); L[0].meta["also"] = range(VF, VF + 8); L[4].meta["also"] = range(VF + 8, VF + 16)
        return L
    def pvc(s): return [o for ss in range(2) for jt in range(2) for o in pack(pvreg(s, 2 * ss, jt), pvreg(s, 2 * ss + 1, jt))]
    nA = [0]
    def rdA2(s, t):
        k = s % 4; buf = A2 + 8 * (nA[0] % 4); nA[0] += 1
        ad = aWo + (t % 2) + (2 if k == 3 else 0); base = 0 if k == 3 else k * 20480
        return buf, [Op(f"ds_read_b64_tr_b16 {v(buf+4*ss+2*h,2)}, v{ad} offset:{base + ss*10240 + h*5120 + t*32}", use=[(f"Wo{k}", 200 + s)]) for ss in range(2) for h in range(2)]
    def owo(s, t, buf):
        L = [mfma(OUTA + 8 * t + 4 * jt, v(buf + 4 * ss, 4), v(pvreg(s, 2 * ss, jt), 4), "0" if (s == 0 and ss == 0) else None) for jt in range(2) for ss in range(2)]
        L[0].meta["also"] = range(buf, buf + 8)
        return L
    steps = [(s, t) for s in range(NS) for t in range(10)]
    order = [8, 9, 0, 1, 2, 3, 4, 5, 6, 7]
    steps += [(s, t) for s in range(NS, 16) for t in order[:2]] + [(s, t) for t in order[2:] for s in range(NS, 16)]
    rd = [rdA2(s, t) for s, t in steps]
    A(cbar())
    A(stamp("bp"))
    p0 = rdP(300)
    A(p0[:2] + rdV(0) + p0[2:] + rd[0][1])
    A(pvm(0)); A(rd[1][1] + rd[2][1]); A(pvc(0))
    T = Ticks(); at = []; pvat = {}
    for n, (s, t) in enumerate(steps):
        if (s < NS and t == P['pvt']) or (NS <= s < 15 and t == 8):
            pvat[s + 1] = len(T.m)
            for o in pvm(s + 1): T.add(o)
        at.append(len(T.m))
        for o in owo(s, t, rd[n][0]): T.add(o)
    fin0 = pvat[NS + 1]; BX = fin0 - 4
    BM = at[steps.index((13, 8))]
    BL2 = at[steps.index((15, 8)) - P["bl2"]] if NF >= 3 else BX
    for n in range(3, len(steps)):
        base = at[n - 3]
        if P["smooth"] and n < 10 * NS and steps[n][1] in (P["pvt"] + 2, P["pvt"] + 3): base = pvat[steps[n][0] + 1] + 4 * (steps[n][1] - P["pvt"] - 2)
        if steps[n][0] > NS: base = max(base, BX)
        if steps[n][0] == 14 and NF == 4: base = max(base, BM)
        if steps[n][0] == 15: base = max(base, BL2)
        for q, o in enumerate(rd[n][1]): T.put(base + q, o, 2)
    for s in range(NS):
        b = at[10 * s]
        T.put(b + BP2, BAR(), 1)
        if P["smooth"]:
            T.spread(rdV(s + 1), b + BP2, b + BP2 + 7, 1.5)
            c_ = pvc(s + 1); e_ = pvat[s + 1] + 7; T.spread(c_[:8], e_, e_ + 3, 4); T.spread(c_[8:], e_ + 4, min(e_ + 13, b + 46), 4)
        else:
            T.spread(rdV(s + 1), b + BP2, b + BP2 + 3, 1.5)
            T.spread(pvc(s + 1), b + 35, b + 46, 4)
        T.put(b + 47, stamp(f"o{s}"), 9)
    T.put(BX, BAR(), 1)
    if NF == 4: T.put(BM, BAR(), 1)
    if NF >= 3: T.put(BL2, BAR(), 1)
    for s2 in range(NS + 1, 16):
        T.spread(rdV(s2), pvat[s2] - 8, pvat[s2] - 5, 1.6)
        T.spread(pvc(s2), pvat[s2] + 9, pvat[s2] + (15 if s2 == 15 or not P['fsm'] else 22), 1.7)
    for dj in range(1, 4):
        ps, pt = P["pld"][dj - 1]; L = ldP(dj)
        if dj > 1 and P["pwide"]: T.spread(L, pvat[ps + 1], pvat[ps + 1] + 7, 6)
        else: T.spread([L[:5], L[5], L[6], L[7]], at[10 * ps] + pt, at[10 * ps] + pt + 6, 6)
        chk = arrived([r_ + e for r_ in PRB[dj % 2] for e in range(4)], ldP(dj), t0)
        b = at[10 * (4 * dj - 1)] + P["pchk"]
        if dj > 1 and P["pwide"]:
            b = pvat[4 * dj - 1] + 7
            T.spread(chk[:-4], b - 7, b - 1, 6); T.put(b, chk[-4:-3], 6); T.put(b + 1, chk[-2:], 1)
        else:
            T.spread(chk[:-4], b - 4, b - 1, 6); T.put(b, chk[-4:] + stamp(f"pc{dj}"), 6)
    end = len(T.m); flags = []
    def done(t): return at[steps.index((15, t))] + 3
    T.put(BX - 1, stamp("bx0"), 9); T.put(BX, stamp("bx1"), 1.1); T.put(BL2 - 1, stamp("bl0"), 9); T.put(BL2, stamp("bl1"), 1.1)
    for t_ in (9, 1, 3, 5): T.put(done(t_), stamp(f"f{t_}"), 9)
    L = []
    for m in range(4):
        L += [cvt(PK + 2 * m, OUTA + 64 + 4 * m), cvt(PK + 2 * m + 1, OUTA + 64 + 4 * m + 2),
              [Op(f"s_add_u32 s{sT2}, s{sRS}, {m*65536 + 2048}"), Op(f"buffer_store_dwordx2 {v(PK+2*m,2)}, v{vL8}, {WSR}, s{sT2} offen sc1", group=("R", -1))]]
    T.spread(L, done(9) + 3, done(9) + 8 * NF - 2, 4)
    for k in range(3):
        L = []; pk = SPARE if k % 2 == 0 else PK
        dest = f"s_add_u32 s{{0}}, s{sQ}, {k+1}\ns_and_b32 s{{0}}, s{{0}}, 3"
        for nt in range(2):
            for jt in range(2):
                z = OUTA + 8 * (2 * k + nt) + 4 * jt
                L += [cvt(pk + 4 * nt + 2 * jt, z), cvt(pk + 4 * nt + 2 * jt + 1, z + 2)]
            it = ops(dest.format(sT2) + f"\ns_lshl_b32 s{sT2}, s{sT2}, 16\ns_add_u32 s{sT3}, s{sT2}, s{sRS}") if nt == 0 else []
            L.append(it + [Op(f"buffer_store_dwordx4 {v(pk+4*nt,4)}, v{vL16}, {WSR}, s{sT3} offen offset:{1024*nt} sc1", group=("R", k))])
        T.spread(L[:5], done(2 * k) + 3, done(2 * k) + 2 * NF + 1, 4); T.spread(L[5:], done(2 * k + 1) + 3, done(2 * k + 1) + 2 * NF + 1, 4)
        fl = [Op("WAITG", group=("R", k))] + ops(dest.format(sT2) + f"\ns_lshl_b32 s{sT2}, s{sT2}, 11\ns_add_u32 s{sT2}, s{sT2}, s{sFLD}")
        fl.append(Op(f"buffer_store_dword v{vONE}, v{vFL0}, {WSR}, s{sT2} offen offset:{k*128} sc1"))
        tf = done(2 * k + 1) + 2 * NF + 1 + P["cover"]
        if tf < end: T.put(tf, fl, 6)
        else: flags.append(fl)
    if P["early"] == 2: T.put(min(done(5) + P["bt1"], end - 1), BAR(), 8)
    T.flush(cs)
    A(stamp("g2"))
    zw = [Op(f"ds_write_b128 v{vZ}, {v(OUTA+48+4*q,4)} offset:{q*1024}", fill=[("S0", 290)], wpriv=True) for q in range(4)]
    A(flags[:-1]); A(zw); A(flags[-1:])
    A(cbar())
    A(stamp("end"))
    A(dump())
    A("s_endpgm")

    sc, sl = {}, {}
    def drop(st, pred): st.ops = [o for o in st.ops if not pred(o)]
    import re
    def hot(L):
        for name, srd_ in (("v", SRD_V), ("o", SRD_WO), ("k", SRD_K), ("w", SRD_WQ), ("x", SRD_X)):
            if name in P["x_hot"]:
                L = [Op(re.sub(r"\], s\d+ offen", "], 0 offen", o.text), **o.meta) if (o.kind in ("dma", "vld") and f"s[{srd_}:" in o.text) else o for o in L]
        return L
    if P['x_nost']: drop(cs, lambda o: o.kind == 'vst' and isinstance(o.meta.get('group'), tuple))
    if "d" in P["x_drop"]: drop(ls, lambda o: o.kind == "dma" and o.meta["group"][1] >= 4)
    if "D" in P["x_drop"]: variants = [[o for o in V_ if not (o.kind == "dma" and o.meta["group"][0] == "W" and o.meta["group"][1] >= 4)] for V_ in variants]
    if "c" in P["x_drop"]: drop(cs, lambda o: o.mn == "v_cvt_pk_bf16_f32")
    if "r" in P["x_drop"]: drop(cs, lambda o: o.kind == "dsr" and "tr" in o.mn and "[9" not in o.text and int(o.text.split("offset:")[1]) % 64 == 32)
    clines = cs.finalize(sc); seg = []; nb = None
    for ph, V_ in enumerate(variants):
        lf = Stream(); lf.nocheck = True; lf.ops = hot(pro.ops + head + V_ + ls.ops)
        L = lf.finalize(sl); i0 = L.index(f"L_var{ph}:"); i1 = L.index("L_join:")
        seg.append((L[:i0], L[i0:i1], L[i1:]))
        assert seg[-1][0] == seg[0][0] and seg[-1][2] == seg[0][2]
        if not P['x_drop']: nb = check_handoffs([cs.events, lf.events]); assert nb[0] == nb[1], nb
    lines = seg[0][0] + [l for x in seg for l in x[1]] + seg[0][2] + tail + clines
    a = Asm(); kernel_begin(a, KNAME)
    for l in lines: a(l)
    a("L_code_end:")
    body = a.text().replace("CODE_SPAN", f"L_code_end-{KNAME}-4").replace("CODE_BACK", f"L_pc-{KNAME}")
    write_file(path, ["; @launch grid=(256,1,1) block=(512,1,1) lds=163840"] + ["; " + l for l in NOTES.strip().split("\n")], body, [descriptor(KNAME, 256, 256)])
    return sc, sl, nb

if __name__ == "__main__":
    out = sys.argv[1] if len(sys.argv) > 1 else f"cdna_kernels/{NAME}.s"
    kw = {}
    for x in sys.argv[2:]:
        k, val = x.split("=", 1)
        try: val = eval(val)
        except Exception: pass
        kw[k] = val
    print(build(out, **kw))
```

```python
import sys, struct
from common import *
from ops import Op, Stream, check_handoffs

def f2u(f): return struct.unpack("<I", struct.pack("<f", f))[0]
SCALE_LOG2E = 128 ** -0.5 * 1.4426950408889634
KNAME = NAME + "_kernel"

DEF = dict(
    nt_w="", nt_x="", nt_k="nt", nt_v="", nt_wo="", bpos=17, bpos2=19, code_pf=1, dbg=0, rot=1, xrot=1, flip=0,
    stamps=("start", "g1", "att", "g2", "end"), lstamps=(),
    clx=((('K0', 'K1'), 3), (('K2', 'K3'), 9)), tch={0: 1}, skip2=(1,), cap2=11, nv=4, vdma={17: 0, 18: 1}, x_hot='', cend=1, skip=(1,), cap=8, tlb=99, cap0=99, phstep=1, clr=(2, 6), bal=0, first=4, prio_l=0, prio_c=0, la=3, pfx=15, smooth=1, sm_in=16, smix=1, bk=8, nf=4, bl2=2, pld=((2, 8), (4, 8), (8, 8)), pwide=1, ctm=1, xt=0, xt0=(1, 4), xt1=(5, 9), xtpos=0, pchk=24, hs0=8, cover=80, early=3, ownlds=1, bt1=28, fsm=1, pvt=7, dist=3, p1=0, chain=1, x_nost=0, x_drop='',
    out_mod="sc1", ntlast=0, x_amp=0, x_seg=None, x_nomfma=0, x_nodma=0,
)

NOTES = """
Generated by my own script (straight-line code, waits and wait states derived from the dependences).
One fused kernel, one workgroup per CU: waves 0-3 compute (MFMA 16x16x32 bf16), waves 4-7 stream operands into LDS (LDS-DMA).
Workgroup id -> branch (bit 2), head group q of 8 heads (bits 0-1), head pair j (bits 3-4), row group rg of 4 batches (bits 5-7).
Phase 1: Q^T = Wq^T X^T for 4 batches x 2 heads (k order rotated per workgroup), S^T = K Q^T, softmax with the true row
  maximum, P packed to bf16.  P goes to d_ws for the three workgroups that share rows and head group.
Phase 2: 160 output columns of the 4 batches over the group's 8 heads: O^T = V^T P^T, out^T += Wo^T O^T, own heads first.
  The last two heads run tile by tile; the tiles owned by the other three head groups are sent as bf16 partial sums through
  d_ws, the loader waves add them up (selector MFMAs) and write the output.
Hand-offs between workgroups: write-through (sc1) stores and sc1 loads only.  Every workgroup first empties its P slots
  (all ones) and its flag lines (zero) and counts that in d_debug; the count is checked before any slot or flag is used.
  P is taken once no dword is all ones; partial sums are announced by a flag stored after their stores have completed.
  All waiting loops are bounded.  Which XCD a workgroup runs on only matters for speed.
"""

WS_R = 0
WS_P = 16 << 20
WS_FL = 20 << 20
WS_DBG = 32 << 20
OOB = 0x40000000

XB, KB = 65536, 98304
WOB, PB = 65536, 147456

sW, sJ, sRG, sG, sBR = 3, 6, 7, 8, 9
sFLIP, sPH, sKC, sQ = 32, 33, 34, 35
SRD_X, SRD_K, SRD_V, SRD_WQ, SRD_WO, SRD_OUT, SRD_DBG, SRD_WS = 36, 40, 44, 48, 52, 56, 60, 64
sWQ0, sX0, sK0, sV0, sWO0, sM4, sM5 = 68, 69, 70, 71, 72, 73, 74
sT0, sT1, sT2, sT3 = 75, 76, 77, 78
sRS, sRL, sPS, sFLD, sPL, sC, sHS, sCT, sFLM = 79, 80, 81, 82, 83, 84, 89, 86, 98
sSPIN = 88
sOUT0, sOUT1 = 90, 91
sTCH = 87
sXT, sKC0 = 99, 100
sST = 92
WSR = f"s[{SRD_WS}:{SRD_WS+3}]"; DBGR = f"s[{SRD_DBG}:{SRD_DBG+3}]"; OUTR = f"s[{SRD_OUT}:{SRD_OUT+3}]"

vL16, vL8, vFL0, vONE = 28, 29, 30, 31
vT = 33
aW, aX, kR = 1, 5, 7
vPW, vPR, vZ = 15, 16, 17
aWo, aV = 19, 23
ABUF = 40; BB = 64; ACC = 128
PF = 40
OUTA = 176
PVB = [112, 144]
VF = 96
A2 = 64
PRB = [[40, 44, 48, 52], [56, 60, 2, 6]]
SPARE = 56
PK = 2
vW, vX, vK, vV, vWo = 1, 5, 9, 13, 17
vFLAG = 32
vFL = 22
lID = 40
lZa, vFA, vFA2, vFB, vFB2, vOA, vOB, vOC, vPF, vPF2, lZm = 46, 47, 48, 49, 50, 51, 52, 53, 54, 55, 56
LINC = 64
LZ = 112
LZC = 132
LPK = 152
VP = 192
vVW = 56

def v(b, n=1): return vr(b, n)
def mfma(d, A, B, C=None): return Op(f"v_mfma_f32_16x16x32_bf16 {v(d,4)}, {A}, {B}, {v(d,4) if C is None else C}")
def cvt(d, s0): return Op(f"v_cvt_pk_bf16_f32 v{d}, v{s0}, v{s0+1}")
def ops(text): return [Op(x) for x in text.split("\n") if x.strip()]

class Ticks:
    def __init__(self): self.m = []; self.f = []
    def add(self, op): self.m.append(op); self.f.append([]); return len(self.m) - 1
    def put(self, t, o, prio=5):
        if not isinstance(o, (list, tuple)): o = [o]
        self.f[t].append((prio, len(self.f[t]), [Op(x) if isinstance(x, str) else x for x in o]))
    def spread(self, items, t0, t1, prio=5):
        n = len(items)
        for q, it in enumerate(items): self.put(t0 + (q * (t1 - t0 + 1)) // n, it, prio)
    def flush(self, st):
        for m, f in zip(self.m, self.f):
            st.add(m)
            for _, _, o in sorted(f, key=lambda x: (x[0], x[1])): st.add(o)

def weave(st, main, side, first=0):
    n, m = len(main), len(side); k = 0
    for i, o in enumerate(main):
        st.add(o)
        while k < m and i >= first and (k + 1) * (n - first) <= (i + 1 - first) * m: st.add(side[k]); k += 1
    while k < m: st.add(side[k]); k += 1

def build(path, **kw):
    P = dict(DEF); P.update(kw)
    BP, BP2, LA, NF = P["bpos"], P["bpos2"], P["la"], P["nf"]
    NS = 16 - NF
    tail = []
    pro = Stream(); cs = Stream(); ls = Stream()
    for s in (pro, cs, ls): s.nocheck = True
    t0, t1, t2, t3, t4, t5, t6 = range(vT, vT + 7)
    nst = {"c": 0, "l": 0}
    def stamp(name, role="c"):
        if P["x_seg"] and role == "l" and name in P["x_seg"]:
            r_ = 14 + 2 * P["x_seg"].index(name)
            return [Op(f"s_memrealtime s[{r_}:{r_+1}]"), Op("s_waitcnt lgkmcnt(0)")]
        if not P["dbg"] or name not in P["stamps" if role == "c" else "lstamps"]: return []
        nst[role] += 1; i = nst[role]; assert i <= 13
        return [Op(f"s_memtime s[{sST}:{sST+1}]"), Op("s_waitcnt lgkmcnt(0)"), Op(f"s_mov_b32 s{sreg_(i)}, s{sST}")]
    def sreg_(i): return 12 + i
    def dump():
        if not P["dbg"]: return []
        L = ops(f"""s_waitcnt vmcnt(0)
            s_memrealtime s[{sST}:{sST+1}]
            s_waitcnt lgkmcnt(0)
            v_writelane_b32 v{t6}, s{sST+2}, 0
            v_writelane_b32 v{t6}, s{sST}, 15
            v_writelane_b32 v{t6}, s{sST+4}, 14""")
        L += [Op(f"v_writelane_b32 v{t6}, s{sreg_(i)}, {i}") for i in range(1, 14)]
        L += ops(f"""s_lshl_b32 s{sT2}, s2, 3
            s_add_u32 s{sT2}, s{sT2}, s31
            s_lshl_b32 s{sT2}, s{sT2}, 8
            s_add_u32 s{sT2}, s{sT2}, {WS_DBG}
            v_lshlrev_b32 v{t0}, 2, v0
            buffer_store_dword v{t6}, v{t0}, {WSR}, s{sT2} offen""")
        return L
    BAR = lambda: Op("s_barrier")
    def mksrd(dst, ptr, n): return ops(f"s_mov_b32 s{dst+2}, {n}\ns_mov_b32 s{dst+3}, 0x00020000")
    def mod10(x, tmp): return f"s_sub_u32 s{tmp}, s{x}, 10\ns_min_u32 s{x}, s{x}, s{tmp}"
    def wo_regions(k):
        lo, hi = WOB + 20480 * k, WOB + 20480 * (k + 1); r = [f"Wo{k}"]
        if lo < XB + 16384: r.append("X0")
        if lo < KB and hi > XB + 16384: r.append("X1")
        if hi > KB: r.append("K")
        return r

    A = pro.add
    A("s_cmp_ge_u32 s2, 256\ns_cbranch_scc1 L_end")
    if P["dbg"] or P["x_amp"]: A(f"s_memtime s[{sST+2}:{sST+3}]\ns_memrealtime s[{sST+4}:{sST+5}]")
    A(f"""v_lshrrev_b32 v{t0}, 6, v0
        s_bfe_u32 s{sBR}, s2, 0x10002
        v_readfirstlane_b32 s31, v{t0}
        s_mul_i32 s10, s{sBR}, 40
        v_and_b32 v0, 63, v0
        s_add_u32 s4, s0, s10
        s_addc_u32 s5, s1, 0
        s_cmp_lt_u32 s31, 4
        s_cbranch_scc1 L_compute""")
    ids = f"""s_and_b32 s{sQ}, s2, 3
        s_bfe_u32 s{sJ}, s2, 0x20003
        s_lshr_b32 s{sRG}, s2, 5
        s_and_b32 s{sW}, s31, 3
        s_lshl_b32 s{sM4}, s{sW}, 12"""

    def exchange_setup():
        return mksrd(SRD_WS, 28, 268435456) + ops(f"""s_lshl_b32 s10, s{sBR}, 3
            s_add_u32 s10, s10, s{sRG}
            s_lshl_b32 s{sG}, s10, 2
            s_add_u32 s{sG}, s{sG}, s{sJ}
            s_lshl_b32 s10, s{sG}, 18
            s_add_u32 s10, s10, s{sM4}
            s_lshl_b32 s11, s{sQ}, 14
            s_add_u32 s{sRS}, s10, s11
            s_lshl_b32 s11, s{sQ}, 16
            s_add_u32 s{sRL}, s10, s11
            s_lshl_b32 s10, s{sBR}, 3
            s_add_u32 s10, s10, s{sRG}
            s_lshl_b32 s10, s10, 7
            s_lshl_b32 s11, s{sQ}, 3
            s_add_u32 s10, s10, s11
            s_lshl_b32 s11, s{sW}, 5
            s_add_u32 s11, s11, s10
            s_lshl_b32 s11, s11, 11
            s_add_u32 s{sPL}, s11, {WS_P}
            s_lshr_b32 s11, s{sW}, 1
            s_lshl_b32 s11, s11, 6
            s_add_u32 s10, s10, s11
            s_lshl_b32 s11, s{sJ}, 1
            s_add_u32 s10, s10, s11
            s_and_b32 s11, s{sW}, 1
            s_add_u32 s10, s10, s11
            s_lshl_b32 s10, s10, 11
            s_add_u32 s{sPS}, s10, {WS_P}
            s_lshl_b32 s10, s{sG}, 13
            s_lshl_b32 s11, s{sW}, 9
            s_add_u32 s10, s10, s11
            s_add_u32 s{sFLD}, s10, {WS_FL}
            s_lshl_b32 s11, s{sQ}, 11
            s_add_u32 s{sFLM}, s{sFLD}, s11
            v_mov_b32 v{t0}, {OOB}
            v_cmp_eq_u32 vcc, 0, v0
            v_mov_b32 v{t2}, 0
            v_mov_b32 v{vONE}, 1
            v_cndmask_b32 v{vFL0}, v{t0}, v{t2}, vcc
            v_lshlrev_b32 v{vL8}, 3, v0""")

    A = ls.add
    def dma(vo, srd_, so, q, mod, g, fill): return Op(f"buffer_load_dwordx4 v{vo}, s[{srd_}:{srd_+3}], s{so} offen offset:{(q%4)*1024} {mod} lds", group=g, fill=fill)
    def dma_w(t):
        kc, dh = t // 2, t % 2; s = t % 4; g = ("W", t); items = []
        if dh == 0:
            for q in range(4):
                it = []
                if q == 0:
                    if kc: it += [Op(f"s_add_u32 s{sKC}, s{sKC}, 1"), Op(f"s_cmp_eq_u32 s{sKC}, 10"), Op(f"s_cselect_b32 s{sKC}, 0, s{sKC}")]
                    it += [Op(f"s_lshl_b32 s{sT1}, s{sKC}, 7"), Op(f"s_add_u32 s{sT1}, s{sT1}, s{sX0}"),
                           Op(f"s_lshl_b32 s{sT0}, s{sKC}, 19"), Op(f"s_add_u32 s{sT0}, s{sT0}, s{sWQ0}"),
                           Op(f"s_add_u32 m0, s{sM4}, {XB + (kc%2)*16384}", wm0=True)]
                it.append(dma(vX + q, SRD_X, sT1, q, "nt" if t >= 20 - P["ntlast"] else P["nt_x"], g, [(f"X{kc%2}", kc)]))
                items.append(it)
        for q in range(4):
            it = []
            if q == 0:
                if dh == 1: it.append(Op(f"s_xor_b32 s{sT0}, s{sT0}, 128"))
                it.append(Op(f"s_add_u32 m0, s{sM4}, {16384*s}", wm0=True))
            it.append(dma(vW + q, SRD_WQ, sT0, q, "nt" if t >= 20 - P["ntlast"] else P["nt_w"], g, [(f"S{s}", t)]))
            items.append(it)
        return items
    def dma_k(n):
        it = []
        if n % 4 == 0:
            it += [Op(f"s_add_u32 s{sT2}, s{sK0}, {(n//8)*262144 + ((n%8)//4)*4096}"), Op(f"s_lshl_b32 s{sT3}, s{sM4}, 2"),
                   Op(f"s_add_u32 m0, s{sT3}, {KB + (n//4)*4096}")]
        it.append(dma(vK + n % 4, SRD_K, sT2, n, P["nt_k"], ("K", 0), [("K", 100), ("Kp", 100)]))
        return it
    def head_ops(s, dst): return [Op(f"s_lshl_b32 s{dst}, s{sJ}, 1"), Op(f"s_add_u32 s{dst}, s{dst}, {s//2}"), Op(f"s_and_b32 s{dst}, s{dst}, 7")]
    def dma_v(s):
        L = head_ops(s, sT2) + [Op(f"s_lshl_b32 s{sT2}, s{sT2}, 13"), Op(f"s_add_u32 s{sT2}, s{sT2}, s{sV0}")]
        if s % 2: L.append(Op(f"s_add_u32 s{sT2}, s{sT2}, 128"))
        L.append(Op(f"s_add_u32 m0, s{sM4}, {16384*(s%4)}"))
        return L + [dma(vV + q, SRD_V, sT2, q, P["nt_v"], ("V", s), [(f"S{s%4}", 200 + s)]) for q in range(4)]
    def dma_wo(s):
        k = s % 4; fill = [(r, 200 + s) for r in wo_regions(k)]
        L = head_ops(s, sT2) + [Op(f"s_mul_i32 s{sT2}, s{sT2}, {128*1280}"), Op(f"s_add_u32 s{sT2}, s{sT2}, s{sWO0}")]
        if s % 2: L.append(Op(f"s_add_u32 s{sT2}, s{sT2}, {64*1280}"))
        for q in range(5):
            if q % 4 == 0: L.append(Op(f"s_add_u32 m0, s{sM5}, {WOB + 20480*k + 1024*q}"))
            L.append(dma(vWo + q, SRD_WO, sT2, q, P["nt_wo"], ("Wo", s), fill))
        return L
    nlab = [0]
    def arrived(regs, reload, tmp):
        k = nlab[0]; nlab[0] += 1; regs = list(regs); L = []
        L.append(f"v_max3_u32 v{tmp}, v{regs[0]}, v{regs[1]}, v{regs[2]}")
        rest_ = regs[3:]
        while len(rest_) >= 2: L.append(f"v_max3_u32 v{tmp}, v{tmp}, v{rest_[0]}, v{rest_[1]}"); rest_ = rest_[2:]
        if rest_: L.append(f"v_max_u32 v{tmp}, v{tmp}, v{rest_[0]}")
        L.append(f"v_cmp_eq_u32 vcc, -1, v{tmp}")
        tail.extend([f"L_spin{k}:", f"s_mov_b32 s{sSPIN}, 0", f"L_spin{k}a:"] + [o.text for o in reload] + ["s_waitcnt vmcnt(0)"] + L +
                    [f"s_add_u32 s{sSPIN}, s{sSPIN}, 1", f"s_cmp_gt_u32 s{sSPIN}, 400000", f"s_cbranch_scc1 L_back{k}",
                     f"s_cbranch_vccnz L_spin{k}a", f"s_branch L_back{k}"])
        return [Op(x) for x in L] + [Op("s_nop 0"), Op(f"s_cbranch_vccnz L_spin{k}"), Op(f"L_back{k}:")]
    def poll(): return Op(f"buffer_load_dword v{vFLAG}, v{vFL}, {WSR}, s{sFLM} offen sc1")
    def need(mask):
        k = nlab[0]; nlab[0] += 1
        tail.extend([f"L_spin{k}:", f"s_mov_b32 s{sSPIN}, 0", f"L_spin{k}a:",
                     f"buffer_load_dword v{vFLAG}, v{vFL}, {WSR}, s{sFLM} offen sc1", "s_waitcnt vmcnt(0)",
                     f"v_cmp_ne_u32 vcc, 0, v{vFLAG}", f"s_add_u32 s{sSPIN}, s{sSPIN}, 1", f"s_cmp_gt_u32 s{sSPIN}, 400000", f"s_cbranch_scc1 L_back{k}",
                     f"s_and_b32 s{sT2}, vcc_lo, {mask}", f"s_cmp_lg_u32 s{sT2}, {mask}", f"s_cbranch_scc1 L_spin{k}a", f"s_branch L_back{k}"])
        return ops(f"v_cmp_ne_u32 vcc, 0, v{vFLAG}\ns_and_b32 s{sT2}, vcc_lo, {mask}\ns_cmp_lg_u32 s{sT2}, {mask}\ns_cbranch_scc1 L_spin{k}\nL_back{k}:")
    def fetch(k, r):
        L = ops(f"s_add_u32 s{sT2}, s{sQ}, {3 - k + 4}\ns_and_b32 s{sT2}, s{sT2}, 3\ns_lshl_b32 s{sT2}, s{sT2}, 14\ns_add_u32 s{sT2}, s{sT2}, s{sRL}")
        if k < 3: L += [Op(f"buffer_load_dwordx4 {v(r+4*nt,4)}, v{vL16}, {WSR}, s{sT2} offen offset:{1024*nt} sc1") for nt in range(2)]
        return L + [Op(f"buffer_load_dwordx2 {v(r+8,2)}, v{vL8}, {WSR}, s{sT2} offen offset:2048 sc1")]
    def addin(k, r):
        L = []
        if k < 3:
            for nt in range(2):
                for jt in range(2): L.append(mfma(LZ + 8 * nt + 4 * jt, v(lID + 2 - 2 * jt, 4), v(r + 4 * nt, 4)))
        return L + [mfma(LZ + 16, v(lID + 2, 4), v(r + 8, 4))]

    A(f"s_load_dwordx2 s[{SRD_X}:{SRD_X+1}], s[4:5], 0\ns_load_dwordx2 s[{SRD_WQ}:{SRD_WQ+1}], s[4:5], 24")
    if P["prio_l"]: A(f"s_setprio {P['prio_l']}")
    A(ids)
    xr = P["xrot"]
    A(f"""s_mul_i32 s{sKC}, s{sRG}, 5
        v_lshrrev_b32 v{t0}, 4, v0
        s_mul_i32 s10, s{sJ}, {0 if P['xt'] else 5}
        v_lshrrev_b32 v{t4}, 3, v0
        s_lshr_b32 s{sKC}, s{sKC}, 2
        v_and_b32 v{t1}, 7, v0
        s_lshr_b32 s10, s10, 1
        v_mul_u32_u24 v{t2}, 1280, v{t4}
        s_add_u32 s{sKC}, s{sKC}, s10
        v_xor_b32 v{t3}, v{t1}, v{t0}
        s_add_u32 s{sKC}, s{sKC}, {'s%d' % sQ if xr else 0}
        v_lshl_add_u32 v{vX}, v{t3}, 4, v{t2}
        {mod10(sKC, 30)}
        v_xor_b32 v{t3}, 4, v{t3}
        s_lshl_b32 s10, s{sRG}, 2
        v_lshl_add_u32 v{vX+1}, v{t3}, 4, v{t2}
        s_add_u32 s10, s10, s{sW}
        v_add_u32 v{vX+2}, {2*9216}, v{vX}
        s_mul_i32 s{sX0}, s10, 40960
        v_add_u32 v{vX+3}, {3*9216}, v{vX+1}
        s_mov_b32 s{SRD_X+2}, {SZ['x']}
        v_add_u32 v{vX+1}, 9216, v{vX+1}
        s_mov_b32 s{SRD_X+3}, 0x00020000""")
    assert xr in (0, 1)
    if not P["rot"]: A(f"s_mov_b32 s{sKC}, 0")
    wsetup = ops(f"""v_bfe_u32 v{t3}, v0, 1, 3
        s_lshl_b32 s10, s{sQ}, 2
        v_xor_b32 v{t3}, v{t3}, v{t0}
        s_add_u32 s10, s10, s{sJ}
        v_and_b32 v{t2}, 4, v{t3}
        s_lshl_b32 s{sWQ0}, s10, 9
        v_and_b32 v{t3}, 3, v{t3}
        s_lshl_b32 s10, s{sW}, 17
        v_lshlrev_b32 v{t2}, 6, v{t2}
        s_add_u32 s{sWQ0}, s{sWQ0}, s10
        v_lshl_or_b32 v{t3}, v{t3}, 5, v{t2}
        s_lshl_b32 s{sT0}, s{sKC}, 19
        v_and_b32 v{t2}, 1, v0
        s_add_u32 s{sT0}, s{sT0}, s{sWQ0}
        v_lshl_or_b32 v{t3}, v{t2}, 4, v{t3}
        s_mov_b32 s{SRD_WQ+2}, {SZ['wq']}
        v_lshl_or_b32 v{vW}, v{t0}, 13, v{t3}
        s_mov_b32 s{SRD_WQ+3}, 0x00020000
        v_add_u32 v{vW+1}, {32768 - 1024}, v{vW}
        v_xor_b32 v{vW+2}, 0x100, v{vW}
        v_add_u32 v{vW+3}, {3*(32768 - 1024)}, v{vW+2}
        v_add_u32 v{vW+2}, {2*(32768 - 1024)}, v{vW+2}""")
    A(stamp("k0", "l"))
    w0 = dma_w(0); w0[0] = [o for o in w0[0] if f"s{sT0}," not in o.text]
    A(w0[:1]); A(stamp("k1", "l")); A(w0[1:4]); A(wsetup); A(w0[4:]); A(stamp("k2", "l"))
    A(f"""s_load_dwordx2 s[{SRD_K}:{SRD_K+1}], s[4:5], 8
        s_load_dwordx2 s[{SRD_V}:{SRD_V+1}], s[4:5], 16
        s_load_dwordx2 s[{SRD_WO}:{SRD_WO+1}], s[4:5], 32
        s_load_dwordx2 s[{SRD_OUT}:{SRD_OUT+1}], s[0:1], 80
        s_load_dwordx2 s[{SRD_WS}:{SRD_WS+1}], s[0:1], 96
        v_lshlrev_b32 v{vL16}, 4, v0""")
    def touch_x(c0, c1, dst, first=False):
        L = ops(f"""s_lshl_b32 s10, s{sRG}, 2
            s_add_u32 s10, s10, s{sJ}
            s_lshl_b32 s10, s10, 2
            s_add_u32 s10, s10, s{sW}
            s_mul_i32 s{sXT}, s10, 10240
            s_mov_b32 s{sKC0}, s{sKC}""") if first else []
        return L + ops(f"""v_lshrrev_b32 v{t2}, 3, v0
            v_min_u32 v{t2}, {c1 - c0}, v{t2}
            s_add_u32 s{sT3}, s{sKC0}, {c0}
            v_add_u32 v{t2}, s{sT3}, v{t2}
            v_subrev_u32 v{t3}, 10, v{t2}
            v_min_u32 v{t2}, v{t2}, v{t3}
            v_and_b32 v{t3}, 7, v0
            v_mul_u32_u24 v{t3}, 1280, v{t3}
            v_lshl_add_u32 v{t2}, v{t2}, 7, v{t3}
            buffer_load_dword v{dst}, v{t2}, s[{SRD_X}:{SRD_X+3}], s{sXT} offen""")
    if P["xt"] and P["xtpos"] == 0: A(touch_x(*P["xt0"], vPF2 + 2, True))
    if P["code_pf"]:
        A("s_getpc_b64 s[22:23]\nL_pc:")
        A(f"""s_lshr_b32 s10, s2, 3
            s_lshl_b32 s10, s10, 11
            v_and_b32 v{t2}, 15, v0
            v_lshlrev_b32 v{t2}, 7, v{t2}
            v_add_u32 v{t2}, s10, v{t2}
            v_min_u32 v{t2}, CODE_SPAN, v{t2}
            s_sub_u32 s22, s22, CODE_BACK
            s_subb_u32 s23, s23, 0
            global_load_dword v{t5}, v{t2}, s[22:23]""")
    rest = mksrd(SRD_K, 14, SZ["k"]) + ops(f"""v_and_b32 v{t2}, 15, v0
        v_xor_b32 v{t2}, v{t2}, v{t0}
        v_lshlrev_b32 v{t2}, 4, v{t2}
        v_lshl_or_b32 v{vK}, v{t0}, 8, v{t2}
        v_xor_b32 v{vK+1}, 64, v{vK}
        v_xor_b32 v{vK+2}, 0x80, v{vK}
        v_xor_b32 v{vK+3}, 0xc0, v{vK}
        v_lshlrev_b32 v{t2}, 1, v{t0}
        v_xor_b32 v{t2}, v{t2}, v{t1}
        v_lshlrev_b32 v{t2}, 4, v{t2}
        v_lshl_or_b32 v{vV}, v{t4}, 8, v{t2}
        v_add_u32 v{vV+1}, 1024, v{vV}
        v_add_u32 v{vV+2}, 2048, v{vV}
        v_add_u32 v{vV+3}, 3072, v{vV}
        s_lshl_b32 s10, s{sRG}, 1
        s_lshr_b32 s11, s{sW}, 1
        s_add_u32 s10, s10, s11
        s_lshl_b32 s10, s10, 6
        s_lshl_b32 s11, s{sQ}, 3
        s_add_u32 s10, s10, s11
        s_lshl_b32 s11, s{sJ}, 1
        s_add_u32 s10, s10, s11
        s_and_b32 s11, s{sW}, 1
        s_add_u32 s10, s10, s11
        s_lshl_b32 s{sK0}, s10, 13
        s_lshr_b32 s{sPH}, s2, 3
        s_lshl_b32 s10, s{sRG}, 2
        s_add_u32 s10, s10, s{sW}
        s_lshl_b32 s10, s10, 2
        s_add_u32 s10, s10, s{sQ}
        s_lshl_b32 s{sV0}, s10, 16""") + mksrd(SRD_V, 16, SZ["v"]) + mksrd(SRD_WO, 20, SZ["wo"])
    rest += exchange_setup()
    rest += ops(f"""v_lshlrev_b32 v{vPF}, 7, v0
        v_min_u32 v{t2}, {47 if P["ctm"] else 23}, v0
        v_mul_u32_u24 v{t3}, 86, v{t2}
        v_lshrrev_b32 v{t3}, 8, v{t3}
        v_mul_u32_u24 v{vPF2}, {1280 - 384}, v{t3}
        v_lshl_add_u32 v{vPF2}, v{t2}, 7, v{vPF2}
        s_and_b32 s{sCT}, s{sRG}, {P["ctm"]}
        s_lshl_b32 s{sCT}, s{sCT}, 1
        s_add_u32 s{sCT}, s{sCT}, s{sJ}
        s_and_b32 s{sCT}, s{sCT}, 3
        s_lshl_b32 s10, s{sQ}, 7
        s_andn2_b32 s11, s{sRG}, {P["ctm"]}
        s_lshl_b32 s11, s11, 2
        s_add_u32 s10, s10, s11
        s_lshl_b32 s11, s{sW}, {P["ctm"]}
        s_add_u32 s10, s10, s11
        s_mul_i32 s10, s10, 10240
        s_mul_i32 s11, s{sCT}, 320
        s_and_b32 s11, s11, 0xffffff80
        s_add_u32 s{sTCH}, s10, s11
        v_mov_b32 v{t2}, {OOB}
        v_cmp_gt_u32 vcc, 3, v0
        s_nop 1
        v_cndmask_b32 v{vFL}, v{t2}, v{vPF}, vcc""")
    g1 = dma_w(1); nf = P["first"]; side = g1[:nf]; k = 0
    for i, o in enumerate(rest):
        A(o)
        if k < len(side) and (k + 1) * len(rest) <= (i + 1) * len(side): A(side[k]); k += 1
    A(side[k:])
    if P["xt"] and P["xtpos"] == 1: A(touch_x(*P["xt0"], vPF2 + 2, True))
    if P["bal"]:
        A(f"""s_mul_i32 s10, s{sRG}, 5
            s_lshr_b32 s10, s10, 2
            s_sub_u32 s10, s{sKC}, s10
            s_lshr_b32 s11, s{sRG}, 2
            s_mul_i32 s11, s11, 5
            s_add_u32 s10, s10, s11
            s_add_u32 s10, s10, 14
            {mod10(10, 30)}
            {mod10(10, 30)}
            s_lshl_b32 s10, s10, 19
            s_and_b32 s11, s{sRG}, 3
            s_lshl_b32 s11, s11, 17
            s_add_u32 s10, s10, s11
            s_lshl_b32 s11, s{sW}, 15
            s_add_u32 s10, s10, s11
            s_and_b32 s11, s{sWQ0}, 0x1fff
            s_add_u32 s10, s10, s11
            v_bfe_u32 v{t2}, v0, 2, 2
            v_and_b32 v{t3}, 3, v0
            v_lshlrev_b32 v{t3}, 7, v{t3}
            v_lshl_or_b32 v{t2}, v{t2}, 13, v{t3}
            buffer_load_dword v{t6}, v{t2}, s[{SRD_WQ}:{SRD_WQ+3}], s10 offen""")
    if P["bal"] > 1:
        A(f"""s_add_u32 s10, s{sKC}, 4
            {mod10(10, 30)}
            s_lshl_b32 s10, s10, 7
            s_lshl_b32 s11, s{sRG}, 3
            s_add_u32 s11, s11, s{sW}
            s_mul_i32 s11, s11, 20480
            s_add_u32 s10, s10, s11
            s_bitcmp1_b32 s{sJ}, 0
            s_cselect_b32 s10, {OOB}, s10
            v_and_b32 v{t3}, 15, v0
            v_mul_u32_u24 v{t3}, 1280, v{t3}
            buffer_load_dword v{vPF2+2}, v{t3}, s[{SRD_X}:{SRD_X+3}], s10 offen""")
    late = mksrd(SRD_OUT, 24, SZ["out"]) + ops(f"""        s_lshl_b32 s10, s{sRG}, 2
        s_add_u32 s10, s10, s{sW}
        s_mul_i32 s10, s10, {32*2560}
        s_mul_i32 s11, s{sBR}, 1280
        s_add_u32 s10, s10, s11
        s_mul_i32 s11, s{sCT}, 320
        s_add_u32 s10, s10, s11
        s_lshl_b32 s30, s{sQ}, 6
        s_add_u32 s{sOUT0}, s10, s30
        s_and_b32 s30, s{sQ}, 1
        s_mul_i32 s30, s30, {16*2560}
        s_add_u32 s10, s10, s30
        s_lshr_b32 s30, s{sQ}, 1
        s_lshl_b32 s30, s30, 5
        s_add_u32 s10, s10, s30
        s_add_u32 s{sOUT1}, s10, 256
        s_lshl_b32 s10, s{sQ}, 6
        s_add_u32 s10, s10, s{sW}
        s_mul_i32 s10, s10, {16*1280}
        s_add_u32 s{sWO0}, s10, s11
        s_mul_i32 s{sM5}, s{sW}, 5120
        s_add_u32 s10, s{sQ}, 1
        s_movk_i32 s11, 3277""")
    for q in range(5):
        late += ops(f"""v_add_u32 v{t0}, {64*q}, v0
            v_mul_u32_u24 v{t1}, s11, v{t0}
            v_lshrrev_b32 v{t1}, 16, v{t1}
            v_mul_u32_u24 v{t2}, 20, v{t1}
            v_sub_u32 v{t0}, v{t0}, v{t2}
            v_lshrrev_b32 v{t2}, 2, v{t0}
            v_add_u32 v{t3}, s10, v{t2}
            v_and_b32 v{t3}, 3, v{t3}
            v_cmp_gt_u32 vcc, 4, v{t2}
            v_and_b32 v{t0}, 3, v{t0}
            v_bfe_u32 v{t4}, v{t1}, 2, 1
            v_cndmask_b32 v{t2}, v{t2}, v{t3}, vcc
            v_lshlrev_b32 v{t4}, 1, v{t4}
            v_xor_b32 v{t0}, v{t0}, v{t4}
            v_lshlrev_b32 v{t0}, 4, v{t0}
            v_lshl_or_b32 v{t0}, v{t2}, 6, v{t0}
            v_mul_u32_u24 v{t1}, 1280, v{t1}
            v_add_u32 v{vWo+q}, v{t0}, v{t1}""")
        if q % 4: late.append(Op(f"v_subrev_u32 v{vWo+q}, {1024*(q%4)}, v{vWo+q}"))
    FA = 16384
    late += ops(f"""v_and_b32 v{t0}, 15, v0
        v_lshrrev_b32 v{t1}, 4, v0
        v_lshrrev_b32 v{t2}, 1, v{t1}
        v_bfe_u32 v{t3}, v0, 1, 2
        v_xor_b32 v{t3}, v{t3}, v{t2}
        v_lshlrev_b32 v{t3}, 4, v{t3}
        v_and_b32 v{t4}, 1, v{t1}
        v_lshl_or_b32 v{t3}, v{t4}, 3, v{t3}
        v_lshl_or_b32 v{t3}, v{t0}, 6, v{t3}
        s_add_u32 s10, s{sM4}, {FA}
        v_add_u32 v{vFA}, s10, v{t3}
        v_lshlrev_b32 v{t3}, 3, v{t1}
        v_lshl_or_b32 v{t3}, v{t0}, 5, v{t3}
        s_add_u32 s11, s10, 2048
        v_add_u32 v{vFA2}, s11, v{t3}
        v_add_u32 v{vFB2}, s11, v{vL16}
        v_lshrrev_b32 v{t0}, 2, v0
        v_and_b32 v{t1}, 3, v0
        v_bfe_u32 v{t2}, v0, 3, 2
        v_xor_b32 v{t2}, v{t2}, v{t1}
        v_lshlrev_b32 v{t2}, 4, v{t2}
        v_lshl_or_b32 v{t2}, v{t0}, 6, v{t2}
        v_add_u32 v{vFB}, s10, v{t2}
        v_mul_u32_u24 v{t0}, 2560, v{t0}
        v_lshl_or_b32 v{vOA}, v{t1}, 4, v{t0}
        v_add_u32 v{vOB}, {16*2560}, v{vOA}
        v_lshrrev_b32 v{t0}, 1, v0
        v_and_b32 v{t1}, 1, v0
        v_mul_u32_u24 v{t0}, 2560, v{t0}
        v_lshl_or_b32 v{t0}, v{t1}, 4, v{t0}
        v_mov_b32 v{t1}, {OOB}
        v_cmp_gt_u32 vcc, 32, v0
        v_add_u32 v{lZa}, s{sM4}, v{vL16}
        s_lshl_b32 s10, s{sQ}, 10
        s_add_u32 s10, s10, 32768
        v_add_u32 v{lZm}, s10, v{lZa}
        v_mov_b32 v{lID}, 0
        v_cndmask_b32 v{vOC}, v{t1}, v{t0}, vcc
        v_and_b32 v{t0}, 1, v0
        v_lshlrev_b32 v{t0}, 4, v{t0}
        v_mov_b32 v{t1}, 0x3f80
        v_lshlrev_b32 v{t0}, v{t0}, v{t1}
        v_lshrrev_b32 v{t1}, 4, v0
        v_bfe_u32 v{t2}, v0, 2, 2
        v_cmp_eq_u32 vcc, v{t1}, v{t2}
        v_mov_b32 v{lID+1}, 0
        v_and_b32 v{t2}, 3, v0
        v_cndmask_b32 v{t0}, v{lID}, v{t0}, vcc
        v_cmp_gt_u32 vcc, 2, v{t2}
        v_mov_b32 v{lID+4}, 0
        v_mov_b32 v{lID+5}, 0
        v_cndmask_b32 v{lID+2}, v{lID}, v{t0}, vcc
        v_cndmask_b32 v{lID+3}, v{t0}, v{lID}, vcc""")
    late += [Op(f"v_mov_b32 v{LZ+q}, 0") for q in range(20)] + [Op(f"v_mov_b32 v{LINC+12*q+10+e}, 0") for q in range(4) for e in range(2)]
    A("s_waitcnt lgkmcnt(0)")
    A(stamp("lstart", "l"))
    def lbar(*groups): return [Op("WAITG", group=g) for g in groups] + [BAR()]
    A(lbar(("W", 0))[:-1]); A(stamp("k3", "l")); A(BAR())
    clx = P["clx"]; vdma = dict(P["vdma"])
    def touch(dj):
        return ops(f"""s_add_u32 s{sT3}, s{sJ}, {dj}
            s_and_b32 s{sT3}, s{sT3}, 3
            s_mul_i32 s{sT3}, s{sT3}, {256*1280}
            s_add_u32 s{sT3}, s{sT3}, s{sTCH}
            buffer_load_dword v{t5}, v{vPF2}, s[{SRD_WO}:{SRD_WO+3}], s{sT3} offen""")
    def touch_v(hd):
        return ops(f"""s_lshl_b32 s{sT2}, s{sJ}, 14
            s_add_u32 s{sT2}, s{sT2}, s{sV0}
            s_add_u32 s{sT2}, s{sT2}, {hd*8192}
            buffer_load_dword v{t6}, v{vPF}, s[{SRD_V}:{SRD_V+3}], s{sT2} offen""")
    def piece(p):
        if p[0] == "T": return touch(int(p[1]))
        if p[0] == "U": return touch_v(int(p[1]))
        if p == "X": return touch_x(*P["xt1"], vPF2 + 3)
        return [y for n in range(4 * int(p[1]), 4 * int(p[1]) + 4) for y in dma_k(n)]
    nl = len(late); parts = {12: late[:nl // 2], 13: late[nl // 2:]}
    NV = P["nv"]; variants = []; lst = {}
    if NV > 1:
        A(f"s_and_b32 s10, s{sPH}, {NV-1}")
        for ph in range(1, NV): A(f"s_cmp_eq_u32 s10, {ph}\ns_cbranch_scc1 L_var{ph}")
    head = ls.ops
    for ph in range(NV):
        V_ = [Op(f"L_var{ph}:")]
        q_ = [(1, [Op(o.text, **o.meta) for o in it]) for it in g1[nf:]] + [(t, it) for t in range(2, 20) for it in dma_w(t)]
        quiet = set()
        for x in range(0, 20):
            cl_ = [y for pcs, xc in clx if xc + ph * P['phstep'] == x for p_ in pcs for y in piece(p_)]
            if cl_:
                quiet |= {x + d for d in P["skip"]}
            if not P["cend"]: V_ += cl_
            n = 0
            while q_ and q_[0][0] <= x + LA and (q_[0][0] <= x + 1 or (x not in quiet and n < (P["cap0"] if x == 0 else P["cap"]))):
                V_ += q_.pop(0)[1]; n += 1
            if P["cend"]: V_ += cl_
            if x in parts: V_ += [Op(o.text, **o.meta) for o in parts[x]]
            if x == P["pfx"]: V_ += touch(0)
            if x in vdma:
                V_ += dma_v(vdma[x])
            V_ += lbar(("W", x + 1))
            if ph == 0: lst[x] = stamp(f"l{x}", "l")
            V_ += [Op(o.text) for o in lst[x]]
        fixed = []; cur = want = None
        for o in V_:
            if o.text.startswith("s_add_u32 m0"):
                cur = o.text
                if o.meta.get("wm0"): want = o.text
            if o.kind == "dma" and o.meta["group"][0] == "W" and cur is not None and cur != want: assert want; fixed.append(Op(want)); cur = want
            fixed.append(o)
        V_ = fixed
        V_.append(Op("s_branch L_join"))
        variants.append(V_)
    ls.ops = []
    A("L_join:")
    A(BAR())
    todo = [s_ for s_ in range(4) if s_ not in vdma.values()]
    early = [s_ for s_ in todo if s_ < 3]
    A(dma_wo(0))
    for s_ in early: A(dma_v(s_))
    A(dma_wo(1))
    A([Op("WAITL")] + lbar(("V", 0), ("Wo", 0)))
    A(stamp("m0", "l"))
    def pieces(L):
        out = [[]]
        for o in L:
            out[-1].append(o)
            if o.kind == "dma": out.append([])
        return out[:-1]
    q2 = []
    for x in range(0, NS):
        if x + 2 <= 15: q2 += [(x, x + 1, it) for it in pieces(dma_wo(x + 2))]
        if x + 3 <= 15 and (x >= 1 or 3 in todo): q2 += [(x, x + 2, it) for it in pieces(dma_v(x + 3))]
    quiet = {x + d for x in P["tch"] for d in P["skip2"]}
    for x in range(0, NS):
        n = 0
        while q2 and q2[0][0] <= x and (x == NS - 1 or any(e[1] <= x for e in q2) or (x not in quiet and n < P["cap2"])):
            A(q2.pop(0)[2]); n += 1
        if x in P["tch"]: A(touch(P["tch"][x]))
        if x == P["tlb"]:
            A(f"""buffer_load_dword v{vPF2+3}, v{vFL0}, {WSR}, s{sRL} offen offset:3072
                buffer_load_dword v{vPF2+4}, v{vFL0}, {WSR}, s{sFLM} offen offset:896 sc1
                buffer_load_dword v{t6}, v{vFL0}, {OUTR}, s{sOUT0} offen""")
        A(stamp(f'd{x}', 'l'))
        g = [("V", x + 1), ("Wo", x + 1)] + ([("V", x + 2)] if x == NS - 1 else [])
        A(lbar(*g))
        A(stamp(f"m{x+1}", "l"))
    if NS + 2 <= 15: A(dma_wo(NS + 2))
    if NS + 3 <= 15: A(dma_v(NS + 3))
    if NF == 4:
        A(lbar(("V", 14), ("Wo", 13)))
        A(dma_wo(15)); A(lbar(("V", 15), ("Wo", 14)))
        A(lbar(("Wo", 15)))
    elif NF == 3: A(lbar(("V", 15), ("Wo", 14)) + lbar(("Wo", 15)))
    else: A(lbar(("V", 15), ("Wo", 15)))
    zrd = [Op(f"ds_read_b128 {v(LZC+4*q,4)}, v{lZa} offset:{q*1024}", use=[("S0", 290)]) for q in range(4)]
    own = [] if P["ownlds"] else fetch(3, LINC + 36); ownadd = [] if P["ownlds"] else addin(3, LINC + 36)
    if P["ownlds"]: zrd.append(Op(f"ds_read_b128 {v(LZC+16,4)}, v{lZm}", use=[("S2", 290)]))
    if P["early"] == 1:
        A(BAR()); A(stamp("bt1", "l"))
        A([poll()] + own); A(zrd)
        A(need(1) + fetch(0, LINC) + need(2) + fetch(1, LINC + 12) + need(4) + fetch(2, LINC + 24))
        A(stamp("c1", "l"))
        A(ownadd + addin(0, LINC) + addin(1, LINC + 12))
    else:
        A(BAR()); A(stamp("bt1", "l"))
        A([poll()])
        A(need(1) + fetch(0, LINC) + need(2) + fetch(1, LINC + 12))
        if P["early"] == 3: A(need(4) + fetch(2, LINC + 24))
        A(stamp("c1", "l"))
        A(BAR())
        if P["early"] == 2: A([poll()])
        A(own); A(zrd)
        if P["early"] == 2: A(need(4) + fetch(2, LINC + 24))
        A(addin(0, LINC) + addin(1, LINC + 12) + ownadd)
    A("s_nop 7")
    for q in range(20 if P["ownlds"] else 16): A(f"v_add_f32 v{LZ+q}, v{LZ+q}, v{LZC+q}")
    A(f"v_xor_b32 v{t0}, 32, v{vFA}")
    A(addin(2, LINC + 24))
    A(stamp("c2", "l"))
    FK = [("S1", 300)]
    for nt in range(2):
        for jt in range(2):
            d = LPK + 4 * nt + 2 * jt; z = LZ + 8 * nt + 4 * jt
            A([cvt(d, z), cvt(d + 1, z + 2)])
            A(Op(f"ds_write_b64 v{t0 if nt else vFA}, {v(d,2)} offset:{jt*1024}", fill=FK, private=True))
    A([cvt(LPK + 8, LZ + 16), cvt(LPK + 9, LZ + 18), Op(f"ds_write_b64 v{vFA2}, {v(LPK+8,2)}", fill=FK, private=True)])
    A(Op(f"ds_read_b128 {v(LINC,4)}, v{vFB}", use=FK, private=True))
    A(Op(f"ds_read_b128 {v(LINC+4,4)}, v{vFB} offset:1024", use=FK, private=True))
    A(Op(f"ds_read_b128 {v(LINC+12,4)}, v{vFB2}", use=FK, private=True))
    A(f"buffer_store_dwordx4 {v(LINC,4)}, v{vOA}, {OUTR}, s{sOUT0} offen {P['out_mod']}")
    A(f"buffer_store_dwordx4 {v(LINC+4,4)}, v{vOB}, {OUTR}, s{sOUT0} offen {P['out_mod']}")
    A(f"buffer_store_dwordx4 {v(LINC+12,4)}, v{vOC}, {OUTR}, s{sOUT1} offen {P['out_mod']}")
    if P["dbg"] or P["x_seg"]: A("s_waitcnt vmcnt(0)"); A(stamp("lend", "l"))
    if P["x_seg"]:
        A(f"s_sub_u32 s10, s16, s14\ns_mul_i32 s10, s10, 8\ns_memrealtime s[14:15]\ns_waitcnt lgkmcnt(0)")
        A(f"L_amp:\ns_sleep 2\ns_memrealtime s[16:17]\ns_waitcnt lgkmcnt(0)\ns_sub_u32 s11, s16, s14\ns_cmp_lt_u32 s11, s10\ns_cbranch_scc1 L_amp")
    A(dump())
    if P["x_amp"]:
        A(f"s_waitcnt vmcnt(0)\ns_memrealtime s[{sST}:{sST+1}]\ns_waitcnt lgkmcnt(0)\ns_sub_u32 s10, s{sST}, s{sST+4}\ns_mul_i32 s10, s10, {P['x_amp']}")
        A(f"L_amp:\ns_sleep 2\ns_memrealtime s[{sST}:{sST+1}]\ns_waitcnt lgkmcnt(0)\ns_sub_u32 s11, s{sST}, s{sST+4}\ns_cmp_lt_u32 s11, s10\ns_cbranch_scc1 L_amp")
    A("L_end:\ns_endpgm")

    A = cs.add
    A("L_compute:")
    A(ids)
    A(f"v_lshlrev_b32 v{vL16}, 4, v0")
    if P["prio_c"]: A(f"s_setprio {P['prio_c']}")
    l16, g, r, c4 = t0, t1, t2, t3
    u0, u1 = ABUF, ABUF + 1
    A(f"""v_and_b32 v{l16}, 15, v0
        v_lshrrev_b32 v{g}, 4, v0
        v_bfe_u32 v{r}, v0, 2, 2
        v_and_b32 v{c4}, 3, v0
        v_and_b32 v{t5}, 1, v{g}
        v_lshl_or_b32 v{t4}, v{t5}, 2, v{r}
        s_and_b32 s10, s{sW}, 1
        s_lshl_b32 s11, s10, 2
        v_lshl_add_u32 v{u0}, v{g}, 3, v{r}
        v_lshlrev_b32 v{u0}, 8, v{u0}
        v_lshl_or_b32 v{u0}, v{c4}, 3, v{u0}
        v_xor_b32 v{u1}, s11, v{t4}
        v_lshl_or_b32 v{aW}, v{u1}, 5, v{u0}
        v_xor_b32 v{aW+1}, 32, v{aW}
        v_xor_b32 v{aW+2}, 64, v{aW}
        v_xor_b32 v{aW+3}, 0x60, v{aW}
        v_lshrrev_b32 v{u1}, 1, v{l16}
        v_xor_b32 v{u1}, v{u1}, v{g}
        v_lshlrev_b32 v{u1}, 4, v{u1}
        v_lshl_or_b32 v{u1}, v{l16}, 7, v{u1}
        s_lshr_b32 s11, s{sW}, 1
        s_lshl_b32 s30, s11, 13
        s_add_u32 s{sT0}, s30, {XB}
        v_add_u32 v{aX}, s{sT0}, v{u1}
        v_xor_b32 v{aX+1}, 64, v{aX}
        s_lshl_b32 s10, s10, 11
        s_add_u32 s10, s10, s30
        s_add_u32 s10, s10, {PB}
        v_add_u32 v{vPW}, s10, v{vL16}
        s_add_u32 s10, s{sM4}, {PB}
        v_add_u32 v{vPR}, s10, v{vL16}
        v_add_u32 v{vZ}, s{sM4}, v{vL16}
        v_lshrrev_b32 v{u0}, 1, v{g}
        v_xor_b32 v{u0}, v{u0}, v{l16}
        v_lshlrev_b32 v{u0}, 4, v{u0}
        v_lshl_or_b32 v{u0}, v{t5}, 3, v{u0}
        v_lshl_or_b32 v{u0}, v{l16}, 8, v{u0}
        s_lshl_b32 s10, s{sM4}, 2
        s_add_u32 s10, s10, {KB}
        v_add_u32 v{u0}, s10, v{u0}
        v_mov_b32 v{kR}, v{u0}
        s_load_dwordx2 s[{SRD_DBG}:{SRD_DBG+1}], s[0:1], 88
        s_load_dwordx2 s[{SRD_WS}:{SRD_WS+1}], s[0:1], 96""")
    for q in range(1, 8): A(f"v_xor_b32 v{kR+q}, {32*q}, v{kR}")
    late_c = ops(f"""v_lshrrev_b32 v{t3}, 2, v0
        v_bfe_u32 v{t4}, v0, 3, 2
        v_lshlrev_b32 v{t4}, 5, v{t4}
        v_and_b32 v{t5}, 3, v0
        v_lshl_or_b32 v{t4}, v{t5}, 3, v{t4}
        v_lshl_or_b32 v{t4}, v{t3}, 7, v{t4}
        v_add_u32 v{aV}, s{sM4}, v{t4}
        v_xor_b32 v{aV+1}, 32, v{aV}
        v_xor_b32 v{aV+2}, 64, v{aV}
        v_xor_b32 v{aV+3}, 0x60, v{aV}
        v_mul_u32_u24 v{t3}, 320, v{t3}
        v_lshl_add_u32 v{t3}, v{t5}, 3, v{t3}
        v_add_u32 v{t3}, {WOB}, v{t3}
        v_bfe_u32 v{t5}, v0, 4, 1
        v_lshlrev_b32 v{t5}, 5, v{t5}
        v_add_u32 v{aWo}, v{t3}, v{t5}
        v_sub_u32 v{aWo+1}, v{t3}, v{t5}
        v_add_u32 v{aWo+2}, 61440, v{aWo}
        v_add_u32 v{aWo+3}, 61440, v{aWo+1}""")
    A(f"""s_mov_b32 s{sC}, {f2u(SCALE_LOG2E)}
        s_mov_b32 s{sC+1}, {f2u(SCALE_LOG2E)}
        s_waitcnt lgkmcnt(0)""")
    A(exchange_setup())
    cbar = lambda: [Op("WAITL"), BAR()]
    vNAN, vZERO = aWo, aV
    A(mksrd(SRD_DBG, 26, 256))
    A(f"""s_lshl_b32 s10, s{sW}, 3
        s_add_u32 s{sHS}, s{sJ}, s10
        s_lshr_b32 s{sT1}, s{sG}, 2
        s_lshl_b32 s{sT1}, s{sT1}, 4
        s_add_u32 s{sT0}, s{sPS}, 65536
        v_mov_b32 v{t2}, {OOB}
        v_cmp_gt_u32 vcc, 24, v0
        v_mov_b32 v{vNAN-1}, -1
        v_mov_b32 v{vNAN}, -1
        v_cndmask_b32 v{t3}, v{t2}, v{vL16}, vcc
        v_mov_b32 v{vNAN+1}, -1
        v_mov_b32 v{vNAN+2}, -1
        v_mov_b32 v{vZERO-1}, 0
        v_mov_b32 v{vZERO}, 0
        v_mov_b32 v{vZERO+1}, 0
        v_mov_b32 v{vZERO+2}, 0""")
    clears = [Op(f"buffer_store_dwordx4 {v(vNAN-1,4)}, v{vL16}, {WSR}, s{so} offen offset:{off} sc1", group="clr") for so in (sPS, sT0) for off in (0, 1024)]
    clears.append(Op(f"buffer_store_dwordx4 {v(vZERO-1,4)}, v{t3}, {WSR}, s{sFLM} offen sc1", group="clr"))

    def rdA1(t, i):
        s = t % 4; buf = ABUF + 8 * ((4 * t + i) % 3)
        return [Op(f"ds_read_b64_tr_b16 {v(buf+4*ss+2*h,2)}, v{aW+i} offset:{s*16384 + ss*8192 + h*1024}", use=[(f"S{s}", t)]) for ss in range(2) for h in range(2)]
    def rdB(kc):
        return [Op(f"ds_read_b128 {v(BB+32*(kc%2)+8*jt+4*ss,4)}, v{aX+ss} offset:{(kc%2)*16384 + jt*2048}", use=[(f"X{kc%2}", kc)]) for jt in range(4) for ss in range(2)]
    if P["clr"][0] < 0: A(clears)
    A(BAR())
    A(stamp("start"))
    b0 = rdB(0); a0 = rdA1(0, 0)
    A(a0[:2] + b0[:1] + a0[2:] + b0[1:] + rdA1(0, 1))
    T = Ticks()
    for t in range(20):
        kc, dh = t // 2, t % 2
        for i in range(4):
            buf = ABUF + 8 * ((4 * t + i) % 3)
            for jt, ss in ([(a_, b_) for a_ in range(4) for b_ in range(2)] if P["chain"] else [(a_, b_) for b_ in range(2) for a_ in range(4)]):
                if True:
                    d = ACC + 16 * (4 * dh + i) + 4 * jt
                    T.add(mfma(d, v(buf + 4 * ss, 4), v(BB + 32 * (kc % 2) + 8 * jt + 4 * ss, 4), "0" if (kc == 0 and ss == 0) else None))
                    if jt == 0 and ss == 0: T.m[-1].meta["also"] = range(buf, buf + 8)
    for t in range(20):
        b = 32 * t
        if P["p1"] == 0:
            for q, o in enumerate(rdA1(t, 2)): T.put(b + q, o, 2)
            for q, o in enumerate(rdA1(t, 3)): T.put(b + 8 + q, o, 2)
        elif P["p1"] == 1:
            for q, o in enumerate(rdA1(t, 2)): T.put(b + 2 * q, o, 2)
            for q, o in enumerate(rdA1(t, 3)): T.put(b + 8 + q, o, 2)
        T.put(b + BP, cbar(), 1)
        if t < 19:
            for q, o in enumerate(rdA1(t + 1, 0)): T.put(b + BP + q, o, 2)
            for q, o in enumerate(rdA1(t + 1, 1)): T.put(b + 24 + (q if t % 2 or P["p1"] == 0 else 2 * q), o, 2)
            if t % 2 == 1:
                for pos, o in zip([min(BP + 4, 23), min(BP + 5, 23), min(BP + 6, 23), 28, 29, 30, 31, 32], rdB((t + 1) // 2)): T.put(b + pos, o, 3)
        T.put(b + 31, stamp(f"w{t}"), 9)
    def qreg(sd, j4): return ACC + 32 * sd + 4 * j4
    def pack(d, e): return [cvt(d, d), cvt(d + 1, d + 2), cvt(d + 2, e), cvt(d + 3, e + 2)]
    def qcvt(sd, j4): return pack(qreg(sd, j4), qreg(sd, j4) + 16)
    def krd(b): return [Op(f"ds_read_b64 {v(BB+32*b+16*kt+4*sd+2*h,2)}, v{kR+2*sd+h} offset:{b*8192 + kt*4096}", use=[("K", 100), ("Kp", 100)]) for sd in range(4) for kt in range(2) for h in range(2)]
    b18, b19 = 32 * 18, 32 * 19
    c0, c1 = P["clr"]; assert c1 < P["hs0"] - 1
    if c0 < 0: pre_clears = clears
    else: T.spread(clears, 32 * c0 + 4, 32 * c1 + 4, 6)
    T.put(32 * (P["hs0"] - 1) + BP, Op("WAITG", group="clr"), 0.5)
    for q in range(4):
        T.put(32 * (P["hs0"] + q) + 5, [Op(f"s_cmp_lg_u32 s{sHS}, {q}"), Op(f"s_cbranch_scc1 L_hs{q}"),
              Op(f"buffer_atomic_add v{vONE}, v{vFL0}, {DBGR}, s{sT1} offen sc1", uncounted=True), Op(f"L_hs{q}:")], 7)
    T.put(32 * 16 + 5, [Op(f"s_cmp_lg_u32 s{sW}, 0"), Op("s_cbranch_scc1 L_hsl"),
          Op(f"buffer_load_dword v{t2}, v{vFL0}, {DBGR}, s{sT1} offen sc1", uncounted=True), Op("L_hsl:")], 7)
    T.put(b19 + BP, [Op(f"s_cmp_lg_u32 s{sW}, 0"), Op("s_cbranch_scc1 L_hsc"), Op("s_waitcnt vmcnt(0)", cond=True, raw=True),
          Op(f"v_readfirstlane_b32 s{sT3}, v{t2}", cond=True), Op("s_nop 1", cond=True), Op(f"s_cmp_lt_u32 s{sT3}, 16", cond=True, nohaz=True),
          Op("s_cbranch_scc1 L_hs_spin", cond=True), Op("L_hsc:")], 0.5)
    tail.extend(["L_hs_spin:", f"s_mov_b32 s{sSPIN}, 0", "L_hs_spin1:",
         f"buffer_load_dword v{t2}, v{vFL0}, {DBGR}, s{sT1} offen sc1", "s_waitcnt vmcnt(0)",
         f"v_readfirstlane_b32 s{sT3}, v{t2}", f"s_add_u32 s{sSPIN}, s{sSPIN}, 1", f"s_cmp_gt_u32 s{sSPIN}, 400000", "s_cbranch_scc1 L_hsc",
         f"s_cmp_lt_u32 s{sT3}, 16", "s_cbranch_scc1 L_hs_spin1", "s_branch L_hsc"])
    T.spread(late_c, 32 * 14, 32 * 14 + 15, 4)
    T.spread(krd(0), b18 + 4, b18 + 15, 4)
    T.spread([o for j4 in range(4) for o in qcvt(0, j4)], b18 + 20, b18 + 31, 5)
    T.spread([o for j4 in range(4) for o in qcvt(1, j4)], b19 + 4, b19 + 16, 5)
    T.spread([o for j4 in range(4) for o in qcvt(2, j4)], b19 + 20, b19 + 31, 5)
    T.flush(cs)
    A(stamp("g1"))

    def sreg(b, jt, kt): return ACC + 16 + 32 * b + 8 * jt + 4 * kt
    def softmax(b):
        tmp = ACC + 80 + 8 * b; pf = PF + 8 * b; L = []
        cols = [(sreg(b, c, 0), tmp + 4 * c) for c in range(2)]
        def both(f):
            for x, y in zip(f(*cols[0]), f(*cols[1])): L.extend([Op(x), Op(y)])
        (s0, m0_), (s1, m1_) = cols
        def across(op):
            L.extend(ops(f"""v_permlane32_swap_b32 v{m0_}, v{m1_}
                {op} v{m0_}, v{m0_}, v{m1_}
                v_mov_b32 v{m1_}, v{m0_}
                v_permlane16_swap_b32 v{m0_}, v{m1_}
                {op} v{m0_}, v{m0_}, v{m1_}"""))
        def spread_back(): L.extend(ops(f"v_mov_b32 v{m1_}, v{m0_}\nv_permlane32_swap_b32 v{m0_}, v{m1_}"))
        both(lambda s, m: [f"v_max3_f32 v{m}, v{s}, v{s+1}, v{s+2}", f"v_max3_f32 v{m+1}, v{s+3}, v{s+4}, v{s+5}",
                           f"v_max3_f32 v{m}, v{m}, v{s+6}, v{s+7}", f"v_max_f32 v{m}, v{m}, v{m+1}"])
        across("v_max_f32"); L.append(Op(f"v_mul_f32 v{m0_}, s{sC}, v{m0_}")); spread_back()
        both(lambda s, m: [f"v_pk_fma_f32 v[{s+q}:{s+q+1}], v[{s+q}:{s+q+1}], s[{sC}:{sC+1}], v[{m}:{m+1}] op_sel_hi:[1,1,0] neg_lo:[0,0,1] neg_hi:[0,0,1]" for q in range(0, 8, 2)])
        both(lambda s, m: [f"v_exp_f32 v{s+q}, v{s+q}" for q in range(8)])
        both(lambda s, m: [f"v_pk_add_f32 v[{m}:{m+1}], v[{s}:{s+1}], v[{s+2}:{s+3}]", f"v_pk_add_f32 v[{m+2}:{m+3}], v[{s+4}:{s+5}], v[{s+6}:{s+7}]",
                           f"v_pk_add_f32 v[{m}:{m+1}], v[{m}:{m+1}], v[{m+2}:{m+3}]", f"v_add_f32 v{m}, v{m}, v{m+1}"])
        across("v_add_f32"); L.append(Op(f"v_rcp_f32 v{m0_}, v{m0_}")); spread_back()
        both(lambda s, m: [f"v_pk_mul_f32 v[{s+q}:{s+q+1}], v[{s+q}:{s+q+1}], v[{m}:{m+1}] op_sel_hi:[1,0]" for q in range(0, 8, 2)])
        if b: L.append(Op(f"s_add_u32 s{sPS}, s{sPS}, 65536"))
        for c in range(2):
            for q in range(4): L.append(cvt(pf + 4 * c + q, cols[c][0] + 2 * q))
            L.append(Op(f"buffer_store_dwordx4 {v(pf+4*c,4)}, v{vL16}, {WSR}, s{sPS} offen offset:{1024*c} sc1"))
            L.append(Op(f"ds_write_b128 v{vPW}, {v(pf+4*c,4)} offset:{b*4096 + c*1024}", fill=[("P", 300), ("Kp", 300)]))
        return L
    T = Ticks()
    for b in range(2):
        for sd in range(4):
            for kt in range(2):
                for jt in range(2):
                    T.add(mfma(sreg(b, jt, kt), v(BB + 32 * b + 16 * kt + 4 * sd, 4), v(qreg(sd, 2 * b + jt), 4), "0" if sd == 0 else None))
    T.spread(krd(1), 0, 5, 2)
    T.spread([o for j4 in range(2) for o in qcvt(3, j4)], 1, 6, 3)
    T.spread([o for j4 in range(2, 4) for o in qcvt(3, j4)], 7, 12, 3)
    T.put(P["bk"], cbar(), 1)
    sm0 = softmax(0); sm1 = softmax(1)
    n0 = P['sm_in']; T.spread(sm0[:n0], 20, 31, 5)
    T.flush(cs)
    A(stamp("qk"))
    if P["smix"]:
        a_, b_ = sm0[n0:], sm1
        k_ = [i for i, o in enumerate(b_) if o.text.startswith("s_add_u32")][0]
        mix = a_[:4]; i_, j_ = 4, 0
        while i_ < len(a_) or j_ < len(b_):
            if j_ < len(b_) and (j_ < k_ or i_ >= len(a_)): mix.append(b_[j_]); j_ += 1
            if i_ < len(a_): mix.append(a_[i_]); i_ += 1
        A(mix)
    else: A(sm0[n0:]); A(stamp("sm0")); A(sm1)
    A(stamp("att"))

    def rdP(gen): return [Op(f"ds_read_b128 {v(PRB[0][2*hd+jt],4)}, v{vPR} offset:{hd*2048 + jt*1024}", use=[("P", gen)]) for hd in range(2) for jt in range(2)]
    def ldP(dj):
        return ops(f"s_add_u32 s{sT2}, s{sJ}, {dj}\ns_and_b32 s{sT2}, s{sT2}, 3\ns_lshl_b32 s{sT2}, s{sT2}, 12\ns_add_u32 s{sT2}, s{sT2}, s{sPL}") + \
            [Op(f"buffer_load_dwordx4 {v(PRB[dj%2][q],4)}, v{vL16}, {WSR}, s{sT2} offen offset:{1024*q} sc1") for q in range(4)]
    def rdV(s): return [Op(f"ds_read_b64_tr_b16 {v(VF+4*i+2*h,2)}, v{aV+i} offset:{(s%4)*16384 + h*2048}", use=[(f"S{s%4}", 200 + s)], private=True) for i in range(4) for h in range(2)]
    def pvreg(s, i, jt):
        if s < NS + 1 or NF == 1: return PVB[s % 2] + 8 * i + 4 * jt
        return fin_regs[s][2 * i + jt]
    e0, e1 = PVB[NS % 2], PVB[(NS + 1) % 2]
    fin_regs = {NS + 1: [e1 + 4 * q for q in range(8)],
                NS + 2: [e0 + 8, e0 + 12, PRB[0][0], PRB[0][1], e0 + 24, e0 + 28, PRB[0][2], PRB[0][3]],
                NS + 3: [e1 + 8, e1 + 12, 56, 60, e1 + 24, e1 + 28, 10, t1]}
    def pvm(s): return [mfma(pvreg(s, i, jt), v(VF + 4 * i, 4), v(PRB[(s // 4) % 2][2 * ((s // 2) % 2) + jt], 4), "0") for i in range(4) for jt in range(2)]
    _pvm = pvm
    def pvm(s):
        L = _pvm(s); L[0].meta["also"] = range(VF, VF + 8); L[4].meta["also"] = range(VF + 8, VF + 16)
        return L
    def pvc(s): return [o for ss in range(2) for jt in range(2) for o in pack(pvreg(s, 2 * ss, jt), pvreg(s, 2 * ss + 1, jt))]
    nA = [0]
    def rdA2(s, t):
        k = s % 4; buf = A2 + 8 * (nA[0] % 4); nA[0] += 1
        ad = aWo + (t % 2) + (2 if k == 3 else 0); base = 0 if k == 3 else k * 20480
        return buf, [Op(f"ds_read_b64_tr_b16 {v(buf+4*ss+2*h,2)}, v{ad} offset:{base + ss*10240 + h*5120 + t*32}", use=[(f"Wo{k}", 200 + s)]) for ss in range(2) for h in range(2)]
    def owo(s, t, buf):
        L = [mfma(OUTA + 8 * t + 4 * jt, v(buf + 4 * ss, 4), v(pvreg(s, 2 * ss, jt), 4), "0" if (s == 0 and ss == 0) else None) for jt in range(2) for ss in range(2)]
        L[0].meta["also"] = range(buf, buf + 8)
        return L
    steps = [(s, t) for s in range(NS) for t in range(10)]
    order = [8, 9, 0, 1, 2, 3, 4, 5, 6, 7]
    steps += [(s, t) for s in range(NS, 16) for t in order[:2]] + [(s, t) for t in order[2:] for s in range(NS, 16)]
    rd = [rdA2(s, t) for s, t in steps]
    A(cbar())
    A(stamp("bp"))
    p0 = rdP(300)
    A(p0[:2] + rdV(0) + p0[2:] + rd[0][1])
    A(pvm(0)); A(rd[1][1] + rd[2][1]); A(pvc(0))
    T = Ticks(); at = []; pvat = {}
    for n, (s, t) in enumerate(steps):
        if (s < NS and t == P['pvt']) or (NS <= s < 15 and t == 8):
            pvat[s + 1] = len(T.m)
            for o in pvm(s + 1): T.add(o)
        at.append(len(T.m))
        for o in owo(s, t, rd[n][0]): T.add(o)
    fin0 = pvat[NS + 1]; BX = fin0 - 4
    BM = at[steps.index((13, 8))]
    BL2 = at[steps.index((15, 8)) - P["bl2"]] if NF >= 3 else BX
    for n in range(3, len(steps)):
        base = at[n - 3]
        if P["smooth"] and n < 10 * NS and steps[n][1] in (P["pvt"] + 2, P["pvt"] + 3): base = pvat[steps[n][0] + 1] + 4 * (steps[n][1] - P["pvt"] - 2)
        if steps[n][0] > NS: base = max(base, BX)
        if steps[n][0] == 14 and NF == 4: base = max(base, BM)
        if steps[n][0] == 15: base = max(base, BL2)
        for q, o in enumerate(rd[n][1]): T.put(base + q, o, 2)
    for s in range(NS):
        b = at[10 * s]
        T.put(b + BP2, BAR(), 1)
        if P["smooth"]:
            T.spread(rdV(s + 1), b + BP2, b + BP2 + 7, 1.5)
            c_ = pvc(s + 1); e_ = pvat[s + 1] + 7; T.spread(c_[:8], e_, e_ + 3, 4); T.spread(c_[8:], e_ + 4, min(e_ + 13, b + 46), 4)
        else:
            T.spread(rdV(s + 1), b + BP2, b + BP2 + 3, 1.5)
            T.spread(pvc(s + 1), b + 35, b + 46, 4)
        T.put(b + 47, stamp(f"o{s}"), 9)
    T.put(BX, BAR(), 1)
    if NF == 4: T.put(BM, BAR(), 1)
    if NF >= 3: T.put(BL2, BAR(), 1)
    for s2 in range(NS + 1, 16):
        T.spread(rdV(s2), pvat[s2] - 8, pvat[s2] - 5, 1.6)
        T.spread(pvc(s2), pvat[s2] + 9, pvat[s2] + (15 if s2 == 15 or not P['fsm'] else 22), 1.7)
    for dj in range(1, 4):
        ps, pt = P["pld"][dj - 1]; L = ldP(dj)
        if dj > 1 and P["pwide"]: T.spread(L, pvat[ps + 1], pvat[ps + 1] + 7, 6)
        else: T.spread([L[:5], L[5], L[6], L[7]], at[10 * ps] + pt, at[10 * ps] + pt + 6, 6)
        chk = arrived([r_ + e for r_ in PRB[dj % 2] for e in range(4)], ldP(dj), t0)
        b = at[10 * (4 * dj - 1)] + P["pchk"]
        if dj > 1 and P["pwide"]:
            b = pvat[4 * dj - 1] + 7
            T.spread(chk[:-4], b - 7, b - 1, 6); T.put(b, chk[-4:-3], 6); T.put(b + 1, chk[-2:], 1)
        else:
            T.spread(chk[:-4], b - 4, b - 1, 6); T.put(b, chk[-4:] + stamp(f"pc{dj}"), 6)
    end = len(T.m); flags = []
    def done(t): return at[steps.index((15, t))] + 3
    T.put(BX - 1, stamp("bx0"), 9); T.put(BX, stamp("bx1"), 1.1); T.put(BL2 - 1, stamp("bl0"), 9); T.put(BL2, stamp("bl1"), 1.1)
    for t_ in (9, 1, 3, 5): T.put(done(t_), stamp(f"f{t_}"), 9)
    L = []
    for m in range(4):
        L += [cvt(PK + 2 * m, OUTA + 64 + 4 * m), cvt(PK + 2 * m + 1, OUTA + 64 + 4 * m + 2),
              [Op(f"s_add_u32 s{sT2}, s{sRS}, {m*65536 + 2048}")] + ([Op(f"s_cmp_eq_u32 s{sQ}, {m}"), Op(f"s_cselect_b32 s{sT2}, {OOB}, s{sT2}")] if P["ownlds"] else []) + [Op(f"buffer_store_dwordx2 {v(PK+2*m,2)}, v{vL8}, {WSR}, s{sT2} offen sc1", group=("R", -1))]]
    T.spread(L, done(9) + 3, done(9) + 8 * NF - 2, 4)
    for k in range(3):
        L = []; pk = SPARE if k % 2 == 0 else PK
        dest = f"s_add_u32 s{{0}}, s{sQ}, {k+1}\ns_and_b32 s{{0}}, s{{0}}, 3"
        for nt in range(2):
            for jt in range(2):
                z = OUTA + 8 * (2 * k + nt) + 4 * jt
                L += [cvt(pk + 4 * nt + 2 * jt, z), cvt(pk + 4 * nt + 2 * jt + 1, z + 2)]
            it = ops(dest.format(sT2) + f"\ns_lshl_b32 s{sT2}, s{sT2}, 16\ns_add_u32 s{sT3}, s{sT2}, s{sRS}") if nt == 0 else []
            L.append(it + [Op(f"buffer_store_dwordx4 {v(pk+4*nt,4)}, v{vL16}, {WSR}, s{sT3} offen offset:{1024*nt} sc1", group=("R", k))])
        T.spread(L[:5], done(2 * k) + 3, done(2 * k) + 2 * NF + 1, 4); T.spread(L[5:], done(2 * k + 1) + 3, done(2 * k + 1) + 2 * NF + 1, 4)
        fl = [Op("WAITG", group=("R", k))] + ops(dest.format(sT2) + f"\ns_lshl_b32 s{sT2}, s{sT2}, 11\ns_add_u32 s{sT2}, s{sT2}, s{sFLD}")
        fl.append(Op(f"buffer_store_dword v{vONE}, v{vFL0}, {WSR}, s{sT2} offen offset:{k*128} sc1"))
        tf = done(2 * k + 1) + 2 * NF + 1 + P["cover"]
        if tf < end: T.put(tf, fl, 6)
        else: flags.append(fl)
    if P["ownlds"]:
        T.spread([Op(f"ds_write_b128 v{vZ}, {v(OUTA+64+4*m,4)} offset:{32768 + m*1024}", fill=[("S2", 290)], wpriv=True) for m in range(4)], end - 12, end - 1, 4)
    if P["early"] >= 2: T.put(min(done(5) + P["bt1"], end - 1), BAR(), 8)
    T.flush(cs)
    A(stamp("g2"))
    zw = [Op(f"ds_write_b128 v{vZ}, {v(OUTA+48+4*q,4)} offset:{q*1024}", fill=[("S0", 290)], wpriv=True) for q in range(4)]
    A(flags[:-1]); A(zw); A(flags[-1:])
    A(cbar())
    A(stamp("end"))
    A(dump())
    A("s_endpgm")

    sc, sl = {}, {}
    def drop(st, pred): st.ops = [o for o in st.ops if not pred(o)]
    import re
    def hot(L):
        for name, srd_ in (("v", SRD_V), ("o", SRD_WO), ("k", SRD_K), ("w", SRD_WQ), ("x", SRD_X)):
            if name in P["x_hot"]:
                L = [Op(re.sub(r"\], s\d+ offen", "], 0 offen", o.text), **o.meta) if (o.kind in ("dma", "vld") and f"s[{srd_}:" in o.text) else o for o in L]
        return L
    if P['x_nost']: drop(cs, lambda o: o.kind == 'vst' and isinstance(o.meta.get('group'), tuple))
    if "d" in P["x_drop"]: drop(ls, lambda o: o.kind == "dma" and o.meta["group"][1] >= 4)
    if "D" in P["x_drop"]: variants = [[o for o in V_ if not (o.kind == "dma" and o.meta["group"][0] == "W" and o.meta["group"][1] >= 4)] for V_ in variants]
    if "c" in P["x_drop"]: drop(cs, lambda o: o.mn == "v_cvt_pk_bf16_f32")
    if "r" in P["x_drop"]: drop(cs, lambda o: o.kind == "dsr" and "tr" in o.mn and "[9" not in o.text and int(o.text.split("offset:")[1]) % 64 == 32)
    clines = cs.finalize(sc); seg = []; nb = None
    for ph, V_ in enumerate(variants):
        lf = Stream(); lf.nocheck = True; lf.ops = hot(pro.ops + head + V_ + ls.ops)
        L = lf.finalize(sl); i0 = L.index(f"L_var{ph}:"); i1 = L.index("L_join:")
        seg.append((L[:i0], L[i0:i1], L[i1:]))
        assert seg[-1][0] == seg[0][0] and seg[-1][2] == seg[0][2]
        if not P['x_drop']: nb = check_handoffs([cs.events, lf.events]); assert nb[0] == nb[1], nb
    lines = seg[0][0] + [l for x in seg for l in x[1]] + seg[0][2] + tail + clines
    a = Asm(); kernel_begin(a, KNAME)
    for l in lines: a(l)
    a("L_code_end:")
    body = a.text().replace("CODE_SPAN", f"L_code_end-{KNAME}-4").replace("CODE_BACK", f"L_pc-{KNAME}")
    write_file(path, ["; @launch grid=(256,1,1) block=(512,1,1) lds=163840"] + ["; " + l for l in NOTES.strip().split("\n")], body, [descriptor(KNAME, 256, 256)])
    return sc, sl, nb

if __name__ == "__main__":
    out = sys.argv[1] if len(sys.argv) > 1 else f"cdna_kernels/{NAME}.s"
    kw = {}
    for x in sys.argv[2:]:
        k, val = x.split("=", 1)
        try: val = eval(val)
        except Exception: pass
        kw[k] = val
    print(build(out, **kw))
```

```python
import sys, struct
from common import *
from ops import Op, Stream, check_handoffs

def f2u(f): return struct.unpack("<I", struct.pack("<f", f))[0]
SCALE_LOG2E = 128 ** -0.5 * 1.4426950408889634
KNAME = NAME + "_kernel"

DEF = dict(
    nt_w="", nt_x="", nt_k="nt", nt_v="", nt_wo="", bpos=17, bpos2=19, code_pf=1, dbg=0, rot=1, xrot=1, flip=0,
    stamps=("start", "g1", "att", "g2", "end"), lstamps=(),
    clx=((('K0', 'K1'), 3), (('K2', 'K3'), 9)), tch={4: 1}, skip2=(1,), cap2=11, nv=4, vdma={17: 0, 18: 1}, x_hot='', cend=1, skip=(1,), cap=8, tlb=99, cap0=99, phstep=1, clr=(2, 6), bal=0, first=4, prio_l=0, prio_c=0, la=3, pfx=15, smooth=1, sm_in=16, smix=1, bk=8, nf=4, bl2=2, pld=((2, 8), (4, 8), (8, 8)), pwide=1, ctm=1, po=(0, 2, 1, 3), xt=0, xt0=(1, 4), xt1=(5, 9), xtpos=0, pchk=24, hs0=8, cover=80, early=3, ownlds=1, bt1=28, fsm=1, pvt=7, dist=3, p1=0, chain=1, x_nost=0, x_drop='',
    out_mod="sc1", ntlast=0, x_amp=0, x_seg=None, x_nomfma=0, x_nodma=0,
)

NOTES = """
Generated by my own script (straight-line code, waits and wait states derived from the dependences).
One fused kernel, one workgroup per CU: waves 0-3 compute (MFMA 16x16x32 bf16), waves 4-7 stream operands into LDS (LDS-DMA).
Workgroup id -> branch (bit 2), head group q of 8 heads (bits 0-1), head pair j (bits 3-4), row group rg of 4 batches (bits 5-7).
Phase 1: Q^T = Wq^T X^T for 4 batches x 2 heads (k order rotated per workgroup), S^T = K Q^T, softmax with the true row
  maximum, P packed to bf16.  P goes to d_ws for the three workgroups that share rows and head group.
Phase 2: 160 output columns of the 4 batches over the group's 8 heads: O^T = V^T P^T, out^T += Wo^T O^T, own heads first.
  The last two heads run tile by tile; the tiles owned by the other three head groups are sent as bf16 partial sums through
  d_ws, the loader waves add them up (selector MFMAs) and write the output.
Hand-offs between workgroups: write-through (sc1) stores and sc1 loads only.  Every workgroup first empties its P slots
  (all ones) and its flag lines (zero) and counts that in d_debug; the count is checked before any slot or flag is used.
  P is taken once no dword is all ones; partial sums are announced by a flag stored after their stores have completed.
  All waiting loops are bounded.  Which XCD a workgroup runs on only matters for speed.
"""

WS_R = 0
WS_P = 16 << 20
WS_FL = 20 << 20
WS_DBG = 32 << 20
OOB = 0x40000000

XB, KB = 65536, 98304
WOB, PB = 65536, 147456

sW, sJ, sRG, sG, sBR = 3, 6, 7, 8, 9
sFLIP, sPH, sKC, sQ = 32, 33, 34, 35
SRD_X, SRD_K, SRD_V, SRD_WQ, SRD_WO, SRD_OUT, SRD_DBG, SRD_WS = 36, 40, 44, 48, 52, 56, 60, 64
sWQ0, sX0, sK0, sV0, sWO0, sM4, sM5 = 68, 69, 70, 71, 72, 73, 74
sT0, sT1, sT2, sT3 = 75, 76, 77, 78
sRS, sRL, sPS, sFLD, sPL, sC, sHS, sCT, sFLM = 79, 80, 81, 82, 83, 84, 89, 86, 98
sSPIN = 88
sOUT0, sOUT1 = 90, 91
sTCH = 87
sXT, sKC0 = 99, 100
sST = 92
WSR = f"s[{SRD_WS}:{SRD_WS+3}]"; DBGR = f"s[{SRD_DBG}:{SRD_DBG+3}]"; OUTR = f"s[{SRD_OUT}:{SRD_OUT+3}]"

vL16, vL8, vFL0, vONE = 28, 29, 30, 31
vT = 33
aW, aX, kR = 1, 5, 7
vPW, vPR, vZ = 15, 16, 17
aWo, aV = 19, 23
ABUF = 40; BB = 64; ACC = 128
PF = 40
OUTA = 176
PVB = [112, 144]
VF = 96
A2 = 64
PRB = [[40, 44, 48, 52], [56, 60, 2, 6]]
SPARE = 56
PK = 2
vW, vX, vK, vV, vWo = 1, 5, 9, 13, 17
vFLAG = 32
vFL = 22
lID = 40
lZa, vFA, vFA2, vFB, vFB2, vOA, vOB, vOC, vPF, vPF2, lZm = 46, 47, 48, 49, 50, 51, 52, 53, 54, 55, 56
LINC = 64
LZ = 112
LZC = 132
LPK = 152
VP = 192
vVW = 56

def v(b, n=1): return vr(b, n)
def mfma(d, A, B, C=None): return Op(f"v_mfma_f32_16x16x32_bf16 {v(d,4)}, {A}, {B}, {v(d,4) if C is None else C}")
def cvt(d, s0): return Op(f"v_cvt_pk_bf16_f32 v{d}, v{s0}, v{s0+1}")
def ops(text): return [Op(x) for x in text.split("\n") if x.strip()]

class Ticks:
    def __init__(self): self.m = []; self.f = []
    def add(self, op): self.m.append(op); self.f.append([]); return len(self.m) - 1
    def put(self, t, o, prio=5):
        if not isinstance(o, (list, tuple)): o = [o]
        self.f[t].append((prio, len(self.f[t]), [Op(x) if isinstance(x, str) else x for x in o]))
    def spread(self, items, t0, t1, prio=5):
        n = len(items)
        for q, it in enumerate(items): self.put(t0 + (q * (t1 - t0 + 1)) // n, it, prio)
    def flush(self, st):
        for m, f in zip(self.m, self.f):
            st.add(m)
            for _, _, o in sorted(f, key=lambda x: (x[0], x[1])): st.add(o)

def weave(st, main, side, first=0):
    n, m = len(main), len(side); k = 0
    for i, o in enumerate(main):
        st.add(o)
        while k < m and i >= first and (k + 1) * (n - first) <= (i + 1 - first) * m: st.add(side[k]); k += 1
    while k < m: st.add(side[k]); k += 1

def build(path, **kw):
    P = dict(DEF); P.update(kw)
    BP, BP2, LA, NF = P["bpos"], P["bpos2"], P["la"], P["nf"]
    NS = 16 - NF
    tail = []
    pro = Stream(); cs = Stream(); ls = Stream()
    for s in (pro, cs, ls): s.nocheck = True
    t0, t1, t2, t3, t4, t5, t6 = range(vT, vT + 7)
    nst = {"c": 0, "l": 0}
    def stamp(name, role="c"):
        if P["x_seg"] and role == "l" and name in P["x_seg"]:
            r_ = 14 + 2 * P["x_seg"].index(name)
            return [Op(f"s_memrealtime s[{r_}:{r_+1}]"), Op("s_waitcnt lgkmcnt(0)")]
        if not P["dbg"] or name not in P["stamps" if role == "c" else "lstamps"]: return []
        nst[role] += 1; i = nst[role]; assert i <= 13
        return [Op(f"s_memtime s[{sST}:{sST+1}]"), Op("s_waitcnt lgkmcnt(0)"), Op(f"s_mov_b32 s{sreg_(i)}, s{sST}")]
    def sreg_(i): return 12 + i
    def dump():
        if not P["dbg"]: return []
        L = ops(f"""s_waitcnt vmcnt(0)
            s_memrealtime s[{sST}:{sST+1}]
            s_waitcnt lgkmcnt(0)
            v_writelane_b32 v{t6}, s{sST+2}, 0
            v_writelane_b32 v{t6}, s{sST}, 15
            v_writelane_b32 v{t6}, s{sST+4}, 14""")
        L += [Op(f"v_writelane_b32 v{t6}, s{sreg_(i)}, {i}") for i in range(1, 14)]
        L += ops(f"""s_lshl_b32 s{sT2}, s2, 3
            s_add_u32 s{sT2}, s{sT2}, s31
            s_lshl_b32 s{sT2}, s{sT2}, 8
            s_add_u32 s{sT2}, s{sT2}, {WS_DBG}
            v_lshlrev_b32 v{t0}, 2, v0
            buffer_store_dword v{t6}, v{t0}, {WSR}, s{sT2} offen""")
        return L
    BAR = lambda: Op("s_barrier")
    def mksrd(dst, ptr, n): return ops(f"s_mov_b32 s{dst+2}, {n}\ns_mov_b32 s{dst+3}, 0x00020000")
    def mod10(x, tmp): return f"s_sub_u32 s{tmp}, s{x}, 10\ns_min_u32 s{x}, s{x}, s{tmp}"
    def wo_regions(k):
        lo, hi = WOB + 20480 * k, WOB + 20480 * (k + 1); r = [f"Wo{k}"]
        if lo < XB + 16384: r.append("X0")
        if lo < KB and hi > XB + 16384: r.append("X1")
        if hi > KB: r.append("K")
        return r

    A = pro.add
    A("s_cmp_ge_u32 s2, 256\ns_cbranch_scc1 L_end")
    if P["dbg"] or P["x_amp"]: A(f"s_memtime s[{sST+2}:{sST+3}]\ns_memrealtime s[{sST+4}:{sST+5}]")
    A(f"""v_lshrrev_b32 v{t0}, 6, v0
        s_bfe_u32 s{sBR}, s2, 0x10002
        v_readfirstlane_b32 s31, v{t0}
        s_mul_i32 s10, s{sBR}, 40
        v_and_b32 v0, 63, v0
        s_add_u32 s4, s0, s10
        s_addc_u32 s5, s1, 0
        s_cmp_lt_u32 s31, 4
        s_cbranch_scc1 L_compute""")
    ids = f"""s_and_b32 s{sQ}, s2, 3
        s_bfe_u32 s{sJ}, s2, 0x20003
        s_lshr_b32 s{sRG}, s2, 5
        s_and_b32 s{sW}, s31, 3
        s_lshl_b32 s{sM4}, s{sW}, 12"""

    def exchange_setup():
        return mksrd(SRD_WS, 28, 268435456) + ops(f"""s_lshl_b32 s10, s{sBR}, 3
            s_add_u32 s10, s10, s{sRG}
            s_lshl_b32 s{sG}, s10, 2
            s_add_u32 s{sG}, s{sG}, s{sJ}
            s_lshl_b32 s10, s{sG}, 18
            s_add_u32 s10, s10, s{sM4}
            s_lshl_b32 s11, s{sQ}, 14
            s_add_u32 s{sRS}, s10, s11
            s_lshl_b32 s11, s{sQ}, 16
            s_add_u32 s{sRL}, s10, s11
            s_lshl_b32 s10, s{sBR}, 3
            s_add_u32 s10, s10, s{sRG}
            s_lshl_b32 s10, s10, 7
            s_lshl_b32 s11, s{sQ}, 3
            s_add_u32 s10, s10, s11
            s_lshl_b32 s11, s{sW}, 5
            s_add_u32 s11, s11, s10
            s_lshl_b32 s11, s11, 11
            s_add_u32 s{sPL}, s11, {WS_P}
            s_lshr_b32 s11, s{sW}, 1
            s_lshl_b32 s11, s11, 6
            s_add_u32 s10, s10, s11
            s_lshl_b32 s11, s{sJ}, 1
            s_add_u32 s10, s10, s11
            s_and_b32 s11, s{sW}, 1
            s_add_u32 s10, s10, s11
            s_lshl_b32 s10, s10, 11
            s_add_u32 s{sPS}, s10, {WS_P}
            s_lshl_b32 s10, s{sG}, 13
            s_lshl_b32 s11, s{sW}, 9
            s_add_u32 s10, s10, s11
            s_add_u32 s{sFLD}, s10, {WS_FL}
            s_lshl_b32 s11, s{sQ}, 11
            s_add_u32 s{sFLM}, s{sFLD}, s11
            v_mov_b32 v{t0}, {OOB}
            v_cmp_eq_u32 vcc, 0, v0
            v_mov_b32 v{t2}, 0
            v_mov_b32 v{vONE}, 1
            v_cndmask_b32 v{vFL0}, v{t0}, v{t2}, vcc
            v_lshlrev_b32 v{vL8}, 3, v0""")

    A = ls.add
    def dma(vo, srd_, so, q, mod, g, fill): return Op(f"buffer_load_dwordx4 v{vo}, s[{srd_}:{srd_+3}], s{so} offen offset:{(q%4)*1024} {mod} lds", group=g, fill=fill)
    def dma_w(t):
        kc, dh = t // 2, t % 2; s = t % 4; g = ("W", t); items = []
        if dh == 0:
            for q in range(4):
                it = []
                if q == 0:
                    if kc: it += [Op(f"s_add_u32 s{sKC}, s{sKC}, 1"), Op(f"s_cmp_eq_u32 s{sKC}, 10"), Op(f"s_cselect_b32 s{sKC}, 0, s{sKC}")]
                    it += [Op(f"s_lshl_b32 s{sT1}, s{sKC}, 7"), Op(f"s_add_u32 s{sT1}, s{sT1}, s{sX0}"),
                           Op(f"s_lshl_b32 s{sT0}, s{sKC}, 19"), Op(f"s_add_u32 s{sT0}, s{sT0}, s{sWQ0}"),
                           Op(f"s_add_u32 m0, s{sM4}, {XB + (kc%2)*16384}", wm0=True)]
                it.append(dma(vX + q, SRD_X, sT1, q, "nt" if t >= 20 - P["ntlast"] else P["nt_x"], g, [(f"X{kc%2}", kc)]))
                items.append(it)
        for q in range(4):
            it = []
            if q == 0:
                if dh == 1: it.append(Op(f"s_xor_b32 s{sT0}, s{sT0}, 128"))
                it.append(Op(f"s_add_u32 m0, s{sM4}, {16384*s}", wm0=True))
            it.append(dma(vW + q, SRD_WQ, sT0, q, "nt" if t >= 20 - P["ntlast"] else P["nt_w"], g, [(f"S{s}", t)]))
            items.append(it)
        return items
    def dma_k(n):
        it = []
        if n % 4 == 0:
            it += [Op(f"s_add_u32 s{sT2}, s{sK0}, {(n//8)*262144 + ((n%8)//4)*4096}"), Op(f"s_lshl_b32 s{sT3}, s{sM4}, 2"),
                   Op(f"s_add_u32 m0, s{sT3}, {KB + (n//4)*4096}")]
        it.append(dma(vK + n % 4, SRD_K, sT2, n, P["nt_k"], ("K", 0), [("K", 100), ("Kp", 100)]))
        return it
    def head_ops(s, dst): return [Op(f"s_lshl_b32 s{dst}, s{sJ}, 1"), Op(f"s_add_u32 s{dst}, s{dst}, {2 * P['po'][s // 4] + (s // 2) % 2}"), Op(f"s_and_b32 s{dst}, s{dst}, 7")]
    def dma_v(s):
        L = head_ops(s, sT2) + [Op(f"s_lshl_b32 s{sT2}, s{sT2}, 13"), Op(f"s_add_u32 s{sT2}, s{sT2}, s{sV0}")]
        if s % 2: L.append(Op(f"s_add_u32 s{sT2}, s{sT2}, 128"))
        L.append(Op(f"s_add_u32 m0, s{sM4}, {16384*(s%4)}"))
        return L + [dma(vV + q, SRD_V, sT2, q, P["nt_v"], ("V", s), [(f"S{s%4}", 200 + s)]) for q in range(4)]
    def dma_wo(s):
        k = s % 4; fill = [(r, 200 + s) for r in wo_regions(k)]
        L = head_ops(s, sT2) + [Op(f"s_mul_i32 s{sT2}, s{sT2}, {128*1280}"), Op(f"s_add_u32 s{sT2}, s{sT2}, s{sWO0}")]
        if s % 2: L.append(Op(f"s_add_u32 s{sT2}, s{sT2}, {64*1280}"))
        for q in range(5):
            if q % 4 == 0: L.append(Op(f"s_add_u32 m0, s{sM5}, {WOB + 20480*k + 1024*q}"))
            L.append(dma(vWo + q, SRD_WO, sT2, q, P["nt_wo"], ("Wo", s), fill))
        return L
    nlab = [0]
    def arrived(regs, reload, tmp):
        k = nlab[0]; nlab[0] += 1; regs = list(regs); L = []
        L.append(f"v_max3_u32 v{tmp}, v{regs[0]}, v{regs[1]}, v{regs[2]}")
        rest_ = regs[3:]
        while len(rest_) >= 2: L.append(f"v_max3_u32 v{tmp}, v{tmp}, v{rest_[0]}, v{rest_[1]}"); rest_ = rest_[2:]
        if rest_: L.append(f"v_max_u32 v{tmp}, v{tmp}, v{rest_[0]}")
        L.append(f"v_cmp_eq_u32 vcc, -1, v{tmp}")
        tail.extend([f"L_spin{k}:", f"s_mov_b32 s{sSPIN}, 0", f"L_spin{k}a:"] + [o.text for o in reload] + ["s_waitcnt vmcnt(0)"] + L +
                    [f"s_add_u32 s{sSPIN}, s{sSPIN}, 1", f"s_cmp_gt_u32 s{sSPIN}, 400000", f"s_cbranch_scc1 L_back{k}",
                     f"s_cbranch_vccnz L_spin{k}a", f"s_branch L_back{k}"])
        return [Op(x) for x in L] + [Op("s_nop 0"), Op(f"s_cbranch_vccnz L_spin{k}"), Op(f"L_back{k}:")]
    def poll(): return Op(f"buffer_load_dword v{vFLAG}, v{vFL}, {WSR}, s{sFLM} offen sc1")
    def need(mask):
        k = nlab[0]; nlab[0] += 1
        tail.extend([f"L_spin{k}:", f"s_mov_b32 s{sSPIN}, 0", f"L_spin{k}a:",
                     f"buffer_load_dword v{vFLAG}, v{vFL}, {WSR}, s{sFLM} offen sc1", "s_waitcnt vmcnt(0)",
                     f"v_cmp_ne_u32 vcc, 0, v{vFLAG}", f"s_add_u32 s{sSPIN}, s{sSPIN}, 1", f"s_cmp_gt_u32 s{sSPIN}, 400000", f"s_cbranch_scc1 L_back{k}",
                     f"s_and_b32 s{sT2}, vcc_lo, {mask}", f"s_cmp_lg_u32 s{sT2}, {mask}", f"s_cbranch_scc1 L_spin{k}a", f"s_branch L_back{k}"])
        return ops(f"v_cmp_ne_u32 vcc, 0, v{vFLAG}\ns_and_b32 s{sT2}, vcc_lo, {mask}\ns_cmp_lg_u32 s{sT2}, {mask}\ns_cbranch_scc1 L_spin{k}\nL_back{k}:")
    def fetch(k, r):
        L = ops(f"s_add_u32 s{sT2}, s{sQ}, {3 - k + 4}\ns_and_b32 s{sT2}, s{sT2}, 3\ns_lshl_b32 s{sT2}, s{sT2}, 14\ns_add_u32 s{sT2}, s{sT2}, s{sRL}")
        if k < 3: L += [Op(f"buffer_load_dwordx4 {v(r+4*nt,4)}, v{vL16}, {WSR}, s{sT2} offen offset:{1024*nt} sc1") for nt in range(2)]
        return L + [Op(f"buffer_load_dwordx2 {v(r+8,2)}, v{vL8}, {WSR}, s{sT2} offen offset:2048 sc1")]
    def addin(k, r):
        L = []
        if k < 3:
            for nt in range(2):
                for jt in range(2): L.append(mfma(LZ + 8 * nt + 4 * jt, v(lID + 2 - 2 * jt, 4), v(r + 4 * nt, 4)))
        return L + [mfma(LZ + 16, v(lID + 2, 4), v(r + 8, 4))]

    A(f"s_load_dwordx2 s[{SRD_X}:{SRD_X+1}], s[4:5], 0\ns_load_dwordx2 s[{SRD_WQ}:{SRD_WQ+1}], s[4:5], 24")
    if P["prio_l"]: A(f"s_setprio {P['prio_l']}")
    A(ids)
    xr = P["xrot"]
    A(f"""s_mul_i32 s{sKC}, s{sRG}, 5
        v_lshrrev_b32 v{t0}, 4, v0
        s_mul_i32 s10, s{sJ}, {0 if P['xt'] else 5}
        v_lshrrev_b32 v{t4}, 3, v0
        s_lshr_b32 s{sKC}, s{sKC}, 2
        v_and_b32 v{t1}, 7, v0
        s_lshr_b32 s10, s10, 1
        v_mul_u32_u24 v{t2}, 1280, v{t4}
        s_add_u32 s{sKC}, s{sKC}, s10
        v_xor_b32 v{t3}, v{t1}, v{t0}
        s_add_u32 s{sKC}, s{sKC}, {'s%d' % sQ if xr else 0}
        v_lshl_add_u32 v{vX}, v{t3}, 4, v{t2}
        {mod10(sKC, 30)}
        v_xor_b32 v{t3}, 4, v{t3}
        s_lshl_b32 s10, s{sRG}, 2
        v_lshl_add_u32 v{vX+1}, v{t3}, 4, v{t2}
        s_add_u32 s10, s10, s{sW}
        v_add_u32 v{vX+2}, {2*9216}, v{vX}
        s_mul_i32 s{sX0}, s10, 40960
        v_add_u32 v{vX+3}, {3*9216}, v{vX+1}
        s_mov_b32 s{SRD_X+2}, {SZ['x']}
        v_add_u32 v{vX+1}, 9216, v{vX+1}
        s_mov_b32 s{SRD_X+3}, 0x00020000""")
    assert xr in (0, 1)
    if not P["rot"]: A(f"s_mov_b32 s{sKC}, 0")
    wsetup = ops(f"""v_bfe_u32 v{t3}, v0, 1, 3
        s_lshl_b32 s10, s{sQ}, 2
        v_xor_b32 v{t3}, v{t3}, v{t0}
        s_add_u32 s10, s10, s{sJ}
        v_and_b32 v{t2}, 4, v{t3}
        s_lshl_b32 s{sWQ0}, s10, 9
        v_and_b32 v{t3}, 3, v{t3}
        s_lshl_b32 s10, s{sW}, 17
        v_lshlrev_b32 v{t2}, 6, v{t2}
        s_add_u32 s{sWQ0}, s{sWQ0}, s10
        v_lshl_or_b32 v{t3}, v{t3}, 5, v{t2}
        s_lshl_b32 s{sT0}, s{sKC}, 19
        v_and_b32 v{t2}, 1, v0
        s_add_u32 s{sT0}, s{sT0}, s{sWQ0}
        v_lshl_or_b32 v{t3}, v{t2}, 4, v{t3}
        s_mov_b32 s{SRD_WQ+2}, {SZ['wq']}
        v_lshl_or_b32 v{vW}, v{t0}, 13, v{t3}
        s_mov_b32 s{SRD_WQ+3}, 0x00020000
        v_add_u32 v{vW+1}, {32768 - 1024}, v{vW}
        v_xor_b32 v{vW+2}, 0x100, v{vW}
        v_add_u32 v{vW+3}, {3*(32768 - 1024)}, v{vW+2}
        v_add_u32 v{vW+2}, {2*(32768 - 1024)}, v{vW+2}""")
    A(stamp("k0", "l"))
    w0 = dma_w(0); w0[0] = [o for o in w0[0] if f"s{sT0}," not in o.text]
    A(w0[:1]); A(stamp("k1", "l")); A(w0[1:4]); A(wsetup); A(w0[4:]); A(stamp("k2", "l"))
    A(f"""s_load_dwordx2 s[{SRD_K}:{SRD_K+1}], s[4:5], 8
        s_load_dwordx2 s[{SRD_V}:{SRD_V+1}], s[4:5], 16
        s_load_dwordx2 s[{SRD_WO}:{SRD_WO+1}], s[4:5], 32
        s_load_dwordx2 s[{SRD_OUT}:{SRD_OUT+1}], s[0:1], 80
        s_load_dwordx2 s[{SRD_WS}:{SRD_WS+1}], s[0:1], 96
        v_lshlrev_b32 v{vL16}, 4, v0""")
    def touch_x(c0, c1, dst, first=False):
        L = ops(f"""s_lshl_b32 s10, s{sRG}, 2
            s_add_u32 s10, s10, s{sJ}
            s_lshl_b32 s10, s10, 2
            s_add_u32 s10, s10, s{sW}
            s_mul_i32 s{sXT}, s10, 10240
            s_mov_b32 s{sKC0}, s{sKC}""") if first else []
        return L + ops(f"""v_lshrrev_b32 v{t2}, 3, v0
            v_min_u32 v{t2}, {c1 - c0}, v{t2}
            s_add_u32 s{sT3}, s{sKC0}, {c0}
            v_add_u32 v{t2}, s{sT3}, v{t2}
            v_subrev_u32 v{t3}, 10, v{t2}
            v_min_u32 v{t2}, v{t2}, v{t3}
            v_and_b32 v{t3}, 7, v0
            v_mul_u32_u24 v{t3}, 1280, v{t3}
            v_lshl_add_u32 v{t2}, v{t2}, 7, v{t3}
            buffer_load_dword v{dst}, v{t2}, s[{SRD_X}:{SRD_X+3}], s{sXT} offen""")
    if P["xt"] and P["xtpos"] == 0: A(touch_x(*P["xt0"], vPF2 + 2, True))
    if P["code_pf"]:
        A("s_getpc_b64 s[22:23]\nL_pc:")
        A(f"""s_lshr_b32 s10, s2, 3
            s_lshl_b32 s10, s10, 11
            v_and_b32 v{t2}, 15, v0
            v_lshlrev_b32 v{t2}, 7, v{t2}
            v_add_u32 v{t2}, s10, v{t2}
            v_min_u32 v{t2}, CODE_SPAN, v{t2}
            s_sub_u32 s22, s22, CODE_BACK
            s_subb_u32 s23, s23, 0
            global_load_dword v{t5}, v{t2}, s[22:23]""")
    rest = mksrd(SRD_K, 14, SZ["k"]) + ops(f"""v_and_b32 v{t2}, 15, v0
        v_xor_b32 v{t2}, v{t2}, v{t0}
        v_lshlrev_b32 v{t2}, 4, v{t2}
        v_lshl_or_b32 v{vK}, v{t0}, 8, v{t2}
        v_xor_b32 v{vK+1}, 64, v{vK}
        v_xor_b32 v{vK+2}, 0x80, v{vK}
        v_xor_b32 v{vK+3}, 0xc0, v{vK}
        v_lshlrev_b32 v{t2}, 1, v{t0}
        v_xor_b32 v{t2}, v{t2}, v{t1}
        v_lshlrev_b32 v{t2}, 4, v{t2}
        v_lshl_or_b32 v{vV}, v{t4}, 8, v{t2}
        v_add_u32 v{vV+1}, 1024, v{vV}
        v_add_u32 v{vV+2}, 2048, v{vV}
        v_add_u32 v{vV+3}, 3072, v{vV}
        s_lshl_b32 s10, s{sRG}, 1
        s_lshr_b32 s11, s{sW}, 1
        s_add_u32 s10, s10, s11
        s_lshl_b32 s10, s10, 6
        s_lshl_b32 s11, s{sQ}, 3
        s_add_u32 s10, s10, s11
        s_lshl_b32 s11, s{sJ}, 1
        s_add_u32 s10, s10, s11
        s_and_b32 s11, s{sW}, 1
        s_add_u32 s10, s10, s11
        s_lshl_b32 s{sK0}, s10, 13
        s_lshr_b32 s{sPH}, s2, 3
        s_lshl_b32 s10, s{sRG}, 2
        s_add_u32 s10, s10, s{sW}
        s_lshl_b32 s10, s10, 2
        s_add_u32 s10, s10, s{sQ}
        s_lshl_b32 s{sV0}, s10, 16""") + mksrd(SRD_V, 16, SZ["v"]) + mksrd(SRD_WO, 20, SZ["wo"])
    rest += exchange_setup()
    rest += ops(f"""v_lshlrev_b32 v{vPF}, 7, v0
        v_min_u32 v{t2}, {47 if P["ctm"] else 23}, v0
        v_mul_u32_u24 v{t3}, 86, v{t2}
        v_lshrrev_b32 v{t3}, 8, v{t3}
        v_mul_u32_u24 v{vPF2}, {1280 - 384}, v{t3}
        v_lshl_add_u32 v{vPF2}, v{t2}, 7, v{vPF2}
        s_and_b32 s{sCT}, s{sRG}, {P["ctm"]}
        s_lshl_b32 s{sCT}, s{sCT}, 1
        s_add_u32 s{sCT}, s{sCT}, s{sJ}
        s_and_b32 s{sCT}, s{sCT}, 3
        s_lshl_b32 s10, s{sQ}, 7
        s_andn2_b32 s11, s{sRG}, {P["ctm"]}
        s_lshl_b32 s11, s11, 2
        s_add_u32 s10, s10, s11
        s_lshl_b32 s11, s{sW}, {P["ctm"]}
        s_add_u32 s10, s10, s11
        s_mul_i32 s10, s10, 10240
        s_mul_i32 s11, s{sCT}, 320
        s_and_b32 s11, s11, 0xffffff80
        s_add_u32 s{sTCH}, s10, s11
        v_mov_b32 v{t2}, {OOB}
        v_cmp_gt_u32 vcc, 3, v0
        s_nop 1
        v_cndmask_b32 v{vFL}, v{t2}, v{vPF}, vcc""")
    g1 = dma_w(1); nf = P["first"]; side = g1[:nf]; k = 0
    for i, o in enumerate(rest):
        A(o)
        if k < len(side) and (k + 1) * len(rest) <= (i + 1) * len(side): A(side[k]); k += 1
    A(side[k:])
    if P["xt"] and P["xtpos"] == 1: A(touch_x(*P["xt0"], vPF2 + 2, True))
    if P["bal"]:
        A(f"""s_mul_i32 s10, s{sRG}, 5
            s_lshr_b32 s10, s10, 2
            s_sub_u32 s10, s{sKC}, s10
            s_lshr_b32 s11, s{sRG}, 2
            s_mul_i32 s11, s11, 5
            s_add_u32 s10, s10, s11
            s_add_u32 s10, s10, 14
            {mod10(10, 30)}
            {mod10(10, 30)}
            s_lshl_b32 s10, s10, 19
            s_and_b32 s11, s{sRG}, 3
            s_lshl_b32 s11, s11, 17
            s_add_u32 s10, s10, s11
            s_lshl_b32 s11, s{sW}, 15
            s_add_u32 s10, s10, s11
            s_and_b32 s11, s{sWQ0}, 0x1fff
            s_add_u32 s10, s10, s11
            v_bfe_u32 v{t2}, v0, 2, 2
            v_and_b32 v{t3}, 3, v0
            v_lshlrev_b32 v{t3}, 7, v{t3}
            v_lshl_or_b32 v{t2}, v{t2}, 13, v{t3}
            buffer_load_dword v{t6}, v{t2}, s[{SRD_WQ}:{SRD_WQ+3}], s10 offen""")
    if P["bal"] > 1:
        A(f"""s_add_u32 s10, s{sKC}, 4
            {mod10(10, 30)}
            s_lshl_b32 s10, s10, 7
            s_lshl_b32 s11, s{sRG}, 3
            s_add_u32 s11, s11, s{sW}
            s_mul_i32 s11, s11, 20480
            s_add_u32 s10, s10, s11
            s_bitcmp1_b32 s{sJ}, 0
            s_cselect_b32 s10, {OOB}, s10
            v_and_b32 v{t3}, 15, v0
            v_mul_u32_u24 v{t3}, 1280, v{t3}
            buffer_load_dword v{vPF2+2}, v{t3}, s[{SRD_X}:{SRD_X+3}], s10 offen""")
    late = mksrd(SRD_OUT, 24, SZ["out"]) + ops(f"""        s_lshl_b32 s10, s{sRG}, 2
        s_add_u32 s10, s10, s{sW}
        s_mul_i32 s10, s10, {32*2560}
        s_mul_i32 s11, s{sBR}, 1280
        s_add_u32 s10, s10, s11
        s_mul_i32 s11, s{sCT}, 320
        s_add_u32 s10, s10, s11
        s_lshl_b32 s30, s{sQ}, 6
        s_add_u32 s{sOUT0}, s10, s30
        s_and_b32 s30, s{sQ}, 1
        s_mul_i32 s30, s30, {16*2560}
        s_add_u32 s10, s10, s30
        s_lshr_b32 s30, s{sQ}, 1
        s_lshl_b32 s30, s30, 5
        s_add_u32 s10, s10, s30
        s_add_u32 s{sOUT1}, s10, 256
        s_lshl_b32 s10, s{sQ}, 6
        s_add_u32 s10, s10, s{sW}
        s_mul_i32 s10, s10, {16*1280}
        s_add_u32 s{sWO0}, s10, s11
        s_mul_i32 s{sM5}, s{sW}, 5120
        s_add_u32 s10, s{sQ}, 1
        s_movk_i32 s11, 3277""")
    for q in range(5):
        late += ops(f"""v_add_u32 v{t0}, {64*q}, v0
            v_mul_u32_u24 v{t1}, s11, v{t0}
            v_lshrrev_b32 v{t1}, 16, v{t1}
            v_mul_u32_u24 v{t2}, 20, v{t1}
            v_sub_u32 v{t0}, v{t0}, v{t2}
            v_lshrrev_b32 v{t2}, 2, v{t0}
            v_add_u32 v{t3}, s10, v{t2}
            v_and_b32 v{t3}, 3, v{t3}
            v_cmp_gt_u32 vcc, 4, v{t2}
            v_and_b32 v{t0}, 3, v{t0}
            v_bfe_u32 v{t4}, v{t1}, 2, 1
            v_cndmask_b32 v{t2}, v{t2}, v{t3}, vcc
            v_lshlrev_b32 v{t4}, 1, v{t4}
            v_xor_b32 v{t0}, v{t0}, v{t4}
            v_lshlrev_b32 v{t0}, 4, v{t0}
            v_lshl_or_b32 v{t0}, v{t2}, 6, v{t0}
            v_mul_u32_u24 v{t1}, 1280, v{t1}
            v_add_u32 v{vWo+q}, v{t0}, v{t1}""")
        if q % 4: late.append(Op(f"v_subrev_u32 v{vWo+q}, {1024*(q%4)}, v{vWo+q}"))
    FA = 16384
    late += ops(f"""v_and_b32 v{t0}, 15, v0
        v_lshrrev_b32 v{t1}, 4, v0
        v_lshrrev_b32 v{t2}, 1, v{t1}
        v_bfe_u32 v{t3}, v0, 1, 2
        v_xor_b32 v{t3}, v{t3}, v{t2}
        v_lshlrev_b32 v{t3}, 4, v{t3}
        v_and_b32 v{t4}, 1, v{t1}
        v_lshl_or_b32 v{t3}, v{t4}, 3, v{t3}
        v_lshl_or_b32 v{t3}, v{t0}, 6, v{t3}
        s_add_u32 s10, s{sM4}, {FA}
        v_add_u32 v{vFA}, s10, v{t3}
        v_lshlrev_b32 v{t3}, 3, v{t1}
        v_lshl_or_b32 v{t3}, v{t0}, 5, v{t3}
        s_add_u32 s11, s10, 2048
        v_add_u32 v{vFA2}, s11, v{t3}
        v_add_u32 v{vFB2}, s11, v{vL16}
        v_lshrrev_b32 v{t0}, 2, v0
        v_and_b32 v{t1}, 3, v0
        v_bfe_u32 v{t2}, v0, 3, 2
        v_xor_b32 v{t2}, v{t2}, v{t1}
        v_lshlrev_b32 v{t2}, 4, v{t2}
        v_lshl_or_b32 v{t2}, v{t0}, 6, v{t2}
        v_add_u32 v{vFB}, s10, v{t2}
        v_mul_u32_u24 v{t0}, 2560, v{t0}
        v_lshl_or_b32 v{vOA}, v{t1}, 4, v{t0}
        v_add_u32 v{vOB}, {16*2560}, v{vOA}
        v_lshrrev_b32 v{t0}, 1, v0
        v_and_b32 v{t1}, 1, v0
        v_mul_u32_u24 v{t0}, 2560, v{t0}
        v_lshl_or_b32 v{t0}, v{t1}, 4, v{t0}
        v_mov_b32 v{t1}, {OOB}
        v_cmp_gt_u32 vcc, 32, v0
        v_add_u32 v{lZa}, s{sM4}, v{vL16}
        s_lshl_b32 s10, s{sQ}, 10
        s_add_u32 s10, s10, 32768
        v_add_u32 v{lZm}, s10, v{lZa}
        v_mov_b32 v{lID}, 0
        v_cndmask_b32 v{vOC}, v{t1}, v{t0}, vcc
        v_and_b32 v{t0}, 1, v0
        v_lshlrev_b32 v{t0}, 4, v{t0}
        v_mov_b32 v{t1}, 0x3f80
        v_lshlrev_b32 v{t0}, v{t0}, v{t1}
        v_lshrrev_b32 v{t1}, 4, v0
        v_bfe_u32 v{t2}, v0, 2, 2
        v_cmp_eq_u32 vcc, v{t1}, v{t2}
        v_mov_b32 v{lID+1}, 0
        v_and_b32 v{t2}, 3, v0
        v_cndmask_b32 v{t0}, v{lID}, v{t0}, vcc
        v_cmp_gt_u32 vcc, 2, v{t2}
        v_mov_b32 v{lID+4}, 0
        v_mov_b32 v{lID+5}, 0
        v_cndmask_b32 v{lID+2}, v{lID}, v{t0}, vcc
        v_cndmask_b32 v{lID+3}, v{t0}, v{lID}, vcc""")
    late += [Op(f"v_mov_b32 v{LZ+q}, 0") for q in range(20)] + [Op(f"v_mov_b32 v{LINC+12*q+10+e}, 0") for q in range(4) for e in range(2)]
    A("s_waitcnt lgkmcnt(0)")
    A(stamp("lstart", "l"))
    def lbar(*groups): return [Op("WAITG", group=g) for g in groups] + [BAR()]
    A(lbar(("W", 0))[:-1]); A(stamp("k3", "l")); A(BAR())
    clx = P["clx"]; vdma = dict(P["vdma"])
    def touch(dj):
        return ops(f"""s_add_u32 s{sT3}, s{sJ}, {dj}
            s_and_b32 s{sT3}, s{sT3}, 3
            s_mul_i32 s{sT3}, s{sT3}, {256*1280}
            s_add_u32 s{sT3}, s{sT3}, s{sTCH}
            buffer_load_dword v{t5}, v{vPF2}, s[{SRD_WO}:{SRD_WO+3}], s{sT3} offen""")
    def touch_v(hd):
        return ops(f"""s_lshl_b32 s{sT2}, s{sJ}, 14
            s_add_u32 s{sT2}, s{sT2}, s{sV0}
            s_add_u32 s{sT2}, s{sT2}, {hd*8192}
            buffer_load_dword v{t6}, v{vPF}, s[{SRD_V}:{SRD_V+3}], s{sT2} offen""")
    def piece(p):
        if p[0] == "T": return touch(int(p[1]))
        if p[0] == "U": return touch_v(int(p[1]))
        if p == "C":
            L = [Op(f"v_mov_b32 v{60+q}, -1") for q in range(4)] + [Op(f"v_mov_b32 v{24+q}, 0") for q in range(4)]
            L += ops(f"v_mov_b32 v23, {OOB}\nv_cmp_gt_u32 vcc, 24, v0\ns_add_u32 s{sT3}, s{sPS}, 65536\nv_cndmask_b32 v23, v23, v{vL16}, vcc")
            L += [Op(f"buffer_store_dwordx4 v[60:63], v{vL16}, {WSR}, s{so} offen offset:{off} sc1", group=("clr", 0)) for so in (sPS, sT3) for off in (0, 1024)]
            return L + [Op(f"buffer_store_dwordx4 v[24:27], v23, {WSR}, s{sFLM} offen sc1", group=("clr", 0))]
        if p == "X": return touch_x(*P["xt1"], vPF2 + 3)
        return [y for n in range(4 * int(p[1]), 4 * int(p[1]) + 4) for y in dma_k(n)]
    nl = len(late); parts = {12: late[:nl // 2], 13: late[nl // 2:]}
    NV = P["nv"]; variants = []; lst = {}
    if NV > 1:
        A(f"s_and_b32 s10, s{sPH}, {NV-1}")
        for ph in range(1, NV): A(f"s_cmp_eq_u32 s10, {ph}\ns_cbranch_scc1 L_var{ph}")
    head = ls.ops
    for ph in range(NV):
        V_ = [Op(f"L_var{ph}:")]
        q_ = [(1, [Op(o.text, **o.meta) for o in it]) for it in g1[nf:]] + [(t, it) for t in range(2, 20) for it in dma_w(t)]
        quiet = set()
        for x in range(0, 20):
            cl_ = [y for pcs, xc in clx if xc + ph * P['phstep'] == x for p_ in pcs for y in piece(p_)]
            if cl_:
                quiet |= {x + d for d in P["skip"]}
            if not P["cend"]: V_ += cl_
            n = 0
            while q_ and q_[0][0] <= x + LA and (q_[0][0] <= x + 1 or (x not in quiet and n < (P["cap0"] if x == 0 else P["cap"]))):
                V_ += q_.pop(0)[1]; n += 1
            if P["cend"]: V_ += cl_
            if x in parts: V_ += [Op(o.text, **o.meta) for o in parts[x]]
            if x == P["pfx"]: V_ += touch(0)
            if x in vdma:
                V_ += dma_v(vdma[x])
            if x + 1 == P["hs0"]:
                assert all(xc + ph * P["phstep"] <= x for pcs, xc in clx if "C" in pcs)
                V_ += [Op("WAITG", group=("clr", 0))]
            V_ += lbar(("W", x + 1))
            if ph == 0: lst[x] = stamp(f"l{x}", "l")
            V_ += [Op(o.text) for o in lst[x]]
        fixed = []; cur = want = None
        for o in V_:
            if o.text.startswith("s_add_u32 m0"):
                cur = o.text
                if o.meta.get("wm0"): want = o.text
            if o.kind == "dma" and o.meta["group"][0] == "W" and cur is not None and cur != want: assert want; fixed.append(Op(want)); cur = want
            fixed.append(o)
        V_ = fixed
        V_.append(Op("s_branch L_join"))
        variants.append(V_)
    ls.ops = []
    A("L_join:")
    A(BAR())
    todo = [s_ for s_ in range(4) if s_ not in vdma.values()]
    early = [s_ for s_ in todo if s_ < 3]
    A(dma_wo(0))
    for s_ in early: A(dma_v(s_))
    A(dma_wo(1))
    A([Op("WAITL")] + lbar(("V", 0), ("Wo", 0)))
    A(stamp("m0", "l"))
    def pieces(L):
        out = [[]]
        for o in L:
            out[-1].append(o)
            if o.kind == "dma": out.append([])
        return out[:-1]
    q2 = []
    for x in range(0, NS):
        if x + 2 <= 15: q2 += [(x, x + 1, it) for it in pieces(dma_wo(x + 2))]
        if x + 3 <= 15 and (x >= 1 or 3 in todo): q2 += [(x, x + 2, it) for it in pieces(dma_v(x + 3))]
    quiet = {x + d for x in P["tch"] for d in P["skip2"]}
    for x in range(0, NS):
        n = 0
        while q2 and q2[0][0] <= x and (x == NS - 1 or any(e[1] <= x for e in q2) or (x not in quiet and n < P["cap2"])):
            A(q2.pop(0)[2]); n += 1
        if x in P["tch"]: A(touch(P["tch"][x]))
        if x == P["tlb"]:
            A(f"""buffer_load_dword v{vPF2+3}, v{vFL0}, {WSR}, s{sRL} offen offset:3072
                buffer_load_dword v{vPF2+4}, v{vFL0}, {WSR}, s{sFLM} offen offset:896 sc1
                buffer_load_dword v{t6}, v{vFL0}, {OUTR}, s{sOUT0} offen""")
        A(stamp(f'd{x}', 'l'))
        g = [("V", x + 1), ("Wo", x + 1)] + ([("V", x + 2)] if x == NS - 1 else [])
        A(lbar(*g))
        A(stamp(f"m{x+1}", "l"))
    if NS + 2 <= 15: A(dma_wo(NS + 2))
    if NS + 3 <= 15: A(dma_v(NS + 3))
    if NF == 4:
        A(lbar(("V", 14), ("Wo", 13)))
        A(dma_wo(15)); A(lbar(("V", 15), ("Wo", 14)))
        A(lbar(("Wo", 15)))
    elif NF == 3: A(lbar(("V", 15), ("Wo", 14)) + lbar(("Wo", 15)))
    else: A(lbar(("V", 15), ("Wo", 15)))
    zrd = [Op(f"ds_read_b128 {v(LZC+4*q,4)}, v{lZa} offset:{q*1024}", use=[("S0", 290)]) for q in range(4)]
    own = [] if P["ownlds"] else fetch(3, LINC + 36); ownadd = [] if P["ownlds"] else addin(3, LINC + 36)
    if P["ownlds"]: zrd.append(Op(f"ds_read_b128 {v(LZC+16,4)}, v{lZm}", use=[("S2", 290)]))
    if P["early"] == 1:
        A(BAR()); A(stamp("bt1", "l"))
        A([poll()] + own); A(zrd)
        A(need(1) + fetch(0, LINC) + need(2) + fetch(1, LINC + 12) + need(4) + fetch(2, LINC + 24))
        A(stamp("c1", "l"))
        A(ownadd + addin(0, LINC) + addin(1, LINC + 12))
    else:
        A(BAR()); A(stamp("bt1", "l"))
        A([poll()])
        A(need(1) + fetch(0, LINC) + need(2) + fetch(1, LINC + 12))
        if P["early"] == 3: A(need(4) + fetch(2, LINC + 24))
        A(stamp("c1", "l"))
        A(BAR())
        if P["early"] == 2: A([poll()])
        A(own); A(zrd)
        if P["early"] == 2: A(need(4) + fetch(2, LINC + 24))
        A(addin(0, LINC) + addin(1, LINC + 12) + ownadd)
    A("s_nop 7")
    for q in range(20 if P["ownlds"] else 16): A(f"v_add_f32 v{LZ+q}, v{LZ+q}, v{LZC+q}")
    A(f"v_xor_b32 v{t0}, 32, v{vFA}")
    A(addin(2, LINC + 24))
    A(stamp("c2", "l"))
    FK = [("S1", 300)]
    for nt in range(2):
        for jt in range(2):
            d = LPK + 4 * nt + 2 * jt; z = LZ + 8 * nt + 4 * jt
            A([cvt(d, z), cvt(d + 1, z + 2)])
            A(Op(f"ds_write_b64 v{t0 if nt else vFA}, {v(d,2)} offset:{jt*1024}", fill=FK, private=True))
    A([cvt(LPK + 8, LZ + 16), cvt(LPK + 9, LZ + 18), Op(f"ds_write_b64 v{vFA2}, {v(LPK+8,2)}", fill=FK, private=True)])
    A(Op(f"ds_read_b128 {v(LINC,4)}, v{vFB}", use=FK, private=True))
    A(Op(f"ds_read_b128 {v(LINC+4,4)}, v{vFB} offset:1024", use=FK, private=True))
    A(Op(f"ds_read_b128 {v(LINC+12,4)}, v{vFB2}", use=FK, private=True))
    A(f"buffer_store_dwordx4 {v(LINC,4)}, v{vOA}, {OUTR}, s{sOUT0} offen {P['out_mod']}")
    A(f"buffer_store_dwordx4 {v(LINC+4,4)}, v{vOB}, {OUTR}, s{sOUT0} offen {P['out_mod']}")
    A(f"buffer_store_dwordx4 {v(LINC+12,4)}, v{vOC}, {OUTR}, s{sOUT1} offen {P['out_mod']}")
    if P["dbg"] or P["x_seg"]: A("s_waitcnt vmcnt(0)"); A(stamp("lend", "l"))
    if P["x_seg"]:
        A(f"s_sub_u32 s10, s16, s14\ns_mul_i32 s10, s10, 8\ns_memrealtime s[14:15]\ns_waitcnt lgkmcnt(0)")
        A(f"L_amp:\ns_sleep 2\ns_memrealtime s[16:17]\ns_waitcnt lgkmcnt(0)\ns_sub_u32 s11, s16, s14\ns_cmp_lt_u32 s11, s10\ns_cbranch_scc1 L_amp")
    A(dump())
    if P["x_amp"]:
        A(f"s_waitcnt vmcnt(0)\ns_memrealtime s[{sST}:{sST+1}]\ns_waitcnt lgkmcnt(0)\ns_sub_u32 s10, s{sST}, s{sST+4}\ns_mul_i32 s10, s10, {P['x_amp']}")
        A(f"L_amp:\ns_sleep 2\ns_memrealtime s[{sST}:{sST+1}]\ns_waitcnt lgkmcnt(0)\ns_sub_u32 s11, s{sST}, s{sST+4}\ns_cmp_lt_u32 s11, s10\ns_cbranch_scc1 L_amp")
    A("L_end:\ns_endpgm")

    A = cs.add
    A("L_compute:")
    A(ids)
    A(f"v_lshlrev_b32 v{vL16}, 4, v0")
    if P["prio_c"]: A(f"s_setprio {P['prio_c']}")
    l16, g, r, c4 = t0, t1, t2, t3
    u0, u1 = ABUF, ABUF + 1
    A(f"""v_and_b32 v{l16}, 15, v0
        v_lshrrev_b32 v{g}, 4, v0
        v_bfe_u32 v{r}, v0, 2, 2
        v_and_b32 v{c4}, 3, v0
        v_and_b32 v{t5}, 1, v{g}
        v_lshl_or_b32 v{t4}, v{t5}, 2, v{r}
        s_and_b32 s10, s{sW}, 1
        s_lshl_b32 s11, s10, 2
        v_lshl_add_u32 v{u0}, v{g}, 3, v{r}
        v_lshlrev_b32 v{u0}, 8, v{u0}
        v_lshl_or_b32 v{u0}, v{c4}, 3, v{u0}
        v_xor_b32 v{u1}, s11, v{t4}
        v_lshl_or_b32 v{aW}, v{u1}, 5, v{u0}
        v_xor_b32 v{aW+1}, 32, v{aW}
        v_xor_b32 v{aW+2}, 64, v{aW}
        v_xor_b32 v{aW+3}, 0x60, v{aW}
        v_lshrrev_b32 v{u1}, 1, v{l16}
        v_xor_b32 v{u1}, v{u1}, v{g}
        v_lshlrev_b32 v{u1}, 4, v{u1}
        v_lshl_or_b32 v{u1}, v{l16}, 7, v{u1}
        s_lshr_b32 s11, s{sW}, 1
        s_lshl_b32 s30, s11, 13
        s_add_u32 s{sT0}, s30, {XB}
        v_add_u32 v{aX}, s{sT0}, v{u1}
        v_xor_b32 v{aX+1}, 64, v{aX}
        s_lshl_b32 s10, s10, 11
        s_add_u32 s10, s10, s30
        s_add_u32 s10, s10, {PB}
        v_add_u32 v{vPW}, s10, v{vL16}
        s_add_u32 s10, s{sM4}, {PB}
        v_add_u32 v{vPR}, s10, v{vL16}
        v_add_u32 v{vZ}, s{sM4}, v{vL16}
        v_lshrrev_b32 v{u0}, 1, v{g}
        v_xor_b32 v{u0}, v{u0}, v{l16}
        v_lshlrev_b32 v{u0}, 4, v{u0}
        v_lshl_or_b32 v{u0}, v{t5}, 3, v{u0}
        v_lshl_or_b32 v{u0}, v{l16}, 8, v{u0}
        s_lshl_b32 s10, s{sM4}, 2
        s_add_u32 s10, s10, {KB}
        v_add_u32 v{u0}, s10, v{u0}
        v_mov_b32 v{kR}, v{u0}
        s_load_dwordx2 s[{SRD_DBG}:{SRD_DBG+1}], s[0:1], 88
        s_load_dwordx2 s[{SRD_WS}:{SRD_WS+1}], s[0:1], 96""")
    for q in range(1, 8): A(f"v_xor_b32 v{kR+q}, {32*q}, v{kR}")
    late_c = ops(f"""v_lshrrev_b32 v{t3}, 2, v0
        v_bfe_u32 v{t4}, v0, 3, 2
        v_lshlrev_b32 v{t4}, 5, v{t4}
        v_and_b32 v{t5}, 3, v0
        v_lshl_or_b32 v{t4}, v{t5}, 3, v{t4}
        v_lshl_or_b32 v{t4}, v{t3}, 7, v{t4}
        v_add_u32 v{aV}, s{sM4}, v{t4}
        v_xor_b32 v{aV+1}, 32, v{aV}
        v_xor_b32 v{aV+2}, 64, v{aV}
        v_xor_b32 v{aV+3}, 0x60, v{aV}
        v_mul_u32_u24 v{t3}, 320, v{t3}
        v_lshl_add_u32 v{t3}, v{t5}, 3, v{t3}
        v_add_u32 v{t3}, {WOB}, v{t3}
        v_bfe_u32 v{t5}, v0, 4, 1
        v_lshlrev_b32 v{t5}, 5, v{t5}
        v_add_u32 v{aWo}, v{t3}, v{t5}
        v_sub_u32 v{aWo+1}, v{t3}, v{t5}
        v_add_u32 v{aWo+2}, 61440, v{aWo}
        v_add_u32 v{aWo+3}, 61440, v{aWo+1}""")
    A(f"""s_mov_b32 s{sC}, {f2u(SCALE_LOG2E)}
        s_mov_b32 s{sC+1}, {f2u(SCALE_LOG2E)}
        s_waitcnt lgkmcnt(0)""")
    A(exchange_setup())
    cbar = lambda: [Op("WAITL"), BAR()]
    vNAN, vZERO = aWo, aV
    A(mksrd(SRD_DBG, 26, 256))
    A(f"""s_lshl_b32 s10, s{sW}, 3
        s_add_u32 s{sHS}, s{sJ}, s10
        s_lshr_b32 s{sT1}, s{sG}, 2
        s_lshl_b32 s{sT1}, s{sT1}, 4
        s_add_u32 s{sT0}, s{sPS}, 65536
        v_mov_b32 v{t2}, {OOB}
        v_cmp_gt_u32 vcc, 24, v0
        v_mov_b32 v{vNAN-1}, -1
        v_mov_b32 v{vNAN}, -1
        v_cndmask_b32 v{t3}, v{t2}, v{vL16}, vcc
        v_mov_b32 v{vNAN+1}, -1
        v_mov_b32 v{vNAN+2}, -1
        v_mov_b32 v{vZERO-1}, 0
        v_mov_b32 v{vZERO}, 0
        v_mov_b32 v{vZERO+1}, 0
        v_mov_b32 v{vZERO+2}, 0""")
    clears = [Op(f"buffer_store_dwordx4 {v(vNAN-1,4)}, v{vL16}, {WSR}, s{so} offen offset:{off} sc1", group="clr") for so in (sPS, sT0) for off in (0, 1024)]
    clears.append(Op(f"buffer_store_dwordx4 {v(vZERO-1,4)}, v{t3}, {WSR}, s{sFLM} offen sc1", group="clr"))

    def rdA1(t, i):
        s = t % 4; buf = ABUF + 8 * ((4 * t + i) % 3)
        return [Op(f"ds_read_b64_tr_b16 {v(buf+4*ss+2*h,2)}, v{aW+i} offset:{s*16384 + ss*8192 + h*1024}", use=[(f"S{s}", t)]) for ss in range(2) for h in range(2)]
    def rdB(kc):
        return [Op(f"ds_read_b128 {v(BB+32*(kc%2)+8*jt+4*ss,4)}, v{aX+ss} offset:{(kc%2)*16384 + jt*2048}", use=[(f"X{kc%2}", kc)]) for jt in range(4) for ss in range(2)]
    if P["clr"][0] < 0: A(clears)
    A(BAR())
    A(stamp("start"))
    b0 = rdB(0); a0 = rdA1(0, 0)
    A(a0[:2] + b0[:1] + a0[2:] + b0[1:] + rdA1(0, 1))
    T = Ticks()
    for t in range(20):
        kc, dh = t // 2, t % 2
        for i in range(4):
            buf = ABUF + 8 * ((4 * t + i) % 3)
            for jt, ss in ([(a_, b_) for a_ in range(4) for b_ in range(2)] if P["chain"] else [(a_, b_) for b_ in range(2) for a_ in range(4)]):
                if True:
                    d = ACC + 16 * (4 * dh + i) + 4 * jt
                    T.add(mfma(d, v(buf + 4 * ss, 4), v(BB + 32 * (kc % 2) + 8 * jt + 4 * ss, 4), "0" if (kc == 0 and ss == 0) else None))
                    if jt == 0 and ss == 0: T.m[-1].meta["also"] = range(buf, buf + 8)
    for t in range(20):
        b = 32 * t
        if P["p1"] == 0:
            for q, o in enumerate(rdA1(t, 2)): T.put(b + q, o, 2)
            for q, o in enumerate(rdA1(t, 3)): T.put(b + 8 + q, o, 2)
        elif P["p1"] == 1:
            for q, o in enumerate(rdA1(t, 2)): T.put(b + 2 * q, o, 2)
            for q, o in enumerate(rdA1(t, 3)): T.put(b + 8 + q, o, 2)
        T.put(b + BP, cbar(), 1)
        if t < 19:
            for q, o in enumerate(rdA1(t + 1, 0)): T.put(b + BP + q, o, 2)
            for q, o in enumerate(rdA1(t + 1, 1)): T.put(b + 24 + (q if t % 2 or P["p1"] == 0 else 2 * q), o, 2)
            if t % 2 == 1:
                for pos, o in zip([min(BP + 4, 23), min(BP + 5, 23), min(BP + 6, 23), 28, 29, 30, 31, 32], rdB((t + 1) // 2)): T.put(b + pos, o, 3)
        T.put(b + 31, stamp(f"w{t}"), 9)
    def qreg(sd, j4): return ACC + 32 * sd + 4 * j4
    def pack(d, e): return [cvt(d, d), cvt(d + 1, d + 2), cvt(d + 2, e), cvt(d + 3, e + 2)]
    def qcvt(sd, j4): return pack(qreg(sd, j4), qreg(sd, j4) + 16)
    def krd(b): return [Op(f"ds_read_b64 {v(BB+32*b+16*kt+4*sd+2*h,2)}, v{kR+2*sd+h} offset:{b*8192 + kt*4096}", use=[("K", 100), ("Kp", 100)]) for sd in range(4) for kt in range(2) for h in range(2)]
    b18, b19 = 32 * 18, 32 * 19
    c0, c1 = P["clr"]; assert c1 < P["hs0"] - 1
    if any("C" in pcs for pcs, xc in P["clx"]): pass
    elif c0 < 0: pre_clears = clears
    else: T.spread(clears, 32 * c0 + 4, 32 * c1 + 4, 6)
    T.put(32 * (P["hs0"] - 1) + BP, Op("WAITG", group="clr"), 0.5)
    for q in range(4):
        T.put(32 * (P["hs0"] + q) + 5, [Op(f"s_cmp_lg_u32 s{sHS}, {q}"), Op(f"s_cbranch_scc1 L_hs{q}"),
              Op(f"buffer_atomic_add v{vONE}, v{vFL0}, {DBGR}, s{sT1} offen sc1", uncounted=True), Op(f"L_hs{q}:")], 7)
    T.put(32 * 16 + 5, [Op(f"s_cmp_lg_u32 s{sW}, 0"), Op("s_cbranch_scc1 L_hsl"),
          Op(f"buffer_load_dword v{t2}, v{vFL0}, {DBGR}, s{sT1} offen sc1", uncounted=True), Op("L_hsl:")], 7)
    T.put(b19 + BP, [Op(f"s_cmp_lg_u32 s{sW}, 0"), Op("s_cbranch_scc1 L_hsc"), Op("s_waitcnt vmcnt(0)", cond=True, raw=True),
          Op(f"v_readfirstlane_b32 s{sT3}, v{t2}", cond=True), Op("s_nop 1", cond=True), Op(f"s_cmp_lt_u32 s{sT3}, 16", cond=True, nohaz=True),
          Op("s_cbranch_scc1 L_hs_spin", cond=True), Op("L_hsc:")], 0.5)
    tail.extend(["L_hs_spin:", f"s_mov_b32 s{sSPIN}, 0", "L_hs_spin1:",
         f"buffer_load_dword v{t2}, v{vFL0}, {DBGR}, s{sT1} offen sc1", "s_waitcnt vmcnt(0)",
         f"v_readfirstlane_b32 s{sT3}, v{t2}", f"s_add_u32 s{sSPIN}, s{sSPIN}, 1", f"s_cmp_gt_u32 s{sSPIN}, 400000", "s_cbranch_scc1 L_hsc",
         f"s_cmp_lt_u32 s{sT3}, 16", "s_cbranch_scc1 L_hs_spin1", "s_branch L_hsc"])
    T.spread(late_c, 32 * 14, 32 * 14 + 15, 4)
    T.spread(krd(0), b18 + 4, b18 + 15, 4)
    T.spread([o for j4 in range(4) for o in qcvt(0, j4)], b18 + 20, b18 + 31, 5)
    T.spread([o for j4 in range(4) for o in qcvt(1, j4)], b19 + 4, b19 + 16, 5)
    T.spread([o for j4 in range(4) for o in qcvt(2, j4)], b19 + 20, b19 + 31, 5)
    T.flush(cs)
    A(stamp("g1"))

    def sreg(b, jt, kt): return ACC + 16 + 32 * b + 8 * jt + 4 * kt
    def softmax(b):
        tmp = ACC + 80 + 8 * b; pf = PF + 8 * b; L = []
        cols = [(sreg(b, c, 0), tmp + 4 * c) for c in range(2)]
        def both(f):
            for x, y in zip(f(*cols[0]), f(*cols[1])): L.extend([Op(x), Op(y)])
        (s0, m0_), (s1, m1_) = cols
        def across(op):
            L.extend(ops(f"""v_permlane32_swap_b32 v{m0_}, v{m1_}
                {op} v{m0_}, v{m0_}, v{m1_}
                v_mov_b32 v{m1_}, v{m0_}
                v_permlane16_swap_b32 v{m0_}, v{m1_}
                {op} v{m0_}, v{m0_}, v{m1_}"""))
        def spread_back(): L.extend(ops(f"v_mov_b32 v{m1_}, v{m0_}\nv_permlane32_swap_b32 v{m0_}, v{m1_}"))
        both(lambda s, m: [f"v_max3_f32 v{m}, v{s}, v{s+1}, v{s+2}", f"v_max3_f32 v{m+1}, v{s+3}, v{s+4}, v{s+5}",
                           f"v_max3_f32 v{m}, v{m}, v{s+6}, v{s+7}", f"v_max_f32 v{m}, v{m}, v{m+1}"])
        across("v_max_f32"); L.append(Op(f"v_mul_f32 v{m0_}, s{sC}, v{m0_}")); spread_back()
        both(lambda s, m: [f"v_pk_fma_f32 v[{s+q}:{s+q+1}], v[{s+q}:{s+q+1}], s[{sC}:{sC+1}], v[{m}:{m+1}] op_sel_hi:[1,1,0] neg_lo:[0,0,1] neg_hi:[0,0,1]" for q in range(0, 8, 2)])
        both(lambda s, m: [f"v_exp_f32 v{s+q}, v{s+q}" for q in range(8)])
        both(lambda s, m: [f"v_pk_add_f32 v[{m}:{m+1}], v[{s}:{s+1}], v[{s+2}:{s+3}]", f"v_pk_add_f32 v[{m+2}:{m+3}], v[{s+4}:{s+5}], v[{s+6}:{s+7}]",
                           f"v_pk_add_f32 v[{m}:{m+1}], v[{m}:{m+1}], v[{m+2}:{m+3}]", f"v_add_f32 v{m}, v{m}, v{m+1}"])
        across("v_add_f32"); L.append(Op(f"v_rcp_f32 v{m0_}, v{m0_}")); spread_back()
        both(lambda s, m: [f"v_pk_mul_f32 v[{s+q}:{s+q+1}], v[{s+q}:{s+q+1}], v[{m}:{m+1}] op_sel_hi:[1,0]" for q in range(0, 8, 2)])
        if b: L.append(Op(f"s_add_u32 s{sPS}, s{sPS}, 65536"))
        for c in range(2):
            for q in range(4): L.append(cvt(pf + 4 * c + q, cols[c][0] + 2 * q))
            L.append(Op(f"buffer_store_dwordx4 {v(pf+4*c,4)}, v{vL16}, {WSR}, s{sPS} offen offset:{1024*c} sc1"))
            L.append(Op(f"ds_write_b128 v{vPW}, {v(pf+4*c,4)} offset:{b*4096 + c*1024}", fill=[("P", 300), ("Kp", 300)]))
        return L
    T = Ticks()
    for b in range(2):
        for sd in range(4):
            for kt in range(2):
                for jt in range(2):
                    T.add(mfma(sreg(b, jt, kt), v(BB + 32 * b + 16 * kt + 4 * sd, 4), v(qreg(sd, 2 * b + jt), 4), "0" if sd == 0 else None))
    T.spread(krd(1), 0, 5, 2)
    T.spread([o for j4 in range(2) for o in qcvt(3, j4)], 1, 6, 3)
    T.spread([o for j4 in range(2, 4) for o in qcvt(3, j4)], 7, 12, 3)
    T.put(P["bk"], cbar(), 1)
    sm0 = softmax(0); sm1 = softmax(1)
    n0 = P['sm_in']; T.spread(sm0[:n0], 20, 31, 5)
    T.flush(cs)
    A(stamp("qk"))
    if P["smix"]:
        a_, b_ = sm0[n0:], sm1
        k_ = [i for i, o in enumerate(b_) if o.text.startswith("s_add_u32")][0]
        mix = a_[:4]; i_, j_ = 4, 0
        while i_ < len(a_) or j_ < len(b_):
            if j_ < len(b_) and (j_ < k_ or i_ >= len(a_)): mix.append(b_[j_]); j_ += 1
            if i_ < len(a_): mix.append(a_[i_]); i_ += 1
        A(mix)
    else: A(sm0[n0:]); A(stamp("sm0")); A(sm1)
    A(stamp("att"))

    def rdP(gen): return [Op(f"ds_read_b128 {v(PRB[0][2*hd+jt],4)}, v{vPR} offset:{hd*2048 + jt*1024}", use=[("P", gen)]) for hd in range(2) for jt in range(2)]
    def ldP(dj):
        return ops(f"s_add_u32 s{sT2}, s{sJ}, {P['po'][dj]}\ns_and_b32 s{sT2}, s{sT2}, 3\ns_lshl_b32 s{sT2}, s{sT2}, 12\ns_add_u32 s{sT2}, s{sT2}, s{sPL}") + \
            [Op(f"buffer_load_dwordx4 {v(PRB[dj%2][q],4)}, v{vL16}, {WSR}, s{sT2} offen offset:{1024*q} sc1") for q in range(4)]
    def rdV(s): return [Op(f"ds_read_b64_tr_b16 {v(VF+4*i+2*h,2)}, v{aV+i} offset:{(s%4)*16384 + h*2048}", use=[(f"S{s%4}", 200 + s)], private=True) for i in range(4) for h in range(2)]
    def pvreg(s, i, jt):
        if s < NS + 1 or NF == 1: return PVB[s % 2] + 8 * i + 4 * jt
        return fin_regs[s][2 * i + jt]
    e0, e1 = PVB[NS % 2], PVB[(NS + 1) % 2]
    fin_regs = {NS + 1: [e1 + 4 * q for q in range(8)],
                NS + 2: [e0 + 8, e0 + 12, PRB[0][0], PRB[0][1], e0 + 24, e0 + 28, PRB[0][2], PRB[0][3]],
                NS + 3: [e1 + 8, e1 + 12, 56, 60, e1 + 24, e1 + 28, 10, t1]}
    def pvm(s): return [mfma(pvreg(s, i, jt), v(VF + 4 * i, 4), v(PRB[(s // 4) % 2][2 * ((s // 2) % 2) + jt], 4), "0") for i in range(4) for jt in range(2)]
    _pvm = pvm
    def pvm(s):
        L = _pvm(s); L[0].meta["also"] = range(VF, VF + 8); L[4].meta["also"] = range(VF + 8, VF + 16)
        return L
    def pvc(s): return [o for ss in range(2) for jt in range(2) for o in pack(pvreg(s, 2 * ss, jt), pvreg(s, 2 * ss + 1, jt))]
    nA = [0]
    def rdA2(s, t):
        k = s % 4; buf = A2 + 8 * (nA[0] % 4); nA[0] += 1
        ad = aWo + (t % 2) + (2 if k == 3 else 0); base = 0 if k == 3 else k * 20480
        return buf, [Op(f"ds_read_b64_tr_b16 {v(buf+4*ss+2*h,2)}, v{ad} offset:{base + ss*10240 + h*5120 + t*32}", use=[(f"Wo{k}", 200 + s)]) for ss in range(2) for h in range(2)]
    def owo(s, t, buf):
        L = [mfma(OUTA + 8 * t + 4 * jt, v(buf + 4 * ss, 4), v(pvreg(s, 2 * ss, jt), 4), "0" if (s == 0 and ss == 0) else None) for jt in range(2) for ss in range(2)]
        L[0].meta["also"] = range(buf, buf + 8)
        return L
    steps = [(s, t) for s in range(NS) for t in range(10)]
    order = [8, 9, 0, 1, 2, 3, 4, 5, 6, 7]
    steps += [(s, t) for s in range(NS, 16) for t in order[:2]] + [(s, t) for t in order[2:] for s in range(NS, 16)]
    rd = [rdA2(s, t) for s, t in steps]
    A(cbar())
    A(stamp("bp"))
    p0 = rdP(300)
    A(p0[:2] + rdV(0) + p0[2:] + rd[0][1])
    A(pvm(0)); A(rd[1][1] + rd[2][1]); A(pvc(0))
    T = Ticks(); at = []; pvat = {}
    for n, (s, t) in enumerate(steps):
        if (s < NS and t == P['pvt']) or (NS <= s < 15 and t == 8):
            pvat[s + 1] = len(T.m)
            for o in pvm(s + 1): T.add(o)
        at.append(len(T.m))
        for o in owo(s, t, rd[n][0]): T.add(o)
    fin0 = pvat[NS + 1]; BX = fin0 - 4
    BM = at[steps.index((13, 8))]
    BL2 = at[steps.index((15, 8)) - P["bl2"]] if NF >= 3 else BX
    for n in range(3, len(steps)):
        base = at[n - 3]
        if P["smooth"] and n < 10 * NS and steps[n][1] in (P["pvt"] + 2, P["pvt"] + 3): base = pvat[steps[n][0] + 1] + 4 * (steps[n][1] - P["pvt"] - 2)
        if steps[n][0] > NS: base = max(base, BX)
        if steps[n][0] == 14 and NF == 4: base = max(base, BM)
        if steps[n][0] == 15: base = max(base, BL2)
        for q, o in enumerate(rd[n][1]): T.put(base + q, o, 2)
    for s in range(NS):
        b = at[10 * s]
        T.put(b + BP2, BAR(), 1)
        if P["smooth"]:
            T.spread(rdV(s + 1), b + BP2, b + BP2 + 7, 1.5)
            c_ = pvc(s + 1); e_ = pvat[s + 1] + 7; T.spread(c_[:8], e_, e_ + 3, 4); T.spread(c_[8:], e_ + 4, min(e_ + 13, b + 46), 4)
        else:
            T.spread(rdV(s + 1), b + BP2, b + BP2 + 3, 1.5)
            T.spread(pvc(s + 1), b + 35, b + 46, 4)
        T.put(b + 47, stamp(f"o{s}"), 9)
    T.put(BX, BAR(), 1)
    if NF == 4: T.put(BM, BAR(), 1)
    if NF >= 3: T.put(BL2, BAR(), 1)
    for s2 in range(NS + 1, 16):
        T.spread(rdV(s2), pvat[s2] - 8, pvat[s2] - 5, 1.6)
        T.spread(pvc(s2), pvat[s2] + 9, pvat[s2] + (15 if s2 == 15 or not P['fsm'] else 22), 1.7)
    for dj in range(1, 4):
        ps, pt = P["pld"][dj - 1]; L = ldP(dj)
        if dj > 1 and P["pwide"]: T.spread(L, pvat[ps + 1], pvat[ps + 1] + 7, 6)
        else: T.spread([L[:5], L[5], L[6], L[7]], at[10 * ps] + pt, at[10 * ps] + pt + 6, 6)
        chk = arrived([r_ + e for r_ in PRB[dj % 2] for e in range(4)], ldP(dj), t0)
        b = at[10 * (4 * dj - 1)] + P["pchk"]
        if dj > 1 and P["pwide"]:
            b = pvat[4 * dj - 1] + 7
            T.spread(chk[:-4], b - 7, b - 1, 6); T.put(b, chk[-4:-3], 6); T.put(b + 1, chk[-2:], 1)
        else:
            T.spread(chk[:-4], b - 4, b - 1, 6); T.put(b, chk[-4:] + stamp(f"pc{dj}"), 6)
    end = len(T.m); flags = []
    def done(t): return at[steps.index((15, t))] + 3
    T.put(BX - 1, stamp("bx0"), 9); T.put(BX, stamp("bx1"), 1.1); T.put(BL2 - 1, stamp("bl0"), 9); T.put(BL2, stamp("bl1"), 1.1)
    for t_ in (9, 1, 3, 5): T.put(done(t_), stamp(f"f{t_}"), 9)
    L = []
    for m in range(4):
        L += [cvt(PK + 2 * m, OUTA + 64 + 4 * m), cvt(PK + 2 * m + 1, OUTA + 64 + 4 * m + 2),
              [Op(f"s_add_u32 s{sT2}, s{sRS}, {m*65536 + 2048}")] + ([Op(f"s_cmp_eq_u32 s{sQ}, {m}"), Op(f"s_cselect_b32 s{sT2}, {OOB}, s{sT2}")] if P["ownlds"] else []) + [Op(f"buffer_store_dwordx2 {v(PK+2*m,2)}, v{vL8}, {WSR}, s{sT2} offen sc1", group=("R", -1))]]
    T.spread(L, done(9) + 3, done(9) + 8 * NF - 2, 4)
    for k in range(3):
        L = []; pk = SPARE if k % 2 == 0 else PK
        dest = f"s_add_u32 s{{0}}, s{sQ}, {k+1}\ns_and_b32 s{{0}}, s{{0}}, 3"
        for nt in range(2):
            for jt in range(2):
                z = OUTA + 8 * (2 * k + nt) + 4 * jt
                L += [cvt(pk + 4 * nt + 2 * jt, z), cvt(pk + 4 * nt + 2 * jt + 1, z + 2)]
            it = ops(dest.format(sT2) + f"\ns_lshl_b32 s{sT2}, s{sT2}, 16\ns_add_u32 s{sT3}, s{sT2}, s{sRS}") if nt == 0 else []
            L.append(it + [Op(f"buffer_store_dwordx4 {v(pk+4*nt,4)}, v{vL16}, {WSR}, s{sT3} offen offset:{1024*nt} sc1", group=("R", k))])
        T.spread(L[:5], done(2 * k) + 3, done(2 * k) + 2 * NF + 1, 4); T.spread(L[5:], done(2 * k + 1) + 3, done(2 * k + 1) + 2 * NF + 1, 4)
        fl = [Op("WAITG", group=("R", k))] + ops(dest.format(sT2) + f"\ns_lshl_b32 s{sT2}, s{sT2}, 11\ns_add_u32 s{sT2}, s{sT2}, s{sFLD}")
        fl.append(Op(f"buffer_store_dword v{vONE}, v{vFL0}, {WSR}, s{sT2} offen offset:{k*128} sc1"))
        tf = done(2 * k + 1) + 2 * NF + 1 + P["cover"]
        if tf < end: T.put(tf, fl, 6)
        else: flags.append(fl)
    if P["ownlds"]:
        T.spread([Op(f"ds_write_b128 v{vZ}, {v(OUTA+64+4*m,4)} offset:{32768 + m*1024}", fill=[("S2", 290)], wpriv=True) for m in range(4)], end - 12, end - 1, 4)
    if P["early"] >= 2: T.put(min(done(5) + P["bt1"], end - 1), BAR(), 8)
    T.flush(cs)
    A(stamp("g2"))
    zw = [Op(f"ds_write_b128 v{vZ}, {v(OUTA+48+4*q,4)} offset:{q*1024}", fill=[("S0", 290)], wpriv=True) for q in range(4)]
    A(flags[:-1]); A(zw); A(flags[-1:])
    A(cbar())
    A(stamp("end"))
    A(dump())
    A("s_endpgm")

    sc, sl = {}, {}
    def drop(st, pred): st.ops = [o for o in st.ops if not pred(o)]
    import re
    def hot(L):
        for name, srd_ in (("v", SRD_V), ("o", SRD_WO), ("k", SRD_K), ("w", SRD_WQ), ("x", SRD_X)):
            if name in P["x_hot"]:
                L = [Op(re.sub(r"\], s\d+ offen", "], 0 offen", o.text), **o.meta) if (o.kind in ("dma", "vld") and f"s[{srd_}:" in o.text) else o for o in L]
        return L
    if P['x_nost']: drop(cs, lambda o: o.kind == 'vst' and isinstance(o.meta.get('group'), tuple))
    if "d" in P["x_drop"]: drop(ls, lambda o: o.kind == "dma" and o.meta["group"][1] >= 4)
    if "D" in P["x_drop"]: variants = [[o for o in V_ if not (o.kind == "dma" and o.meta["group"][0] == "W" and o.meta["group"][1] >= 4)] for V_ in variants]
    if "c" in P["x_drop"]: drop(cs, lambda o: o.mn == "v_cvt_pk_bf16_f32")
    if "r" in P["x_drop"]: drop(cs, lambda o: o.kind == "dsr" and "tr" in o.mn and "[9" not in o.text and int(o.text.split("offset:")[1]) % 64 == 32)
    clines = cs.finalize(sc); seg = []; nb = None
    for ph, V_ in enumerate(variants):
        lf = Stream(); lf.nocheck = True; lf.ops = hot(pro.ops + head + V_ + ls.ops)
        L = lf.finalize(sl); i0 = L.index(f"L_var{ph}:"); i1 = L.index("L_join:")
        seg.append((L[:i0], L[i0:i1], L[i1:]))
        assert seg[-1][0] == seg[0][0] and seg[-1][2] == seg[0][2]
        if not P['x_drop']: nb = check_handoffs([cs.events, lf.events]); assert nb[0] == nb[1], nb
    lines = seg[0][0] + [l for x in seg for l in x[1]] + seg[0][2] + tail + clines
    a = Asm(); kernel_begin(a, KNAME)
    for l in lines: a(l)
    a("L_code_end:")
    body = a.text().replace("CODE_SPAN", f"L_code_end-{KNAME}-4").replace("CODE_BACK", f"L_pc-{KNAME}")
    write_file(path, ["; @launch grid=(256,1,1) block=(512,1,1) lds=163840"] + ["; " + l for l in NOTES.strip().split("\n")], body, [descriptor(KNAME, 256, 256)])
    return sc, sl, nb

if __name__ == "__main__":
    out = sys.argv[1] if len(sys.argv) > 1 else f"cdna_kernels/{NAME}.s"
    kw = {}
    for x in sys.argv[2:]:
        k, val = x.split("=", 1)
        try: val = eval(val)
        except Exception: pass
        kw[k] = val
    print(build(out, **kw))
```

```python
import sys, struct
from common import *
from ops import Op, Stream, check_handoffs

def f2u(f): return struct.unpack("<I", struct.pack("<f", f))[0]
SCALE_LOG2E = 128 ** -0.5 * 1.4426950408889634
KNAME = NAME + "_kernel"

DEF = dict(
    nt_w="", nt_x="", nt_k="nt", nt_v="", nt_wo="", bpos=17, bpos2=19, code_pf=1, dbg=0, rot=1, xrot=1, flip=0,
    stamps=("start", "g1", "att", "g2", "end"), lstamps=(),
    clx=((('K0', 'K1'), 3), (('K2', 'K3'), 9)), tch={4: 1}, skip2=(1,), cap2=11, capx={}, align=0, nv=4, vdma={17: 0, 18: 1}, x_hot='', cend=1, skip=(1,), cap=8, tlb=99, cap0=99, phstep=1, clr=(2, 6), bal=0, first=4, prio_l=0, prio_c=0, la=3, pfx=15, smooth=1, sm_in=16, smix=1, bk=8, nf=4, bl2=2, pld=((2, 8), (4, 8), (8, 8)), pwide=1, ctm=1, po=(0, 2, 1, 3), wo19=0, pre=('O0', 'V2', 'O1'), q0=('O2', 'V3'), xt=0, xt0=(1, 4), xt1=(5, 9), xtpos=0, pchk=24, hs0=8, cover=80, early=3, ownlds=1, bt1=28, fsm=1, pvt=7, dist=3, p1=0, chain=1, x_nost=0, x_drop='',
    out_mod="sc1", ntlast=0, x_amp=0, x_seg=None, x_nomfma=0, x_nodma=0,
)

NOTES = """
Generated by my own script (straight-line code, waits and wait states derived from the dependences).
One fused kernel, one workgroup per CU: waves 0-3 compute (MFMA 16x16x32 bf16), waves 4-7 stream operands into LDS (LDS-DMA).
Workgroup id -> branch (bit 2), head group q of 8 heads (bits 0-1), head pair j (bits 3-4), row group rg of 4 batches (bits 5-7).
Phase 1: Q^T = Wq^T X^T for 4 batches x 2 heads (k order rotated per workgroup), S^T = K Q^T, softmax with the true row
  maximum, P packed to bf16.  P goes to d_ws for the three workgroups that share rows and head group.
Phase 2: 160 output columns of the 4 batches over the group's 8 heads: O^T = V^T P^T, out^T += Wo^T O^T, own heads first.
  The last two heads run tile by tile; the tiles owned by the other three head groups are sent as bf16 partial sums through
  d_ws, the loader waves add them up (selector MFMAs) and write the output.
Hand-offs between workgroups: write-through (sc1) stores and sc1 loads only.  Every workgroup first empties its P slots
  (all ones) and its flag lines (zero) and counts that in d_debug; the count is checked before any slot or flag is used.
  P is taken once no dword is all ones; partial sums are announced by a flag stored after their stores have completed.
  All waiting loops are bounded.  Which XCD a workgroup runs on only matters for speed.
"""

WS_R = 0
WS_P = 16 << 20
WS_FL = 20 << 20
WS_DBG = 32 << 20
OOB = 0x40000000

XB, KB = 65536, 98304
WOB, PB = 65536, 147456

sW, sJ, sRG, sG, sBR = 3, 6, 7, 8, 9
sFLIP, sPH, sKC, sQ = 32, 33, 34, 35
SRD_X, SRD_K, SRD_V, SRD_WQ, SRD_WO, SRD_OUT, SRD_DBG, SRD_WS = 36, 40, 44, 48, 52, 56, 60, 64
sWQ0, sX0, sK0, sV0, sWO0, sM4, sM5 = 68, 69, 70, 71, 72, 73, 74
sT0, sT1, sT2, sT3 = 75, 76, 77, 78
sRS, sRL, sPS, sFLD, sPL, sC, sHS, sCT, sFLM = 79, 80, 81, 82, 83, 84, 89, 86, 98
sSPIN = 88
sOUT0, sOUT1 = 90, 91
sTCH = 87
sXT, sKC0 = 99, 100
sST = 92
WSR = f"s[{SRD_WS}:{SRD_WS+3}]"; DBGR = f"s[{SRD_DBG}:{SRD_DBG+3}]"; OUTR = f"s[{SRD_OUT}:{SRD_OUT+3}]"

vL16, vL8, vFL0, vONE = 28, 29, 30, 31
vT = 33
aW, aX, kR = 1, 5, 7
vPW, vPR, vZ = 15, 16, 17
aWo, aV = 19, 23
ABUF = 40; BB = 64; ACC = 128
PF = 40
OUTA = 176
PVB = [112, 144]
VF = 96
A2 = 64
PRB = [[40, 44, 48, 52], [56, 60, 2, 6]]
SPARE = 56
PK = 2
vW, vX, vK, vV, vWo = 1, 5, 9, 13, 17
vFLAG = 32
vFL = 22
lID = 40
lZa, vFA, vFA2, vFB, vFB2, vOA, vOB, vOC, vPF, vPF2, lZm = 46, 47, 48, 49, 50, 51, 52, 53, 54, 55, 56
LINC = 64
LZ = 112
LZC = 132
LPK = 152
VP = 192
vVW = 56

def v(b, n=1): return vr(b, n)
def mfma(d, A, B, C=None): return Op(f"v_mfma_f32_16x16x32_bf16 {v(d,4)}, {A}, {B}, {v(d,4) if C is None else C}")
def cvt(d, s0): return Op(f"v_cvt_pk_bf16_f32 v{d}, v{s0}, v{s0+1}")
def ops(text): return [Op(x) for x in text.split("\n") if x.strip()]

class Ticks:
    def __init__(self): self.m = []; self.f = []
    def add(self, op): self.m.append(op); self.f.append([]); return len(self.m) - 1
    def put(self, t, o, prio=5):
        if not isinstance(o, (list, tuple)): o = [o]
        self.f[t].append((prio, len(self.f[t]), [Op(x) if isinstance(x, str) else x for x in o]))
    def spread(self, items, t0, t1, prio=5):
        n = len(items)
        for q, it in enumerate(items): self.put(t0 + (q * (t1 - t0 + 1)) // n, it, prio)
    def flush(self, st):
        for m, f in zip(self.m, self.f):
            st.add(m)
            for _, _, o in sorted(f, key=lambda x: (x[0], x[1])): st.add(o)

def weave(st, main, side, first=0):
    n, m = len(main), len(side); k = 0
    for i, o in enumerate(main):
        st.add(o)
        while k < m and i >= first and (k + 1) * (n - first) <= (i + 1 - first) * m: st.add(side[k]); k += 1
    while k < m: st.add(side[k]); k += 1

def build(path, **kw):
    P = dict(DEF); P.update(kw)
    BP, BP2, LA, NF = P["bpos"], P["bpos2"], P["la"], P["nf"]
    NS = 16 - NF
    tail = []
    pro = Stream(); cs = Stream(); ls = Stream()
    for s in (pro, cs, ls): s.nocheck = True
    t0, t1, t2, t3, t4, t5, t6 = range(vT, vT + 7)
    nst = {"c": 0, "l": 0}
    def stamp(name, role="c"):
        if P["x_seg"] and role == "l" and name in P["x_seg"]:
            r_ = 14 + 2 * P["x_seg"].index(name)
            return [Op(f"s_memrealtime s[{r_}:{r_+1}]"), Op("s_waitcnt lgkmcnt(0)")]
        if not P["dbg"] or name not in P["stamps" if role == "c" else "lstamps"]: return []
        nst[role] += 1; i = nst[role]; assert i <= 13
        return [Op(f"s_memtime s[{sST}:{sST+1}]"), Op("s_waitcnt lgkmcnt(0)"), Op(f"s_mov_b32 s{sreg_(i)}, s{sST}")]
    def sreg_(i): return 12 + i
    def dump():
        if not P["dbg"]: return []
        L = ops(f"""s_waitcnt vmcnt(0)
            s_memrealtime s[{sST}:{sST+1}]
            s_waitcnt lgkmcnt(0)
            v_writelane_b32 v{t6}, s{sST+2}, 0
            v_writelane_b32 v{t6}, s{sST}, 15
            v_writelane_b32 v{t6}, s{sST+4}, 14""")
        L += [Op(f"v_writelane_b32 v{t6}, s{sreg_(i)}, {i}") for i in range(1, 14)]
        L += ops(f"""s_lshl_b32 s{sT2}, s2, 3
            s_add_u32 s{sT2}, s{sT2}, s31
            s_lshl_b32 s{sT2}, s{sT2}, 8
            s_add_u32 s{sT2}, s{sT2}, {WS_DBG}
            v_lshlrev_b32 v{t0}, 2, v0
            buffer_store_dword v{t6}, v{t0}, {WSR}, s{sT2} offen""")
        return L
    BAR = lambda: Op("s_barrier")
    def mksrd(dst, ptr, n): return ops(f"s_mov_b32 s{dst+2}, {n}\ns_mov_b32 s{dst+3}, 0x00020000")
    def mod10(x, tmp): return f"s_sub_u32 s{tmp}, s{x}, 10\ns_min_u32 s{x}, s{x}, s{tmp}"
    def wo_regions(k):
        lo, hi = WOB + 20480 * k, WOB + 20480 * (k + 1); r = [f"Wo{k}"]
        if lo < XB + 16384: r.append("X0")
        if lo < KB and hi > XB + 16384: r.append("X1")
        if hi > KB: r.append("K")
        return r

    A = pro.add
    A("s_cmp_ge_u32 s2, 256\ns_cbranch_scc1 L_end")
    if P["dbg"] or P["x_amp"]: A(f"s_memtime s[{sST+2}:{sST+3}]\ns_memrealtime s[{sST+4}:{sST+5}]")
    A(f"""v_lshrrev_b32 v{t0}, 6, v0
        s_bfe_u32 s{sBR}, s2, 0x10002
        v_readfirstlane_b32 s31, v{t0}
        s_mul_i32 s10, s{sBR}, 40
        v_and_b32 v0, 63, v0
        s_add_u32 s4, s0, s10
        s_addc_u32 s5, s1, 0
        s_cmp_lt_u32 s31, 4
        s_cbranch_scc1 L_compute""")
    ids = f"""s_and_b32 s{sQ}, s2, 3
        s_bfe_u32 s{sJ}, s2, 0x20003
        s_lshr_b32 s{sRG}, s2, 5
        s_and_b32 s{sW}, s31, 3
        s_lshl_b32 s{sM4}, s{sW}, 12"""

    def exchange_setup():
        return mksrd(SRD_WS, 28, 268435456) + ops(f"""s_lshl_b32 s10, s{sBR}, 3
            s_add_u32 s10, s10, s{sRG}
            s_lshl_b32 s{sG}, s10, 2
            s_add_u32 s{sG}, s{sG}, s{sJ}
            s_lshl_b32 s10, s{sG}, 18
            s_add_u32 s10, s10, s{sM4}
            s_lshl_b32 s11, s{sQ}, 14
            s_add_u32 s{sRS}, s10, s11
            s_lshl_b32 s11, s{sQ}, 16
            s_add_u32 s{sRL}, s10, s11
            s_lshl_b32 s10, s{sBR}, 3
            s_add_u32 s10, s10, s{sRG}
            s_lshl_b32 s10, s10, 7
            s_lshl_b32 s11, s{sQ}, 3
            s_add_u32 s10, s10, s11
            s_lshl_b32 s11, s{sW}, 5
            s_add_u32 s11, s11, s10
            s_lshl_b32 s11, s11, 11
            s_add_u32 s{sPL}, s11, {WS_P}
            s_lshr_b32 s11, s{sW}, 1
            s_lshl_b32 s11, s11, 6
            s_add_u32 s10, s10, s11
            s_lshl_b32 s11, s{sJ}, 1
            s_add_u32 s10, s10, s11
            s_and_b32 s11, s{sW}, 1
            s_add_u32 s10, s10, s11
            s_lshl_b32 s10, s10, 11
            s_add_u32 s{sPS}, s10, {WS_P}
            s_lshl_b32 s10, s{sG}, 13
            s_lshl_b32 s11, s{sW}, 9
            s_add_u32 s10, s10, s11
            s_add_u32 s{sFLD}, s10, {WS_FL}
            s_lshl_b32 s11, s{sQ}, 11
            s_add_u32 s{sFLM}, s{sFLD}, s11
            v_mov_b32 v{t0}, {OOB}
            v_cmp_eq_u32 vcc, 0, v0
            v_mov_b32 v{t2}, 0
            v_mov_b32 v{vONE}, 1
            v_cndmask_b32 v{vFL0}, v{t0}, v{t2}, vcc
            v_lshlrev_b32 v{vL8}, 3, v0""")

    A = ls.add
    def dma(vo, srd_, so, q, mod, g, fill): return Op(f"buffer_load_dwordx4 v{vo}, s[{srd_}:{srd_+3}], s{so} offen offset:{(q%4)*1024} {mod} lds", group=g, fill=fill)
    def dma_w(t):
        kc, dh = t // 2, t % 2; s = t % 4; g = ("W", t); items = []
        if dh == 0:
            for q in range(4):
                it = []
                if q == 0:
                    if kc: it += [Op(f"s_add_u32 s{sKC}, s{sKC}, 1"), Op(f"s_cmp_eq_u32 s{sKC}, 10"), Op(f"s_cselect_b32 s{sKC}, 0, s{sKC}")]
                    it += [Op(f"s_lshl_b32 s{sT1}, s{sKC}, 7"), Op(f"s_add_u32 s{sT1}, s{sT1}, s{sX0}"),
                           Op(f"s_lshl_b32 s{sT0}, s{sKC}, 19"), Op(f"s_add_u32 s{sT0}, s{sT0}, s{sWQ0}"),
                           Op(f"s_add_u32 m0, s{sM4}, {XB + (kc%2)*16384}", wm0=True)]
                it.append(dma(vX + q, SRD_X, sT1, q, "nt" if t >= 20 - P["ntlast"] else P["nt_x"], g, [(f"X{kc%2}", kc)]))
                items.append(it)
        for q in range(4):
            it = []
            if q == 0:
                if dh == 1: it.append(Op(f"s_xor_b32 s{sT0}, s{sT0}, 128"))
                it.append(Op(f"s_add_u32 m0, s{sM4}, {16384*s}", wm0=True))
            it.append(dma(vW + q, SRD_WQ, sT0, q, "nt" if t >= 20 - P["ntlast"] else P["nt_w"], g, [(f"S{s}", t)]))
            items.append(it)
        return items
    def dma_k(n):
        it = []
        if n % 4 == 0:
            it += [Op(f"s_add_u32 s{sT2}, s{sK0}, {(n//8)*262144 + ((n%8)//4)*4096}"), Op(f"s_lshl_b32 s{sT3}, s{sM4}, 2"),
                   Op(f"s_add_u32 m0, s{sT3}, {KB + (n//4)*4096}")]
        it.append(dma(vK + n % 4, SRD_K, sT2, n, P["nt_k"], ("K", 0), [("K", 100), ("Kp", 100)]))
        return it
    def head_ops(s, dst): return [Op(f"s_lshl_b32 s{dst}, s{sJ}, 1"), Op(f"s_add_u32 s{dst}, s{dst}, {2 * P['po'][s // 4] + (s // 2) % 2}"), Op(f"s_and_b32 s{dst}, s{dst}, 7")]
    def dma_v(s):
        L = head_ops(s, sT2) + [Op(f"s_lshl_b32 s{sT2}, s{sT2}, 13"), Op(f"s_add_u32 s{sT2}, s{sT2}, s{sV0}")]
        if s % 2: L.append(Op(f"s_add_u32 s{sT2}, s{sT2}, 128"))
        L.append(Op(f"s_add_u32 m0, s{sM4}, {16384*(s%4)}"))
        return L + [dma(vV + q, SRD_V, sT2, q, P["nt_v"], ("V", s), [(f"S{s%4}", 200 + s)]) for q in range(4)]
    def dma_wo(s):
        k = s % 4; fill = [(r, 200 + s) for r in wo_regions(k)]
        L = head_ops(s, sT2) + [Op(f"s_mul_i32 s{sT2}, s{sT2}, {128*1280}"), Op(f"s_add_u32 s{sT2}, s{sT2}, s{sWO0}")]
        if s % 2: L.append(Op(f"s_add_u32 s{sT2}, s{sT2}, {64*1280}"))
        for q in range(5):
            if q % 4 == 0: L.append(Op(f"s_add_u32 m0, s{sM5}, {WOB + 20480*k + 1024*q}"))
            L.append(dma(vWo + q, SRD_WO, sT2, q, P["nt_wo"], ("Wo", s), fill))
        return L
    nlab = [0]
    def arrived(regs, reload, tmp):
        k = nlab[0]; nlab[0] += 1; regs = list(regs); L = []
        L.append(f"v_max3_u32 v{tmp}, v{regs[0]}, v{regs[1]}, v{regs[2]}")
        rest_ = regs[3:]
        while len(rest_) >= 2: L.append(f"v_max3_u32 v{tmp}, v{tmp}, v{rest_[0]}, v{rest_[1]}"); rest_ = rest_[2:]
        if rest_: L.append(f"v_max_u32 v{tmp}, v{tmp}, v{rest_[0]}")
        L.append(f"v_cmp_eq_u32 vcc, -1, v{tmp}")
        tail.extend([f"L_spin{k}:", f"s_mov_b32 s{sSPIN}, 0", f"L_spin{k}a:"] + [o.text for o in reload] + ["s_waitcnt vmcnt(0)"] + L +
                    [f"s_add_u32 s{sSPIN}, s{sSPIN}, 1", f"s_cmp_gt_u32 s{sSPIN}, 400000", f"s_cbranch_scc1 L_back{k}",
                     f"s_cbranch_vccnz L_spin{k}a", f"s_branch L_back{k}"])
        return [Op(x) for x in L] + [Op("s_nop 0"), Op(f"s_cbranch_vccnz L_spin{k}"), Op(f"L_back{k}:")]
    def poll(): return Op(f"buffer_load_dword v{vFLAG}, v{vFL}, {WSR}, s{sFLM} offen sc1")
    def need(mask):
        k = nlab[0]; nlab[0] += 1
        tail.extend([f"L_spin{k}:", f"s_mov_b32 s{sSPIN}, 0", f"L_spin{k}a:",
                     f"buffer_load_dword v{vFLAG}, v{vFL}, {WSR}, s{sFLM} offen sc1", "s_waitcnt vmcnt(0)",
                     f"v_cmp_ne_u32 vcc, 0, v{vFLAG}", f"s_add_u32 s{sSPIN}, s{sSPIN}, 1", f"s_cmp_gt_u32 s{sSPIN}, 400000", f"s_cbranch_scc1 L_back{k}",
                     f"s_and_b32 s{sT2}, vcc_lo, {mask}", f"s_cmp_lg_u32 s{sT2}, {mask}", f"s_cbranch_scc1 L_spin{k}a", f"s_branch L_back{k}"])
        return ops(f"v_cmp_ne_u32 vcc, 0, v{vFLAG}\ns_and_b32 s{sT2}, vcc_lo, {mask}\ns_cmp_lg_u32 s{sT2}, {mask}\ns_cbranch_scc1 L_spin{k}\nL_back{k}:")
    def fetch(k, r):
        L = ops(f"s_add_u32 s{sT2}, s{sQ}, {3 - k + 4}\ns_and_b32 s{sT2}, s{sT2}, 3\ns_lshl_b32 s{sT2}, s{sT2}, 14\ns_add_u32 s{sT2}, s{sT2}, s{sRL}")
        if k < 3: L += [Op(f"buffer_load_dwordx4 {v(r+4*nt,4)}, v{vL16}, {WSR}, s{sT2} offen offset:{1024*nt} sc1") for nt in range(2)]
        return L + [Op(f"buffer_load_dwordx2 {v(r+8,2)}, v{vL8}, {WSR}, s{sT2} offen offset:2048 sc1")]
    def addin(k, r):
        L = []
        if k < 3:
            for nt in range(2):
                for jt in range(2): L.append(mfma(LZ + 8 * nt + 4 * jt, v(lID + 2 - 2 * jt, 4), v(r + 4 * nt, 4)))
        return L + [mfma(LZ + 16, v(lID + 2, 4), v(r + 8, 4))]

    A(f"s_load_dwordx2 s[{SRD_X}:{SRD_X+1}], s[4:5], 0\ns_load_dwordx2 s[{SRD_WQ}:{SRD_WQ+1}], s[4:5], 24")
    if P["prio_l"]: A(f"s_setprio {P['prio_l']}")
    A(ids)
    xr = P["xrot"]
    A(f"""s_mul_i32 s{sKC}, s{sRG}, 5
        v_lshrrev_b32 v{t0}, 4, v0
        s_mul_i32 s10, s{sJ}, {0 if P['xt'] else 5}
        v_lshrrev_b32 v{t4}, 3, v0
        s_lshr_b32 s{sKC}, s{sKC}, 2
        v_and_b32 v{t1}, 7, v0
        s_lshr_b32 s10, s10, 1
        v_mul_u32_u24 v{t2}, 1280, v{t4}
        s_add_u32 s{sKC}, s{sKC}, s10
        v_xor_b32 v{t3}, v{t1}, v{t0}
        s_add_u32 s{sKC}, s{sKC}, {'s%d' % sQ if xr else 0}
        v_lshl_add_u32 v{vX}, v{t3}, 4, v{t2}
        {mod10(sKC, 30)}
        v_xor_b32 v{t3}, 4, v{t3}
        s_lshl_b32 s10, s{sRG}, 2
        v_lshl_add_u32 v{vX+1}, v{t3}, 4, v{t2}
        s_add_u32 s10, s10, s{sW}
        v_add_u32 v{vX+2}, {2*9216}, v{vX}
        s_mul_i32 s{sX0}, s10, 40960
        v_add_u32 v{vX+3}, {3*9216}, v{vX+1}
        s_mov_b32 s{SRD_X+2}, {SZ['x']}
        v_add_u32 v{vX+1}, 9216, v{vX+1}
        s_mov_b32 s{SRD_X+3}, 0x00020000""")
    assert xr in (0, 1)
    if not P["rot"]: A(f"s_mov_b32 s{sKC}, 0")
    wsetup = ops(f"""v_bfe_u32 v{t3}, v0, 1, 3
        s_lshl_b32 s10, s{sQ}, 2
        v_xor_b32 v{t3}, v{t3}, v{t0}
        s_add_u32 s10, s10, s{sJ}
        v_and_b32 v{t2}, 4, v{t3}
        s_lshl_b32 s{sWQ0}, s10, 9
        v_and_b32 v{t3}, 3, v{t3}
        s_lshl_b32 s10, s{sW}, 17
        v_lshlrev_b32 v{t2}, 6, v{t2}
        s_add_u32 s{sWQ0}, s{sWQ0}, s10
        v_lshl_or_b32 v{t3}, v{t3}, 5, v{t2}
        s_lshl_b32 s{sT0}, s{sKC}, 19
        v_and_b32 v{t2}, 1, v0
        s_add_u32 s{sT0}, s{sT0}, s{sWQ0}
        v_lshl_or_b32 v{t3}, v{t2}, 4, v{t3}
        s_mov_b32 s{SRD_WQ+2}, {SZ['wq']}
        v_lshl_or_b32 v{vW}, v{t0}, 13, v{t3}
        s_mov_b32 s{SRD_WQ+3}, 0x00020000
        v_add_u32 v{vW+1}, {32768 - 1024}, v{vW}
        v_xor_b32 v{vW+2}, 0x100, v{vW}
        v_add_u32 v{vW+3}, {3*(32768 - 1024)}, v{vW+2}
        v_add_u32 v{vW+2}, {2*(32768 - 1024)}, v{vW+2}""")
    A(stamp("k0", "l"))
    w0 = dma_w(0); w0[0] = [o for o in w0[0] if f"s{sT0}," not in o.text]
    A(w0[:1]); A(stamp("k1", "l")); A(w0[1:4]); A(wsetup); A(w0[4:]); A(stamp("k2", "l"))
    A(f"""s_load_dwordx2 s[{SRD_K}:{SRD_K+1}], s[4:5], 8
        s_load_dwordx2 s[{SRD_V}:{SRD_V+1}], s[4:5], 16
        s_load_dwordx2 s[{SRD_WO}:{SRD_WO+1}], s[4:5], 32
        s_load_dwordx2 s[{SRD_OUT}:{SRD_OUT+1}], s[0:1], 80
        s_load_dwordx2 s[{SRD_WS}:{SRD_WS+1}], s[0:1], 96
        v_lshlrev_b32 v{vL16}, 4, v0""")
    def touch_x(c0, c1, dst, first=False):
        L = ops(f"""s_lshl_b32 s10, s{sRG}, 2
            s_add_u32 s10, s10, s{sJ}
            s_lshl_b32 s10, s10, 2
            s_add_u32 s10, s10, s{sW}
            s_mul_i32 s{sXT}, s10, 10240
            s_mov_b32 s{sKC0}, s{sKC}""") if first else []
        return L + ops(f"""v_lshrrev_b32 v{t2}, 3, v0
            v_min_u32 v{t2}, {c1 - c0}, v{t2}
            s_add_u32 s{sT3}, s{sKC0}, {c0}
            v_add_u32 v{t2}, s{sT3}, v{t2}
            v_subrev_u32 v{t3}, 10, v{t2}
            v_min_u32 v{t2}, v{t2}, v{t3}
            v_and_b32 v{t3}, 7, v0
            v_mul_u32_u24 v{t3}, 1280, v{t3}
            v_lshl_add_u32 v{t2}, v{t2}, 7, v{t3}
            buffer_load_dword v{dst}, v{t2}, s[{SRD_X}:{SRD_X+3}], s{sXT} offen""")
    if P["xt"] and P["xtpos"] == 0: A(touch_x(*P["xt0"], vPF2 + 2, True))
    if P["code_pf"]:
        A("s_getpc_b64 s[22:23]\nL_pc:")
        A(f"""s_lshr_b32 s10, s2, 3
            s_lshl_b32 s10, s10, 11
            v_and_b32 v{t2}, 15, v0
            v_lshlrev_b32 v{t2}, 7, v{t2}
            v_add_u32 v{t2}, s10, v{t2}
            v_min_u32 v{t2}, CODE_SPAN, v{t2}
            s_sub_u32 s22, s22, CODE_BACK
            s_subb_u32 s23, s23, 0
            global_load_dword v{t5}, v{t2}, s[22:23]""")
    rest = mksrd(SRD_K, 14, SZ["k"]) + ops(f"""v_and_b32 v{t2}, 15, v0
        v_xor_b32 v{t2}, v{t2}, v{t0}
        v_lshlrev_b32 v{t2}, 4, v{t2}
        v_lshl_or_b32 v{vK}, v{t0}, 8, v{t2}
        v_xor_b32 v{vK+1}, 64, v{vK}
        v_xor_b32 v{vK+2}, 0x80, v{vK}
        v_xor_b32 v{vK+3}, 0xc0, v{vK}
        v_lshlrev_b32 v{t2}, 1, v{t0}
        v_xor_b32 v{t2}, v{t2}, v{t1}
        v_lshlrev_b32 v{t2}, 4, v{t2}
        v_lshl_or_b32 v{vV}, v{t4}, 8, v{t2}
        v_add_u32 v{vV+1}, 1024, v{vV}
        v_add_u32 v{vV+2}, 2048, v{vV}
        v_add_u32 v{vV+3}, 3072, v{vV}
        s_lshl_b32 s10, s{sRG}, 1
        s_lshr_b32 s11, s{sW}, 1
        s_add_u32 s10, s10, s11
        s_lshl_b32 s10, s10, 6
        s_lshl_b32 s11, s{sQ}, 3
        s_add_u32 s10, s10, s11
        s_lshl_b32 s11, s{sJ}, 1
        s_add_u32 s10, s10, s11
        s_and_b32 s11, s{sW}, 1
        s_add_u32 s10, s10, s11
        s_lshl_b32 s{sK0}, s10, 13
        s_lshr_b32 s{sPH}, s2, 3
        s_lshl_b32 s10, s{sRG}, 2
        s_add_u32 s10, s10, s{sW}
        s_lshl_b32 s10, s10, 2
        s_add_u32 s10, s10, s{sQ}
        s_lshl_b32 s{sV0}, s10, 16""") + mksrd(SRD_V, 16, SZ["v"]) + mksrd(SRD_WO, 20, SZ["wo"])
    rest += exchange_setup()
    rest += ops(f"""v_lshlrev_b32 v{vPF}, 7, v0
        v_min_u32 v{t2}, {47 if P["ctm"] else 23}, v0
        v_mul_u32_u24 v{t3}, 86, v{t2}
        v_lshrrev_b32 v{t3}, 8, v{t3}
        v_mul_u32_u24 v{vPF2}, {1280 - 384}, v{t3}
        v_lshl_add_u32 v{vPF2}, v{t2}, 7, v{vPF2}
        s_and_b32 s{sCT}, s{sRG}, {P["ctm"]}
        s_lshl_b32 s{sCT}, s{sCT}, 1
        s_add_u32 s{sCT}, s{sCT}, s{sJ}
        s_and_b32 s{sCT}, s{sCT}, 3
        s_lshl_b32 s10, s{sQ}, 7
        s_andn2_b32 s11, s{sRG}, {P["ctm"]}
        s_lshl_b32 s11, s11, 2
        s_add_u32 s10, s10, s11
        s_lshl_b32 s11, s{sW}, {P["ctm"]}
        s_add_u32 s10, s10, s11
        s_mul_i32 s10, s10, 10240
        s_mul_i32 s11, s{sCT}, 320
        s_and_b32 s11, s11, 0xffffff80
        s_add_u32 s{sTCH}, s10, s11
        v_mov_b32 v{t2}, {OOB}
        v_cmp_gt_u32 vcc, 3, v0
        s_nop 1
        v_cndmask_b32 v{vFL}, v{t2}, v{vPF}, vcc""")
    g1 = dma_w(1); nf = P["first"]; side = g1[:nf]; k = 0
    for i, o in enumerate(rest):
        A(o)
        if k < len(side) and (k + 1) * len(rest) <= (i + 1) * len(side): A(side[k]); k += 1
    A(side[k:])
    if P["xt"] and P["xtpos"] == 1: A(touch_x(*P["xt0"], vPF2 + 2, True))
    if P["bal"]:
        A(f"""s_mul_i32 s10, s{sRG}, 5
            s_lshr_b32 s10, s10, 2
            s_sub_u32 s10, s{sKC}, s10
            s_lshr_b32 s11, s{sRG}, 2
            s_mul_i32 s11, s11, 5
            s_add_u32 s10, s10, s11
            s_add_u32 s10, s10, 14
            {mod10(10, 30)}
            {mod10(10, 30)}
            s_lshl_b32 s10, s10, 19
            s_and_b32 s11, s{sRG}, 3
            s_lshl_b32 s11, s11, 17
            s_add_u32 s10, s10, s11
            s_lshl_b32 s11, s{sW}, 15
            s_add_u32 s10, s10, s11
            s_and_b32 s11, s{sWQ0}, 0x1fff
            s_add_u32 s10, s10, s11
            v_bfe_u32 v{t2}, v0, 2, 2
            v_and_b32 v{t3}, 3, v0
            v_lshlrev_b32 v{t3}, 7, v{t3}
            v_lshl_or_b32 v{t2}, v{t2}, 13, v{t3}
            buffer_load_dword v{t6}, v{t2}, s[{SRD_WQ}:{SRD_WQ+3}], s10 offen""")
    if P["bal"] > 1:
        A(f"""s_add_u32 s10, s{sKC}, 4
            {mod10(10, 30)}
            s_lshl_b32 s10, s10, 7
            s_lshl_b32 s11, s{sRG}, 3
            s_add_u32 s11, s11, s{sW}
            s_mul_i32 s11, s11, 20480
            s_add_u32 s10, s10, s11
            s_bitcmp1_b32 s{sJ}, 0
            s_cselect_b32 s10, {OOB}, s10
            v_and_b32 v{t3}, 15, v0
            v_mul_u32_u24 v{t3}, 1280, v{t3}
            buffer_load_dword v{vPF2+2}, v{t3}, s[{SRD_X}:{SRD_X+3}], s10 offen""")
    late = mksrd(SRD_OUT, 24, SZ["out"]) + ops(f"""        s_lshl_b32 s10, s{sRG}, 2
        s_add_u32 s10, s10, s{sW}
        s_mul_i32 s10, s10, {32*2560}
        s_mul_i32 s11, s{sBR}, 1280
        s_add_u32 s10, s10, s11
        s_mul_i32 s11, s{sCT}, 320
        s_add_u32 s10, s10, s11
        s_lshl_b32 s30, s{sQ}, 6
        s_add_u32 s{sOUT0}, s10, s30
        s_and_b32 s30, s{sQ}, 1
        s_mul_i32 s30, s30, {16*2560}
        s_add_u32 s10, s10, s30
        s_lshr_b32 s30, s{sQ}, 1
        s_lshl_b32 s30, s30, 5
        s_add_u32 s10, s10, s30
        s_add_u32 s{sOUT1}, s10, 256
        s_lshl_b32 s10, s{sQ}, 6
        s_add_u32 s10, s10, s{sW}
        s_mul_i32 s10, s10, {16*1280}
        s_add_u32 s{sWO0}, s10, s11
        s_mul_i32 s{sM5}, s{sW}, 5120
        s_add_u32 s10, s{sQ}, 1
        s_movk_i32 s11, 3277""")
    for q in range(5):
        late += ops(f"""v_add_u32 v{t0}, {64*q}, v0
            v_mul_u32_u24 v{t1}, s11, v{t0}
            v_lshrrev_b32 v{t1}, 16, v{t1}
            v_mul_u32_u24 v{t2}, 20, v{t1}
            v_sub_u32 v{t0}, v{t0}, v{t2}
            v_lshrrev_b32 v{t2}, 2, v{t0}
            v_add_u32 v{t3}, s10, v{t2}
            v_and_b32 v{t3}, 3, v{t3}
            v_cmp_gt_u32 vcc, 4, v{t2}
            v_and_b32 v{t0}, 3, v{t0}
            v_bfe_u32 v{t4}, v{t1}, 2, 1
            v_cndmask_b32 v{t2}, v{t2}, v{t3}, vcc
            v_lshlrev_b32 v{t4}, 1, v{t4}
            v_xor_b32 v{t0}, v{t0}, v{t4}
            v_lshlrev_b32 v{t0}, 4, v{t0}
            v_lshl_or_b32 v{t0}, v{t2}, 6, v{t0}
            v_mul_u32_u24 v{t1}, 1280, v{t1}
            v_add_u32 v{vWo+q}, v{t0}, v{t1}""")
        if q % 4: late.append(Op(f"v_subrev_u32 v{vWo+q}, {1024*(q%4)}, v{vWo+q}"))
    FA = 16384
    late += ops(f"""v_and_b32 v{t0}, 15, v0
        v_lshrrev_b32 v{t1}, 4, v0
        v_lshrrev_b32 v{t2}, 1, v{t1}
        v_bfe_u32 v{t3}, v0, 1, 2
        v_xor_b32 v{t3}, v{t3}, v{t2}
        v_lshlrev_b32 v{t3}, 4, v{t3}
        v_and_b32 v{t4}, 1, v{t1}
        v_lshl_or_b32 v{t3}, v{t4}, 3, v{t3}
        v_lshl_or_b32 v{t3}, v{t0}, 6, v{t3}
        s_add_u32 s10, s{sM4}, {FA}
        v_add_u32 v{vFA}, s10, v{t3}
        v_lshlrev_b32 v{t3}, 3, v{t1}
        v_lshl_or_b32 v{t3}, v{t0}, 5, v{t3}
        s_add_u32 s11, s10, 2048
        v_add_u32 v{vFA2}, s11, v{t3}
        v_add_u32 v{vFB2}, s11, v{vL16}
        v_lshrrev_b32 v{t0}, 2, v0
        v_and_b32 v{t1}, 3, v0
        v_bfe_u32 v{t2}, v0, 3, 2
        v_xor_b32 v{t2}, v{t2}, v{t1}
        v_lshlrev_b32 v{t2}, 4, v{t2}
        v_lshl_or_b32 v{t2}, v{t0}, 6, v{t2}
        v_add_u32 v{vFB}, s10, v{t2}
        v_mul_u32_u24 v{t0}, 2560, v{t0}
        v_lshl_or_b32 v{vOA}, v{t1}, 4, v{t0}
        v_add_u32 v{vOB}, {16*2560}, v{vOA}
        v_lshrrev_b32 v{t0}, 1, v0
        v_and_b32 v{t1}, 1, v0
        v_mul_u32_u24 v{t0}, 2560, v{t0}
        v_lshl_or_b32 v{t0}, v{t1}, 4, v{t0}
        v_mov_b32 v{t1}, {OOB}
        v_cmp_gt_u32 vcc, 32, v0
        v_add_u32 v{lZa}, s{sM4}, v{vL16}
        s_lshl_b32 s10, s{sQ}, 10
        s_add_u32 s10, s10, 32768
        v_add_u32 v{lZm}, s10, v{lZa}
        v_mov_b32 v{lID}, 0
        v_cndmask_b32 v{vOC}, v{t1}, v{t0}, vcc
        v_and_b32 v{t0}, 1, v0
        v_lshlrev_b32 v{t0}, 4, v{t0}
        v_mov_b32 v{t1}, 0x3f80
        v_lshlrev_b32 v{t0}, v{t0}, v{t1}
        v_lshrrev_b32 v{t1}, 4, v0
        v_bfe_u32 v{t2}, v0, 2, 2
        v_cmp_eq_u32 vcc, v{t1}, v{t2}
        v_mov_b32 v{lID+1}, 0
        v_and_b32 v{t2}, 3, v0
        v_cndmask_b32 v{t0}, v{lID}, v{t0}, vcc
        v_cmp_gt_u32 vcc, 2, v{t2}
        v_mov_b32 v{lID+4}, 0
        v_mov_b32 v{lID+5}, 0
        v_cndmask_b32 v{lID+2}, v{lID}, v{t0}, vcc
        v_cndmask_b32 v{lID+3}, v{t0}, v{lID}, vcc""")
    late += [Op(f"v_mov_b32 v{LZ+q}, 0") for q in range(20)] + [Op(f"v_mov_b32 v{LINC+12*q+10+e}, 0") for q in range(4) for e in range(2)]
    A("s_waitcnt lgkmcnt(0)")
    A(stamp("lstart", "l"))
    def lbar(*groups): return [Op("WAITG", group=g) for g in groups] + [BAR()]
    A(lbar(("W", 0))[:-1]); A(stamp("k3", "l")); A(BAR())
    clx = P["clx"]; vdma = dict(P["vdma"])
    def touch(dj):
        return ops(f"""s_add_u32 s{sT3}, s{sJ}, {dj}
            s_and_b32 s{sT3}, s{sT3}, 3
            s_mul_i32 s{sT3}, s{sT3}, {256*1280}
            s_add_u32 s{sT3}, s{sT3}, s{sTCH}
            buffer_load_dword v{t5}, v{vPF2}, s[{SRD_WO}:{SRD_WO+3}], s{sT3} offen""")
    def touch_v(hd):
        return ops(f"""s_lshl_b32 s{sT2}, s{sJ}, 14
            s_add_u32 s{sT2}, s{sT2}, s{sV0}
            s_add_u32 s{sT2}, s{sT2}, {hd*8192}
            buffer_load_dword v{t6}, v{vPF}, s[{SRD_V}:{SRD_V+3}], s{sT2} offen""")
    def piece(p):
        if p[0] == "T": return touch(int(p[1]))
        if p[0] == "U": return touch_v(int(p[1]))
        if p == "C":
            L = [Op(f"v_mov_b32 v{60+q}, -1") for q in range(4)] + [Op(f"v_mov_b32 v{24+q}, 0") for q in range(4)]
            L += ops(f"v_mov_b32 v23, {OOB}\nv_cmp_gt_u32 vcc, 24, v0\ns_add_u32 s{sT3}, s{sPS}, 65536\nv_cndmask_b32 v23, v23, v{vL16}, vcc")
            L += [Op(f"buffer_store_dwordx4 v[60:63], v{vL16}, {WSR}, s{so} offen offset:{off} sc1", group=("clr", 0)) for so in (sPS, sT3) for off in (0, 1024)]
            return L + [Op(f"buffer_store_dwordx4 v[24:27], v23, {WSR}, s{sFLM} offen sc1", group=("clr", 0))]
        if p == "X": return touch_x(*P["xt1"], vPF2 + 3)
        return [y for n in range(4 * int(p[1]), 4 * int(p[1]) + 4) for y in dma_k(n)]
    nl = len(late); parts = {12: late[:nl // 2], 13: late[nl // 2:]}
    NV = P["nv"]; variants = []; lst = {}
    if NV > 1:
        A(f"s_and_b32 s10, s{sPH}, {NV-1}")
        for ph in range(1, NV): A(f"s_cmp_eq_u32 s10, {ph}\ns_cbranch_scc1 L_var{ph}")
    head = ls.ops
    for ph in range(NV):
        V_ = [Op(f"L_var{ph}:")]
        q_ = [(1, [Op(o.text, **o.meta) for o in it]) for it in g1[nf:]] + [(t, it) for t in range(2, 20) for it in dma_w(t)]
        quiet = set()
        for x in range(0, 20):
            cl_ = [y for pcs, xc in clx if xc + ph * P['phstep'] == x for p_ in pcs for y in piece(p_)]
            if cl_:
                quiet |= {x + d for d in P["skip"]}
            if not P["cend"]: V_ += cl_
            n = 0
            while q_ and q_[0][0] <= x + LA and (q_[0][0] <= x + 1 or (x not in quiet and n < (P["cap0"] if x == 0 else P["cap"]))):
                V_ += q_.pop(0)[1]; n += 1
            if P["cend"]: V_ += cl_
            if x in parts: V_ += [Op(o.text, **o.meta) for o in parts[x]]
            if x == P["pfx"]: V_ += touch(0)
            if x in vdma:
                V_ += dma_v(vdma[x])
            if x == 19 and P["wo19"]: V_ += dma_wo(0)
            if x + 1 == P["hs0"]:
                assert all(xc + ph * P["phstep"] <= x for pcs, xc in clx if "C" in pcs)
                V_ += [Op("WAITG", group=("clr", 0))]
            V_ += lbar(("W", x + 1))
            if ph == 0: lst[x] = stamp(f"l{x}", "l")
            V_ += [Op(o.text) for o in lst[x]]
        fixed = []; cur = want = None
        for o in V_:
            if o.text.startswith("s_add_u32 m0"):
                cur = o.text
                if o.meta.get("wm0"): want = o.text
            if o.kind == "dma" and o.meta["group"][0] == "W" and cur is not None and cur != want: assert want; fixed.append(Op(want)); cur = want
            fixed.append(o)
        V_ = fixed
        V_.append(Op("s_branch L_join"))
        variants.append(V_)
    ls.ops = []
    A("L_join:")
    A(BAR())
    grp = lambda n_: dma_v(int(n_[1:])) if n_[0] == "V" else dma_wo(int(n_[1:]))
    assert sorted(list(P["pre"]) + list(P["q0"]) + [f"V{s_}" for s_ in vdma.values()] + ["O0"] * P["wo19"]) == ["O0", "O1", "O2", "V0", "V1", "V2", "V3"]
    for n_ in P["pre"]: A(grp(n_))
    A([Op("WAITL")] + lbar(("V", 0), ("Wo", 0)))
    A(stamp("m0", "l"))
    def pieces(L):
        out = [[]]
        for o in L:
            out[-1].append(o)
            if o.kind == "dma": out.append([])
        return out[:-1]
    q2 = [(0, int(n_[1:]) - 1, it) for n_ in P["q0"] for it in pieces(grp(n_))]
    for x in range(1, NS):
        if x + 2 <= 15: q2 += [(x, x + 1, it) for it in pieces(dma_wo(x + 2))]
        if x + 3 <= 15: q2 += [(x, x + 2, it) for it in pieces(dma_v(x + 3))]
    quiet = {x + d for x in P["tch"] for d in P["skip2"]}
    for x in range(0, NS):
        n = 0
        while q2 and q2[0][0] <= x and (x == NS - 1 or any(e[1] <= x for e in q2) or (x not in quiet and n < P["capx"].get(x, P["cap2"]))):
            A(q2.pop(0)[2]); n += 1
        if x in P["tch"]: A(touch(P["tch"][x]))
        if x == P["tlb"]:
            A(f"""buffer_load_dword v{vPF2+3}, v{vFL0}, {WSR}, s{sRL} offen offset:3072
                buffer_load_dword v{vPF2+4}, v{vFL0}, {WSR}, s{sFLM} offen offset:896 sc1
                buffer_load_dword v{t6}, v{vFL0}, {OUTR}, s{sOUT0} offen""")
        A(stamp(f'd{x}', 'l'))
        g = [("V", x + 1), ("Wo", x + 1)] + ([("V", x + 2)] if x == NS - 1 else [])
        A(lbar(*g))
        A(stamp(f"m{x+1}", "l"))
    if NS + 2 <= 15: A(dma_wo(NS + 2))
    if NS + 3 <= 15: A(dma_v(NS + 3))
    if NF == 4:
        A(lbar(("V", 14), ("Wo", 13)))
        A(dma_wo(15)); A(lbar(("V", 15), ("Wo", 14)))
        A(lbar(("Wo", 15)))
    elif NF == 3: A(lbar(("V", 15), ("Wo", 14)) + lbar(("Wo", 15)))
    else: A(lbar(("V", 15), ("Wo", 15)))
    zrd = [Op(f"ds_read_b128 {v(LZC+4*q,4)}, v{lZa} offset:{q*1024}", use=[("S0", 290)]) for q in range(4)]
    own = [] if P["ownlds"] else fetch(3, LINC + 36); ownadd = [] if P["ownlds"] else addin(3, LINC + 36)
    if P["ownlds"]: zrd.append(Op(f"ds_read_b128 {v(LZC+16,4)}, v{lZm}", use=[("S2", 290)]))
    if P["early"] == 1:
        A(BAR()); A(stamp("bt1", "l"))
        A([poll()] + own); A(zrd)
        A(need(1) + fetch(0, LINC) + need(2) + fetch(1, LINC + 12) + need(4) + fetch(2, LINC + 24))
        A(stamp("c1", "l"))
        A(ownadd + addin(0, LINC) + addin(1, LINC + 12))
    else:
        A(BAR()); A(stamp("bt1", "l"))
        A([poll()])
        A(need(1) + fetch(0, LINC) + need(2) + fetch(1, LINC + 12))
        if P["early"] == 3: A(need(4) + fetch(2, LINC + 24))
        A(stamp("c1", "l"))
        A(BAR())
        if P["early"] == 2: A([poll()])
        A(own); A(zrd)
        if P["early"] == 2: A(need(4) + fetch(2, LINC + 24))
        A(addin(0, LINC) + addin(1, LINC + 12) + ownadd)
    A("s_nop 7")
    for q in range(20 if P["ownlds"] else 16): A(f"v_add_f32 v{LZ+q}, v{LZ+q}, v{LZC+q}")
    A(f"v_xor_b32 v{t0}, 32, v{vFA}")
    A(addin(2, LINC + 24))
    A(stamp("c2", "l"))
    FK = [("S1", 300)]
    for nt in range(2):
        for jt in range(2):
            d = LPK + 4 * nt + 2 * jt; z = LZ + 8 * nt + 4 * jt
            A([cvt(d, z), cvt(d + 1, z + 2)])
            A(Op(f"ds_write_b64 v{t0 if nt else vFA}, {v(d,2)} offset:{jt*1024}", fill=FK, private=True))
    A([cvt(LPK + 8, LZ + 16), cvt(LPK + 9, LZ + 18), Op(f"ds_write_b64 v{vFA2}, {v(LPK+8,2)}", fill=FK, private=True)])
    A(Op(f"ds_read_b128 {v(LINC,4)}, v{vFB}", use=FK, private=True))
    A(Op(f"ds_read_b128 {v(LINC+4,4)}, v{vFB} offset:1024", use=FK, private=True))
    A(Op(f"ds_read_b128 {v(LINC+12,4)}, v{vFB2}", use=FK, private=True))
    A(f"buffer_store_dwordx4 {v(LINC,4)}, v{vOA}, {OUTR}, s{sOUT0} offen {P['out_mod']}")
    A(f"buffer_store_dwordx4 {v(LINC+4,4)}, v{vOB}, {OUTR}, s{sOUT0} offen {P['out_mod']}")
    A(f"buffer_store_dwordx4 {v(LINC+12,4)}, v{vOC}, {OUTR}, s{sOUT1} offen {P['out_mod']}")
    if P["dbg"] or P["x_seg"]: A("s_waitcnt vmcnt(0)"); A(stamp("lend", "l"))
    if P["x_seg"]:
        A(f"s_sub_u32 s10, s16, s14\ns_mul_i32 s10, s10, 8\ns_memrealtime s[14:15]\ns_waitcnt lgkmcnt(0)")
        A(f"L_amp:\ns_sleep 2\ns_memrealtime s[16:17]\ns_waitcnt lgkmcnt(0)\ns_sub_u32 s11, s16, s14\ns_cmp_lt_u32 s11, s10\ns_cbranch_scc1 L_amp")
    A(dump())
    if P["x_amp"]:
        A(f"s_waitcnt vmcnt(0)\ns_memrealtime s[{sST}:{sST+1}]\ns_waitcnt lgkmcnt(0)\ns_sub_u32 s10, s{sST}, s{sST+4}\ns_mul_i32 s10, s10, {P['x_amp']}")
        A(f"L_amp:\ns_sleep 2\ns_memrealtime s[{sST}:{sST+1}]\ns_waitcnt lgkmcnt(0)\ns_sub_u32 s11, s{sST}, s{sST+4}\ns_cmp_lt_u32 s11, s10\ns_cbranch_scc1 L_amp")
    A("L_end:\ns_endpgm")

    A = cs.add
    A("L_compute:")
    A(ids)
    A(f"v_lshlrev_b32 v{vL16}, 4, v0")
    if P["prio_c"]: A(f"s_setprio {P['prio_c']}")
    l16, g, r, c4 = t0, t1, t2, t3
    u0, u1 = ABUF, ABUF + 1
    A(f"""v_and_b32 v{l16}, 15, v0
        v_lshrrev_b32 v{g}, 4, v0
        v_bfe_u32 v{r}, v0, 2, 2
        v_and_b32 v{c4}, 3, v0
        v_and_b32 v{t5}, 1, v{g}
        v_lshl_or_b32 v{t4}, v{t5}, 2, v{r}
        s_and_b32 s10, s{sW}, 1
        s_lshl_b32 s11, s10, 2
        v_lshl_add_u32 v{u0}, v{g}, 3, v{r}
        v_lshlrev_b32 v{u0}, 8, v{u0}
        v_lshl_or_b32 v{u0}, v{c4}, 3, v{u0}
        v_xor_b32 v{u1}, s11, v{t4}
        v_lshl_or_b32 v{aW}, v{u1}, 5, v{u0}
        v_xor_b32 v{aW+1}, 32, v{aW}
        v_xor_b32 v{aW+2}, 64, v{aW}
        v_xor_b32 v{aW+3}, 0x60, v{aW}
        v_lshrrev_b32 v{u1}, 1, v{l16}
        v_xor_b32 v{u1}, v{u1}, v{g}
        v_lshlrev_b32 v{u1}, 4, v{u1}
        v_lshl_or_b32 v{u1}, v{l16}, 7, v{u1}
        s_lshr_b32 s11, s{sW}, 1
        s_lshl_b32 s30, s11, 13
        s_add_u32 s{sT0}, s30, {XB}
        v_add_u32 v{aX}, s{sT0}, v{u1}
        v_xor_b32 v{aX+1}, 64, v{aX}
        s_lshl_b32 s10, s10, 11
        s_add_u32 s10, s10, s30
        s_add_u32 s10, s10, {PB}
        v_add_u32 v{vPW}, s10, v{vL16}
        s_add_u32 s10, s{sM4}, {PB}
        v_add_u32 v{vPR}, s10, v{vL16}
        v_add_u32 v{vZ}, s{sM4}, v{vL16}
        v_lshrrev_b32 v{u0}, 1, v{g}
        v_xor_b32 v{u0}, v{u0}, v{l16}
        v_lshlrev_b32 v{u0}, 4, v{u0}
        v_lshl_or_b32 v{u0}, v{t5}, 3, v{u0}
        v_lshl_or_b32 v{u0}, v{l16}, 8, v{u0}
        s_lshl_b32 s10, s{sM4}, 2
        s_add_u32 s10, s10, {KB}
        v_add_u32 v{u0}, s10, v{u0}
        v_mov_b32 v{kR}, v{u0}
        s_load_dwordx2 s[{SRD_DBG}:{SRD_DBG+1}], s[0:1], 88
        s_load_dwordx2 s[{SRD_WS}:{SRD_WS+1}], s[0:1], 96""")
    for q in range(1, 8): A(f"v_xor_b32 v{kR+q}, {32*q}, v{kR}")
    late_c = ops(f"""v_lshrrev_b32 v{t3}, 2, v0
        v_bfe_u32 v{t4}, v0, 3, 2
        v_lshlrev_b32 v{t4}, 5, v{t4}
        v_and_b32 v{t5}, 3, v0
        v_lshl_or_b32 v{t4}, v{t5}, 3, v{t4}
        v_lshl_or_b32 v{t4}, v{t3}, 7, v{t4}
        v_add_u32 v{aV}, s{sM4}, v{t4}
        v_xor_b32 v{aV+1}, 32, v{aV}
        v_xor_b32 v{aV+2}, 64, v{aV}
        v_xor_b32 v{aV+3}, 0x60, v{aV}
        v_mul_u32_u24 v{t3}, 320, v{t3}
        v_lshl_add_u32 v{t3}, v{t5}, 3, v{t3}
        v_add_u32 v{t3}, {WOB}, v{t3}
        v_bfe_u32 v{t5}, v0, 4, 1
        v_lshlrev_b32 v{t5}, 5, v{t5}
        v_add_u32 v{aWo}, v{t3}, v{t5}
        v_sub_u32 v{aWo+1}, v{t3}, v{t5}
        v_add_u32 v{aWo+2}, 61440, v{aWo}
        v_add_u32 v{aWo+3}, 61440, v{aWo+1}""")
    A(f"""s_mov_b32 s{sC}, {f2u(SCALE_LOG2E)}
        s_mov_b32 s{sC+1}, {f2u(SCALE_LOG2E)}
        s_waitcnt lgkmcnt(0)""")
    A(exchange_setup())
    cbar = lambda: [Op("WAITL"), BAR()]
    vNAN, vZERO = aWo, aV
    A(mksrd(SRD_DBG, 26, 256))
    A(f"""s_lshl_b32 s10, s{sW}, 3
        s_add_u32 s{sHS}, s{sJ}, s10
        s_lshr_b32 s{sT1}, s{sG}, 2
        s_lshl_b32 s{sT1}, s{sT1}, 4
        s_add_u32 s{sT0}, s{sPS}, 65536
        v_mov_b32 v{t2}, {OOB}
        v_cmp_gt_u32 vcc, 24, v0
        v_mov_b32 v{vNAN-1}, -1
        v_mov_b32 v{vNAN}, -1
        v_cndmask_b32 v{t3}, v{t2}, v{vL16}, vcc
        v_mov_b32 v{vNAN+1}, -1
        v_mov_b32 v{vNAN+2}, -1
        v_mov_b32 v{vZERO-1}, 0
        v_mov_b32 v{vZERO}, 0
        v_mov_b32 v{vZERO+1}, 0
        v_mov_b32 v{vZERO+2}, 0""")
    clears = [Op(f"buffer_store_dwordx4 {v(vNAN-1,4)}, v{vL16}, {WSR}, s{so} offen offset:{off} sc1", group="clr") for so in (sPS, sT0) for off in (0, 1024)]
    clears.append(Op(f"buffer_store_dwordx4 {v(vZERO-1,4)}, v{t3}, {WSR}, s{sFLM} offen sc1", group="clr"))

    def rdA1(t, i):
        s = t % 4; buf = ABUF + 8 * ((4 * t + i) % 3)
        return [Op(f"ds_read_b64_tr_b16 {v(buf+4*ss+2*h,2)}, v{aW+i} offset:{s*16384 + ss*8192 + h*1024}", use=[(f"S{s}", t)]) for ss in range(2) for h in range(2)]
    def rdB(kc):
        return [Op(f"ds_read_b128 {v(BB+32*(kc%2)+8*jt+4*ss,4)}, v{aX+ss} offset:{(kc%2)*16384 + jt*2048}", use=[(f"X{kc%2}", kc)]) for jt in range(4) for ss in range(2)]
    if P["clr"][0] < 0: A(clears)
    A(BAR())
    A(stamp("start"))
    b0 = rdB(0); a0 = rdA1(0, 0)
    A(a0[:2] + b0[:1] + a0[2:] + b0[1:] + rdA1(0, 1))
    T = Ticks()
    for t in range(20):
        kc, dh = t // 2, t % 2
        for i in range(4):
            buf = ABUF + 8 * ((4 * t + i) % 3)
            for jt, ss in ([(a_, b_) for a_ in range(4) for b_ in range(2)] if P["chain"] else [(a_, b_) for b_ in range(2) for a_ in range(4)]):
                if True:
                    d = ACC + 16 * (4 * dh + i) + 4 * jt
                    T.add(mfma(d, v(buf + 4 * ss, 4), v(BB + 32 * (kc % 2) + 8 * jt + 4 * ss, 4), "0" if (kc == 0 and ss == 0) else None))
                    if jt == 0 and ss == 0: T.m[-1].meta["also"] = range(buf, buf + 8)
    for t in range(20):
        b = 32 * t
        if P["p1"] == 0:
            for q, o in enumerate(rdA1(t, 2)): T.put(b + q, o, 2)
            for q, o in enumerate(rdA1(t, 3)): T.put(b + 8 + q, o, 2)
        elif P["p1"] == 1:
            for q, o in enumerate(rdA1(t, 2)): T.put(b + 2 * q, o, 2)
            for q, o in enumerate(rdA1(t, 3)): T.put(b + 8 + q, o, 2)
        T.put(b + BP, cbar(), 1)
        if t < 19:
            for q, o in enumerate(rdA1(t + 1, 0)): T.put(b + BP + q, o, 2)
            for q, o in enumerate(rdA1(t + 1, 1)): T.put(b + 24 + (q if t % 2 or P["p1"] == 0 else 2 * q), o, 2)
            if t % 2 == 1:
                for pos, o in zip([min(BP + 4, 23), min(BP + 5, 23), min(BP + 6, 23), 28, 29, 30, 31, 32], rdB((t + 1) // 2)): T.put(b + pos, o, 3)
        T.put(b + 31, stamp(f"w{t}"), 9)
    def qreg(sd, j4): return ACC + 32 * sd + 4 * j4
    def pack(d, e): return [cvt(d, d), cvt(d + 1, d + 2), cvt(d + 2, e), cvt(d + 3, e + 2)]
    def qcvt(sd, j4): return pack(qreg(sd, j4), qreg(sd, j4) + 16)
    def krd(b): return [Op(f"ds_read_b64 {v(BB+32*b+16*kt+4*sd+2*h,2)}, v{kR+2*sd+h} offset:{b*8192 + kt*4096}", use=[("K", 100), ("Kp", 100)]) for sd in range(4) for kt in range(2) for h in range(2)]
    b18, b19 = 32 * 18, 32 * 19
    c0, c1 = P["clr"]; assert c1 < P["hs0"] - 1
    if any("C" in pcs for pcs, xc in P["clx"]): pass
    elif c0 < 0: pre_clears = clears
    else: T.spread(clears, 32 * c0 + 4, 32 * c1 + 4, 6)
    T.put(32 * (P["hs0"] - 1) + BP, Op("WAITG", group="clr"), 0.5)
    for q in range(4):
        T.put(32 * (P["hs0"] + q) + 5, [Op(f"s_cmp_lg_u32 s{sHS}, {q}"), Op(f"s_cbranch_scc1 L_hs{q}"),
              Op(f"buffer_atomic_add v{vONE}, v{vFL0}, {DBGR}, s{sT1} offen sc1", uncounted=True), Op(f"L_hs{q}:")], 7)
    T.put(32 * 16 + 5, [Op(f"s_cmp_lg_u32 s{sW}, 0"), Op("s_cbranch_scc1 L_hsl"),
          Op(f"buffer_load_dword v{t2}, v{vFL0}, {DBGR}, s{sT1} offen sc1", uncounted=True), Op("L_hsl:")], 7)
    T.put(b19 + BP, [Op(f"s_cmp_lg_u32 s{sW}, 0"), Op("s_cbranch_scc1 L_hsc"), Op("s_waitcnt vmcnt(0)", cond=True, raw=True),
          Op(f"v_readfirstlane_b32 s{sT3}, v{t2}", cond=True), Op("s_nop 1", cond=True), Op(f"s_cmp_lt_u32 s{sT3}, 16", cond=True, nohaz=True),
          Op("s_cbranch_scc1 L_hs_spin", cond=True), Op("L_hsc:")], 0.5)
    tail.extend(["L_hs_spin:", f"s_mov_b32 s{sSPIN}, 0", "L_hs_spin1:",
         f"buffer_load_dword v{t2}, v{vFL0}, {DBGR}, s{sT1} offen sc1", "s_waitcnt vmcnt(0)",
         f"v_readfirstlane_b32 s{sT3}, v{t2}", f"s_add_u32 s{sSPIN}, s{sSPIN}, 1", f"s_cmp_gt_u32 s{sSPIN}, 400000", "s_cbranch_scc1 L_hsc",
         f"s_cmp_lt_u32 s{sT3}, 16", "s_cbranch_scc1 L_hs_spin1", "s_branch L_hsc"])
    T.spread(late_c, 32 * 14, 32 * 14 + 15, 4)
    T.spread(krd(0), b18 + 4, b18 + 15, 4)
    T.spread([o for j4 in range(4) for o in qcvt(0, j4)], b18 + 20, b18 + 31, 5)
    T.spread([o for j4 in range(4) for o in qcvt(1, j4)], b19 + 4, b19 + 16, 5)
    T.spread([o for j4 in range(4) for o in qcvt(2, j4)], b19 + 20, b19 + 31, 5)
    T.flush(cs)
    A(stamp("g1"))

    def sreg(b, jt, kt): return ACC + 16 + 32 * b + 8 * jt + 4 * kt
    def softmax(b):
        tmp = ACC + 80 + 8 * b; pf = PF + 8 * b; L = []
        cols = [(sreg(b, c, 0), tmp + 4 * c) for c in range(2)]
        def both(f):
            for x, y in zip(f(*cols[0]), f(*cols[1])): L.extend([Op(x), Op(y)])
        (s0, m0_), (s1, m1_) = cols
        def across(op):
            L.extend(ops(f"""v_permlane32_swap_b32 v{m0_}, v{m1_}
                {op} v{m0_}, v{m0_}, v{m1_}
                v_mov_b32 v{m1_}, v{m0_}
                v_permlane16_swap_b32 v{m0_}, v{m1_}
                {op} v{m0_}, v{m0_}, v{m1_}"""))
        def spread_back(): L.extend(ops(f"v_mov_b32 v{m1_}, v{m0_}\nv_permlane32_swap_b32 v{m0_}, v{m1_}"))
        both(lambda s, m: [f"v_max3_f32 v{m}, v{s}, v{s+1}, v{s+2}", f"v_max3_f32 v{m+1}, v{s+3}, v{s+4}, v{s+5}",
                           f"v_max3_f32 v{m}, v{m}, v{s+6}, v{s+7}", f"v_max_f32 v{m}, v{m}, v{m+1}"])
        across("v_max_f32"); L.append(Op(f"v_mul_f32 v{m0_}, s{sC}, v{m0_}")); spread_back()
        both(lambda s, m: [f"v_pk_fma_f32 v[{s+q}:{s+q+1}], v[{s+q}:{s+q+1}], s[{sC}:{sC+1}], v[{m}:{m+1}] op_sel_hi:[1,1,0] neg_lo:[0,0,1] neg_hi:[0,0,1]" for q in range(0, 8, 2)])
        both(lambda s, m: [f"v_exp_f32 v{s+q}, v{s+q}" for q in range(8)])
        both(lambda s, m: [f"v_pk_add_f32 v[{m}:{m+1}], v[{s}:{s+1}], v[{s+2}:{s+3}]", f"v_pk_add_f32 v[{m+2}:{m+3}], v[{s+4}:{s+5}], v[{s+6}:{s+7}]",
                           f"v_pk_add_f32 v[{m}:{m+1}], v[{m}:{m+1}], v[{m+2}:{m+3}]", f"v_add_f32 v{m}, v{m}, v{m+1}"])
        across("v_add_f32"); L.append(Op(f"v_rcp_f32 v{m0_}, v{m0_}")); spread_back()
        both(lambda s, m: [f"v_pk_mul_f32 v[{s+q}:{s+q+1}], v[{s+q}:{s+q+1}], v[{m}:{m+1}] op_sel_hi:[1,0]" for q in range(0, 8, 2)])
        if b: L.append(Op(f"s_add_u32 s{sPS}, s{sPS}, 65536"))
        for c in range(2):
            for q in range(4): L.append(cvt(pf + 4 * c + q, cols[c][0] + 2 * q))
            L.append(Op(f"buffer_store_dwordx4 {v(pf+4*c,4)}, v{vL16}, {WSR}, s{sPS} offen offset:{1024*c} sc1"))
            L.append(Op(f"ds_write_b128 v{vPW}, {v(pf+4*c,4)} offset:{b*4096 + c*1024}", fill=[("P", 300), ("Kp", 300)]))
        return L
    T = Ticks()
    for b in range(2):
        for sd in range(4):
            for kt in range(2):
                for jt in range(2):
                    T.add(mfma(sreg(b, jt, kt), v(BB + 32 * b + 16 * kt + 4 * sd, 4), v(qreg(sd, 2 * b + jt), 4), "0" if sd == 0 else None))
    T.spread(krd(1), 0, 5, 2)
    T.spread([o for j4 in range(2) for o in qcvt(3, j4)], 1, 6, 3)
    T.spread([o for j4 in range(2, 4) for o in qcvt(3, j4)], 7, 12, 3)
    T.put(P["bk"], cbar(), 1)
    sm0 = softmax(0); sm1 = softmax(1)
    n0 = P['sm_in']; T.spread(sm0[:n0], 20, 31, 5)
    T.flush(cs)
    A(stamp("qk"))
    if P["smix"]:
        a_, b_ = sm0[n0:], sm1
        k_ = [i for i, o in enumerate(b_) if o.text.startswith("s_add_u32")][0]
        mix = a_[:4]; i_, j_ = 4, 0
        while i_ < len(a_) or j_ < len(b_):
            if j_ < len(b_) and (j_ < k_ or i_ >= len(a_)): mix.append(b_[j_]); j_ += 1
            if i_ < len(a_): mix.append(a_[i_]); i_ += 1
        A(mix)
    else: A(sm0[n0:]); A(stamp("sm0")); A(sm1)
    A(stamp("att"))

    def rdP(gen): return [Op(f"ds_read_b128 {v(PRB[0][2*hd+jt],4)}, v{vPR} offset:{hd*2048 + jt*1024}", use=[("P", gen)]) for hd in range(2) for jt in range(2)]
    def ldP(dj):
        return ops(f"s_add_u32 s{sT2}, s{sJ}, {P['po'][dj]}\ns_and_b32 s{sT2}, s{sT2}, 3\ns_lshl_b32 s{sT2}, s{sT2}, 12\ns_add_u32 s{sT2}, s{sT2}, s{sPL}") + \
            [Op(f"buffer_load_dwordx4 {v(PRB[dj%2][q],4)}, v{vL16}, {WSR}, s{sT2} offen offset:{1024*q} sc1") for q in range(4)]
    def rdV(s): return [Op(f"ds_read_b64_tr_b16 {v(VF+4*i+2*h,2)}, v{aV+i} offset:{(s%4)*16384 + h*2048}", use=[(f"S{s%4}", 200 + s)], private=True) for i in range(4) for h in range(2)]
    def pvreg(s, i, jt):
        if s < NS + 1 or NF == 1: return PVB[s % 2] + 8 * i + 4 * jt
        return fin_regs[s][2 * i + jt]
    e0, e1 = PVB[NS % 2], PVB[(NS + 1) % 2]
    fin_regs = {NS + 1: [e1 + 4 * q for q in range(8)],
                NS + 2: [e0 + 8, e0 + 12, PRB[0][0], PRB[0][1], e0 + 24, e0 + 28, PRB[0][2], PRB[0][3]],
                NS + 3: [e1 + 8, e1 + 12, 56, 60, e1 + 24, e1 + 28, 10, t1]}
    def pvm(s): return [mfma(pvreg(s, i, jt), v(VF + 4 * i, 4), v(PRB[(s // 4) % 2][2 * ((s // 2) % 2) + jt], 4), "0") for i in range(4) for jt in range(2)]
    _pvm = pvm
    def pvm(s):
        L = _pvm(s); L[0].meta["also"] = range(VF, VF + 8); L[4].meta["also"] = range(VF + 8, VF + 16)
        return L
    def pvc(s): return [o for ss in range(2) for jt in range(2) for o in pack(pvreg(s, 2 * ss, jt), pvreg(s, 2 * ss + 1, jt))]
    nA = [0]
    def rdA2(s, t):
        k = s % 4; buf = A2 + 8 * (nA[0] % 4); nA[0] += 1
        ad = aWo + (t % 2) + (2 if k == 3 else 0); base = 0 if k == 3 else k * 20480
        return buf, [Op(f"ds_read_b64_tr_b16 {v(buf+4*ss+2*h,2)}, v{ad} offset:{base + ss*10240 + h*5120 + t*32}", use=[(f"Wo{k}", 200 + s)]) for ss in range(2) for h in range(2)]
    def owo(s, t, buf):
        L = [mfma(OUTA + 8 * t + 4 * jt, v(buf + 4 * ss, 4), v(pvreg(s, 2 * ss, jt), 4), "0" if (s == 0 and ss == 0) else None) for jt in range(2) for ss in range(2)]
        L[0].meta["also"] = range(buf, buf + 8)
        return L
    steps = [(s, t) for s in range(NS) for t in range(10)]
    order = [8, 9, 0, 1, 2, 3, 4, 5, 6, 7]
    steps += [(s, t) for s in range(NS, 16) for t in order[:2]] + [(s, t) for t in order[2:] for s in range(NS, 16)]
    rd = [rdA2(s, t) for s, t in steps]
    A(cbar())
    A(stamp("bp"))
    p0 = rdP(300)
    A(p0[:2] + rdV(0) + p0[2:] + rd[0][1])
    A(pvm(0)); A(rd[1][1] + rd[2][1]); A(pvc(0))
    T = Ticks(); at = []; pvat = {}
    for n, (s, t) in enumerate(steps):
        if (s < NS and t == P['pvt']) or (NS <= s < 15 and t == 8):
            pvat[s + 1] = len(T.m)
            for o in pvm(s + 1): T.add(o)
        at.append(len(T.m))
        for o in owo(s, t, rd[n][0]): T.add(o)
    fin0 = pvat[NS + 1]; BX = fin0 - 4
    BM = at[steps.index((13, 8))]
    BL2 = at[steps.index((15, 8)) - P["bl2"]] if NF >= 3 else BX
    for n in range(3, len(steps)):
        base = at[n - 3]
        if P["smooth"] and n < 10 * NS and steps[n][1] in (P["pvt"] + 2, P["pvt"] + 3): base = pvat[steps[n][0] + 1] + 4 * (steps[n][1] - P["pvt"] - 2)
        if steps[n][0] > NS: base = max(base, BX)
        if steps[n][0] == 14 and NF == 4: base = max(base, BM)
        if steps[n][0] == 15: base = max(base, BL2)
        for q, o in enumerate(rd[n][1]): T.put(base + q, o, 2)
    for s in range(NS):
        b = at[10 * s]
        T.put(b + BP2, BAR(), 1)
        if P["smooth"]:
            T.spread(rdV(s + 1), b + BP2, b + BP2 + 7, 1.5)
            c_ = pvc(s + 1); e_ = pvat[s + 1] + 7; T.spread(c_[:8], e_, e_ + 3, 4); T.spread(c_[8:], e_ + 4, min(e_ + 13, b + 46), 4)
        else:
            T.spread(rdV(s + 1), b + BP2, b + BP2 + 3, 1.5)
            T.spread(pvc(s + 1), b + 35, b + 46, 4)
        T.put(b + 47, stamp(f"o{s}"), 9)
    T.put(BX, BAR(), 1)
    if NF == 4: T.put(BM, BAR(), 1)
    if NF >= 3: T.put(BL2, BAR(), 1)
    for s2 in range(NS + 1, 16):
        T.spread(rdV(s2), pvat[s2] - 8, pvat[s2] - 5, 1.6)
        T.spread(pvc(s2), pvat[s2] + 9, pvat[s2] + (15 if s2 == 15 or not P['fsm'] else 22), 1.7)
    for dj in range(1, 4):
        ps, pt = P["pld"][dj - 1]; L = ldP(dj)
        if dj > 1 and P["pwide"]: T.spread(L, pvat[ps + 1], pvat[ps + 1] + 7, 6)
        else: T.spread([L[:5], L[5], L[6], L[7]], at[10 * ps] + pt, at[10 * ps] + pt + 6, 6)
        chk = arrived([r_ + e for r_ in PRB[dj % 2] for e in range(4)], ldP(dj), t0)
        b = at[10 * (4 * dj - 1)] + P["pchk"]
        if dj > 1 and P["pwide"]:
            b = pvat[4 * dj - 1] + 7
            T.spread(chk[:-4], b - 7, b - 1, 6); T.put(b, chk[-4:-3], 6); T.put(b + 1, chk[-2:], 1)
        else:
            T.spread(chk[:-4], b - 4, b - 1, 6); T.put(b, chk[-4:] + stamp(f"pc{dj}"), 6)
    end = len(T.m); flags = []
    def done(t): return at[steps.index((15, t))] + 3
    T.put(BX - 1, stamp("bx0"), 9); T.put(BX, stamp("bx1"), 1.1); T.put(BL2 - 1, stamp("bl0"), 9); T.put(BL2, stamp("bl1"), 1.1)
    for t_ in (9, 1, 3, 5): T.put(done(t_), stamp(f"f{t_}"), 9)
    L = []
    for m in range(4):
        L += [cvt(PK + 2 * m, OUTA + 64 + 4 * m), cvt(PK + 2 * m + 1, OUTA + 64 + 4 * m + 2),
              [Op(f"s_add_u32 s{sT2}, s{sRS}, {m*65536 + 2048}")] + ([Op(f"s_cmp_eq_u32 s{sQ}, {m}"), Op(f"s_cselect_b32 s{sT2}, {OOB}, s{sT2}")] if P["ownlds"] else []) + [Op(f"buffer_store_dwordx2 {v(PK+2*m,2)}, v{vL8}, {WSR}, s{sT2} offen sc1", group=("R", -1))]]
    T.spread(L, done(9) + 3, done(9) + 8 * NF - 2, 4)
    for k in range(3):
        L = []; pk = SPARE if k % 2 == 0 else PK
        dest = f"s_add_u32 s{{0}}, s{sQ}, {k+1}\ns_and_b32 s{{0}}, s{{0}}, 3"
        for nt in range(2):
            for jt in range(2):
                z = OUTA + 8 * (2 * k + nt) + 4 * jt
                L += [cvt(pk + 4 * nt + 2 * jt, z), cvt(pk + 4 * nt + 2 * jt + 1, z + 2)]
            it = ops(dest.format(sT2) + f"\ns_lshl_b32 s{sT2}, s{sT2}, 16\ns_add_u32 s{sT3}, s{sT2}, s{sRS}") if nt == 0 else []
            L.append(it + [Op(f"buffer_store_dwordx4 {v(pk+4*nt,4)}, v{vL16}, {WSR}, s{sT3} offen offset:{1024*nt} sc1", group=("R", k))])
        T.spread(L[:5], done(2 * k) + 3, done(2 * k) + 2 * NF + 1, 4); T.spread(L[5:], done(2 * k + 1) + 3, done(2 * k + 1) + 2 * NF + 1, 4)
        fl = [Op("WAITG", group=("R", k))] + ops(dest.format(sT2) + f"\ns_lshl_b32 s{sT2}, s{sT2}, 11\ns_add_u32 s{sT2}, s{sT2}, s{sFLD}")
        fl.append(Op(f"buffer_store_dword v{vONE}, v{vFL0}, {WSR}, s{sT2} offen offset:{k*128} sc1"))
        tf = done(2 * k + 1) + 2 * NF + 1 + P["cover"]
        if tf < end: T.put(tf, fl, 6)
        else: flags.append(fl)
    if P["ownlds"]:
        T.spread([Op(f"ds_write_b128 v{vZ}, {v(OUTA+64+4*m,4)} offset:{32768 + m*1024}", fill=[("S2", 290)], wpriv=True) for m in range(4)], end - 12, end - 1, 4)
    if P["early"] >= 2: T.put(min(done(5) + P["bt1"], end - 1), BAR(), 8)
    T.flush(cs)
    A(stamp("g2"))
    zw = [Op(f"ds_write_b128 v{vZ}, {v(OUTA+48+4*q,4)} offset:{q*1024}", fill=[("S0", 290)], wpriv=True) for q in range(4)]
    A(flags[:-1]); A(zw); A(flags[-1:])
    A(cbar())
    A(stamp("end"))
    A(dump())
    A("s_endpgm")

    sc, sl = {}, {}
    def drop(st, pred): st.ops = [o for o in st.ops if not pred(o)]
    import re
    def hot(L):
        for name, srd_ in (("v", SRD_V), ("o", SRD_WO), ("k", SRD_K), ("w", SRD_WQ), ("x", SRD_X)):
            if name in P["x_hot"]:
                L = [Op(re.sub(r"\], s\d+ offen", "], 0 offen", o.text), **o.meta) if (o.kind in ("dma", "vld") and f"s[{srd_}:" in o.text) else o for o in L]
        return L
    if P['x_nost']: drop(cs, lambda o: o.kind == 'vst' and isinstance(o.meta.get('group'), tuple))
    if "d" in P["x_drop"]: drop(ls, lambda o: o.kind == "dma" and o.meta["group"][1] >= 4)
    if "D" in P["x_drop"]: variants = [[o for o in V_ if not (o.kind == "dma" and o.meta["group"][0] == "W" and o.meta["group"][1] >= 4)] for V_ in variants]
    if "c" in P["x_drop"]: drop(cs, lambda o: o.mn == "v_cvt_pk_bf16_f32")
    if "r" in P["x_drop"]: drop(cs, lambda o: o.kind == "dsr" and "tr" in o.mn and "[9" not in o.text and int(o.text.split("offset:")[1]) % 64 == 32)
    clines = cs.finalize(sc); seg = []; nb = None
    for ph, V_ in enumerate(variants):
        lf = Stream(); lf.nocheck = True; lf.ops = hot(pro.ops + head + V_ + ls.ops)
        L = lf.finalize(sl); i0 = L.index(f"L_var{ph}:"); i1 = L.index("L_join:")
        seg.append((L[:i0], L[i0:i1], L[i1:]))
        assert seg[-1][0] == seg[0][0] and seg[-1][2] == seg[0][2]
        if not P['x_drop']: nb = check_handoffs([cs.events, lf.events]); assert nb[0] == nb[1], nb
    if P["align"]:
        import subprocess, tempfile
        src = '.amdgcn_target "amdgcn-amd-amdhsa--gfx950"\n.text\n' + "\n".join("s_nop 0" if "branch" in l else l for l in clines) + "\n"
        open("_al.s", "w").write(src)
        subprocess.run(["clang", "-x", "assembler", "-target", "amdgcn-amd-amdhsa", "-mcpu=gfx950", "-c", "_al.s", "-o", "_al.o"], check=True)
        dis = subprocess.run(["llvm-objdump", "-d", "--mcpu=gfx950", "_al.o"], capture_output=True, text=True).stdout
        sizes = [4 * len(l.split("//")[1].split(":")[1].split()) for l in dis.split("\n") if "//" in l and l.startswith("\t")]
        outl = [".p2align 3"]; pos = 0; k = 0
        for l in clines:
            if l.endswith(":"): outl.append(l); continue
            sz = sizes[k]; k += 1
            if pos % 8 and l.startswith("v_mfma") and P["align"] == 1: outl.append("s_nop 0"); pos += 4
            if P["align"] == 2 and k == 1: outl.append("s_nop 0"); pos += 4
            outl.append(l); pos += sz
        clines = outl
    lines = seg[0][0] + [l for x in seg for l in x[1]] + seg[0][2] + tail + clines
    a = Asm(); kernel_begin(a, KNAME)
    for l in lines: a(l)
    a("L_code_end:")
    body = a.text().replace("CODE_SPAN", f"L_code_end-{KNAME}-4").replace("CODE_BACK", f"L_pc-{KNAME}")
    write_file(path, ["; @launch grid=(256,1,1) block=(512,1,1) lds=163840"] + ["; " + l for l in NOTES.strip().split("\n")], body, [descriptor(KNAME, 256, 256)])
    return sc, sl, nb

if __name__ == "__main__":
    out = sys.argv[1] if len(sys.argv) > 1 else f"cdna_kernels/{NAME}.s"
    kw = {}
    for x in sys.argv[2:]:
        k, val = x.split("=", 1)
        try: val = eval(val)
        except Exception: pass
        kw[k] = val
    print(build(out, **kw))
```
